```python
import torch

def _softmax(x, axis=-1):
    return torch.softmax(x, dim=axis)
def _gelu(x):
    return torch.nn.functional.gelu(x, approximate="tanh")
def _silu(x):
    return torch.nn.functional.silu(x)
def _sigmoid(x):
    return torch.sigmoid(x)
def _layernorm(x, axis=-1, eps=1e-5):
    m = x.mean(dim=axis, keepdim=True)
    v = x.var(dim=axis, keepdim=True, unbiased=False)
    return (x - m) / torch.sqrt(v + eps)
def _scatter_add(tgt, idx, src, axis=0):
    return tgt.clone().index_add_(axis, idx, src)
def _segment_sum(src, seg, n):
    out = torch.zeros((n,) + src.shape[1:], dtype=src.dtype)
    return out.index_add_(0, seg, src)
def _pad(x, pw):
    flat = tuple(v for pair in reversed(pw) for v in pair)
    return torch.nn.functional.pad(x, flat)

kernel_name = 'sequential_preLN__ssm_conv_h3__glu_gated_glu__prompt'

def setup_inputs():

    _w = (lambda a: (lambda t: t.to(torch.bfloat16) if t.is_floating_point() else t)(torch.as_tensor(a)))
    def _A_setup():
        B, S, D = 1, 2048, 640
        ks = 4
        return {
            "q": _w((lambda *s: torch.randn(*s, dtype=torch.bfloat16) * 0.05)(B, S, D)),
            "k": _w((lambda *s: torch.randn(*s, dtype=torch.bfloat16) * 0.4)(B, S, D)),
            "v": _w((lambda *s: torch.randn(*s, dtype=torch.bfloat16) * 0.4)(B, S, D)),
            "shift_k": _w((lambda *s: torch.randn(*s, dtype=torch.bfloat16) * 0.4)(D, ks) * 0.5),
            "ssm_k": _w((lambda *s: torch.randn(*s, dtype=torch.bfloat16) * 0.4)(D, S) * (1.0 / S ** 0.5)),
            "ssm_D": _w((lambda *s: torch.randn(*s, dtype=torch.bfloat16) * 0.4)(D)),
        }
    _A_in = _A_setup()

    def _B_setup():
        B, S, D, F = 1, 2048, 640, 1728
        return {
            "x": _w((lambda *s: torch.randn(*s, dtype=torch.bfloat16) * 0.05)(B, S, D)),
            "w_gate": _w((lambda *s: torch.randn(*s, dtype=torch.bfloat16) * 0.05)(D, F)),
            "w_up": _w((lambda *s: torch.randn(*s, dtype=torch.bfloat16) * 0.05)(D, F)),
            "w_down": _w((lambda *s: torch.randn(*s, dtype=torch.bfloat16) * 0.05)(F, D)),
        }
    _B_in = _B_setup()

    return {
        "A_q": _A_in["q"],
        "A_k": _A_in["k"],
        "A_v": _A_in["v"],
        "A_shift_k": _A_in["shift_k"],
        "A_ssm_k": _A_in["ssm_k"],
        "A_ssm_D": _A_in["ssm_D"],
        "B_x": _B_in["x"],
        "B_w_gate": _B_in["w_gate"],
        "B_w_up": _B_in["w_up"],
        "B_w_down": _B_in["w_down"],
    }

def reference(A_q, A_k, A_v, A_shift_k, A_ssm_k, A_ssm_D, B_x, B_w_gate, B_w_up, B_w_down):
    def _A_ref(q, k, v, shift_k, ssm_k, ssm_D):
        B, S, D = q.shape
        ks = shift_k.shape[-1]
        k_pad = _pad(k, ((0, 0), (ks - 1, 0), (0, 0)))
        k_shift = torch.zeros_like(k)
        for t in range(ks):
            k_shift = k_shift + k_pad[:, t:t + S, :] * shift_k[:, ks - 1 - t][None, None, :]
        kv = k_shift * v
        L = 2 * S
        kv_pad = _pad(kv, ((0, 0), (0, S), (0, 0)))
        kf_pad = _pad(ssm_k, ((0, 0), (0, S)))
        kv_f = (lambda x, axes=(-2,-1): torch.fft.rfft2(x.float(), dim=axes))(kv_pad[:, None, :, :], axes=(1, 2))
        kf_f = (lambda x, axes=(-2,-1): torch.fft.rfft2(x.float(), dim=axes))(kf_pad[:, None, :], axes=(1, 2))
        kf_f = (lambda x, *d: x.permute(*d))(kf_f, 1, 2, 0)
        y_f = kv_f * kf_f[None, :, :, :]
        y = (lambda x, s, axes=(-2,-1): torch.fft.irfft2(x, s=s, dim=axes).to(torch.bfloat16))(y_f, (1, L), axes=(1, 2))[:, 0, :S, :]
        y = y + kv * ssm_D[None, None, :]
        return q * y

    def _B_ref(x, w_gate, w_up, w_down):
        g = torch.einsum("bsd,df->bsf", x, w_gate)
        u = torch.einsum("bsd,df->bsf", x, w_up)
        h = _sigmoid(g) * u
        return torch.einsum("bsf,fd->bsd", h, w_down)

    x = A_q
    h = x + _A_ref(_layernorm(x, axis=-1), A_k, A_v, A_shift_k, A_ssm_k, A_ssm_D)
    h2 = h + _B_ref(_layernorm(h, axis=-1), B_w_gate, B_w_up, B_w_down)
    return h2
```

```python
import re

REG_RE = re.compile(r'\b([vas])(?:(\d+)\b|\[(\d+):(\d+)\])')
TRANS = ('v_exp_f32', 'v_log_f32', 'v_rcp_f32', 'v_rsq_f32', 'v_sqrt_f32', 'v_sin_f32', 'v_cos_f32')


def regs_of(op):
    out = []
    for m in REG_RE.finditer(op):
        f = m.group(1)
        if m.group(2) is not None:
            out.append((f, int(m.group(2))))
        else:
            out.extend((f, i) for i in range(int(m.group(3)), int(m.group(4)) + 1))
    if re.search(r'\bvcc\b', op):
        out.append(('s', 'vcc'))
    if re.search(r'\bm0\b', op):
        out.append(('s', 'm0'))
    if re.search(r'\bexec\b', op):
        out.append(('s', 'exec'))
    return out


def vr(base, n=1, f='v'):
    return f'{f}{base}' if n == 1 else f'{f}[{base}:{base + n - 1}]'


def ar(base, n=1):
    return vr(base, n, 'a')


def sr(base, n=1):
    return vr(base, n, 's')


class Ins:
    __slots__ = ('text', 'mn', 'ops', 'kind', 'rd', 'wr', 'tag', 'passes', 'srcc', 'srcab', 'wide_store', 'data', 'cost')

    def __init__(self, text, tag=None):
        self.text = text
        self.tag = tag
        t = text.split(';')[0].strip()
        self.passes = 0
        self.srcc = set()
        self.srcab = set()
        self.wide_store = False
        self.data = set()
        self.rd = set()
        self.wr = set()
        self.cost = 4
        if t.endswith(':') or t.startswith('.') or not t:
            self.mn = t
            self.kind = 'label' if t.endswith(':') else 'dir'
            self.ops = []
            self.cost = 0
            return
        if t.startswith('@'):
            p = t.split()
            self.mn = p[0]
            self.ops = p[1:]
            self.kind = 'pseudo'
            self.cost = 4
            return
        p = t.split(None, 1)
        mn = self.mn = p[0]
        ops = self.ops = [o.strip() for o in p[1].split(',')] if len(p) > 1 else []
        R = [set(regs_of(o)) for o in ops]
        allr = set().union(*R) if R else set()
        rest = set().union(*R[1:]) if len(R) > 1 else set()
        if mn.startswith('v_mfma'):
            self.kind = 'mfma'
            self.wr = R[0]
            self.srcab = R[1] | R[2]
            self.srcc = R[3]
            self.rd = rest
            self.passes = 8 if '32x32x16' in mn else 4
            assert '32x32x16' in mn or '16x16x32' in mn
            self.cost = 8
        elif mn.startswith('v_'):
            base = mn.replace('_e32', '').replace('_e64', '').replace('_dpp', '').replace('_sdwa', '')
            self.kind = 'trans' if base in TRANS else ('dot' if base.startswith('v_dot') else 'valu')
            self.wr = set(R[0])
            self.rd = set(rest)
            if base.startswith('v_permlane') or base == 'v_swap_b32':
                self.wr = set(allr)
                self.rd = set(allr)
                self.cost = 8
            if base.startswith(('v_fmac', 'v_dot2c', 'v_writelane')) or 'dpp' in mn or 'row_' in t or 'quad_perm' in t:
                self.rd |= R[0]
            if base.startswith(('v_add_co', 'v_sub_co', 'v_addc_co')):
                self.wr |= R[1]
                self.rd = set().union(*R[2:])
            if base == 'v_nop':
                self.wr = set()
            if self.kind == 'trans':
                self.cost = 8
        elif mn.startswith('ds_'):
            self.kind = 'ds'
            if mn.startswith(('ds_read', 'ds_bpermute', 'ds_permute', 'ds_swizzle')):
                self.wr = R[0]
                self.rd = rest
            else:
                self.rd = allr
        elif mn.startswith(('buffer_', 'global_')):
            self.kind = 'vmem'
            islds = bool(re.search(r'\blds\b', t)) or 'load_lds' in mn
            if mn in ('buffer_wbl2', 'buffer_inv'):
                pass
            elif 'load' in mn and not islds:
                self.wr = R[0]
                self.rd = rest
            elif islds:
                self.rd = allr | {('s', 'm0')}
            else:
                self.rd = allr
                if mn.startswith('buffer_'):
                    self.data = R[0]
                else:
                    self.data = R[1]
                self.wide_store = mn.endswith(('x3', 'x4'))
        elif mn.startswith('s_'):
            if mn.startswith(('s_load', 's_memtime', 's_memrealtime', 's_buffer_load')):
                self.kind = 'smem'
                self.wr = R[0]
                self.rd = rest
            elif mn.startswith(('s_cbranch', 's_branch', 's_endpgm', 's_setpc', 's_swappc')):
                self.kind = 'branch'
                self.rd = allr
            elif mn in ('s_waitcnt', 's_barrier', 's_nop', 's_setprio', 's_sleep'):
                self.kind = 'ctl'
            elif mn.startswith(('s_cmp', 's_bitcmp')):
                self.kind = 'salu'
                self.rd = allr
            else:
                self.kind = 'salu'
                self.wr = set(R[0])
                self.rd = set(rest)
                if mn.startswith(('s_addk', 's_mulk')):
                    self.rd |= R[0]
                if 'saveexec' in mn:
                    self.wr.add(('s', 'exec'))
        else:
            raise ValueError('unknown instruction: ' + text)

    def states(self):
        if self.kind in ('label', 'dir', 'pseudo'):
            return 0
        if self.mn == 's_nop':
            return int(self.ops[0], 0) + 1
        return 1

    def isvalu(self):
        return self.kind in ('valu', 'trans', 'dot')


def _vec(regs):
    return {r for r in regs if r[0] in 'va'}


def _sca(regs):
    return {r for r in regs if r[0] == 's'}


def need_states(p, c):
    n = 0
    ctext = c.text
    if p.isvalu():
        pv = _vec(p.wr)
        ps = _sca(p.wr)
        if c.kind == 'mfma' and pv & c.rd:
            n = max(n, 2)
        if c.isvalu():
            if c.mn.startswith('v_permlane') and pv & c.rd:
                n = max(n, 2)
            if ('dpp' in c.mn or 'row_' in ctext or 'quad_perm' in ctext) and pv & c.rd:
                n = max(n, 2)
            if c.mn.startswith(('v_readlane', 'v_readfirstlane')) and pv & c.rd:
                n = max(n, 1)
            if ps & c.rd:
                n = max(n, 4 if c.mn.startswith(('v_readlane', 'v_writelane')) else 2)
            if p.kind == 'trans' and pv & c.rd:
                n = max(n, 1)
            if ('sdwa' in p.mn or 'op_sel' in p.text) and pv & (c.rd | c.wr):
                n = max(n, 1)
        if c.kind == 'vmem' and ps & c.rd:
            n = max(n, 5)
        if c.kind in ('salu', 'smem', 'branch') and ps & c.rd:
            n = max(n, 1)
        if p.kind == 'dot' and pv & (c.rd | c.wr):
            same = c.mn == p.mn
            if same:
                ab = set(regs_of(c.ops[1])) | set(regs_of(c.ops[2]))
                if pv & ab:
                    n = max(n, 3)
            elif c.kind != 'ctl':
                n = max(n, 3)
    if p.kind == 'mfma':
        big = p.passes == 8
        if c.kind == 'mfma':
            if p.wr & c.srcab:
                n = max(n, 12 if big else 8)
            if p.wr & c.srcc and not (p.wr == c.srcc and p.passes == c.passes):
                n = max(n, 10 if big else 6)
            if p.wr & c.wr and not (p.wr & c.srcc):
                n = max(n, 12 if big else 8)
        elif c.isvalu() or c.kind in ('ds', 'vmem'):
            if p.wr & (c.rd | c.wr):
                n = max(n, 12 if big else 8)
            if c.isvalu() and p.srcc & c.wr:
                n = max(n, 7 if big else 3)
    if p.kind == 'salu' and ('s', 'm0') in p.wr and c.kind in ('vmem', 'ds') and ('s', 'm0') in c.rd:
        n = max(n, 1)
    if p.kind == 'vmem' and p.wide_store and p.data & c.wr:
        n = max(n, 2)
    return n


class Code:
    def __init__(self):
        self.ins = []

    def __call__(self, text, tag=None):
        for line in text.split('\n'):
            line = line.strip()
            if line:
                self.ins.append(Ins(line, tag))
        return self

    def add(self, i):
        self.ins.append(i)

    def extend(self, other):
        self.ins.extend(other.ins if isinstance(other, Code) else other)


def finalize(ins, stats=None):
    out = []
    vm = []
    lg = []
    nwait = nnop = 0

    def emit(i):
        nonlocal nnop
        need = 0
        dist = 0
        for p in reversed(out):
            if p.kind == 'pseudo' and p.mn == '@hz':
                break
            k = need_states(p, i) - dist
            need = max(need, k)
            dist += p.states()
            if dist >= 20:
                break
        while need > 0:
            k = min(need, 16)
            out.append(Ins(f's_nop {k - 1}'))
            nnop += 1
            need -= k
        out.append(i)

    def do_wait(nv, nl):
        nonlocal nwait
        parts = []
        if nv is not None and nv < len(vm):
            nv = min(nv, 63)
            del vm[:len(vm) - nv]
            parts.append(f'vmcnt({nv})')
        if nl is not None and nl < len(lg):
            if any(o.kind == 'smem' for o in lg):
                nl = 0
            nl2 = min(nl, 15)
            del lg[:len(lg) - nl2]
            parts.append(f'lgkmcnt({nl2})')
        if parts:
            nwait += 1
            out.append(Ins('s_waitcnt ' + ' '.join(parts)))

    def youngest(q, pred):
        for k in range(len(q) - 1, -1, -1):
            if pred(q[k]):
                return len(q) - 1 - k
        return None

    left = {}
    for i in ins:
        if i.kind == 'pseudo' and i.mn == '@reset':
            pass
        if i.tag is not None and i.kind in ('vmem', 'ds'):
            left[i.tag] = left.get(i.tag, 0) + 1
    for i in ins:
        if i.tag is not None and i.kind in ('vmem', 'ds'):
            left[i.tag] -= 1
        if i.kind == 'pseudo':
            if i.mn in ('@vm', '@lg', '@vmlg'):
                for t in i.ops:
                    assert left.get(t) == 0, ('tag not fully issued before wait', t, left.get(t))
            if i.mn == '@vm':
                do_wait(youngest(vm, lambda o: o.tag == i.ops[0]), None)
            elif i.mn == '@lg':
                do_wait(None, youngest(lg, lambda o: o.tag == i.ops[0]))
            elif i.mn == '@vmlg':
                do_wait(youngest(vm, lambda o: o.tag == i.ops[0]), youngest(lg, lambda o: o.tag == i.ops[1]))
            elif i.mn == '@reset':
                vm.clear()
                lg.clear()
            else:
                raise ValueError(i.text)
            continue
        if i.kind in ('label', 'dir'):
            out.append(i)
            continue
        if i.mn == 's_waitcnt':
            m = re.search(r'vmcnt\((\d+)\)', i.text)
            if m and int(m.group(1)) < len(vm):
                del vm[:len(vm) - int(m.group(1))]
            m = re.search(r'lgkmcnt\((\d+)\)', i.text)
            if m and int(m.group(1)) < len(lg):
                del lg[:len(lg) - int(m.group(1))]
            out.append(i)
            continue
        touched = i.rd | i.wr
        nv = youngest(vm, lambda o: o.wr & (i.rd if i.kind == 'vmem' else touched))
        nl = youngest(lg, lambda o: o.wr & (i.rd if (i.kind == 'ds' and o.kind == 'ds') else touched))
        do_wait(nv, nl)
        emit(i)
        if i.kind == 'vmem':
            vm.append(i)
        elif i.kind in ('ds', 'smem'):
            lg.append(i)
    if stats is not None:
        stats['waits'] = nwait
        stats['nops'] = nnop
        stats['n'] = sum(1 for o in out if o.kind not in ('label', 'dir'))
    return out


def weave(mf, pre, bg, budget):
    out = []
    k = 0
    out.extend(pre.get(-1, []))
    debt = 0
    for idx, m in enumerate(mf):
        out.append(m)
        used = debt
        for i in pre.get(idx, []):
            out.append(i)
            used += i.cost
        while k < len(bg) and bg[k][0] <= idx and used + bg[k][1].cost <= budget:
            out.append(bg[k][1])
            used += bg[k][1].cost
            k += 1
        debt = 0
    while k < len(bg):
        out.append(bg[k][1])
        k += 1
    return out


def text_of(ins):
    lines = []
    for i in ins:
        if i.kind == 'label':
            lines.append(i.text)
        else:
            lines.append('    ' + i.text)
    return '\n'.join(lines)
```

```python
from asmlib import *

S, D, F = 2048, 640, 1728
NBYTES_SD = S * D * 2
U_OFF = 0
X4_OFF = U_OFF + NBYTES_SD
H4_OFF = X4_OFF + NBYTES_SD
ST_OFF = H4_OFF + NBYTES_SD
W1_OFF = ST_OFF + 65536
WD_OFF = W1_OFF + 16 * 288 * 1024
HH_OFF = WD_OFF + 8 * 56 * 5 * 1024
FL_OFF = HH_OFF + 128 * 57344
TS_OFF = FL_OFF + 262144
WS_USED = TS_OFF + 262144

A_Q, A_K, A_V, A_SH, A_SSMK, A_SSMD, B_X, B_WG, B_WU, B_WD, OUT, DBG, WS = [8 * i for i in range(13)]

WSR = 's[8:11]'
sWAVE = 's33'
sXCD, sSLOT = 's4', 's5'
sSG, sIDX = 's6', 's7'
ONES = 0x3f803f80

NB1 = 2
BLK_ORDER = [6, 0, 1, 2, 3, 4, 5]


def w1_seq(b, ks):
    bi = BLK_ORDER.index(b)
    if bi < NB1:
        return ks * NB1 + bi
    return NB1 * 41 + (bi - NB1) * 41 + ks


def srd(c, base, slot, nbytes):
    c(f's_load_dwordx2 s[{base}:{base + 1}], s[0:1], {slot}')
    c(f's_mov_b32 s{base + 2}, {nbytes}')
    c(f's_mov_b32 s{base + 3}, 0x20000')


def ids(c):
    c(f'v_lshrrev_b32 v1, 6, v0')
    c(f's_and_b32 {sXCD}, s2, 7')
    c(f'v_readfirstlane_b32 {sWAVE}, v1')
    c(f's_lshr_b32 {sSLOT}, s2, 3')
    c(f'v_and_b32 v0, 63, v0')


def conv_ids(c):
    c(f'''
    s_lshr_b32 {sSG}, {sXCD}, 2
    s_add_u32 {sSG}, {sSG}, 8
    s_and_b32 {sIDX}, {sXCD}, 3
    s_lshl_b32 {sIDX}, {sIDX}, 2
    s_add_u32 {sIDX}, {sIDX}, {sSLOT}
    s_sub_u32 {sIDX}, {sIDX}, 16
    s_cmp_lt_u32 {sSLOT}, 16
    s_cselect_b32 {sSG}, {sXCD}, {sSG}
    s_cselect_b32 {sIDX}, {sSLOT}, {sIDX}
    ''')


def p0_kv(c, KS, VS, SHS, st=''):
    KR, VR, CF, P, AC, VU, OG = 8, 30, 48, 56, 66, 74, 84
    c(f'''
    v_lshrrev_b32 v7, 4, v0
    v_and_b32 v6, 15, v0
    s_lshl_b32 s34, {sIDX}, 2
    s_add_u32 s34, s34, {sWAVE}
    s_mul_i32 s34, s34, {32 * 1280}
    s_lshl_b32 s35, {sSG}, 7
    s_add_u32 s34, s34, s35
    v_mul_u32_u24 v1, {8 * 1280}, v7
    v_lshl_add_u32 v1, v6, 3, v1
    v_add_u32 v1, s34, v1
    v_subrev_u32 v2, 3840, v1
    s_lshl_b32 s35, {sSG}, 9
    v_lshlrev_b32 v3, 5, v6
    s_movk_i32 s36, 5120
    ''')
    c(f'buffer_load_dwordx4 {vr(CF, 4)}, v3, {SHS}, s35 offen')
    c(f'buffer_load_dwordx4 {vr(CF + 4, 4)}, v3, {SHS}, s35 offen offset:16')
    for r in range(3):
        c(f'buffer_load_dwordx2 {vr(KR + 2 * r, 2)}, v2, {KS}, 0 offen offset:{1280 * r}')
    for r in range(8):
        c(f'buffer_load_dwordx2 {vr(KR + 6 + 2 * r, 2)}, v1, {KS}, {"s36" if r >= 4 else 0} offen offset:{1280 * (r & 3)}')
    for r in range(8):
        c(f'buffer_load_dwordx2 {vr(VR + 2 * r, 2)}, v1, {VS}, {"s36" if r >= 4 else 0} offen offset:{1280 * (r & 3)}')
    c(f'''
    s_lshl_b32 s35, {sWAVE}, 6
    v_mul_u32_u24 v4, 1040, v6
    v_lshl_add_u32 v4, v7, 4, v4
    v_add_u32 v4, s35, v4
    s_mul_i32 s35, {sWAVE}, {4 * 1040}
    v_lshlrev_b32 v3, 4, v0
    v_add_u32 v5, s35, v3
    s_lshl_b32 s34, {sSG}, 2
    s_add_u32 s34, s34, {sWAVE}
    s_lshl_b32 s34, s34, 16
    s_lshl_b32 s35, {sIDX}, 10
    s_add_u32 s34, s34, s35
    s_mov_b32 s40, 0x05040100
    s_mov_b32 s41, 0x07060302
    ''')
    if U_OFF:
        c(f's_add_u32 s34, s34, {U_OFF}')
    kr = lambda t, dw: KR + 2 * (t + 3) + dw
    for ch in range(4):
        dw, hf = ch >> 1, ch & 1
        for t in range(-2, 8):
            c(f'v_perm_b32 v{P + t + 2}, v{kr(t - 1, dw)}, v{kr(t, dw)}, s{40 + hf}')
        for t in range(8):
            c(f'v_dot2_f32_bf16 v{AC + t}, v{P + t + 2}, v{CF + 2 * ch}, 0')
        for t in range(8):
            c(f'v_dot2_f32_bf16 v{AC + t}, v{P + t}, v{CF + 2 * ch + 1}, v{AC + t}')
        for t in range(8):
            if hf:
                c(f'v_and_b32 v{VU + t}, 0xffff0000, v{VR + 2 * t + dw}')
            else:
                c(f'v_lshlrev_b32 v{VU + t}, 16, v{VR + 2 * t + dw}')
        for t in range(0, 8, 2):
            c(f'v_pk_mul_f32 {vr(AC + t, 2)}, {vr(AC + t, 2)}, {vr(VU + t, 2)}')
        for p in range(4):
            c(f'v_cvt_pk_bf16_f32 v{OG + 4 * ch + p}, v{AC + p}, v{AC + p + 4}')
        c(f'ds_write_b128 v4, {vr(OG + 4 * ch, 4)} offset:{256 * ch}')
    c('s_waitcnt lgkmcnt(0)')
    c('s_barrier')
    for i in range(4):
        c(f'ds_read_b128 {vr(OG + 4 * i, 4)}, v5 offset:{1040 * i}')
    for i in range(4):
        c(f'buffer_store_dwordx4 {vr(OG + 4 * i, 4)}, v3, {WSR}, s34 offen{st}', 'ust')
        if i < 3:
            c('s_add_u32 s34, s34, 16384')


def ln_finish(c, s1, s2, tmp):
    c(f'v_mul_f32 v{s1}, 0xbacccccd, v{s1}')
    c(f'v_mul_f32 v{s2}, 0x3acccccd, v{s2}')
    c(f'v_fma_f32 v{s2}, -v{s1}, v{s1}, v{s2}')
    c(f'v_max_f32 v{s2}, 0, v{s2}')
    c(f'v_add_f32 v{s2}, 0x3727c5ac, v{s2}')
    c(f'v_rsq_f32 v{tmp}, v{s2}')


def p0_x(c, XS, sBLK, st=''):
    XR, O = 8, 56
    c(f'''
    v_lshrrev_b32 v7, 4, v0
    v_and_b32 v6, 15, v0
    s_lshl_b32 s34, {sBLK}, 2
    s_add_u32 s34, s34, {sWAVE}
    s_mul_i32 s34, s34, {8 * 1280}
    s_add_u32 s35, s34, 5120
    v_mul_u32_u24 v1, 1280, v7
    v_lshl_add_u32 v1, v6, 4, v1
    ''')
    for i in range(2):
        for m in range(5):
            c(f'buffer_load_dwordx4 {vr(XR + 20 * i + 4 * m, 4)}, v1, {XS}, s{34 + i} offen offset:{256 * m}')
    c(f'''
    s_mul_i32 s36, {sWAVE}, {8 * 1296}
    v_mul_u32_u24 v2, 1296, v7
    v_lshl_add_u32 v2, v6, 4, v2
    v_add_u32 v2, s36, v2
    s_mul_i32 s36, {sWAVE}, 320
    v_mul_u32_u24 v3, 1296, v6
    v_lshl_add_u32 v3, v7, 3, v3
    v_add_u32 v3, s36, v3
    v_lshlrev_b32 v4, 4, v0
    s_mul_i32 s37, {sBLK}, 40960
    s_mul_i32 s36, {sWAVE}, 10240
    s_add_u32 s37, s37, s36
    s_add_u32 s37, s37, {X4_OFF}
    s_and_b32 s36, {sWAVE}, 1
    s_lshl_b32 s36, s36, 7
    s_lshr_b32 s38, {sWAVE}, 1
    s_lshl_b32 s38, s38, 3
    s_add_u32 s36, s36, s38
    s_lshl_b32 s38, {sBLK}, 8
    s_add_u32 s36, s36, s38
    s_add_u32 s36, s36, {ST_OFF}
    v_lshlrev_b32 v5, 4, v7
    s_mov_b32 s40, {ONES}
    ''')
    for i in range(2):
        for m in range(5):
            c(f'ds_write_b128 v2, {vr(XR + 20 * i + 4 * m, 4)} offset:{4 * 1296 * i + 256 * m}')
    A = 48
    for i in range(2):
        for r in range(20):
            x = XR + 20 * i + r
            c(f'v_dot2_f32_bf16 v{A + 2 * i}, v{x}, s40, {"0" if r == 0 else "v%d" % (A + 2 * i)}')
            c(f'v_dot2_f32_bf16 v{A + 2 * i + 1}, v{x}, v{x}, {"0" if r == 0 else "v%d" % (A + 2 * i + 1)}')
    c('s_waitcnt lgkmcnt(0)')
    c('s_barrier')
    for i in range(10):
        c(f'ds_read_b64 {vr(O + 4 * i, 2)}, v3 offset:{32 * i}')
        c(f'ds_read_b64 {vr(O + 4 * i + 2, 2)}, v3 offset:{32 * i + 16 * 1296}')
    for sh in (8, 4, 2, 1):
        for k in range(4):
            c(f'v_add_f32_dpp v{A + k}, v{A + k}, v{A + k} row_ror:{sh} row_mask:0xf bank_mask:0xf')
    for i in range(10):
        c(f'buffer_store_dwordx4 {vr(O + 4 * i, 4)}, v4, {WSR}, s37 offen offset:{1024 * (i & 3)}{st}', 'xst')
        if (i & 3) == 3:
            c('s_add_u32 s37, s37, 4096')
    for i in range(2):
        ln_finish(c, A + 2 * i, A + 2 * i + 1, 52 + 2 * i)
    for i in range(2):
        c(f'v_mul_f32 v{53 + 2 * i}, v{A + 2 * i}, v{52 + 2 * i}')
    c('s_mov_b32 exec_lo, 0x00010001')
    c('s_mov_b32 exec_hi, 0x00010001')
    for i in range(2):
        c(f'buffer_store_dwordx2 {vr(52 + 2 * i, 2)}, v5, {WSR}, s36 offen offset:{64 * i}{st}', 'xst')
    c('s_mov_b64 exec, -1')


KY0 = 256
UB0 = 17664
UBS = 10368
EB0 = UB0 + 4 * UBS
P1_LDS = EB0 + 4 * 2048
cA, cACC, cB, cXQ, cSQ, cT = 16, 80, 176, 208, 224, 240
NBUF = 8


def p1_k(c, KKS, DS):
    T = cACC
    c(f'''
    s_lshl_b32 s34, {sSG}, 4
    s_add_u32 s34, s34, {sIDX}
    s_lshl_b32 s35, s34, 2
    s_add_u32 s35, s35, {sWAVE}
    s_lshl_b32 s36, s35, 12
    s_lshl_b32 s35, s35, 1
    v_lshlrev_b32 v1, 4, v0
    v_mov_b32 v2, 0
    buffer_load_ushort v{T + 16}, v2, {DS}, s35 offen
    ''')
    for i in range(4):
        c(f'buffer_load_dwordx4 {vr(T + 4 * i, 4)}, v1, {KKS}, s36 offen offset:{1024 * i}')
    c(f'''
    s_mul_i32 s37, {sWAVE}, 4352
    s_and_b32 s38, {sWAVE}, 1
    s_lshl_b32 s38, s38, 5
    s_add_u32 s37, s37, s38
    s_lshr_b32 s38, {sWAVE}, 1
    s_lshl_b32 s38, s38, 7
    s_add_u32 s37, s37, s38
    s_add_u32 s37, s37, {KY0}
    s_mul_i32 s38, {sWAVE}, {UBS}
    s_add_u32 s38, s38, {UB0}
    s_lshl_b32 s39, {sWAVE}, 11
    s_add_u32 s39, s39, {EB0}
    v_lshrrev_b32 v7, 4, v0
    v_and_b32 v6, 15, v0
    v_bfe_u32 v8, v0, 2, 2
    v_and_b32 v9, 3, v0
    v_lshlrev_b32 v3, 2, v0
    v_add_u32 v10, s38, v3
    v_mov_b32 v3, 0
    v_mov_b32 v4, 0
    v_mov_b32 v5, 0
    ds_write2st64_b32 v10, v2, v2 offset0:0 offset1:5
    ds_write2st64_b32 v10, v2, v2 offset0:10 offset1:15
    v_add_u32 v11, 5248, v10
    ds_write2st64_b32 v11, v2, v2 offset0:0 offset1:5
    ds_write2st64_b32 v11, v2, v2 offset0:10 offset1:15
    v_add_u32 v12, s39, v1
    ds_write_b128 v12, v[2:5]
    s_sub_u32 s42, s37, 32
    v_add_u32 v13, s42, v1
    ds_write_b128 v13, v[2:5]
    v_add_u32 v10, 128, v10
    v_add_u32 v11, 136, v11
    ''')
    c(f'''
    v_lshlrev_b32 v{T + 16}, 16, v{T + 16}
    v_lshlrev_b32 v{T + 17}, 16, v{T}
    v_add_f32 v{T + 16}, v{T + 16}, v{T + 17}
    v_cvt_pk_bf16_f32 v{T + 16}, v{T + 16}, v{T + 16}
    s_mov_b32 s42, 0xffff
    s_mov_b64 exec, 1
    v_bfi_b32 v{T}, s42, v{T + 16}, v{T}
    s_mov_b64 exec, -1
    ''')
    for i in range(4):
        c(f'ds_write_b128 v13, {vr(T + 4 * i, 4)} offset:{32 + 1024 * i}')
    c(f'''
    v_sub_u32 v14, v9, v8
    v_lshlrev_b32 v14, 3, v14
    v_lshl_add_u32 v14, v7, 6, v14
    v_add_u32 v14, s37, v14
    ''')
    for n in range(16):
        c(f'ds_read_b64_tr_b16 {vr(cA + 4 * n, 2)}, v14 offset:{256 * n + 32}')
        c(f'ds_read_b64_tr_b16 {vr(cA + 4 * n + 2, 2)}, v14 offset:{256 * n}')
    c(f'''
    v_lshlrev_b32 v14, 1, v7
    v_sub_u32 v14, v6, v14
    v_lshlrev_b32 v14, 3, v14
    v_and_b32 v13, 1, v6
    v_mul_u32_u24 v13, 5256, v13
    v_sub_u32 v14, v14, v13
    s_add_u32 s42, s38, {5248 + 64}
    v_add_u32 v14, s42, v14
    v_add_u32 v13, 16, v0
    v_subrev_u32 v15, 47, v0
    v_cmp_gt_u32 vcc, 48, v0
    v_lshlrev_b32 v2, 5, v6
    v_lshl_add_u32 v2, v7, 3, v2
    v_cndmask_b32 v13, v15, v13, vcc
    v_add_u32 v15, 64, v13
    v_add_u32 v2, s37, v2
    v_writelane_b32 v13, 64, 63
    v_writelane_b32 v15, 0, 63
    v_lshlrev_b32 v13, 4, v13
    v_lshlrev_b32 v15, 4, v15
    v_add_u32 v13, s39, v13
    v_add_u32 v15, s39, v15
    v_mul_u32_u24 v3, 4352, v8
    v_and_b32 v4, 1, v8
    v_lshl_add_u32 v3, v4, 5, v3
    v_lshrrev_b32 v4, 1, v8
    v_lshl_add_u32 v3, v4, 7, v3
    v_lshl_add_u32 v3, v7, 6, v3
    v_lshl_add_u32 v3, v9, 3, v3
    s_lshl_b32 s42, {sWAVE}, 8
    s_add_u32 s42, s42, {KY0}
    v_add_u32 v3, s42, v3
    ''')
    c(f'''
    v_lshlrev_b32 v4, 4, v6
    v_mul_u32_u24 v5, 40960, v7
    v_add_u32 v5, v5, v4
    v_lshl_add_u32 v4, v7, 10, v4
    s_lshl_b32 s43, s34, 14
    s_lshl_b32 s42, {sWAVE}, 8
    s_add_u32 s43, s43, s42
    s_mul_i32 s44, {sWAVE}, 163840
    s_lshl_b32 s42, s34, 8
    s_add_u32 s44, s44, s42
    s_lshl_b32 s45, {sWAVE}, 10
    s_add_u32 s45, s45, {ST_OFF}
    ''')
    if U_OFF:
        c(f's_add_u32 s43, s43, {U_OFF}')


def p1_load_u(c, ld=''):
    T = cACC + 64
    for i in range(4):
        c(f'buffer_load_dwordx4 {vr(T + 4 * i, 4)}, v4, {WSR}, s43 offen{ld}')
        if i < 3:
            c('s_add_u32 s43, s43, 4096')


def p1_load_x(c, ld=''):
    for u in range(4):
        c(f's_add_u32 s42, s44, {X4_OFF + u * 655360}')
        c(f'buffer_load_dwordx4 {vr(cXQ + 4 * u, 4)}, v5, {WSR}, s42 offen{ld}')
        c(f'buffer_load_dwordx4 {vr(cSQ + 4 * u, 4)}, v1, {WSR}, s45 offen{ld}')
        if u < 3:
            c('s_add_u32 s45, s45, 4096')


def p1_main(c, st=''):
    T = cACC + 64
    for i in range(4):
        for a in ('v10', 'v11'):
            c(f'ds_write2st64_b32 {a}, v{T + 4 * i}, v{T + 4 * i + 1} offset0:{i} offset1:{5 + i}')
            c(f'ds_write2st64_b32 {a}, v{T + 4 * i + 2}, v{T + 4 * i + 3} offset0:{10 + i} offset1:{15 + i}')
    groups = [[0, 1, 2, 3], [4, 5], [6, 7]]
    accb = {0: 0, 1: 16, 2: 32, 3: 48, 4: 64, 5: 80, 6: 0, 7: 16}
    acc = lambda t, cp: cACC + accb[t] + 4 * cp
    frags = []
    mf = []
    first = []
    last_of_tile = {}
    for G in groups:
        for w in range(-1, 2 * G[-1] + 1):
            for cp in range(4):
                f = len(frags)
                frags.append((cp, w))
                first.append(len(mf))
                for t in G:
                    n = 2 * t - w
                    if n < 0:
                        continue
                    a = vr(acc(t, cp), 4)
                    mf.append(Ins(f'v_mfma_f32_16x16x32_bf16 {a}, {vr(cA + 4 * n, 4)}, {vr(cB + 4 * (f % NBUF), 4)}, {"0" if w == -1 else a}'))
                    last_of_tile[t] = len(mf) - 1
    first.append(len(mf))
    rd = lambda f: Ins(f'ds_read_b128 {vr(cB + 4 * (f % NBUF), 4)}, v14 offset:{64 * (frags[f][1] + 1) + 1280 * frags[f][0]}', f'b{f}')
    pre = {-1: [rd(f) for f in range(NBUF - 1)]}
    for f in range(NBUF - 1, len(frags)):
        pos = first[f - NBUF + 1] - 1 if f >= NBUF else -1
        pre.setdefault(pos, []).append(rd(f))
    for f in range(0, len(frags), 2):
        pre.setdefault(first[f] - 1, []).append(Ins(f'@lg b{f + 1}'))
    bg = []

    def B(pos, text, tag=None):
        bg.append((pos, Ins(text, tag)))

    def tile_epi(t):
        p = last_of_tile[t] + 4
        Y = [acc(t, cp) for cp in range(4)]
        B(p, f'v_add_f32 v{Y[3] + 1}, v{Y[3] + 1}, v{Y[1] + 3}')
        B(p, f'v_add_f32 v{Y[3] + 2}, v{Y[3] + 2}, v{Y[2] + 3}')
        B(p, f'v_add_f32 v{Y[3] + 1}, v{Y[3] + 1}, v{Y[2] + 2}')
        B(p, f'ds_write_b128 {"v15" if t & 1 else "v13"}, {vr(Y[3], 4)}')
        B(p, f'ds_read_b128 {vr(cT, 4)}, v12 offset:{1024 * (t & 1)}')
        B(p, f'v_add_f32 v{Y[0] + 1}, v{Y[0] + 1}, v{Y[1]}')
        B(p, f'v_add_f32 v{Y[0] + 2}, v{Y[0] + 2}, v{Y[1] + 1}')
        B(p, f'v_add_f32 v{Y[0] + 3}, v{Y[0] + 3}, v{Y[1] + 2}')
        B(p, f'v_add_f32 v{Y[0] + 2}, v{Y[0] + 2}, v{Y[2]}')
        B(p, f'v_add_f32 v{Y[0] + 3}, v{Y[0] + 3}, v{Y[2] + 1}')
        B(p, f'v_add_f32 v{Y[0] + 3}, v{Y[0] + 3}, v{Y[3]}')
        B(p + 6, f'v_add_f32 v{Y[0]}, v{Y[0]}, v{cT + 1}')
        B(p, f'v_add_f32 v{Y[0] + 1}, v{Y[0] + 1}, v{cT + 2}')
        B(p, f'v_add_f32 v{Y[0] + 2}, v{Y[0] + 2}, v{cT + 3}')
        B(p, f'v_cvt_pk_bf16_f32 v{Y[0]}, v{Y[0]}, v{Y[0] + 1}')
        B(p, f'v_cvt_pk_bf16_f32 v{Y[0] + 1}, v{Y[0] + 2}, v{Y[0] + 3}')
        B(p, f'ds_write_b64 v2, {vr(Y[0], 2)} offset:{512 * t}', f'y{t}')

    def tail(u):
        R, Tm = cT + 4, cT + 8
        B(0, f'ds_read_b64_tr_b16 {vr(R, 2)}, v3 offset:{1024 * u}')
        B(0, f'ds_read_b64_tr_b16 {vr(R + 2, 2)}, v3 offset:{1024 * u + 32}')
        B(0, f's_add_u32 s42, s44, {H4_OFF + u * 655360}')
        for k in range(4):
            x, rs, nm = cXQ + 4 * u + k, cSQ + 4 * u + (k >> 1) * 2, cSQ + 4 * u + (k >> 1) * 2 + 1
            B(0, f'v_lshlrev_b32 v{Tm}, 16, v{x}')
            B(0, f'v_and_b32 v{Tm + 1}, 0xffff0000, v{x}')
            B(0, f'v_fma_f32 v{Tm + 2}, v{Tm}, v{rs}, v{nm}')
            B(0, f'v_fma_f32 v{Tm + 3}, v{Tm + 1}, v{rs}, v{nm}')
            B(0, f'v_lshlrev_b32 v{Tm + 4}, 16, v{R + k}')
            B(0, f'v_and_b32 v{Tm + 5}, 0xffff0000, v{R + k}')
            B(0, f'v_fmac_f32 v{Tm}, v{Tm + 2}, v{Tm + 4}')
            B(0, f'v_fmac_f32 v{Tm + 1}, v{Tm + 3}, v{Tm + 5}')
            B(0, f'v_cvt_pk_bf16_f32 v{x}, v{Tm}, v{Tm + 1}')
        B(0, f'buffer_store_dwordx4 {vr(cXQ + 4 * u, 4)}, v5, {WSR}, s42 offen{st}', 'hst')

    for u in range(4):
        tile_epi(2 * u)
        tile_epi(2 * u + 1)
        B(0, f'@lg y{2 * u + 1}')
        B(0, 's_barrier')
        tail(u)
    out = weave(mf, pre, bg, 8)
    pos = {id(i): k for k, i in enumerate(out)}
    y1 = next(i for _, i in bg if i.tag == 'y1')
    g3 = mf[last_of_tile[5] + 1]
    assert pos[id(y1)] < pos[id(g3)]
    c.extend(out)


W1J_LDS = 35968 + 35840
WDJ_LDS = 448 * 160


def side_w1(c, WGS, WUS, sNI, sKQ, st=''):
    UR = 35968
    c(f'''
    v_mul_u32_u24 v1, 147, v0
    v_lshrrev_b32 v1, 11, v1
    v_mul_u32_u24 v2, 14, v1
    v_sub_u32 v2, v0, v2
    v_mul_u32_u24 v1, 3456, v1
    v_lshl_add_u32 v1, v2, 4, v1
    s_lshl_b32 s34, {sKQ}, 2
    s_add_u32 s34, s34, {sWAVE}
    s_mul_i32 s34, s34, {40 * 3456}
    s_mul_i32 s35, {sNI}, 216
    s_add_u32 s34, s34, s35
    s_mul_i32 s35, {sWAVE}, {40 * 224}
    s_mov_b32 exec_hi, 0x00ffffff
    ''')
    for i in range(10):
        c(f's_add_u32 m0, s35, {896 * i}')
        c(f'buffer_load_dwordx4 v1, {WGS}, s34 offen lds', 'wd')
        c(f's_add_u32 m0, s35, {UR + 896 * i}')
        c(f'buffer_load_dwordx4 v1, {WUS}, s34 offen lds', 'wd')
        if i < 9:
            c(f's_add_u32 s34, s34, {4 * 3456}')
    c(f'''
    s_mov_b64 exec, -1
    v_mul_u32_u24 v2, 224, v0
    v_add_u32 v2, s35, v2
    v_mov_b32 v8, 0x3f80
    v_mov_b32 v9, 0
    v_mov_b32 v10, 0
    v_mov_b32 v11, 0
    v_lshrrev_b32 v7, 5, v0
    v_bfe_u32 v6, v0, 2, 2
    v_lshl_add_u32 v3, v7, 3, v6
    v_mul_u32_u24 v3, 224, v3
    v_bfe_u32 v6, v0, 4, 1
    v_mul_u32_u24 v6, {UR}, v6
    v_add_u32 v3, v3, v6
    v_and_b32 v6, 1, v0
    v_lshl_add_u32 v3, v6, 4, v3
    v_bfe_u32 v6, v0, 1, 1
    v_lshl_add_u32 v3, v6, 3, v3
    s_lshl_b32 s36, {sWAVE}, 5
    v_add_u32 v3, s36, v3
    v_lshlrev_b32 v4, 4, v0
    s_mov_b32 s40, {ONES}
    s_mul_i32 s37, {sNI}, {288 * 1024}
    s_add_u32 s37, s37, {W1_OFF}
    s_lshr_b32 s38, {sKQ}, 1
    s_lshl_b32 s38, s38, 9
    s_and_b32 s39, {sKQ}, 1
    s_lshl_b32 s39, s39, 3
    s_add_u32 s38, s38, s39
    s_mov_b32 exec_hi, 0xff
    @vm wd
    ds_write_b64 v2, v[8:9] offset:216
    ds_write_b64 v2, v[10:11] offset:{UR + 216}
    s_mov_b64 exec, -1
    s_waitcnt lgkmcnt(0)
    s_barrier
    ''')
    FR = 16
    for half in range(2):
        if half:
            c(f's_cmp_eq_u32 {sWAVE}, 3')
            c('s_cbranch_scc1 L_w1_done')
        tb = [(w1_seq(b, 0), w1_seq(b, 1) - w1_seq(b, 0)) for b in range(4 * half, min(7, 4 * half + 4))]
        c(f's_movk_i32 s41, {tb[0][0]}')
        c(f's_movk_i32 s42, {tb[0][1]}')
        for w in range(1, len(tb)):
            c(f's_cmp_eq_u32 {sWAVE}, {w}')
            c(f's_cselect_b32 s41, {tb[w][0]}, s41')
            c(f's_cselect_b32 s42, {tb[w][1]}, s42')
        c(f'''
        s_lshl_b32 s41, s41, 10
        s_lshl_b32 s42, s42, 10
        s_add_u32 s41, s41, s37
        s_mul_i32 s43, s42, 40
        s_add_u32 s43, s43, s41
        s_add_u32 s43, s43, s38
        s_mul_i32 s44, {sKQ}, 10
        s_mul_i32 s44, s44, s42
        s_add_u32 s41, s41, s44
        ''')
        for ks in range(10):
            for h in range(2):
                c(f'ds_read_b64_tr_b16 {vr(FR + 4 * ks + 2 * h, 2)}, v3 offset:{224 * (16 * ks + 4 * h) + 128 * half}')
        for ks in range(10):
            c(f'buffer_store_dwordx4 {vr(FR + 4 * ks, 4)}, v4, {WSR}, s41 offen{st}', 'wst')
            if ks < 9:
                c('s_add_u32 s41, s41, s42')
            for r in range(4):
                c(f'v_dot2_f32_bf16 v12, v{FR + 4 * ks + r}, s40, {"0" if ks + r == 0 else "v12"}')
        c(f'''
        v_mov_b32 v13, v12
        v_permlane32_swap_b32 v12, v13
        v_add_f32 v12, v12, v13
        v_cvt_pk_bf16_f32 v13, v12, v12
        v_and_b32 v13, 0xffff0000, v13
        v_sub_f32 v14, v12, v13
        v_cvt_pk_bf16_f32 v14, v12, v14
        v_mov_b32 v15, v14
        s_mov_b32 exec_hi, 0
        ''')
        c(f'buffer_store_dwordx2 v[14:15], v4, {WSR}, s43 offen{st}', 'wst')
        c('s_mov_b64 exec, -1')
    c('L_w1_done:')


def side_wd(c, WDS, sDC, sKQ, st=''):
    c(f'''
    v_mul_u32_u24 v1, 205, v0
    v_lshrrev_b32 v1, 11, v1
    v_mul_u32_u24 v2, 10, v1
    v_sub_u32 v2, v0, v2
    v_mul_u32_u24 v1, 1280, v1
    v_lshl_add_u32 v1, v2, 4, v1
    s_lshl_b32 s34, {sKQ}, 2
    s_add_u32 s34, s34, {sWAVE}
    s_mul_i32 s34, s34, {108 * 1280}
    s_mul_i32 s35, {sDC}, 160
    s_add_u32 s34, s34, s35
    s_mul_i32 s35, {sWAVE}, {112 * 160}
    s_mov_b32 exec_hi, 0x0fffffff
    ''')
    for i in range(18):
        c(f's_add_u32 m0, s35, {960 * i}')
        c(f'buffer_load_dwordx4 v1, {WDS}, s34 offen lds', 'wdd')
        if i < 17:
            c(f's_add_u32 s34, s34, {6 * 1280}')
    c(f'''
    s_mov_b64 exec, -1
    v_lshlrev_b32 v4, 4, v0
    v_add_u32 v2, s35, v4
    v_mov_b32 v8, 0
    v_mov_b32 v9, 0
    v_mov_b32 v10, 0
    v_mov_b32 v11, 0
    s_mov_b32 exec_hi, 0xff
    ds_write_b128 v2, v[8:11] offset:{108 * 160}
    s_mov_b64 exec, -1
    v_lshrrev_b32 v7, 4, v0
    v_bfe_u32 v6, v0, 2, 2
    v_lshl_add_u32 v3, v7, 3, v6
    v_mul_u32_u24 v3, 160, v3
    s_mul_i32 s36, {sWAVE}, {128 * 160}
    v_add_u32 v3, s36, v3
    v_and_b32 v6, 3, v0
    v_lshl_add_u32 v5, v6, 3, v3
    v_lshl_add_u32 v3, v6, 4, v3
    s_mul_i32 s37, {sDC}, 56
    s_mul_i32 s38, {sKQ}, 14
    s_add_u32 s37, s37, s38
    s_lshl_b32 s38, {sWAVE}, 2
    s_add_u32 s37, s37, s38
    s_mul_i32 s37, s37, 5120
    s_add_u32 s37, s37, {WD_OFF}
    s_waitcnt vmcnt(0) lgkmcnt(0)
    s_barrier
    ''')
    FR = 16
    for half in range(2):
        if half:
            c(f's_cmp_eq_u32 {sWAVE}, 3')
            c('s_cbranch_scc1 L_wd_done')
        for k2 in range(2):
            ks = 2 * half + k2
            for b in range(5):
                for h in range(2):
                    r = FR + 40 * half + 20 * k2 + 4 * b + 2 * h
                    if b < 4:
                        c(f'ds_read_b64_tr_b16 {vr(r, 2)}, v3 offset:{160 * (32 * ks + 4 * h) + 64 * (b >> 1) + 8 * (b & 1)}')
                    else:
                        c(f'ds_read_b64_tr_b16 {vr(r, 2)}, v5 offset:{160 * (32 * ks + 4 * h) + 128}')
        for i in range(10):
            j = 10 * half + i
            c(f'buffer_store_dwordx4 {vr(FR + 40 * half + 4 * i, 4)}, v4, {WSR}, s37 offen offset:{1024 * (j & 3)}{st}', 'wst')
            if (j & 3) == 3:
                c('s_add_u32 s37, s37, 4096')
    c('L_wd_done:')


RING = 9
P2_LDS = RING * 16384
gHF, gMF, gACC, gT = 8, 168, 172, 236
NWB = 8


def p2_setup(c, sMT, sNI):
    c(f'''
    v_lshlrev_b32 v1, 4, v0
    s_lshl_b32 s34, {sMT}, 2
    s_add_u32 s34, s34, {sWAVE}
    s_mul_i32 s35, s34, 40960
    s_add_u32 s35, s35, {H4_OFF}
    s_mul_i32 s36, {sNI}, {288 * 1024}
    s_lshl_b32 s37, {sWAVE}, 12
    s_add_u32 s36, s36, s37
    s_add_u32 s36, s36, {W1_OFF}
    v_add_u32 v4, 0x10000, v1
    v_add_u32 v5, 0x20000, v1
    v_bfe_u32 v2, v0, 4, 1
    v_mul_u32_u24 v2, 57344, v2
    v_lshrrev_b32 v3, 5, v0
    v_lshl_add_u32 v2, v3, 8, v2
    v_and_b32 v3, 15, v0
    v_lshl_add_u32 v2, v3, 4, v2
    s_mul_i32 s38, s34, {2 * 57344}
    s_mul_i32 s39, {sNI}, {14 * 256}
    s_add_u32 s38, s38, s39
    s_add_u32 s38, s38, {HH_OFF}
    ''')


def p2_dma(g, ld=''):
    o = [Ins(f's_add_u32 m0, s37, {(g % RING) * 16384}')]
    o.append(Ins(f's_add_u32 s39, s36, {g * 16384}'))
    for k in range(4):
        o.append(Ins(f'buffer_load_dwordx4 v1, {WSR}, s39 offen offset:{1024 * k}{ld} lds', f'g{g}'))
    return o


def p2_main(c, ld='', st='', pre_groups=0, HPRE=12, GPRE=2):
    nacc = NB1 + 1
    accof = lambda bi: gACC + 16 * (bi % nacc)
    order = []
    for ks in range(40):
        for bi in range(NB1):
            order.append((ks * NB1 + bi, bi, ks))
    late = [(40 * NB1 + bi, bi, 40) for bi in range(NB1)]
    rest = []
    for bi in range(NB1, 7):
        for ks in range(41):
            rest.append((NB1 * 41 + (bi - NB1) * 41 + ks, bi, ks))
    LATE_AT = 12
    order += rest[:LATE_AT] + late + rest[LATE_AT:]
    latebuf = {s: NWB + k for k, (s, _, _) in enumerate(late)}
    bufof = {}
    k = 0
    for s in range(287):
        if s in latebuf:
            bufof[s] = latebuf[s]
        else:
            bufof[s] = k % NWB
            k += 1
    mf = []
    mpos = {}
    last_of_blk = {}
    for s, bi, ks in order:
        a = vr(accof(bi), 16)
        h = vr(gHF + 4 * ks, 4) if ks < 40 else vr(gMF, 4)
        mpos[s] = len(mf)
        last_of_blk[bi] = len(mf)
        mf.append(Ins(f'v_mfma_f32_32x32x16_bf16 {a}, {ar(4 * bufof[s], 4)}, {h}, {"0" if ks == 0 else a}'))
    pre = {}
    P = lambda pos, i: pre.setdefault(pos, []).append(i)

    def rd(s):
        off = (s % (16 * RING)) * 1024
        return Ins(f'ds_read_b128 {ar(4 * bufof[s], 4)}, {["v1", "v4", "v5"][off >> 16]} offset:{off & 0xffff}', f'w{s}')

    def hload(ks):
        o = []
        if ks and (ks & 3) == 0:
            o.append(Ins('s_add_u32 s35, s35, 4096'))
        o.append(Ins(f'buffer_load_dwordx4 {vr(gHF + 4 * ks, 4)}, v1, {WSR}, s35 offen offset:{1024 * (ks & 3)}{ld}', f'h{ks}'))
        return o
    DIST = NWB - 2
    rpos = {}
    prev_user = {}
    seen = {}
    for s in range(287):
        want = s - DIST - 1
        b = bufof[s]
        if b in seen:
            want = max(want, mpos[seen[b]])
        seen[b] = s
        rpos[s] = max(-1, want, rpos.get(s - 1, -1))
        assert rpos[s] < mpos[s]
    issued_h = 0
    issued_g = pre_groups
    per = 16 // NB1
    start = []
    while issued_h < HPRE or issued_g < GPRE:
        if issued_g < GPRE and issued_g * per <= issued_h:
            start += p2_dma(issued_g, ld)
            issued_g += 1
        elif issued_h < HPRE:
            start += hload(issued_h)
            issued_h += 1
        else:
            start += p2_dma(issued_g, ld)
            issued_g += 1
    pre[-1] = start
    vm_at = {}
    for ks in range(issued_h, 40):
        vm_at.setdefault((ks - issued_h) * NB1, []).extend(hload(ks))
    pos = 1
    for g in range(issued_g, 18):
        if g >= RING:
            pos = max(pos, rpos[16 * (g - RING + 2)] + 1)
        ins = p2_dma(g, ld)
        step = 2 if pos < (40 - issued_h) * NB1 else 1
        vm_at.setdefault(pos, []).extend(ins[:3])
        for k in range(3, 6):
            pos += 2 * step
            vm_at.setdefault(pos, []).append(ins[k])
        pos += 2 * step
    SS = gT
    for ks in range(40):
        p = mpos[ks * NB1] - NB1 - 1 if ks else -1
        p = max(p, -1)
        P(p, Ins(f'v_permlane16_swap_b32 v{gHF + 4 * ks}, v{gHF + 4 * ks + 2}'))
        P(p, Ins(f'v_permlane16_swap_b32 v{gHF + 4 * ks + 1}, v{gHF + 4 * ks + 3}'))
        if (ks & 3) == 3:
            q = mpos[ks * NB1]
            for r in range(16 * (ks >> 2), 16 * (ks >> 2) + 16):
                x = gHF + r
                P(q, Ins(f'v_dot2_f32_bf16 v{SS}, v{x}, v{x}, {"0" if r == 0 else "v%d" % SS}'))
    for s in range(287):
        if s % 16 == 0:
            P(rpos[s], Ins(f'@vm g{s // 16}'))
            P(rpos[s], Ins('s_barrier'))
        P(rpos[s], rd(s))
    for p, l in vm_at.items():
        for i in l:
            P(p, i)
    for k in range(0, 286, 2):
        s2 = max(order[k][0], order[k + 1][0])
        P(k - 1, Ins(f'@lg w{s2}'))
    bg = []
    B = lambda pos, t, tag=None: bg.append((pos, Ins(t, tag)))
    p = mpos[39 * NB1 + NB1 - 1] + 2
    NM, VA, RS, C1, T2 = gT + 1, gT, gT + 2, gT + 3, gT + 4
    B(p, f'v_mov_b32 v{T2}, v{SS}')
    B(p, f'v_mov_b32 v{NM}, v{accof(0) + 4}')
    B(p, f'v_mov_b32 v{T2 + 1}, v{accof(0) + 4}')
    B(p, f'v_permlane32_swap_b32 v{SS}, v{T2}')
    B(p, f'v_permlane32_swap_b32 v{T2 + 1}, v{NM}')
    B(p, f'v_add_f32 v{VA}, v{SS}, v{T2}')
    cc = Code()
    ln_finish(cc, NM, VA, RS)
    for i in cc.ins:
        bg.append((p, i))
    B(p, f'v_cvt_pk_bf16_f32 v{gMF}, v{NM}, v{NM}')
    B(p, f'v_and_b32 v{T2}, 0xffff0000, v{gMF}')
    B(p, f'v_sub_f32 v{T2}, v{NM}, v{T2}')
    B(p, f'v_mov_b32 v{gMF + 2}, v{gMF}')
    B(p, f'v_cvt_pk_bf16_f32 v{gMF + 1}, v{T2}, v{T2}')
    B(p, f'v_cvt_pk_bf16_f32 v{gMF + 3}, v{T2}, v{T2}', 'mf')
    B(p, f'v_mul_f32 v{C1}, 0xbfb8aa3b, v{RS}')
    B(p, f'v_mul_f32 v{VA}, v{VA}, v{RS}')
    epi_last = {}
    for bi in range(7):
        a = accof(bi)
        p = last_of_blk[bi] + 3
        for r in range(8):
            B(p, f'v_mul_f32 v{a + r}, v{C1}, v{a + r}')
        for r in range(8):
            B(p, f'v_exp_f32 v{a + r}, v{a + r}')
            if r:
                B(p, f'v_fma_f32 v{a + r - 1}, v{a + r - 1}, v{VA}, v{VA}')
        B(p, f'v_rcp_f32 v{a}, v{a}')
        B(p, f'v_fma_f32 v{a + 7}, v{a + 7}, v{VA}, v{VA}')
        for r in range(1, 8):
            B(p, f'v_rcp_f32 v{a + r}, v{a + r}')
            B(p, f'v_mul_f32 v{a + 8 + r - 1}, v{a + 8 + r - 1}, v{a + r - 1}')
        B(p, f'v_cvt_pk_bf16_f32 v{a}, v{a + 8}, v{a + 9}')
        B(p, f'v_mul_f32 v{a + 15}, v{a + 15}, v{a + 7}')
        for r in range(1, 4):
            B(p, f'v_cvt_pk_bf16_f32 v{a + r}, v{a + 8 + 2 * r}, v{a + 9 + 2 * r}')
        B(p, f'buffer_store_dwordx4 {vr(a, 4)}, v2, {WSR}, s38 offen offset:{512 * BLK_ORDER[bi]}{st}', 'hh')
        epi_last[bi] = bg[-1][1]
    out = weave(mf, pre, bg, 24)
    pos = {id(i): k for k, i in enumerate(out)}
    mfi = next(i for _, i in bg if i.tag == 'mf')
    assert pos[id(mfi)] < pos[id(mf[mpos[late[0][0]]])], 'mean fragment not ready'
    for bi in range(nacc, 7):
        firstm = mf[mpos[NB1 * 41 + (bi - NB1) * 41]]
        assert pos[id(epi_last[bi - nacc])] + 3 < pos[id(firstm)], ('acc reuse', bi)
    c.extend(out)


P3_LDS = 4 * 15 * 1024
dW, dACC, dRES, dPR, dHB = 8, 32, 72, 84, 124
NHB = 33


def p3_setup(c, sMT, sDC):
    c(f'''
    v_lshlrev_b32 v1, 4, v0
    s_mul_i32 s34, {sDC}, 56
    s_mul_i32 s35, {sWAVE}, 14
    s_add_u32 s34, s34, s35
    s_mul_i32 s34, s34, 5120
    s_add_u32 s34, s34, {WD_OFF}
    s_mul_i32 s35, {sMT}, {4 * 57344}
    s_mul_i32 s36, {sWAVE}, {56 * 256}
    s_add_u32 s35, s35, s36
    s_add_u32 s35, s35, {HH_OFF}
    ''')
    for r in range(4):
        c(f'''
        s_add_u32 s36, {sWAVE}, {r + 1}
        s_and_b32 s36, s36, 3
        s_mul_i32 s{40 + r}, s36, 57344
        s_add_u32 s{40 + r}, s{40 + r}, s35
        s_mul_i32 s36, s36, {15 * 1024}
        ''')
        c(f'v_add_u32 v{2 + r}, s36, v1')
    c(f'''
    v_lshrrev_b32 v{dPR}, 4, v0
    v_and_b32 v{dPR + 1}, 15, v0
    v_lshlrev_b32 v7, 4, v{dPR + 1}
    v_lshl_add_u32 v6, v{dPR}, 9, v7
    v_lshl_add_u32 v7, v{dPR}, 8, v7
    s_lshl_b32 s36, {sMT}, 1
    s_lshr_b32 s37, {sWAVE}, 1
    s_add_u32 s36, s36, s37
    s_mul_i32 s36, s36, 40960
    s_and_b32 s37, {sWAVE}, 1
    s_lshl_b32 s37, s37, 3
    s_add_u32 s36, s36, s37
    s_mul_i32 s37, {sDC}, {20 * 256}
    s_add_u32 s36, s36, s37
    s_add_u32 s36, s36, {H4_OFF}
    s_add_u32 s37, s36, 4096
    s_lshl_b32 s38, {sMT}, 2
    s_add_u32 s38, s38, {sWAVE}
    s_mul_i32 s38, s38, {16 * 1280}
    s_mul_i32 s39, {sDC}, 160
    s_add_u32 s38, s38, s39
    ''')


def wfrag(j):
    return ar(4 * j, 4) if j < 64 else vr(dW + 4 * (j - 64), 4)


def p3_wload(j, ld=''):
    o = []
    if j and (j & 3) == 0:
        o.append(Ins('s_add_u32 s34, s34, 4096'))
    o.append(Ins(f'buffer_load_dwordx4 {wfrag(j)}, v1, {WSR}, s34 offen offset:{1024 * (j & 3)}{ld}', f'wd{j}'))
    return o


def p3_main(c, OUTS, ld='', wpre=0, KPRE=6):
    def hload(i):
        r, ks = divmod(i, 14)
        o = []
        if ks and (ks & 3) == 0:
            o.append(Ins(f's_add_u32 s{40 + r}, s{40 + r}, 4096'))
        o.append(Ins(f'buffer_load_dwordx4 {vr(dHB + 4 * (i % NHB), 4)}, v1, {WSR}, s{40 + r} offen offset:{1024 * (ks & 3)}{ld}', f'hh{i}'))
        return o
    mf = []
    for r in range(4):
        for ks in range(14):
            for b in range(5):
                a = vr(dACC + 20 * (r & 1) + 4 * b, 4)
                mf.append(Ins(f'v_mfma_f32_16x16x32_bf16 {a}, {wfrag(5 * ks + b)}, {vr(dHB + 4 * ((14 * r + ks) % NHB), 4)}, {"0" if ks == 0 else a}'))
    pre = {}
    P = lambda pos, i: pre.setdefault(pos, []).append(i)
    loads = []
    for ks in range(14):
        loads.append((-1, hload(ks)))
        for b in range(5):
            if 5 * ks + b >= wpre:
                loads.append((-1, p3_wload(5 * ks + b, ld)))
    for i in range(14, 56):
        loads.append((5 * (i - NHB) + 4 if i >= NHB else -1, hload(i)))
    res = []
    for b in range(4):
        res.append(Ins(f'buffer_load_dwordx2 {vr(dRES + 2 * b, 2)}, v6, {WSR}, s36 offen offset:{2048 * (b >> 1) + 256 * (b & 1)}{ld}'))
    res.append(Ins(f'buffer_load_dwordx2 {vr(dRES + 8, 2)}, v7, {WSR}, s37 offen{ld}'))
    loads += [(-1, [i]) for i in res]
    npre = KPRE * 6 if wpre == 0 else min(NHB, 30)
    pos = -1
    for k, (e, l) in enumerate(loads):
        if k >= npre:
            pos = max(pos + 1, e)
        for i in l:
            P(pos, i)
    for ks in range(14):
        if 5 * ks + 4 >= wpre:
            P(5 * ks - 1, Ins(f'@vm wd{5 * ks + 4}'))
    bg = []
    B = lambda pos, t, tag=None: bg.append((pos, Ins(t, tag)))
    for r in range(3):
        p = 70 * (r + 1) + 3
        for b in range(5):
            B(p + b, f'ds_write_b128 v{2 + r}, {vr(dACC + 20 * (r & 1) + 4 * b, 4)} offset:{1024 * (5 * r + b)}', f'pw{r}')
    p = 70 * 3 + 14
    B(p, '@lg pw2')
    B(p, 's_barrier')
    SUM = dACC
    for b in range(5):
        B(p, f'ds_read_b128 {vr(SUM + 4 * b, 4)}, v5 offset:{1024 * b}')
    for r in range(1, 3):
        for b in range(5):
            B(p, f'ds_read_b128 {vr(dPR + 20 * (r - 1) + 4 * b, 4)}, v5 offset:{1024 * (5 * r + b)}')
    B(p, f'v_lshrrev_b32 v2, 4, v0')
    B(p, f'v_and_b32 v3, 15, v0')
    B(p, f'v_mul_u32_u24 v3, 1280, v3')
    B(p, f'v_lshl_add_u32 v4, v2, 3, v3')
    B(p, f'v_lshl_add_u32 v3, v2, 4, v3')
    for r in range(1, 3):
        for k in range(20):
            B(p, f'v_add_f32 v{SUM + k}, v{SUM + k}, v{dPR + 20 * (r - 1) + k}')
    for k in range(10):
        B(p, f'v_lshlrev_b32 v{dPR + 2 * k}, 16, v{dRES + k}')
        B(p, f'v_and_b32 v{dPR + 2 * k + 1}, 0xffff0000, v{dRES + k}')
    for k in range(20):
        B(p, f'v_add_f32 v{SUM + k}, v{SUM + k}, v{dPR + k}')
    p = 280
    for k in range(0, 20, 2):
        B(p, f'v_pk_add_f32 {vr(SUM + k, 2)}, {vr(SUM + k, 2)}, {vr(dACC + 20 + k, 2)}')
    for k in range(10):
        B(p, f'v_cvt_pk_bf16_f32 v{dPR + k}, v{SUM + 2 * k}, v{SUM + 2 * k + 1}')
        if k == 3:
            B(p, f'buffer_store_dwordx4 {vr(dPR, 4)}, v3, {OUTS}, s38 offen')
        if k == 7:
            B(p, f'buffer_store_dwordx4 {vr(dPR + 4, 4)}, v3, {OUTS}, s38 offen offset:64')
    B(p, f'buffer_store_dwordx2 {vr(dPR + 8, 2)}, v4, {OUTS}, s38 offen offset:128')
    c.extend(weave(mf, pre, bg, 8))
```

```python
import sys
from asmlib import *
from phases import *

NAME = 'sequential_preLN__ssm_conv_h3__glu_gated_glu__prompt'
HEADER = open('cdna_kernels/%s.s.ref' % NAME).read().split('; Override launch')[0]


def stamp_begin(c, ts):
    if ts:
        c('s_memrealtime s[60:61]')


def stamp_end(c, ts, k):
    if ts:
        c(f'''
        s_waitcnt vmcnt(0) lgkmcnt(0)
        s_memrealtime s[62:63]
        s_lshl_b32 s64, s2, 2
        s_add_u32 s64, s64, {sWAVE}
        s_lshl_b32 s64, s64, 4
        s_add_u32 s64, s64, {TS_OFF + k * 16384}
        s_waitcnt lgkmcnt(0)
        v_mov_b32 v0, s60
        v_mov_b32 v1, s61
        v_mov_b32 v2, s62
        v_mov_b32 v3, s63
        v_mov_b32 v4, 0
        s_mov_b64 exec, 1
        buffer_store_dwordx4 v[0:3], v4, {WSR}, s64 offen
        ''')


def entry(c, name, ts):
    c('.p2align 8')
    c(f'.type {name},@function')
    c(f'{name}:')
    c('@reset')
    c('s_cmp_ge_u32 s2, 256')
    c(f's_cbranch_scc1 L_{name}_exit')
    stamp_begin(c, ts)
    srd(c, 8, WS, WS_USED)


def leave(c, name, ts, k):
    c(f'L_{name}_end:')
    stamp_end(c, ts, k)
    c(f'L_{name}_exit:')
    c('s_endpgm')


def desc(name, vgpr, accum):
    return f'''.amdhsa_kernel {name}
  .amdhsa_next_free_vgpr {vgpr}
  .amdhsa_next_free_sgpr 80
  .amdhsa_accum_offset {accum}
  .amdhsa_group_segment_fixed_size 0
  .amdhsa_kernarg_size 104
  .amdhsa_user_sgpr_count 2
  .amdhsa_user_sgpr_kernarg_segment_ptr 1
  .amdhsa_system_sgpr_workgroup_id_x 1
  .amdhsa_float_denorm_mode_32 3
.end_amdhsa_kernel'''


def build(ts=False, extra_triv=0, opts={}):
    c = Code()
    entry(c, 'k0_kernel', ts)
    srd(c, 12, A_K, NBYTES_SD)
    srd(c, 16, A_V, NBYTES_SD)
    srd(c, 20, A_SH, D * 8)
    srd(c, 24, A_Q, NBYTES_SD)
    ids(c)
    c(f's_cmp_ge_u32 {sSLOT}, 20')
    c('s_cbranch_scc1 L_k0_side')
    conv_ids(c)
    c('s_waitcnt lgkmcnt(0)')
    p0_kv(c, 's[12:15]', 's[16:19]', 's[20:23]')
    c('s_branch L_k0_kernel_end')
    c('L_k0_side:')
    c('@reset')
    c('s_waitcnt lgkmcnt(0)')
    c(f's_cmp_ge_u32 {sSLOT}, 28')
    c('s_cbranch_scc1 L_k0_kernel_end')
    c(f's_lshl_b32 s6, {sXCD}, 3')
    c(f's_add_u32 s6, s6, {sSLOT}')
    c('s_sub_u32 s6, s6, 20')
    p0_x(c, 's[24:27]', 's6')
    leave(c, 'k0_kernel', ts, 0)
    entry(c, 'k1_kernel', ts)
    srd(c, 12, A_SSMK, NBYTES_SD)
    srd(c, 16, A_SSMD, D * 2)
    srd(c, 20, B_WG, D * F * 2)
    srd(c, 24, B_WU, D * F * 2)
    srd(c, 28, B_WD, D * F * 2)
    ids(c)
    c(f's_cmp_ge_u32 {sSLOT}, 20')
    c('s_cbranch_scc1 L_k1_side')
    conv_ids(c)
    c('s_waitcnt lgkmcnt(0)')
    p1_k(c, 's[12:15]', 's[16:19]')
    p1_load_u(c)
    p1_load_x(c)
    p1_main(c)
    c('s_branch L_k1_kernel_end')
    c('L_k1_side:')
    c('@reset')
    c('s_waitcnt lgkmcnt(0)')
    c(f's_cmp_ge_u32 {sSLOT}, 28')
    c('s_cbranch_scc1 L_k1_wd')
    c(f'''
    s_sub_u32 s7, {sSLOT}, 20
    s_and_b32 s6, s7, 1
    s_lshr_b32 s7, s7, 1
    s_lshl_b32 s34, {sXCD}, 1
    s_add_u32 s6, s6, s34
    ''')
    side_w1(c, 's[20:23]', 's[24:27]', 's6', 's7')
    c('s_branch L_k1_kernel_end')
    c('L_k1_wd:')
    c('@reset')
    c(f'''
    s_lshr_b32 s7, {sXCD}, 1
    s_and_b32 s6, {sXCD}, 1
    s_lshl_b32 s6, s6, 2
    s_add_u32 s6, s6, {sSLOT}
    s_sub_u32 s6, s6, 28
    ''')
    side_wd(c, 's[28:31]', 's6', 's7')
    leave(c, 'k1_kernel', ts, 1)
    entry(c, 'k2_kernel', ts)
    ids(c)
    c(f'''
    s_and_b32 s6, {sXCD}, 1
    s_lshl_b32 s6, s6, 3
    s_lshr_b32 s34, {sSLOT}, 2
    s_add_u32 s6, s6, s34
    s_lshr_b32 s7, {sXCD}, 1
    s_lshl_b32 s7, s7, 2
    s_and_b32 s34, {sSLOT}, 3
    s_add_u32 s7, s7, s34
    ''')
    p2_setup(c, 's6', 's7')
    c('s_waitcnt lgkmcnt(0)')
    p2_main(c)
    leave(c, 'k2_kernel', ts, 2)
    entry(c, 'k3_kernel', ts)
    srd(c, 12, OUT, NBYTES_SD)
    ids(c)
    c(f'''
    s_lshl_b32 s6, {sXCD}, 2
    s_lshr_b32 s34, {sSLOT}, 3
    s_add_u32 s6, s6, s34
    s_and_b32 s7, {sSLOT}, 7
    ''')
    p3_setup(c, 's6', 's7')
    c('s_waitcnt lgkmcnt(0)')
    p3_main(c, 's[12:15]')
    leave(c, 'k3_kernel', ts, 3)
    if extra_triv:
        c('.p2align 8')
        c('.type triv_kernel,@function')
        c('triv_kernel:')
        c('s_endpgm')
    st = {}
    body = text_of(finalize(c.ins, st))
    print(st, file=sys.stderr)
    launches = [('k0_kernel', 41472), ('k1_kernel', max(P1_LDS, W1J_LDS, WDJ_LDS)), ('k2_kernel', P2_LDS), ('k3_kernel', P3_LDS)]
    launches += [('triv_kernel', 0)] * extra_triv
    out = HEADER
    for n, l in launches:
        out += f'; @launch kernel={n} grid=(256,1,1) block=(256,1,1) lds={l}\n'
    out += '.amdgcn_target "amdgcn-amd-amdhsa--gfx950"\n.text\n'
    out += body + '\n.section .rodata,"a"\n'
    for n, v, a in [('k0_kernel', 104, 104), ('k1_kernel', 256, 256), ('k2_kernel', 256 + 48, 256), ('k3_kernel', 512, 256)] + ([('triv_kernel', 8, 8)] if extra_triv else []):
        out += '.p2align 6\n' + desc(n, v, a) + '\n'
    return out


if __name__ == '__main__':
    import argparse
    ap = argparse.ArgumentParser()
    ap.add_argument('-o', default='cdna_kernels/%s.s' % NAME)
    ap.add_argument('--ts', action='store_true')
    ap.add_argument('--triv', type=int, default=0)
    a = ap.parse_args()
    open(a.o, 'w').write(build(a.ts, a.triv))
```

```python
import re

REG_RE = re.compile(r'\b([vas])(?:(\d+)\b|\[(\d+):(\d+)\])')
TRANS = ('v_exp_f32', 'v_log_f32', 'v_rcp_f32', 'v_rsq_f32', 'v_sqrt_f32', 'v_sin_f32', 'v_cos_f32')


def regs_of(op):
    out = []
    for m in REG_RE.finditer(op):
        f = m.group(1)
        if m.group(2) is not None:
            out.append((f, int(m.group(2))))
        else:
            out.extend((f, i) for i in range(int(m.group(3)), int(m.group(4)) + 1))
    if re.search(r'\bvcc\b', op):
        out.append(('s', 'vcc'))
    if re.search(r'\bm0\b', op):
        out.append(('s', 'm0'))
    if re.search(r'\bexec\b', op):
        out.append(('s', 'exec'))
    return out


def vr(base, n=1, f='v'):
    return f'{f}{base}' if n == 1 else f'{f}[{base}:{base + n - 1}]'


def ar(base, n=1):
    return vr(base, n, 'a')


def sr(base, n=1):
    return vr(base, n, 's')


class Ins:
    __slots__ = ('text', 'mn', 'ops', 'kind', 'rd', 'wr', 'tag', 'passes', 'srcc', 'srcab', 'wide_store', 'data', 'cost')

    def __init__(self, text, tag=None):
        self.text = text
        self.tag = tag
        t = text.split(';')[0].strip()
        self.passes = 0
        self.srcc = set()
        self.srcab = set()
        self.wide_store = False
        self.data = set()
        self.rd = set()
        self.wr = set()
        self.cost = 4
        if t.endswith(':') or t.startswith('.') or not t:
            self.mn = t
            self.kind = 'label' if t.endswith(':') else 'dir'
            self.ops = []
            self.cost = 0
            return
        if t.startswith('@'):
            p = t.split()
            self.mn = p[0]
            self.ops = p[1:]
            self.kind = 'pseudo'
            self.cost = 4
            return
        p = t.split(None, 1)
        mn = self.mn = p[0]
        ops = self.ops = [o.strip() for o in p[1].split(',')] if len(p) > 1 else []
        R = [set(regs_of(o)) for o in ops]
        allr = set().union(*R) if R else set()
        rest = set().union(*R[1:]) if len(R) > 1 else set()
        if mn.startswith('v_mfma'):
            self.kind = 'mfma'
            self.wr = R[0]
            self.srcab = R[1] | R[2]
            self.srcc = R[3]
            self.rd = rest
            self.passes = 8 if '32x32x16' in mn else 4
            assert '32x32x16' in mn or '16x16x32' in mn
            self.cost = 8
        elif mn.startswith('v_'):
            base = mn.replace('_e32', '').replace('_e64', '').replace('_dpp', '').replace('_sdwa', '')
            self.kind = 'trans' if base in TRANS else ('dot' if base.startswith('v_dot') else 'valu')
            self.wr = set(R[0])
            self.rd = set(rest)
            if base.startswith('v_permlane') or base == 'v_swap_b32':
                self.wr = set(allr)
                self.rd = set(allr)
                self.cost = 8
            if base.startswith(('v_fmac', 'v_dot2c', 'v_writelane')) or 'dpp' in mn or 'row_' in t or 'quad_perm' in t:
                self.rd |= R[0]
            if base.startswith(('v_add_co', 'v_sub_co', 'v_addc_co')):
                self.wr |= R[1]
                self.rd = set().union(*R[2:])
            if base == 'v_nop':
                self.wr = set()
            if self.kind == 'trans':
                self.cost = 8
        elif mn.startswith('ds_'):
            self.kind = 'ds'
            if mn.startswith(('ds_read', 'ds_bpermute', 'ds_permute', 'ds_swizzle')):
                self.wr = R[0]
                self.rd = rest
            else:
                self.rd = allr
        elif mn.startswith(('buffer_', 'global_')):
            self.kind = 'vmem'
            islds = bool(re.search(r'\blds\b', t)) or 'load_lds' in mn
            if mn in ('buffer_wbl2', 'buffer_inv'):
                pass
            elif 'load' in mn and not islds:
                self.wr = R[0]
                self.rd = rest
            elif islds:
                self.rd = allr | {('s', 'm0')}
            else:
                self.rd = allr
                if mn.startswith('buffer_'):
                    self.data = R[0]
                else:
                    self.data = R[1]
                self.wide_store = mn.endswith(('x3', 'x4'))
        elif mn.startswith('s_'):
            if mn.startswith(('s_load', 's_memtime', 's_memrealtime', 's_buffer_load')):
                self.kind = 'smem'
                self.wr = R[0]
                self.rd = rest
            elif mn.startswith(('s_cbranch', 's_branch', 's_endpgm', 's_setpc', 's_swappc')):
                self.kind = 'branch'
                self.rd = allr
            elif mn in ('s_waitcnt', 's_barrier', 's_nop', 's_setprio', 's_sleep'):
                self.kind = 'ctl'
            elif mn.startswith(('s_cmp', 's_bitcmp')):
                self.kind = 'salu'
                self.rd = allr
            else:
                self.kind = 'salu'
                self.wr = set(R[0])
                self.rd = set(rest)
                if mn.startswith(('s_addk', 's_mulk')):
                    self.rd |= R[0]
                if 'saveexec' in mn:
                    self.wr.add(('s', 'exec'))
        else:
            raise ValueError('unknown instruction: ' + text)

    def states(self):
        if self.kind in ('label', 'dir', 'pseudo'):
            return 0
        if self.mn == 's_nop':
            return int(self.ops[0], 0) + 1
        return 1

    def isvalu(self):
        return self.kind in ('valu', 'trans', 'dot')


def _vec(regs):
    return {r for r in regs if r[0] in 'va'}


def _sca(regs):
    return {r for r in regs if r[0] == 's'}


def need_states(p, c):
    n = 0
    ctext = c.text
    if p.isvalu():
        pv = _vec(p.wr)
        ps = _sca(p.wr)
        if c.kind == 'mfma' and pv & c.rd:
            n = max(n, 2)
        if c.isvalu():
            if c.mn.startswith('v_permlane') and pv & c.rd:
                n = max(n, 2)
            if ('dpp' in c.mn or 'row_' in ctext or 'quad_perm' in ctext) and pv & c.rd:
                n = max(n, 2)
            if c.mn.startswith(('v_readlane', 'v_readfirstlane')) and pv & c.rd:
                n = max(n, 1)
            if ps & c.rd:
                n = max(n, 4 if c.mn.startswith(('v_readlane', 'v_writelane')) else 2)
            if p.kind == 'trans' and pv & c.rd:
                n = max(n, 1)
            if ('sdwa' in p.mn or 'op_sel' in p.text) and pv & (c.rd | c.wr):
                n = max(n, 1)
        if c.kind == 'vmem' and ps & c.rd:
            n = max(n, 5)
        if c.kind in ('salu', 'smem', 'branch') and ps & c.rd:
            n = max(n, 1)
        if p.kind == 'dot' and pv & (c.rd | c.wr):
            same = c.mn == p.mn
            if same:
                ab = set(regs_of(c.ops[1])) | set(regs_of(c.ops[2]))
                if pv & ab:
                    n = max(n, 3)
            elif c.kind != 'ctl':
                n = max(n, 3)
    if p.kind == 'mfma':
        big = p.passes == 8
        if c.kind == 'mfma':
            if p.wr & c.srcab:
                n = max(n, 12 if big else 8)
            if p.wr & c.srcc and not (p.wr == c.srcc and p.passes == c.passes):
                n = max(n, 10 if big else 6)
            if p.wr & c.wr and not (p.wr & c.srcc):
                n = max(n, 12 if big else 8)
        elif c.isvalu() or c.kind in ('ds', 'vmem'):
            if p.wr & (c.rd | c.wr):
                n = max(n, 12 if big else 8)
            if c.isvalu() and p.srcc & c.wr:
                n = max(n, 7 if big else 3)
    if p.kind == 'salu' and ('s', 'm0') in p.wr and c.kind in ('vmem', 'ds') and ('s', 'm0') in c.rd:
        n = max(n, 1)
    if p.kind == 'vmem' and p.wide_store and p.data & c.wr:
        n = max(n, 2)
    return n


class Code:
    def __init__(self):
        self.ins = []

    def __call__(self, text, tag=None):
        for line in text.split('\n'):
            line = line.strip()
            if line:
                self.ins.append(Ins(line, tag))
        return self

    def add(self, i):
        self.ins.append(i)

    def extend(self, other):
        self.ins.extend(other.ins if isinstance(other, Code) else other)


def finalize(ins, stats=None):
    out = []
    vm = []
    lg = []
    nwait = nnop = 0

    def emit(i):
        nonlocal nnop
        need = 0
        dist = 0
        for p in reversed(out):
            if p.kind == 'pseudo' and p.mn == '@hz':
                break
            k = need_states(p, i) - dist
            need = max(need, k)
            dist += p.states()
            if dist >= 20:
                break
        while need > 0:
            k = min(need, 16)
            out.append(Ins(f's_nop {k - 1}'))
            nnop += 1
            need -= k
        out.append(i)

    def do_wait(nv, nl):
        nonlocal nwait
        parts = []
        if nv is not None and nv < len(vm):
            nv = min(nv, 63)
            del vm[:len(vm) - nv]
            parts.append(f'vmcnt({nv})')
        if nl is not None and nl < len(lg):
            if any(o.kind == 'smem' for o in lg):
                nl = 0
            nl2 = min(nl, 15)
            del lg[:len(lg) - nl2]
            parts.append(f'lgkmcnt({nl2})')
        if parts:
            nwait += 1
            out.append(Ins('s_waitcnt ' + ' '.join(parts)))

    def youngest(q, pred):
        for k in range(len(q) - 1, -1, -1):
            if pred(q[k]):
                return len(q) - 1 - k
        return None

    left = {}
    for i in ins:
        if i.kind == 'pseudo' and i.mn == '@reset':
            pass
        if i.tag is not None and i.kind in ('vmem', 'ds'):
            left[i.tag] = left.get(i.tag, 0) + 1
    for i in ins:
        if i.tag is not None and i.kind in ('vmem', 'ds'):
            left[i.tag] -= 1
        if i.kind == 'pseudo':
            if i.mn in ('@vm', '@lg', '@vmlg'):
                for t in i.ops:
                    assert left.get(t) == 0, ('tag not fully issued before wait', t, left.get(t))
            if i.mn == '@vm':
                do_wait(youngest(vm, lambda o: o.tag == i.ops[0]), None)
            elif i.mn == '@lg':
                do_wait(None, youngest(lg, lambda o: o.tag == i.ops[0]))
            elif i.mn == '@vmlg':
                do_wait(youngest(vm, lambda o: o.tag == i.ops[0]), youngest(lg, lambda o: o.tag == i.ops[1]))
            elif i.mn == '@reset':
                vm.clear()
                lg.clear()
            else:
                raise ValueError(i.text)
            continue
        if i.kind in ('label', 'dir'):
            out.append(i)
            continue
        if i.mn == 's_waitcnt':
            m = re.search(r'vmcnt\((\d+)\)', i.text)
            if m and int(m.group(1)) < len(vm):
                del vm[:len(vm) - int(m.group(1))]
            m = re.search(r'lgkmcnt\((\d+)\)', i.text)
            if m and int(m.group(1)) < len(lg):
                del lg[:len(lg) - int(m.group(1))]
            out.append(i)
            continue
        touched = i.rd | i.wr
        nv = youngest(vm, lambda o: o.wr & (i.rd if i.kind == 'vmem' else touched))
        nl = youngest(lg, lambda o: o.wr & (i.rd if (i.kind == 'ds' and o.kind == 'ds') else touched))
        do_wait(nv, nl)
        emit(i)
        if i.kind == 'vmem':
            vm.append(i)
        elif i.kind in ('ds', 'smem'):
            lg.append(i)
    if stats is not None:
        stats['waits'] = nwait
        stats['nops'] = nnop
        stats['n'] = sum(1 for o in out if o.kind not in ('label', 'dir'))
    return out


def weave(mf, pre, bg, vm=None, extra=None):
    vm = vm or {}
    extra = extra or {}
    out = []
    k = 0
    out.extend(vm.get(-1, []))
    out.extend(pre.get(-1, []))
    for idx, m in enumerate(mf):
        out.append(m)
        budget = (24 if m.passes == 8 else 8) + extra.get(idx, 0)
        used = 0
        for i in vm.get(idx, []) + pre.get(idx, []):
            out.append(i)
            used += i.cost
        while k < len(bg) and bg[k][0] <= idx and used + bg[k][1].cost <= budget:
            out.append(bg[k][1])
            used += bg[k][1].cost
            k += 1
    while k < len(bg):
        out.append(bg[k][1])
        k += 1
    return out


def pace(streams, tpos, spacing, start=0):
    vm, pre, where = {}, {}, {}
    heads = [0] * len(streams)
    nxt = -1e9
    for p in range(start, len(tpos)):
        if tpos[p] < nxt:
            continue
        best = None
        for k, st in enumerate(streams):
            if heads[k] < len(st) and st[heads[k]][0] <= p:
                if best is None or st[heads[k]][1] < streams[best][heads[best]][1]:
                    best = k
        if best is None:
            continue
        e, d, l = streams[best][heads[best]]
        heads[best] += 1
        assert p <= d, ('deadline missed', l[-1].text, p, d)
        vm.setdefault(p, []).append(l[-1])
        pre.setdefault(p - 1, []).extend(l[:-1])
        where[id(l[-1])] = p
        nxt = max(nxt, tpos[p] - 32) + spacing(p)
    assert all(h == len(st) for h, st in zip(heads, streams)), ('unplaced', [(h, len(st)) for h, st in zip(heads, streams)])
    return vm, pre, where


def text_of(ins):
    lines = []
    for i in ins:
        if i.kind == 'label':
            lines.append(i.text)
        else:
            lines.append('    ' + i.text)
    return '\n'.join(lines)
```

```python
import sys
from asmlib import *

S, D, F = 2048, 640, 1728
NBYTES_SD = S * D * 2
U_OFF = 0
X4_OFF = U_OFF + NBYTES_SD
H4_OFF = X4_OFF + NBYTES_SD
ST_OFF = H4_OFF + NBYTES_SD
W1_OFF = ST_OFF + 65536
WD_OFF = W1_OFF + 16 * 288 * 1024
HH_OFF = WD_OFF + 8 * 56 * 5 * 1024
FL_OFF = HH_OFF + 128 * 57344
FSP = 64
F1_OFF = FL_OFF
FX_OFF = F1_OFF + 640 * FSP
FW1_OFF = FX_OFF + 64 * FSP
FWD_OFF = FW1_OFF + 64 * FSP
assert FWD_OFF + 32 * FSP <= FL_OFF + 65536
F3_OFF = FL_OFF + 65536
F2_OFF = F3_OFF + 1024 * FSP
assert F2_OFF + 2560 * FSP <= F3_OFF + 262144
TS_OFF = F3_OFF + 262144
WS_USED = TS_OFF + 262144

A_Q, A_K, A_V, A_SH, A_SSMK, A_SSMD, B_X, B_WG, B_WU, B_WD, OUT, DBG, WS = [8 * i for i in range(13)]

WSR = 's[8:11]'
sWAVE = 's33'
sXCD, sSLOT = 's4', 's5'
sSG, sIDX = 's6', 's7'
ONES = 0x3f803f80
OUTS, DBGS = 's[48:51]', 's[52:55]'
sP2W, sP2L, sP2T, sP3W = 's92', 's93', 's94', 's95'
sMT, sNI, sMT64, sDC = 's96', 's97', 's98', 's99'
SC = ' sc1'
SPIN = 30000
LDS_TOTAL = 163840

NB1 = 2
BLK_ORDER = [6, 0, 1, 2, 3, 4, 5]


OPT = {}


def mark(k, p23=False):
    if not OPT.get('ts') or (OPT.get('mk23') and not p23):
        return []
    return [Ins(f's_mem{"" if OPT.get("cyc") else "real"}time s[{60 + 2 * k}:{61 + 2 * k}]')]


def mark1(k):
    return mark(k) if OPT.get('mk1') else []


def w1_seq(b, ks):
    bi = BLK_ORDER.index(b)
    if bi < NB1:
        return ks * NB1 + bi
    return NB1 * 41 + (bi - NB1) * 41 + ks


def srd(c, base, slot, nbytes):
    c(f's_load_dwordx2 s[{base}:{base + 1}], s[0:1], {slot}')
    c(f's_mov_b32 s{base + 2}, {nbytes}')
    c(f's_mov_b32 s{base + 3}, 0x20000')


def ids(c):
    c(f'v_lshrrev_b32 v1, 6, v0')
    c(f's_and_b32 {sXCD}, s2, 7')
    c(f'v_readfirstlane_b32 {sWAVE}, v1')
    c(f's_lshr_b32 {sSLOT}, s2, 3')
    c(f'v_and_b32 v0, 63, v0')


def conv_ids(c):
    c(f'''
    s_lshr_b32 {sSG}, {sXCD}, 2
    s_add_u32 {sSG}, {sSG}, 8
    s_and_b32 {sIDX}, {sXCD}, 3
    s_lshl_b32 {sIDX}, {sIDX}, 2
    s_add_u32 {sIDX}, {sIDX}, {sSLOT}
    s_sub_u32 {sIDX}, {sIDX}, 16
    s_cmp_lt_u32 {sSLOT}, 16
    s_cselect_b32 {sSG}, {sXCD}, {sSG}
    s_cselect_b32 {sIDX}, {sSLOT}, {sIDX}
    ''')


KR, VR, CF, PP, AC, VU, OG = 8, 30, 48, 56, 66, 74, 84


def p0_kv_load(c, KS, VS, SHS):
    c(f'''
    v_lshrrev_b32 v7, 4, v0
    v_and_b32 v6, 15, v0
    s_lshl_b32 s34, {sIDX}, 2
    s_add_u32 s34, s34, {sWAVE}
    s_mul_i32 s34, s34, {32 * 1280}
    s_lshl_b32 s35, {sSG}, 7
    s_add_u32 s34, s34, s35
    v_mul_u32_u24 v1, {8 * 1280}, v7
    v_lshl_add_u32 v1, v6, 3, v1
    v_add_u32 v1, s34, v1
    v_subrev_u32 v2, 3840, v1
    s_lshl_b32 s35, {sSG}, 9
    v_lshlrev_b32 v3, 5, v6
    s_movk_i32 s36, 5120
    ''')
    c(f'buffer_load_dwordx4 {vr(CF, 4)}, v3, {SHS}, s35 offen')
    c(f'buffer_load_dwordx4 {vr(CF + 4, 4)}, v3, {SHS}, s35 offen offset:16')
    for r in range(3):
        c(f'buffer_load_dwordx2 {vr(KR + 2 * r, 2)}, v2, {KS}, 0 offen offset:{1280 * r}')
    for r in range(8):
        c(f'buffer_load_dwordx2 {vr(KR + 6 + 2 * r, 2)}, v1, {KS}, {"s36" if r >= 4 else 0} offen offset:{1280 * (r & 3)}')
    for r in range(8):
        c(f'buffer_load_dwordx2 {vr(VR + 2 * r, 2)}, v1, {VS}, {"s36" if r >= 4 else 0} offen offset:{1280 * (r & 3)}')


def p0_kv(c0, late, st=SC):
    P = PP
    c = c0
    c(f'''
    s_lshl_b32 s35, {sWAVE}, 6
    v_mul_u32_u24 v4, 1040, v6
    v_lshl_add_u32 v4, v7, 4, v4
    v_add_u32 v4, s35, v4
    s_mul_i32 s35, {sWAVE}, {4 * 1040}
    v_lshlrev_b32 v3, 4, v0
    v_add_u32 v5, s35, v3
    s_lshl_b32 s34, {sSG}, 2
    s_add_u32 s34, s34, {sWAVE}
    s_lshl_b32 s34, s34, 16
    s_lshl_b32 s35, {sIDX}, 10
    s_add_u32 s34, s34, s35
    s_mov_b32 s40, 0x05040100
    s_mov_b32 s41, 0x07060302
    ''')
    if U_OFF:
        c(f's_add_u32 s34, s34, {U_OFF}')
    kr = lambda t, dw: KR + 2 * (t + 3) + dw
    c = Code()
    for ch in range(4):
        dw, hf = ch >> 1, ch & 1
        for t in range(-2, 8):
            c(f'v_perm_b32 v{P + t + 2}, v{kr(t - 1, dw)}, v{kr(t, dw)}, s{40 + hf}')
        for t in range(8):
            c(f'v_dot2_f32_bf16 v{AC + t}, v{P + t + 2}, v{CF + 2 * ch}, 0')
        for t in range(8):
            c(f'v_dot2_f32_bf16 v{AC + t}, v{P + t}, v{CF + 2 * ch + 1}, v{AC + t}')
        for t in range(8):
            if hf:
                c(f'v_and_b32 v{VU + t}, 0xffff0000, v{VR + 2 * t + dw}')
            else:
                c(f'v_lshlrev_b32 v{VU + t}, 16, v{VR + 2 * t + dw}')
        for t in range(0, 8, 2):
            c(f'v_pk_mul_f32 {vr(AC + t, 2)}, {vr(AC + t, 2)}, {vr(VU + t, 2)}')
        for p in range(4):
            c(f'v_cvt_pk_bf16_f32 v{OG + 4 * ch + p}, v{AC + p}, v{AC + p + 4}')
        c(f'ds_write_b128 v4, {vr(OG + 4 * ch, 4)} offset:{256 * ch}')
    k0, step = OPT.get('lk0', 36), OPT.get('lks', 12)
    for k, i in enumerate(c.ins):
        c0.add(i)
        if k == 10:
            c0.extend(mark1(7))
        if k == 34:
            c0.extend(mark1(8))
        if k >= k0 and (k - k0) % step == 0 and late:
            c0.extend(late.pop(0))
    assert not late
    c = c0
    c0.extend(mark1(9))
    c('s_waitcnt lgkmcnt(0)')
    c('s_barrier')
    for i in range(4):
        c(f'ds_read_b128 {vr(OG + 4 * i, 4)}, v5 offset:{1040 * i}')
    for i in range(4):
        c(f'buffer_store_dwordx4 {vr(OG + 4 * i, 4)}, v3, {WSR}, s34 offen{st}', 'ust')
        if i < 3:
            c('s_add_u32 s34, s34, 16384')


def ln_finish(c, s1, s2, tmp):
    c(f'v_mul_f32 v{s1}, 0xbacccccd, v{s1}')
    c(f'v_mul_f32 v{s2}, 0x3acccccd, v{s2}')
    c(f'v_fma_f32 v{s2}, -v{s1}, v{s1}, v{s2}')
    c(f'v_max_f32 v{s2}, 0, v{s2}')
    c(f'v_add_f32 v{s2}, 0x3727c5ac, v{s2}')
    c(f'v_rsq_f32 v{tmp}, v{s2}')


XT = 120


def p0_x_load(c, XS):
    c(f'''
    v_and_b32 v{XT + 16}, 7, v0
    v_lshrrev_b32 v{XT + 17}, 3, v0
    v_mul_u32_u24 v{XT + 18}, 1280, v{XT + 16}
    v_lshl_add_u32 v{XT + 18}, v{XT + 17}, 4, v{XT + 18}
    s_lshl_b32 s56, {sIDX}, 2
    s_add_u32 s56, s56, {sWAVE}
    s_mul_i32 s56, s56, 40960
    s_lshl_b32 s42, {sSG}, 7
    s_add_u32 s42, s42, s56
    v_lshlrev_b32 v{XT + 16}, 4, v{XT + 16}
    v_lshl_add_u32 v{XT + 16}, v{XT + 17}, 9, v{XT + 16}
    s_lshl_b32 s35, {sSG}, 12
    s_add_u32 s56, s56, s35
    s_add_u32 s56, s56, {X4_OFF}
    ''')
    return [[Ins(f's_add_u32 s43, s42, {8 * 1280 * i}'),
             Ins(f'buffer_load_dwordx4 {vr(XT + 4 * [0, 2, 1, 3][i], 4)}, v{XT + 18}, {XS}, s43 offen')] for i in (0, 2, 1, 3)]


def p0_x_store(c, st=SC):
    for k in range(2):
        c(f'v_swap_b32 v{XT + 8 * k + 2}, v{XT + 8 * k + 4}')
        c(f'v_swap_b32 v{XT + 8 * k + 3}, v{XT + 8 * k + 5}')
    for k in range(2):
        for p in range(2):
            c(f'buffer_store_dwordx4 {vr(XT + 8 * k + 4 * p, 4)}, v{XT + 16}, {WSR}, s56 offen offset:{256 * p + 128 * k}{st}', 'xst')


def p0_stats(c, XS, sT, hook, st=SC):
    XR, A = 16, 100
    c(f'''
    v_lshrrev_b32 v3, 4, v0
    v_and_b32 v2, 15, v0
    s_lshl_b32 s38, {sT}, 2
    s_add_u32 s38, s38, {sWAVE}
    s_mul_i32 s34, s38, {16 * 1280}
    v_mul_u32_u24 v1, 1280, v3
    v_lshl_add_u32 v1, v2, 4, v1
    ''')
    for i in range(4):
        for m in range(5):
            c(f'buffer_load_dwordx4 {vr(XR + 20 * i + 4 * m, 4)}, v1, {XS}, s34 offen offset:{256 * m}')
        if i < 3:
            c('s_add_u32 s34, s34, 5120')
    hook()
    c.extend(mark1(7))
    c(f'''
    s_lshr_b32 s36, {sWAVE}, 1
    s_lshl_b32 s36, s36, 8
    s_and_b32 s37, {sWAVE}, 1
    s_lshl_b32 s37, s37, 3
    s_add_u32 s36, s36, s37
    v_lshlrev_b32 v5, 4, v3
    v_add_u32 v5, s36, v5
    s_lshl_b32 s36, {sT}, 9
    s_add_u32 s36, s36, {ST_OFF}
    s_cmp_eq_u32 {sWAVE}, 0
    s_cselect_b32 s36, s36, 0x7f000000
    s_lshl_b32 s38, s38, 11
    s_add_u32 s38, s38, {F3_OFF}
    v_lshlrev_b32 v4, 4, v0
    v_mov_b32 v8, 0
    v_mov_b32 v9, 0
    v_mov_b32 v10, 0
    v_mov_b32 v11, 0
    buffer_store_dwordx4 v[8:11], v4, {WSR}, s38 offen{st}
    buffer_store_dwordx4 v[8:11], v4, {WSR}, s38 offen offset:1024{st}
    s_mov_b32 s40, {ONES}
    ''')
    for i in range(4):
        for r in range(20):
            x = XR + 20 * i + r
            c(f'v_dot2_f32_bf16 v{A + 2 * i}, v{x}, s40, {"0" if r == 0 else "v%d" % (A + 2 * i)}')
            c(f'v_dot2_f32_bf16 v{A + 2 * i + 1}, v{x}, v{x}, {"0" if r == 0 else "v%d" % (A + 2 * i + 1)}')
    c.extend(mark1(8))
    for sh in (8, 4, 2, 1):
        for k in range(8):
            c(f'v_add_f32_dpp v{A + k}, v{A + k}, v{A + k} row_ror:{sh} row_mask:0xf bank_mask:0xf')
    for i in range(4):
        ln_finish(c, A + 2 * i, A + 2 * i + 1, A + 8 + 2 * i)
    for i in range(4):
        c(f'v_mul_f32 v{A + 9 + 2 * i}, v{A + 2 * i}, v{A + 8 + 2 * i}')
        c(f'ds_write_b64 v5, {vr(A + 8 + 2 * i, 2)} offset:{64 * i}')
    c('v_lshlrev_b32 v5, 3, v0')
    c('s_waitcnt lgkmcnt(0)')
    c('s_barrier')
    c('ds_read_b64 v[8:9], v5')
    c(f'buffer_store_dwordx2 v[8:9], v5, {WSR}, s36 offen{st}', 'sst')
    c.extend(mark1(9))


UBS = 10368
P1_LDS = 17664 + 4 * UBS + 4 * 2048
LB1 = LDS_TOTAL - P1_LDS
assert LB1 % 256 == 0
KY0 = LB1 + 256
UB0 = LB1 + 17664
EB0 = UB0 + 4 * UBS
KT = 100
cA, cACC, cB, cXQ, cSQ, cT = 16, 80, 176, 208, 224, 240
NBUF = 8


def p1_k_load(c, KKS, DS):
    T = KT
    c(f'''
    s_lshl_b32 s34, {sSG}, 4
    s_add_u32 s34, s34, {sIDX}
    s_lshl_b32 s35, s34, 2
    s_add_u32 s35, s35, {sWAVE}
    s_lshl_b32 s38, s35, 12
    s_lshl_b32 s39, s35, 1
    v_lshlrev_b32 v1, 4, v0
    v_mov_b32 v2, 0
    ''')
    o = [[Ins(f'buffer_load_dwordx4 {vr(T + 4 * i, 4)}, v1, {KKS}, s38 offen offset:{1024 * i}')] for i in range(4)]
    o[0].insert(0, Ins(f'buffer_load_ushort v{T + 16}, v2, {DS}, s39 offen'))
    return o


def p1_k(c):
    T = KT
    c(f'''
    s_lshl_b32 s34, {sSG}, 4
    s_add_u32 s34, s34, {sIDX}
    s_mul_i32 s37, {sWAVE}, 4352
    s_and_b32 s38, {sWAVE}, 1
    s_lshl_b32 s38, s38, 5
    s_add_u32 s37, s37, s38
    s_lshr_b32 s38, {sWAVE}, 1
    s_lshl_b32 s38, s38, 7
    s_add_u32 s37, s37, s38
    s_add_u32 s37, s37, {KY0}
    s_mul_i32 s38, {sWAVE}, {UBS}
    s_add_u32 s38, s38, {UB0}
    s_lshl_b32 s39, {sWAVE}, 11
    s_add_u32 s39, s39, {EB0}
    v_lshrrev_b32 v7, 4, v0
    v_and_b32 v6, 15, v0
    v_bfe_u32 v8, v0, 2, 2
    v_and_b32 v9, 3, v0
    v_lshlrev_b32 v3, 2, v0
    v_add_u32 v10, s38, v3
    v_mov_b32 v3, 0
    v_mov_b32 v4, 0
    v_mov_b32 v5, 0
    ds_write2st64_b32 v10, v2, v2 offset0:0 offset1:5
    ds_write2st64_b32 v10, v2, v2 offset0:10 offset1:15
    v_add_u32 v11, 5248, v10
    ds_write2st64_b32 v11, v2, v2 offset0:0 offset1:5
    ds_write2st64_b32 v11, v2, v2 offset0:10 offset1:15
    v_add_u32 v12, s39, v1
    ds_write_b128 v12, v[2:5]
    s_sub_u32 s42, s37, 32
    v_add_u32 v13, s42, v1
    ds_write_b128 v13, v[2:5]
    v_add_u32 v10, 128, v10
    v_add_u32 v11, 136, v11
    ''')
    c(f'''
    v_lshlrev_b32 v{T + 16}, 16, v{T + 16}
    v_lshlrev_b32 v{T + 17}, 16, v{T}
    v_add_f32 v{T + 16}, v{T + 16}, v{T + 17}
    v_cvt_pk_bf16_f32 v{T + 16}, v{T + 16}, v{T + 16}
    s_mov_b32 s42, 0xffff
    s_mov_b64 exec, 1
    v_bfi_b32 v{T}, s42, v{T + 16}, v{T}
    s_mov_b64 exec, -1
    ''')
    for i in range(4):
        c(f'ds_write_b128 v13, {vr(T + 4 * i, 4)} offset:{32 + 1024 * i}')
    c(f'''
    v_sub_u32 v14, v9, v8
    v_lshlrev_b32 v14, 3, v14
    v_lshl_add_u32 v14, v7, 6, v14
    v_add_u32 v14, s37, v14
    ''')
    for n in range(16):
        c(f'ds_read_b64_tr_b16 {vr(cA + 4 * n, 2)}, v14 offset:{256 * n + 32}')
        c(f'ds_read_b64_tr_b16 {vr(cA + 4 * n + 2, 2)}, v14 offset:{256 * n}')
    c(f'''
    v_lshlrev_b32 v14, 1, v7
    v_sub_u32 v14, v6, v14
    v_lshlrev_b32 v14, 3, v14
    v_and_b32 v13, 1, v6
    v_mul_u32_u24 v13, 5256, v13
    v_sub_u32 v14, v14, v13
    s_add_u32 s42, s38, {5248 + 64}
    v_add_u32 v14, s42, v14
    v_add_u32 v13, 16, v0
    v_subrev_u32 v15, 47, v0
    v_cmp_gt_u32 vcc, 48, v0
    v_lshlrev_b32 v2, 5, v6
    v_lshl_add_u32 v2, v7, 3, v2
    v_cndmask_b32 v13, v15, v13, vcc
    v_add_u32 v15, 64, v13
    v_add_u32 v2, s37, v2
    v_writelane_b32 v13, 64, 63
    v_writelane_b32 v15, 0, 63
    v_lshlrev_b32 v13, 4, v13
    v_lshlrev_b32 v15, 4, v15
    v_add_u32 v13, s39, v13
    v_add_u32 v15, s39, v15
    v_mul_u32_u24 v3, 4352, v8
    v_and_b32 v4, 1, v8
    v_lshl_add_u32 v3, v4, 5, v3
    v_lshrrev_b32 v4, 1, v8
    v_lshl_add_u32 v3, v4, 7, v3
    v_lshl_add_u32 v3, v7, 6, v3
    v_lshl_add_u32 v3, v9, 3, v3
    s_lshl_b32 s42, {sWAVE}, 8
    s_add_u32 s42, s42, {KY0}
    v_add_u32 v3, s42, v3
    ''')
    c(f'''
    v_lshlrev_b32 v4, 4, v6
    v_mul_u32_u24 v5, 40960, v7
    v_add_u32 v5, v5, v4
    v_lshl_add_u32 v4, v7, 10, v4
    s_lshl_b32 s43, s34, 14
    s_lshl_b32 s42, {sWAVE}, 8
    s_add_u32 s43, s43, s42
    s_mul_i32 s44, {sWAVE}, 163840
    s_lshl_b32 s42, s34, 8
    s_add_u32 s44, s44, s42
    s_lshl_b32 s45, {sWAVE}, 10
    s_add_u32 s45, s45, {ST_OFF}
    ''')
    if U_OFF:
        c(f's_add_u32 s43, s43, {U_OFF}')


def p1_load_u(c, ld=SC):
    T = cACC + 64
    for i in range(4):
        c(f'buffer_load_dwordx4 {vr(T + 4 * i, 4)}, v4, {WSR}, s43 offen{ld}')
        if i < 3:
            c('s_add_u32 s43, s43, 4096')


def p1_load_x(ld=SC):
    o = []
    for u in range(4):
        o.append([Ins(f's_add_u32 s43, s44, {X4_OFF + u * 655360}'),
                  Ins(f'buffer_load_dwordx4 {vr(cXQ + 4 * u, 4)}, v5, {WSR}, s43 offen{ld}')])
        o.append(([Ins('s_add_u32 s45, s45, 4096')] if u else []) +
                 [Ins(f'buffer_load_dwordx4 {vr(cSQ + 4 * u, 4)}, v1, {WSR}, s45 offen{ld}', f'xq{u}')])
    return o


def p1_main(c, inject, jobs, after, st=SC):
    T = cACC + 64
    uw = []
    for i in range(4):
        for a in ('v10', 'v11'):
            uw.append(Ins(f'ds_write2st64_b32 {a}, v{T + 4 * i}, v{T + 4 * i + 1} offset0:{i} offset1:{5 + i}'))
            uw.append(Ins(f'ds_write2st64_b32 {a}, v{T + 4 * i + 2}, v{T + 4 * i + 3} offset0:{10 + i} offset1:{15 + i}'))
    c.extend(uw[:4])
    inject = inject + [(2 * k, [i]) for k, i in enumerate(uw[4:])]
    groups = [[0, 1, 2, 3], [4, 5], [6, 7]]
    accb = {0: 0, 1: 16, 2: 32, 3: 48, 4: 64, 5: 80, 6: 0, 7: 16}
    acc = lambda t, cp: cACC + accb[t] + 4 * cp
    frags = []
    mf = []
    first = []
    last_of_tile = {}
    for G in groups:
        for w in range(-1, 2 * G[-1] + 1):
            for cp in range(4):
                f = len(frags)
                frags.append((cp, w))
                first.append(len(mf))
                for t in G:
                    n = 2 * t - w
                    if n < 0:
                        continue
                    a = vr(acc(t, cp), 4)
                    mf.append(Ins(f'v_mfma_f32_16x16x32_bf16 {a}, {vr(cA + 4 * n, 4)}, {vr(cB + 4 * (f % NBUF), 4)}, {"0" if w == -1 else a}'))
                    last_of_tile[t] = len(mf) - 1
    first.append(len(mf))
    rd = lambda f: Ins(f'ds_read_b128 {vr(cB + 4 * (f % NBUF), 4)}, v14 offset:{64 * (frags[f][1] + 1) + 1280 * frags[f][0]}', f'b{f}')
    pre = {-1: [rd(f) for f in range(NBUF - 1)]}
    for f in range(NBUF - 1, len(frags)):
        pos = first[f - NBUF + 1] - 1 if f >= NBUF else -1
        pre.setdefault(pos, []).append(rd(f))
    for f in range(0, len(frags), 2):
        pre.setdefault(first[f] - 1, []).append(Ins(f'@lg b{f + 1}'))
    for p, l in inject:
        pre.setdefault(p, []).extend(l)
    bg = []

    def B(pos, text, tag=None):
        bg.append((pos, Ins(text, tag)))

    def tile_epi(t):
        p = last_of_tile[t] + 4
        Y = [acc(t, cp) for cp in range(4)]
        B(p, f'v_add_f32 v{Y[3] + 1}, v{Y[3] + 1}, v{Y[1] + 3}')
        B(p, f'v_add_f32 v{Y[3] + 2}, v{Y[3] + 2}, v{Y[2] + 3}')
        B(p, f'v_add_f32 v{Y[3] + 1}, v{Y[3] + 1}, v{Y[2] + 2}')
        B(p, f'ds_write_b128 {"v15" if t & 1 else "v13"}, {vr(Y[3], 4)}')
        B(p, f'ds_read_b128 {vr(cT, 4)}, v12 offset:{1024 * (t & 1)}')
        B(p, f'v_add_f32 v{Y[0] + 1}, v{Y[0] + 1}, v{Y[1]}')
        B(p, f'v_add_f32 v{Y[0] + 2}, v{Y[0] + 2}, v{Y[1] + 1}')
        B(p, f'v_add_f32 v{Y[0] + 3}, v{Y[0] + 3}, v{Y[1] + 2}')
        B(p, f'v_add_f32 v{Y[0] + 2}, v{Y[0] + 2}, v{Y[2]}')
        B(p, f'v_add_f32 v{Y[0] + 3}, v{Y[0] + 3}, v{Y[2] + 1}')
        B(p, f'v_add_f32 v{Y[0] + 3}, v{Y[0] + 3}, v{Y[3]}')
        B(p + 6, f'v_add_f32 v{Y[0]}, v{Y[0]}, v{cT + 1}')
        B(p, f'v_add_f32 v{Y[0] + 1}, v{Y[0] + 1}, v{cT + 2}')
        B(p, f'v_add_f32 v{Y[0] + 2}, v{Y[0] + 2}, v{cT + 3}')
        B(p, f'v_cvt_pk_bf16_f32 v{Y[0]}, v{Y[0]}, v{Y[0] + 1}')
        B(p, f'v_cvt_pk_bf16_f32 v{Y[0] + 1}, v{Y[0] + 2}, v{Y[0] + 3}')
        B(p, f'ds_write_b64 v2, {vr(Y[0], 2)} offset:{512 * t}', f'y{t}')

    def tail(u, p):
        R, Tm = cT + 4, cT + 8
        B(p, f'ds_read_b64_tr_b16 {vr(R, 2)}, v3 offset:{1024 * u}')
        B(0, f'ds_read_b64_tr_b16 {vr(R + 2, 2)}, v3 offset:{1024 * u + 32}')
        B(0, f's_add_u32 s42, s44, {H4_OFF + u * 655360}')
        for k in range(4):
            x, rs, nm = cXQ + 4 * u + k, cSQ + 4 * u + (k >> 1) * 2, cSQ + 4 * u + (k >> 1) * 2 + 1
            B(0, f'v_lshlrev_b32 v{Tm}, 16, v{x}')
            B(0, f'v_and_b32 v{Tm + 1}, 0xffff0000, v{x}')
            B(0, f'v_fma_f32 v{Tm + 2}, v{Tm}, v{rs}, v{nm}')
            B(0, f'v_fma_f32 v{Tm + 3}, v{Tm + 1}, v{rs}, v{nm}')
            B(0, f'v_lshlrev_b32 v{Tm + 4}, 16, v{R + k}')
            B(0, f'v_and_b32 v{Tm + 5}, 0xffff0000, v{R + k}')
            B(0, f'v_fmac_f32 v{Tm}, v{Tm + 2}, v{Tm + 4}')
            B(0, f'v_fmac_f32 v{Tm + 1}, v{Tm + 3}, v{Tm + 5}')
            B(0, f'v_cvt_pk_bf16_f32 v{x}, v{Tm}, v{Tm + 1}')
        B(0, f'buffer_store_dwordx4 {vr(cXQ + 4 * u, 4)}, v5, {WSR}, s42 offen{st}', f'hst{u}')

    def flag(u, p):
        B(p, f's_add_u32 s42, s46, {u * 4 * 160 * FSP}')
        B(p, f'@vm hst{u}')
        B(p, f'buffer_store_dword v7, v6, {WSR}, s42 offen{st}')

    tpos = [17 * k for k in range(len(mf))]
    vm, pre2, where = pace(jobs, tpos, lambda p: OPT.get('sp1', 80))
    for p, l in pre2.items():
        pre.setdefault(p, []).extend(l)
    print('p1 prefetch ends at mfma', max(where.values()), file=sys.stderr)
    xq = {i.tag: where[id(i)] for _, _, l in sum(jobs, []) for i in l if i.tag and i.tag.startswith('xq')}
    for t in range(4):
        tile_epi(t)
    B(0, '@lg y3')
    B(0, 's_barrier')
    tail(0, xq['xq0'] + 50)
    tail(1, xq['xq1'] + 50)
    tile_epi(4)
    tile_epi(5)
    B(0, '@lg y5')
    B(0, 's_barrier')
    flag(0, 0)
    tail(2, 0)
    flag(1, 0)
    flag(2, OPT.get('f2pos', 270))
    tile_epi(6)
    tile_epi(7)
    B(0, '@lg y7')
    B(0, 's_barrier')
    tail(3, 0)
    for i in mark(6):
        bg.append((0, i))
    B(0, 's_barrier')
    nb = OPT.get('nb', 4)
    for l in after[:nb]:
        for i in l:
            bg.append((0, i))
    flag(3, 0)
    for l in after[nb:]:
        for i in l:
            bg.append((0, i))
    out = weave(mf, pre, bg, vm)
    pos = {id(i): k for k, i in enumerate(out)}
    y1 = next(i for _, i in bg if i.tag == 'y1')
    g3 = mf[last_of_tile[5] + 1]
    assert pos[id(y1)] < pos[id(g3)]
    for f, (cp, w) in enumerate(frags):
        i = min(3, (8 * w + 15) // 32)
        r = next(x for x in out if x.tag == f'b{f}')
        assert i <= 0 or pos[id(uw[4 * i + 3])] < pos[id(r)], f
    for t in ('hst0', 'hst1', 'hst2'):
        i = next(x for x in out if x.tag == t)
        print(t, 'after mfma', max(j for j in range(len(mf)) if pos[id(mf[j])] < pos[id(i)]), file=sys.stderr)
    c.extend(out)


WJB = 49152
UR = 35968


def side_w1_load(c, WGS, WUS, sN, sKQ):
    c(f'''
    v_mul_u32_u24 v100, 147, v0
    v_lshrrev_b32 v100, 11, v100
    v_mul_u32_u24 v101, 14, v100
    v_sub_u32 v101, v0, v101
    v_mul_u32_u24 v100, 3456, v100
    v_lshl_add_u32 v100, v101, 4, v100
    s_lshl_b32 s46, {sKQ}, 2
    s_add_u32 s46, s46, {sWAVE}
    s_mul_i32 s46, s46, {40 * 3456}
    s_mul_i32 s47, {sN}, 216
    s_add_u32 s46, s46, s47
    s_mul_i32 s47, {sWAVE}, {40 * 224}
    s_add_u32 s47, s47, {WJB}
    s_mov_b32 exec_hi, 0x00ffffff
    ''')
    for i in range(10):
        c(f's_add_u32 m0, s47, {896 * i}')
        c(f'buffer_load_dwordx4 v100, {WGS}, s46 offen lds', 'wd')
        c(f's_add_u32 m0, s47, {UR + 896 * i}')
        c(f'buffer_load_dwordx4 v100, {WUS}, s46 offen lds', 'wd')
        if i < 9:
            c(f's_add_u32 s46, s46, {4 * 3456}')
    c('s_mov_b64 exec, -1')


def side_w1(c, sN, sKQ, st=SC):
    c(f'''
    v_mul_u32_u24 v2, 224, v0
    v_add_u32 v2, s47, v2
    v_mov_b32 v8, 0x3f80
    v_mov_b32 v9, 0
    v_mov_b32 v10, 0
    v_mov_b32 v11, 0
    v_lshrrev_b32 v12, 5, v0
    v_bfe_u32 v13, v0, 2, 2
    v_lshl_add_u32 v3, v12, 3, v13
    v_mul_u32_u24 v3, 224, v3
    v_bfe_u32 v13, v0, 4, 1
    v_mul_u32_u24 v13, {UR}, v13
    v_add_u32 v3, v3, v13
    v_and_b32 v13, 1, v0
    v_lshl_add_u32 v3, v13, 4, v3
    v_bfe_u32 v13, v0, 1, 1
    v_lshl_add_u32 v3, v13, 3, v3
    s_lshl_b32 s36, {sWAVE}, 5
    s_add_u32 s36, s36, {WJB}
    v_add_u32 v3, s36, v3
    v_lshlrev_b32 v4, 4, v0
    s_mov_b32 s40, {ONES}
    s_mul_i32 s37, {sN}, {288 * 1024}
    s_add_u32 s37, s37, {W1_OFF}
    s_lshl_b32 s38, {sKQ}, 8
    v_lshlrev_b32 v5, 3, v0
    s_mov_b32 exec_hi, 0xff
    @vm wd
    ds_write_b64 v2, v[8:9] offset:216
    ds_write_b64 v2, v[10:11] offset:{UR + 216}
    s_mov_b64 exec, -1
    s_waitcnt lgkmcnt(0)
    s_barrier
    ''')
    for half in range(2):
        FR = 16 + 40 * half
        c.extend(mark1(7 + half))
        if half:
            c(f's_cmp_eq_u32 {sWAVE}, 3')
            c('s_cbranch_scc1 L_w1_done')
        for ks in range(10):
            for h in range(2):
                c(f'ds_read_b64_tr_b16 {vr(FR + 4 * ks + 2 * h, 2)}, v3 offset:{224 * (16 * ks + 4 * h) + 128 * half}')
        tb = [(w1_seq(b, 0), w1_seq(b, 1) - w1_seq(b, 0)) for b in range(4 * half, min(7, 4 * half + 4))]
        c(f's_movk_i32 s41, {tb[0][0]}')
        c(f's_movk_i32 s42, {tb[0][1]}')
        for w in range(1, len(tb)):
            c(f's_cmp_eq_u32 {sWAVE}, {w}')
            c(f's_cselect_b32 s41, {tb[w][0]}, s41')
            c(f's_cselect_b32 s42, {tb[w][1]}, s42')
        c(f'''
        s_lshl_b32 s41, s41, 10
        s_lshl_b32 s42, s42, 10
        s_add_u32 s41, s41, s37
        s_mul_i32 s43, s42, 40
        s_add_u32 s43, s43, s41
        s_add_u32 s43, s43, s38
        s_mul_i32 s44, {sKQ}, 10
        s_mul_i32 s44, s44, s42
        s_add_u32 s41, s41, s44
        ''')
        for ks in range(10):
            c(f'buffer_store_dwordx4 {vr(FR + 4 * ks, 4)}, v4, {WSR}, s41 offen{st}')
            if ks < 9:
                c('s_add_u32 s41, s41, s42')
            for r in range(4):
                c(f'v_dot2_f32_bf16 v12, v{FR + 4 * ks + r}, s40, {"0" if ks + r == 0 else "v12"}')
        c(f'''
        v_mov_b32 v13, v12
        v_permlane32_swap_b32 v12, v13
        v_add_f32 v12, v12, v13
        v_cvt_pk_bf16_f32 v13, v12, v12
        v_and_b32 v13, 0xffff0000, v13
        v_sub_f32 v14, v12, v13
        v_cvt_pk_bf16_f32 v14, v12, v14
        v_mov_b32 v15, v14
        s_mov_b32 exec_hi, 0
        ''')
        c(f'buffer_store_dwordx2 v[14:15], v5, {WSR}, s43 offen{st}')
        c('s_mov_b64 exec, -1')
    c('L_w1_done:')
    c.extend(mark1(9))


def side_wd_load(c, WDS, sD, sKQ):
    c(f'''
    v_mul_u32_u24 v116, 205, v0
    v_lshrrev_b32 v116, 11, v116
    v_mul_u32_u24 v117, 10, v116
    v_sub_u32 v117, v0, v117
    v_mul_u32_u24 v116, 1280, v116
    v_lshl_add_u32 v116, v117, 4, v116
    s_lshl_b32 s46, {sKQ}, 2
    s_add_u32 s46, s46, {sWAVE}
    s_mul_i32 s46, s46, {108 * 1280}
    s_mul_i32 s47, {sD}, 160
    s_add_u32 s46, s46, s47
    s_mul_i32 s47, {sWAVE}, {112 * 160}
    s_add_u32 s47, s47, {WJB}
    s_mov_b32 exec_hi, 0x0fffffff
    ''')
    for i in range(18):
        c(f's_add_u32 m0, s47, {960 * i}')
        c(f'buffer_load_dwordx4 v116, {WDS}, s46 offen lds')
        if i < 17:
            c(f's_add_u32 s46, s46, {6 * 1280}')
    c('s_mov_b64 exec, -1')


def side_wd(c, sD, sKQ, st=SC):
    assert BLK_ORDER == [6, 0, 1, 2, 3, 4, 5]
    c.extend(mark1(10))
    c(f'''
    v_lshlrev_b32 v4, 4, v0
    v_add_u32 v2, s47, v4
    v_mov_b32 v8, 0
    v_mov_b32 v9, 0
    v_mov_b32 v10, 0
    v_mov_b32 v11, 0
    s_mov_b32 exec_hi, 0xff
    ds_write_b128 v2, v[8:11] offset:{108 * 160}
    s_mov_b64 exec, -1
    v_lshrrev_b32 v12, 5, v0
    v_mul_u32_u24 v12, 112, v12
    v_bfe_u32 v13, v0, 4, 1
    v_lshl_add_u32 v12, v13, 3, v12
    v_bfe_u32 v13, v0, 2, 2
    v_add_u32 v12, v12, v13
    v_mul_u32_u24 v12, 160, v12
    v_and_b32 v13, 3, v0
    v_lshl_add_u32 v14, v13, 3, v12
    v_lshl_add_u32 v12, v13, 4, v12
    s_lshl_b32 s39, {sWAVE}, 1
    s_sub_u32 s36, s39, 1
    s_cmp_eq_u32 {sWAVE}, 0
    s_cselect_b32 s36, 6, s36
    s_mul_i32 s36, s36, {16 * 160}
    s_mul_i32 s39, s39, {16 * 160}
    s_add_u32 s36, s36, {WJB}
    s_add_u32 s39, s39, {WJB}
    s_mul_i32 s37, {sD}, 56
    s_mul_i32 s38, {sKQ}, 14
    s_add_u32 s37, s37, s38
    s_lshl_b32 s38, {sWAVE}, 2
    s_add_u32 s37, s37, s38
    s_mul_i32 s37, s37, 5120
    s_add_u32 s37, s37, {WD_OFF}
    s_waitcnt vmcnt(0) lgkmcnt(0)
    s_barrier
    ''')
    FR = 16
    c.extend(mark1(11))
    for half in range(2):
        if half:
            c(f's_cmp_eq_u32 {sWAVE}, 3')
            c('s_cbranch_scc1 L_wd_done')
        c(f'v_add_u32 v3, {"s39" if half else "s36"}, v12')
        c(f'v_add_u32 v5, {"s39" if half else "s36"}, v14')
        for k2 in range(2):
            for b in range(5):
                for h in range(2):
                    r = FR + 40 * half + 20 * k2 + 4 * b + 2 * h
                    if b < 4:
                        c(f'ds_read_b64_tr_b16 {vr(r, 2)}, v3 offset:{160 * (224 * k2 + 4 * h) + 64 * (b >> 1) + 8 * (b & 1)}')
                    else:
                        c(f'ds_read_b64_tr_b16 {vr(r, 2)}, v5 offset:{160 * (224 * k2 + 4 * h) + 128}')
        for i in range(10):
            j = 10 * half + i
            c(f'buffer_store_dwordx4 {vr(FR + 40 * half + 4 * i, 4)}, v4, {WSR}, s37 offen offset:{1024 * (j & 3)}{st}')
            if (j & 3) == 3:
                c('s_add_u32 s37, s37, 4096')
    c('L_wd_done:')
    c.extend(mark1(12))


SLOW = []


def poll_load(vval, vaddr, srd_, soff):
    return Ins(f'buffer_load_dword {vval}, {vaddr}, {srd_}, {soff} offen{SC}')


def poll_check(name, vval, vaddr, srd_, soff, need):
    cc = Code()
    cc(f'''
    L_{name}_slow:
    @reset
    s_mov_b32 s32, {SPIN}
    L_{name}_spin:
    {('s_sleep %d' % OPT['sleep']) if OPT.get('sleep') else ''}
    buffer_load_dword {vval}, {vaddr}, {srd_}, {soff} offen{SC}
    s_sub_u32 s32, s32, 1
    s_waitcnt vmcnt(0)
    v_cmp_gt_u32 vcc, {need}, {vval}
    s_cbranch_scc1 L_{name}_ok
    s_nop 0
    s_cbranch_vccnz L_{name}_spin
    s_branch L_{name}_ok
    ''')
    SLOW.extend(cc.ins)
    return [Ins(f'v_cmp_gt_u32 vcc, {need}, {vval}'), Ins('s_nop 0'), Ins(f's_cbranch_vccnz L_{name}_slow'), Ins(f'L_{name}_ok:')]


def flag_regs(c, voob, vone):
    c(f'v_mov_b32 {voob}, 0x80000000')
    c(f'v_mov_b32 {vone}, 1')
    c(f'v_writelane_b32 {voob}, 0, 0')


RING = 9
gHF, gMF, gACC, gT = 8, 168, 172, 236
NWB = 8
NHB = 33
vOOB, vFV, vPA, vPV = 'v252', 'v253', 'v254', 'v255'


def p23_ids(c):
    c(f'''
    s_lshr_b32 s34, {sSLOT}, 2
    s_sub_u32 s34, 7, s34
    s_and_b32 s35, {sSLOT}, 3
    s_and_b32 s36, {sXCD}, 1
    s_lshr_b32 s37, {sXCD}, 1
    s_lshl_b32 {sMT}, s34, 1
    s_add_u32 {sMT}, {sMT}, s36
    s_lshl_b32 {sNI}, s37, 2
    s_add_u32 {sNI}, {sNI}, s35
    s_lshl_b32 {sMT64}, {sMT}, 1
    s_and_b32 s36, s37, 1
    s_add_u32 {sMT64}, {sMT64}, s36
    s_and_b32 {sDC}, {sXCD}, 4
    s_add_u32 {sDC}, {sDC}, s35
    s_mul_i32 {sP2W}, {sNI}, {288 * 1024}
    s_lshl_b32 {sP2L}, {sWAVE}, 12
    s_add_u32 {sP2W}, {sP2W}, {sP2L}
    s_add_u32 {sP2W}, {sP2W}, {W1_OFF}
    s_mul_i32 {sP3W}, {sDC}, 56
    s_mul_i32 s35, {sWAVE}, 14
    s_add_u32 {sP3W}, {sP3W}, s35
    s_mul_i32 {sP3W}, {sP3W}, 5120
    s_add_u32 {sP3W}, {sP3W}, {WD_OFF}
    ''')


def fa_addr(c, va, t1):
    c(f'''
    v_and_b32 {t1}, 3, v0
    v_and_b32 {va}, 12, v0
    v_lshl_add_u32 {va}, {t1}, 4, {va}
    s_lshl_b32 s42, {sSG}, 6
    s_add_u32 s42, s42, {sWAVE}
    v_add_u32 {va}, s42, {va}
    v_add_u32 {t1}, {(FX_OFF - F1_OFF) // FSP - 32}, v0
    s_mov_b32 vcc_lo, 0
    s_mov_b32 vcc_hi, -1
    s_mov_b32 s47, {F1_OFF}
    s_nop 0
    v_cndmask_b32 {va}, {va}, {t1}, vcc
    v_mul_u32_u24 {va}, {FSP}, {va}
    ''')


def fw_addr(c, va):
    c(f'''
    v_and_b32 {va}, 3, v0
    v_mul_u32_u24 {va}, {FSP}, {va}
    s_mul_i32 s57, {sNI}, {4 * FSP}
    s_add_u32 s57, s57, {FW1_OFF}
    s_mul_i32 s58, {sDC}, {4 * FSP}
    s_add_u32 s58, s58, {FWD_OFF}
    ''')


def p2_dma(g):
    o = []
    for k in range(4):
        l = [Ins(f's_add_u32 m0, {sP2L}, {(g % RING) * 16384}')] if k == 0 or g >= RING else []
        if k == 0:
            l.append(Ins(f's_add_u32 {sP2T}, {sP2W}, {g * 16384}'))
        l.append(Ins(f'buffer_load_dwordx4 v1, {WSR}, {sP2T} offen offset:{1024 * k}{SC} lds', f'g{g}'))
        o.append(l)
    return o


def wfrag(j):
    if j < 56:
        return ar(32 + 4 * j, 4)
    if j < 58:
        return vr(244 + 4 * (j - 56), 4)
    if j < 62:
        return vr(gACC + 4 * (j - 58), 4)
    return ar(4 * (j - 62), 4)


def wstage(j):
    if j < 62:
        return RING * 16384 + 1024 * (j - 58)
    return 16384 * ((j - 62) >> 2) + 1024 * ((j - 62) & 3)


def p3_wload(j):
    o = []
    if j and (j & 3) == 0:
        o.append(Ins(f's_add_u32 {sP3W}, {sP3W}, 4096'))
    if j < 58:
        o.append(Ins(f'buffer_load_dwordx4 {wfrag(j)}, v1, {WSR}, {sP3W} offen offset:{1024 * (j & 3)}{SC}', f'wd{j}'))
    else:
        o.append(Ins(f's_add_u32 s39, {sP3W}, {1024 * (j & 3)}'))
        o.append(Ins(f's_add_u32 m0, {sP2L}, {wstage(j)}'))
        o.append(Ins(f'buffer_load_dwordx4 v1, {WSR}, s39 offen{SC} lds', f'wd{j}'))
    return o


def p23_setup(c):
    c(f'''
    v_lshlrev_b32 v1, 4, v0
    s_lshl_b32 s34, {sMT}, 2
    s_add_u32 s34, s34, {sWAVE}
    s_mul_i32 s35, s34, 40960
    s_add_u32 s35, s35, {H4_OFF}
    v_add_u32 v4, 0x10000, v1
    v_add_u32 v5, 0x20000, v1
    v_bfe_u32 v2, v0, 4, 1
    v_mul_u32_u24 v2, 57344, v2
    v_lshrrev_b32 v3, 5, v0
    v_lshl_add_u32 v2, v3, 8, v2
    v_and_b32 v3, 15, v0
    v_lshl_add_u32 v2, v3, 4, v2
    s_mul_i32 s38, s34, {2 * 57344}
    s_lshr_b32 s39, {sNI}, 2
    s_mul_i32 s39, s39, {56 * 256}
    s_add_u32 s38, s38, s39
    s_and_b32 s39, {sNI}, 3
    s_lshl_b32 s39, s39, 9
    s_add_u32 s38, s38, s39
    s_add_u32 s38, s38, {HH_OFF}
    s_lshr_b32 s36, s34, 1
    s_lshl_b32 s36, s36, 4
    s_add_u32 s36, s36, {sNI}
    s_lshl_b32 s36, s36, 1
    s_and_b32 s39, {sWAVE}, 1
    s_add_u32 s36, s36, s39
    s_mul_i32 s36, s36, {FSP}
    s_add_u32 s36, s36, {F3_OFF}
    s_lshl_b32 s37, {sMT64}, 2
    s_add_u32 s37, s37, {sWAVE}
    s_mul_i32 s46, s37, {16 * 1280}
    s_mul_i32 s37, s37, {8 * FSP}
    s_add_u32 s37, s37, {F3_OFF}
    s_mul_i32 s39, {sDC}, 160
    s_add_u32 s46, s46, s39
    s_mul_i32 s34, {sMT64}, {4 * 57344}
    s_mul_i32 s39, {sWAVE}, {56 * 256}
    s_add_u32 s34, s34, s39
    s_add_u32 s34, s34, {HH_OFF}
    ''')
    for r in range(4):
        c(f'''
        s_add_u32 s39, {sWAVE}, {r + 1}
        s_and_b32 s39, s39, 3
        s_mul_i32 s{40 + r}, s39, 57344
        s_add_u32 s{40 + r}, s{40 + r}, s34
        ''')
    c(f'''
    v_lshrrev_b32 v8, 4, v0
    v_lshlrev_b32 v7, 4, v3
    v_lshl_add_u32 v6, v8, 9, v7
    v_lshl_add_u32 v7, v8, 8, v7
    s_lshl_b32 s44, {sMT64}, 1
    s_lshr_b32 s39, {sWAVE}, 1
    s_add_u32 s44, s44, s39
    s_mul_i32 s44, s44, 40960
    s_and_b32 s39, {sWAVE}, 1
    s_lshl_b32 s39, s39, 3
    s_add_u32 s44, s44, s39
    s_mul_i32 s39, {sDC}, {20 * 256}
    s_add_u32 s44, s44, s39
    s_add_u32 s44, s44, {H4_OFF}
    s_add_u32 s45, s44, 4096
    v_and_b32 v3, 31, v0
    v_lshlrev_b32 v3, 3, v3
    v_lshrrev_b32 v8, 5, v0
    v_lshl_add_u32 v3, v8, 9, v3
    ''')
    flag_regs(c, vOOB, vFV)
    c(f'''
    s_lshl_b32 s39, {sWAVE}, 6
    v_add_u32 {vPA}, s39, v0
    v_min_u32 {vPA}, 159, {vPA}
    v_mul_u32_u24 {vPA}, {FSP}, {vPA}
    s_mul_i32 s47, {sMT}, {160 * FSP}
    s_add_u32 s47, s47, {F2_OFF}
    ''')


def p23_main(c, pre_groups, wpre):
    ld = st = SC
    HPRE = OPT.get('hpre', 16)
    nacc = NB1 + 1
    assert nacc == 3
    accof = lambda bi: gACC + 16 * (bi % nacc)
    order = []
    for ks in range(40):
        for bi in range(NB1):
            order.append((ks * NB1 + bi, bi, ks))
    late = [(40 * NB1 + bi, bi, 40) for bi in range(NB1)]
    rest = []
    for bi in range(NB1, 7):
        for ks in range(41):
            rest.append((NB1 * 41 + (bi - NB1) * 41 + ks, bi, ks))
    LATE_AT = 12
    order += rest[:LATE_AT] + late + rest[LATE_AT:]
    latebuf = {s: NWB + k for k, (s, _, _) in enumerate(late)}
    bufof = {}
    k = 0
    for s in range(287):
        if s in latebuf:
            bufof[s] = latebuf[s]
        else:
            bufof[s] = k % NWB
            k += 1
    gRES = 220
    wbuf = lambda s: ar(4 * bufof[s], 4) if bufof[s] < NWB else vr(gRES + 4 * (bufof[s] - NWB), 4)
    mf = []
    mpos = {}
    last_of_blk = {}
    for s, bi, ks in order:
        a = vr(accof(bi), 16)
        h = vr(gHF + 4 * ks, 4) if ks < 40 else vr(gMF, 4)
        mpos[s] = len(mf)
        last_of_blk[bi] = len(mf)
        mf.append(Ins(f'v_mfma_f32_32x32x16_bf16 {a}, {wbuf(s)}, {h}, {"0" if ks == 0 else a}'))
    N2 = len(mf)
    pre = {}
    P = lambda pos, i: pre.setdefault(pos, []).append(i)

    cs_seq = {s for s, _, ks in order if ks == 40}

    def rd(s):
        off = (s % (16 * RING)) * 1024
        if s in cs_seq:
            return [Ins(f'v_add_u32 v{gT + 6}, {off}, v3'),
                    Ins(f'ds_read2_b64 {wbuf(s)}, v{gT + 6} offset0:0 offset1:32', f'w{s}')]
        return [Ins(f'ds_read_b128 {wbuf(s)}, {["v1", "v4", "v5"][off >> 16]} offset:{off & 0xffff}', f'w{s}')]

    def hload(ks):
        o = []
        if ks and (ks & 3) == 0:
            o.append(Ins('s_add_u32 s35, s35, 4096'))
        o.append(Ins(f'buffer_load_dwordx4 {vr(gHF + 4 * ks, 4)}, v1, {WSR}, s35 offen offset:{1024 * (ks & 3)}{ld}', f'h{ks}'))
        return o
    DIST = NWB - 2
    rpos = {}
    seen = {}
    for s in range(287):
        want = s - DIST - 1
        b = bufof[s]
        if b in seen:
            want = max(want, mpos[seen[b]])
        seen[b] = s
        rpos[s] = max(-1, want, rpos.get(s - 1, -1))
        assert rpos[s] < mpos[s]
    SS = gT
    for ks in range(40):
        p = max(mpos[ks * NB1] - NB1 - 1, -1)
        P(p, Ins(f'v_permlane16_swap_b32 v{gHF + 4 * ks}, v{gHF + 4 * ks + 2}'))
        P(p, Ins(f'v_permlane16_swap_b32 v{gHF + 4 * ks + 1}, v{gHF + 4 * ks + 3}'))
        if (ks & 3) == 3:
            q = mpos[ks * NB1]
            for r in range(16 * (ks >> 2), 16 * (ks >> 2) + 16):
                x = gHF + r
                P(q, Ins(f'v_dot2_f32_bf16 v{SS}, v{x}, v{x}, {"0" if r == 0 else "v%d" % SS}'))
    bars = OPT.get('bars', [48, 96, 136, 184, 232])
    gjobs = []
    for g in range(pre_groups, 18):
        assert pre_groups == RING
        e = min(b for b in bars if b >= max(mpos[s] for s in range(16 * (g - RING), 16 * (g - RING) + 16)))
        cert = max(b for b in bars if b <= rpos[16 * g])
        assert e + 12 < cert
        for l in p2_dma(g):
            gjobs.append((e + 2, cert - OPT.get('gmargin', 14), l))
        P(cert, Ins(f'@vm g{g}'))
    for b in bars:
        P(b, Ins('s_barrier'))
    for s in range(287):
        for i in rd(s):
            P(rpos[s], i)
    quads = list(range(140, 172, 4)) + list(range(204, 236, 4))[:7] + [188, 192, 196, 200, 232]
    acc3 = lambda r, b: quads[5 * r + b]
    seq3 = []
    for ks in range(8):
        seq3 += [(r, ks) for r in range(4)]
    for ks in range(8, 12):
        seq3 += [(r, ks) for r in range(3)]
    for r in range(3):
        seq3 += [(r, 12), (r, 13)]
    seq3 += [(3, ks) for ks in range(8, 14)]
    lorder = [(r, ks) for ks in range(12) for r in range(4)] + [(r, ks) for r in range(4) for ks in (12, 13)]
    usepos = {x: N2 + 5 * i for i, x in enumerate(seq3)}
    free_at = {i: mpos[NB1 * 41 + 4 * 41 + i] for i in range(NHB)}
    hbuf, lpos = {}, {}
    CP1 = mpos[NB1 * 41 + 4 * 41] + OPT.get('cp1', 0)
    CP2 = N2 + OPT.get('cp2', 10)
    CP3 = N2 + OPT.get('cp3', 95)
    CP4 = N2 + OPT.get('cp4', 165)
    hjobs, rjobs = [], []
    for b in range(5):
        if b < 4:
            i = Ins(f'buffer_load_dwordx2 {vr(gRES + 2 * b, 2)}, v6, {WSR}, s44 offen offset:{2048 * (b >> 1) + 256 * (b & 1)}{ld}')
        else:
            i = Ins(f'buffer_load_dwordx2 {vr(gRES + 2 * b, 2)}, v7, {WSR}, s45 offen{ld}')
        rjobs.append((mpos[late[-1][0]] + 1, CP1 - 20, [i]))
    for x in lorder:
        b = min(free_at, key=lambda k_: (free_at[k_], k_))
        e = max(CP1 + 1, free_at[b], CP2 + 1 if x[1] >= 6 else 0, CP3 + 1 if x[1] >= 10 else 0, CP4 + 1 if x[1] >= 12 else 0)
        hbuf[x] = b
        free_at[b] = usepos[x] + 4
        r, ks = x
        l = []
        if ks and (ks & 3) == 0:
            l.append(Ins(f's_add_u32 s{40 + r}, s{40 + r}, 4096'))
        l.append(Ins(f'buffer_load_dwordx4 {vr(gHF + 4 * b, 4)}, v1, {WSR}, s{40 + r} offen offset:{1024 * (ks & 3)}{ld}', f'hq{r}_{ks}'))
        hjobs.append((e, usepos[x] - 1, l))
    done3 = {}
    for r, ks in seq3:
        for b in range(5):
            a = vr(acc3(r, b), 4)
            mf.append(Ins(f'v_mfma_f32_16x16x32_bf16 {a}, {wfrag(5 * ks + b)}, {vr(gHF + 4 * hbuf[(r, ks)], 4)}, {"0" if ks == 0 and r < 3 else a}'))
        done3[r] = len(mf) - 1
    P(CP1 - 40, Ins(f'v_and_b32 {vPA}, 7, v0'))
    P(CP1 - 40, Ins(f'v_mul_u32_u24 {vPA}, {FSP}, {vPA}'))
    pjobs = []
    for nm, cp, need, lead in (('cp1', CP1, 3, 28), ('cp2', CP2, 5, OPT.get('l2', 30)), ('cp3', CP3, 6, OPT.get('l3', 55)), ('cp4', CP4, 7, OPT.get('l4', 55))):
        pjobs.append((cp - lead, cp - lead + 6, [poll_load(vPV, vPA, WSR, 's37')]))
        for i in poll_check(nm, vPV, vPA, WSR, 's37', need):
            P(cp, i)
    wjobs = []
    for j in range(wpre, 70):
        e = 0 if j < 62 else min(b for b in bars if b >= mpos[16 * 11 - 1]) + 2
        wjobs.append((e, usepos[(0, j // 5)] - (1 if j < 58 else 60), p3_wload(j)))
    h2jobs = [(0, mpos[ks * NB1] - NB1 - 2, hload(ks)) for ks in range(HPRE, 40)]
    tpos, t = [], 0
    for k, m in enumerate(mf):
        tpos.append(t)
        t += 33 if m.passes == 8 else 17
        if k < 40 * NB1 and k % (4 * NB1) == 3 * NB1:
            t += 76
    vm, pre2, where = pace([h2jobs, gjobs, wjobs, hjobs, pjobs, rjobs], tpos,
                           lambda p: OPT.get('spa', 70) if p < 40 * NB1 else (OPT.get('spb', 80) if p < N2 else OPT.get('spc', 72)))
    vm[-1] = sum((hload(ks) for ks in range(HPRE)), [])
    for p, l in pre2.items():
        for i in l:
            P(p, i)
    lead = sorted((tpos[d] - tpos[where[id(l[-1])]], l[-1].tag) for _, d, l in h2jobs + wjobs + hjobs)
    print('smallest leads', lead[:6], 'last vm at', max(where.values()) - N2, 'last w', max(where[id(l[-1])] for _, _, l in wjobs) - N2, file=sys.stderr)
    for k in range(0, 286, 2):
        s2 = max(order[k][0], order[k + 1][0])
        P(k - 1, Ins(f'@lg w{s2}'))
    mk = ((8, 0), (9, 80), (10, N2 - 1), (11, N2 + 140), (12, len(mf) - 1))
    if OPT.get('mk23'):
        mk = ((1, 0), (2, 80), (3, 164), (4, CP1 - 1), (5, CP1 + 1), (6, CP2 - 1), (7, CP2 + 1), (8, CP3 - 1), (9, CP3 + 1), (10, CP4 - 1), (11, CP4 + 1), (12, len(mf) - 1))
    for k, p in ([] if OPT.get('mk1') else mk):
        for i in mark(k, True):
            P(p, i)
    bg = []
    B = lambda pos, t, tag=None: bg.append((pos, Ins(t, tag)))
    p = mpos[39 * NB1 + NB1 - 1] + 2
    NM, VA, RS, C1, T2 = gT + 1, gT, gT + 2, gT + 3, gT + 4
    B(p, f'v_mov_b32 v{T2}, v{SS}')
    B(p, f'v_mov_b32 v{NM}, v{accof(0) + 4}')
    B(p, f'v_mov_b32 v{T2 + 1}, v{accof(0) + 4}')
    B(p, f'v_permlane32_swap_b32 v{SS}, v{T2}')
    B(p, f'v_permlane32_swap_b32 v{T2 + 1}, v{NM}')
    B(p, f'v_add_f32 v{VA}, v{SS}, v{T2}')
    cc = Code()
    ln_finish(cc, NM, VA, RS)
    for i in cc.ins:
        bg.append((p, i))
    B(p, f'v_cvt_pk_bf16_f32 v{gMF}, v{NM}, v{NM}')
    B(p, f'v_and_b32 v{T2}, 0xffff0000, v{gMF}')
    B(p, f'v_sub_f32 v{T2}, v{NM}, v{T2}')
    B(p, f'v_mov_b32 v{gMF + 2}, v{gMF}')
    B(p, f'v_cvt_pk_bf16_f32 v{gMF + 1}, v{T2}, v{T2}')
    B(p, f'v_cvt_pk_bf16_f32 v{gMF + 3}, v{T2}, v{T2}', 'mf')
    B(p, f'v_mul_f32 v{C1}, 0xbfb8aa3b, v{RS}')
    B(p, f'v_mul_f32 v{VA}, v{VA}, v{RS}')
    epi_last = {}

    def post(p, bi):
        B(p, f'v_mov_b32 {vFV}, {bi + 1}')
        B(p, f'@vm hh{bi}')
        B(p, f'buffer_store_dword {vFV}, {vOOB}, {WSR}, s36 offen{st}', f'post{bi + 1}')

    for bi in range(7):
        a = accof(bi)
        p = last_of_blk[bi] + 3
        if bi in (3, 5):
            post(p, bi - 1)
        if bi == 6:
            for b in range(5):
                q = acc3(3, b)
                B(0, f'v_lshlrev_b32 v{q}, 16, v{gRES + 2 * b}')
                B(0, f'v_and_b32 v{q + 1}, 0xffff0000, v{gRES + 2 * b}')
                B(0, f'v_lshlrev_b32 v{q + 2}, 16, v{gRES + 2 * b + 1}')
                B(0, f'v_and_b32 v{q + 3}, 0xffff0000, v{gRES + 2 * b + 1}', 'res')
            post(p - 4, 5)
            p += 2
        for r in range(8):
            B(p, f'v_mul_f32 v{a + r}, v{C1}, v{a + r}')
        for r in range(8):
            B(p, f'v_exp_f32 v{a + r}, v{a + r}')
            if r:
                B(p, f'v_fma_f32 v{a + r - 1}, v{a + r - 1}, v{VA}, v{VA}')
        B(p, f'v_rcp_f32 v{a}, v{a}')
        B(p, f'v_fma_f32 v{a + 7}, v{a + 7}, v{VA}, v{VA}')
        for r in range(1, 8):
            B(p, f'v_rcp_f32 v{a + r}, v{a + r}')
            B(p, f'v_mul_f32 v{a + 8 + r - 1}, v{a + 8 + r - 1}, v{a + r - 1}')
        B(p, f'v_cvt_pk_bf16_f32 v{a}, v{a + 8}, v{a + 9}')
        B(p, f'v_mul_f32 v{a + 15}, v{a + 15}, v{a + 7}')
        for r in range(1, 4):
            B(p, f'v_cvt_pk_bf16_f32 v{a + r}, v{a + 8 + 2 * r}, v{a + 9 + 2 * r}')
        B(p, f'buffer_store_dwordx4 {vr(a, 4)}, v2, {WSR}, s38 offen offset:{2048 * (bi & 1)}{st}', f'hh{bi}')
        epi_last[bi] = bg[-1][1]
        if bi & 1:
            B(p, 's_add_u32 s38, s38, 4096')
    B(0, 's_barrier')
    B(0, f'v_add_u32 v4, {sP2L}, v1')
    B(0, f'v_add_u32 v5, {sP2L}, v5')
    post(N2 + OPT.get('post7', 70), 6)
    lastw = max(where[id(l[-1])] for _, _, l in wjobs)
    B(lastw + 30, '@vm wd69')
    for j in range(58, 70):
        B(0, f'ds_read_b128 {wfrag(j)}, {"v5" if j < 62 else "v4"} offset:{wstage(j) & 0xffff}', f'ws{j}')
    for r in range(4):
        B(0, f's_add_u32 s39, {sWAVE}, {r + 1}')
        B(0, f's_and_b32 s39, s39, 3')
        B(0, f's_mul_i32 s39, s39, {15 * 1024}')
        B(0, f's_add_u32 s39, s39, 65536')
        B(0, f'v_add_u32 v{2 + r}, s39, v1')
    B(0, f'v_lshrrev_b32 v{gT}, 4, v0')
    B(0, f'v_and_b32 v6, 15, v0')
    B(0, f'v_mul_u32_u24 v6, 1280, v6')
    B(0, f'v_lshl_add_u32 v7, v{gT}, 3, v6')
    B(0, f'v_lshl_add_u32 v6, v{gT}, 4, v6')
    for r in range(3):
        for b in range(5):
            B(done3[r] + 1 + b, f'ds_write_b128 v{2 + r}, {vr(acc3(r, b), 4)} offset:{1024 * (5 * r + b)}', f'pw{r}')
    B(0, '@lg pw2')
    B(0, 's_barrier')
    for r in range(3):
        for b in range(5):
            B(0, f'ds_read_b128 {vr(acc3(r, b), 4)}, v5 offset:{1024 * (5 * r + b)}')
    p = len(mf)
    for r in (1, 2, 3):
        for b in range(5):
            for k in (0, 2):
                B(p, f'v_pk_add_f32 {vr(acc3(0, b) + k, 2)}, {vr(acc3(0, b) + k, 2)}, {vr(acc3(r, b) + k, 2)}')
    O = gHF
    for k in range(10):
        q = acc3(0, k >> 1) + 2 * (k & 1)
        B(p, f'v_cvt_pk_bf16_f32 v{O + k}, v{q}, v{q + 1}')
        if k == 3:
            B(p, f'buffer_store_dwordx4 {vr(O, 4)}, v6, {OUTS}, s46 offen')
        if k == 7:
            B(p, f'buffer_store_dwordx4 {vr(O + 4, 4)}, v6, {OUTS}, s46 offen offset:64')
    B(p, f'buffer_store_dwordx2 {vr(O + 8, 2)}, v7, {OUTS}, s46 offen offset:128')
    out = weave(mf, pre, bg, vm, {k: OPT.get('xb', 8) for k in range(N2, N2 + 40)})
    pos = {id(i): k for k, i in enumerate(out)}
    print('hh6 stored after mfma', max(j for j in range(len(mf)) if pos[id(mf[j])] < pos[id(epi_last[6])]) - N2, file=sys.stderr)
    tagged = lambda t: [i for _, i in bg if i.tag == t][-1]
    assert pos[id(tagged('mf'))] < pos[id(mf[mpos[late[0][0]]])], 'mean fragment not ready'
    for bi in range(nacc, 7):
        firstm = mf[mpos[NB1 * 41 + (bi - NB1) * 41]]
        assert pos[id(epi_last[bi - nacc])] + 3 < pos[id(firstm)], ('acc reuse', bi)
    assert pos[id(epi_last[4])] + 3 < pos[id(mf[CP1])]
    assert pos[id(epi_last[5])] + 3 < pos[id(mf[N2])]
    assert pos[id(tagged('res'))] < pos[id(mf[N2 + 2])]
    for j in range(58, 70):
        assert pos[id(tagged(f'ws{j}'))] < pos[id(mf[usepos[(0, j // 5)] - 8])], j
    for t, cp in (('post3', CP1), ('post5', CP2), ('post6', CP3), ('post7', CP4)):
        assert pos[id(tagged(t))] < pos[id(mf[cp])], t
        k = max(j for j in range(len(mf)) if pos[id(mf[j])] < pos[id(tagged(t))])
        print(t, 'after mfma', k - N2, 'check at', cp - N2, file=sys.stderr)
    c.extend(out)
```

```python
import sys
from asmlib import *
from phases import *
import phases

NAME = 'sequential_preLN__ssm_conv_h3__glu_gated_glu__prompt'
KN = NAME + '_kernel'
HEADER = open('cdna_kernels/%s.s.ref' % NAME).read().split('; Override launch')[0]


def stamp_begin(c, ts):
    if ts:
        c('s_memrealtime s[60:61]')
        for k in range(1, 13):
            c(f's_mov_b32 s{60 + 2 * k}, 0')
        c('s_memtime s[86:87]')


def stamp_end(c, ts, k):
    if ts:
        c(f'''
        s_waitcnt vmcnt(0) lgkmcnt(0)
        s_memrealtime s[90:91]
        s_memtime s[88:89]
        s_lshl_b32 s59, s2, 2
        s_add_u32 s59, s59, {sWAVE}
        s_lshl_b32 s59, s59, 6
        s_add_u32 s59, s59, {TS_OFF + k * 65536}
        s_waitcnt lgkmcnt(0)
        ''')
        for j in range(16):
            c(f'v_mov_b32 v{j}, s{60 + 2 * j}')
        c('v_mov_b32 v16, 0')
        c('s_mov_b64 exec, 1')
        for j in range(4):
            c(f'buffer_store_dwordx4 v[{4 * j}:{4 * j + 3}], v16, {WSR}, s59 offen offset:{16 * j}')


def desc(name, vgpr, accum):
    return f'''.amdhsa_kernel {name}
  .amdhsa_next_free_vgpr {vgpr}
  .amdhsa_next_free_sgpr 102
  .amdhsa_accum_offset {accum}
  .amdhsa_group_segment_fixed_size 0
  .amdhsa_kernarg_size 104
  .amdhsa_user_sgpr_count 2
  .amdhsa_user_sgpr_kernarg_segment_ptr 1
  .amdhsa_system_sgpr_workgroup_id_x 1
  .amdhsa_float_denorm_mode_32 3
.end_amdhsa_kernel'''


def go_addr(c, va):
    c(f'v_and_b32 {va}, 7, v0')
    c(f'v_lshlrev_b32 {va}, 2, {va}')


def wg_flag(c, soff, wait='s_waitcnt vmcnt(0)'):
    c(wait)
    c('s_barrier')
    c(f's_cmp_eq_u32 {sWAVE}, 0')
    c(f's_cselect_b32 s42, {soff}, 0x7f000000')
    c(f'buffer_store_dword v7, v6, {WSR}, s42 offen{SC}')


def untag(ll):
    for l in ll:
        for i in l:
            i.tag = None
    return ll


def build(ts=False, opts={}):
    c = Code()
    OPT.clear()
    OPT.update(opts)
    OPT['ts'] = ts
    SLOW.clear()
    PG = OPT.get('pg', 5)
    WP = OPT.get('wp', 4)
    WP2 = OPT.get('wp2', 0)
    c('.p2align 8')
    c(f'.type {KN},@function')
    c(f'{KN}:')
    c('s_cmp_ge_u32 s2, 256')
    c('s_cbranch_scc1 L_exit')
    stamp_begin(c, ts)
    ids(c)
    c(f's_cmp_ge_u32 {sSLOT}, 20')
    c('s_cbranch_scc1 L_side')
    srd(c, 12, A_K, NBYTES_SD)
    srd(c, 16, A_V, NBYTES_SD)
    srd(c, 20, A_SH, D * 8)
    srd(c, 24, A_SSMK, NBYTES_SD)
    srd(c, 28, A_SSMD, D * 2)
    srd(c, 44, A_Q, NBYTES_SD)
    srd(c, 8, WS, WS_USED)
    srd(c, 48, OUT, NBYTES_SD)
    srd(c, 52, DBG, 256)
    conv_ids(c)
    p0_kv_load(c, 's[12:15]', 's[16:19]', 's[20:23]')
    c.extend(mark(1))
    p23_ids(c)
    late = p1_k_load(c, 's[24:27]', 's[28:31]')
    late += p0_x_load(c, 's[44:47]')
    p0_kv(c, late)
    go_addr(c, 'v118')
    c.add(poll_load('v119', 'v118', DBGS, '0'))
    c.extend(mark(2))
    p1_k(c)
    flag_regs(c, 'v6', 'v7')
    c(f'''
    s_lshl_b32 s42, {sSG}, 2
    s_add_u32 s35, s42, {sWAVE}
    s_lshl_b32 s35, s35, 4
    s_add_u32 s35, s35, {sIDX}
    s_mul_i32 s35, s35, {FSP}
    s_add_u32 s35, s35, {F1_OFF}
    s_lshr_b32 s36, {sIDX}, 2
    s_add_u32 s36, s36, s42
    s_mul_i32 s36, s36, {16 * FSP}
    s_add_u32 s36, s36, {F1_OFF}
    v_and_b32 v8, 15, v0
    v_mul_u32_u24 v8, {FSP}, v8
    s_mul_i32 s46, {sWAVE}, 160
    s_add_u32 s46, s46, s34
    s_mul_i32 s46, s46, {FSP}
    s_add_u32 s46, s46, {F2_OFF}
    ''')
    c.extend(poll_check('go_c', 'v119', 'v118', DBGS, '0', 1))
    c('s_waitcnt vmcnt(0)')
    c(f'buffer_store_dword v7, v6, {WSR}, s35 offen{SC}')
    c.extend(mark(3))
    XL = OPT.get('xlate', 0)
    if not XL:
        p0_x_store(c)
    c(f's_cmp_ge_u32 {sWAVE}, 1')
    c('s_cbranch_scc1 L_s1_ok')
    c.add(poll_load('v9', 'v8', WSR, 's36'))
    c.extend(poll_check('s1', 'v9', 'v8', WSR, 's36', 1))
    c('s_waitcnt vmcnt(0)')
    c('s_barrier')
    c.extend(mark(4))
    p1_load_u(c)
    if XL:
        p0_x_store(c)
    fa_addr(c, 'v8', 'v9')
    fw_addr(c, 'v254')
    c('v_mov_b32 v7, 2')
    xf = [Ins('@vm xst'), Ins(f'buffer_store_dword v7, v6, {WSR}, s35 offen{SC}')]
    if not XL:
        c.extend(xf)
    FA, FB = OPT.get('fa', 70), OPT.get('fb', 170)
    inj = [(0, mark(5)), (FA, poll_check('fa', 'v9', 'v8', WSR, 's47', 2)), (FB, poll_check('fb', 'v255', 'v254', WSR, 's57', 1))]
    if XL:
        inj.append((XL, xf))
    if OPT.get('mk1'):
        inj += [(p, mark(k)) for k, p in ((10, FA + 1), (11, FB - 1), (12, FB + 1))]
    polls = [(FA - 36, FA - 30, [poll_load('v9', 'v8', WSR, 's47')]), (FB - 40, FB - 30, [poll_load('v255', 'v254', WSR, 's57')])]
    xj = [(FA + 2, 200, l) for l in p1_load_x()]
    gj = [(FB + 2, 285, l) for g in range(PG) for l in untag(p2_dma(g))]
    after = sum((untag(p2_dma(g)) for g in range(PG, RING)), [])
    p1_main(c, inj, [polls, xj, gj], after)
    c('s_branch L_p2')
    c('L_side:')
    c('@reset')
    srd(c, 12, A_Q, NBYTES_SD)
    srd(c, 16, B_WG, D * F * 2)
    srd(c, 20, B_WU, D * F * 2)
    srd(c, 24, B_WD, D * F * 2)
    srd(c, 8, WS, WS_USED)
    srd(c, 48, OUT, NBYTES_SD)
    srd(c, 52, DBG, 256)
    c(f's_cmp_ge_u32 {sSLOT}, 28')
    c('s_cbranch_scc1 L_side2')
    c(f'''
    s_sub_u32 s57, {sSLOT}, 20
    s_and_b32 s6, s57, 1
    s_lshr_b32 s7, s57, 1
    s_lshl_b32 s34, {sXCD}, 1
    s_add_u32 s6, s6, s34
    ''')
    if OPT.get('codepf', 1):
        c(f'''
        s_getpc_b64 s[34:35]
        L_pc:
        s_sub_u32 s34, s34, L_pc-{KN}
        s_subb_u32 s35, s35, 0
        s_lshl_b32 s36, {sWAVE}, 3
        s_add_u32 s36, s36, s57
        s_lshl_b32 s36, s36, 11
        v_and_b32 v1, 15, v0
        v_lshl_add_u32 v1, v1, 7, s36
        s_mov_b32 s36, L_code_end-{KN}-4
        v_mov_b32 v3, s35
        v_min_u32 v2, s36, v1
        v_add_co_u32 v2, vcc, s34, v2
        v_addc_co_u32 v3, vcc, 0, v3, vcc
        global_load_dword v250, v[2:3], off
        ''')
    side_w1_load(c, 's[16:19]', 's[20:23]', 's6', 's7')
    c.extend(mark(1))
    flag_regs(c, 'v6', 'v7')
    side_w1(c, 's6', 's7')
    c(f'''
    s_lshl_b32 s56, s6, 2
    s_add_u32 s56, s56, s7
    s_mul_i32 s56, s56, {FSP}
    s_add_u32 s56, s56, {FW1_OFF}
    s_branch L_side_pub
    ''')
    c('L_side2:')
    c('@reset')
    c('s_waitcnt lgkmcnt(0)')
    flag_regs(c, 'v6', 'v7')
    c(f'''
    s_lshl_b32 s34, {sXCD}, 2
    s_add_u32 s35, s34, {sWAVE}
    s_lshl_b32 s35, s35, 11
    s_add_u32 s35, s35, {FL_OFF}
    s_cmp_eq_u32 {sWAVE}, 0
    s_cselect_b32 s45, s34, 0x7f000000
    s_cmp_eq_u32 {sSLOT}, 28
    s_cselect_b32 s35, s35, 0x7f000000
    s_cselect_b32 s45, s45, 0x7f000000
    v_lshlrev_b32 v1, 4, v0
    v_mov_b32 v2, 0
    v_mov_b32 v3, 0
    v_mov_b32 v4, 0
    v_mov_b32 v5, 0
    ''')
    c(f'buffer_store_dwordx4 v[2:5], v1, {WSR}, s35 offen{SC}', 'z1')
    c(f'buffer_store_dwordx4 v[2:5], v1, {WSR}, s35 offen offset:1024{SC}', 'z1')

    def go_hook():
        c('@vm z1')
        c('s_barrier')
        c(f'buffer_store_dword v7, v6, {DBGS}, s45 offen{SC}')
        if OPT.get('wdearly', 1):
            side_wd_load(c, 's[24:27]', 's6', 's7')
    c(f'''
    s_and_b32 s7, {sXCD}, 3
    s_and_b32 s6, {sXCD}, 4
    s_add_u32 s6, s6, {sSLOT}
    s_sub_u32 s6, s6, 28
    ''')
    c(f'''
    s_lshl_b32 s56, {sXCD}, 2
    s_add_u32 s56, s56, {sSLOT}
    s_sub_u32 s56, s56, 28
    ''')
    p0_stats(c, 's[12:15]', 's56', go_hook)
    go_addr(c, 'v118')
    c.add(poll_load('v119', 'v118', DBGS, '0'))
    c(f's_mul_i32 s56, s56, {FSP}')
    c(f's_add_u32 s56, s56, {FX_OFF}')
    c('v_mov_b32 v7, 2')
    c.extend(poll_check('go_x', 'v119', 'v118', DBGS, '0', 1))
    wg_flag(c, 's56')
    c.extend(mark(1))
    if not OPT.get('wdearly', 1):
        side_wd_load(c, 's[24:27]', 's6', 's7')
    side_wd(c, 's6', 's7')
    c(f'''
    s_lshl_b32 s56, s6, 2
    s_add_u32 s56, s56, s7
    s_mul_i32 s56, s56, {FSP}
    s_add_u32 s56, s56, {FWD_OFF}
    L_side_pub:
    @reset
    ''')
    go_addr(c, 'v118')
    c.add(poll_load('v119', 'v118', DBGS, '0'))
    p23_ids(c)
    fw_addr(c, 'v8')
    c('v_lshlrev_b32 v1, 4, v0')
    c('v_and_b32 v10, 31, v0')
    c(f'v_mul_u32_u24 v10, {FSP}, v10')
    c(f's_mov_b32 s47, {FX_OFF}')
    c('s_waitcnt vmcnt(0)')
    c.extend(poll_check('go_d', 'v119', 'v118', DBGS, '0', 1))
    wg_flag(c, 's56')
    c.extend(mark(2))
    c.add(poll_load('v11', 'v10', WSR, 's47'))
    c.add(poll_load('v9', 'v8', WSR, 's57'))
    c.extend(poll_check('fx_s', 'v11', 'v10', WSR, 's47', 1))
    c.extend(poll_check('fw_s', 'v9', 'v8', WSR, 's57', 1))
    c.extend(mark(3))
    for g in range(RING):
        c.extend(sum(untag(p2_dma(g)), []))
    c('L_p2:')
    c('@reset')
    c('v_and_b32 v8, 3, v0')
    c(f'v_mul_u32_u24 v10, {FSP}, v8')
    c.add(poll_load('v9', 'v10', WSR, 's58'))
    p23_setup(c)
    c.extend(poll_check('fd', 'v9', 'v10', WSR, 's58', 1))
    for j in range(WP):
        c.extend(untag([p3_wload(j)])[0])
    c(f's_cmp_eq_u32 {sWAVE}, 3')
    c('s_cbranch_scc1 L_s2_ok')
    c.add(poll_load(vPV, vPA, WSR, 's47'))
    c('s_waitcnt vmcnt(0)')
    c.extend(poll_check('s2', vPV, vPA, WSR, 's47', 1))
    c('s_waitcnt vmcnt(0) lgkmcnt(0)')
    c('s_barrier')
    c.extend([] if OPT.get('mk1') else mark(7))
    p23_main(c, RING, WP)
    stamp_end(c, ts, 0)
    c('L_exit:')
    c('s_endpgm')
    c.extend(SLOW)
    c('L_code_end:')
    st = {}
    body = text_of(finalize(c.ins, st))
    print(st, file=sys.stderr)
    out = HEADER
    out += f'; @launch grid=(256,1,1) block=(256,1,1) lds={LDS_TOTAL}\n'
    out += f'.amdgcn_target "amdgcn-amd-amdhsa--gfx950"\n.text\n.globl {KN}\n'
    out += body + '\n.section .rodata,"a"\n'
    out += '.p2align 6\n' + desc(KN, 512, 256) + '\n'
    return out


if __name__ == '__main__':
    import argparse
    ap = argparse.ArgumentParser()
    ap.add_argument('-o', default='cdna_kernels/%s.s' % NAME)
    ap.add_argument('--ts', action='store_true')
    ap.add_argument('--opt', nargs='*', default=[])
    a = ap.parse_args()
    opts = {}
    for kv in a.opt:
        k, _, v = kv.partition('=')
        opts[k] = int(v) if v else 1
    open(a.o, 'w').write(build(a.ts, opts))
```

```python
import sys
from asmlib import *
from phases import *
import phases

NAME = 'sequential_preLN__ssm_conv_h3__glu_gated_glu__prompt'
KN = NAME + '_kernel'
HEADER = open('cdna_kernels/%s.s.ref' % NAME).read().split('; Override launch')[0]


def stamp_begin(c, ts):
    if ts:
        c('s_memrealtime s[60:61]')
        for k in range(1, 13):
            c(f's_mov_b32 s{60 + 2 * k}, 0')
        c('s_memtime s[86:87]')


def stamp_end(c, ts, k):
    if ts:
        c(f'''
        s_waitcnt vmcnt(0) lgkmcnt(0)
        s_memrealtime s[90:91]
        s_memtime s[88:89]
        s_lshl_b32 s59, s2, 2
        s_add_u32 s59, s59, {sWAVE}
        s_lshl_b32 s59, s59, 6
        s_add_u32 s59, s59, {TS_OFF + k * 65536}
        s_waitcnt lgkmcnt(0)
        ''')
        for j in range(16):
            c(f'v_mov_b32 v{j}, s{60 + 2 * j}')
        c('v_mov_b32 v16, 0')
        c('s_mov_b64 exec, 1')
        for j in range(4):
            c(f'buffer_store_dwordx4 v[{4 * j}:{4 * j + 3}], v16, {WSR}, s59 offen offset:{16 * j}')


def desc(name, vgpr, accum):
    return f'''.amdhsa_kernel {name}
  .amdhsa_next_free_vgpr {vgpr}
  .amdhsa_next_free_sgpr 102
  .amdhsa_accum_offset {accum}
  .amdhsa_group_segment_fixed_size 0
  .amdhsa_kernarg_size 104
  .amdhsa_user_sgpr_count 2
  .amdhsa_user_sgpr_kernarg_segment_ptr 1
  .amdhsa_system_sgpr_workgroup_id_x 1
  .amdhsa_float_denorm_mode_32 3
.end_amdhsa_kernel'''


def go_addr(c, va):
    c(f'v_and_b32 {va}, 7, v0')
    c(f'v_lshlrev_b32 {va}, 2, {va}')


def wg_flag(c, soff, wait='s_waitcnt vmcnt(0)'):
    c(wait)
    c('s_barrier')
    c(f's_cmp_eq_u32 {sWAVE}, 0')
    c(f's_cselect_b32 s42, {soff}, 0x7f000000')
    c(f'buffer_store_dword v7, v6, {WSR}, s42 offen{SC}')


def probe(c, a, b, mult):
    c('.p2align 8')
    c('.type probe_kernel,@function')
    c('probe_kernel:')
    c('@reset')
    c('s_cmp_ge_u32 s2, 1')
    c('s_cbranch_scc1 L_probe_exit')
    srd(c, 8, WS, WS_USED)
    c('v_lshlrev_b32 v1, 6, v0')
    c('s_waitcnt lgkmcnt(0)')
    for k, (kn, wd, op) in enumerate([(0, 0, 'min'), a, b]):
        c(f's_mov_b32 s20, {TS_OFF + kn * 65536 + wd * 4}')
        for i in range(16):
            c(f'buffer_load_dword v{8 + i}, v1, {WSR}, s20 offen')
            c('s_add_u32 s20, s20, 4096')
        for i in range(1, 16):
            c(f'v_{op}_u32 v8, v8, v{8 + i}')
        c(f'v_readlane_b32 s{30 + k}, v8, 0')
        for l in range(1, 64):
            c(f'v_readlane_b32 s21, v8, {l}')
            c(f's_{op}_u32 s{30 + k}, s{30 + k}, s21')
    c(f'''
    s_sub_u32 s32, s32, s31
    s_min_u32 s32, s32, 20000
    s_mul_i32 s32, s32, {mult}
    s_add_u32 s32, s32, 10000
    L_probe_spin:
    s_memrealtime s[22:23]
    s_waitcnt lgkmcnt(0)
    s_sub_u32 s22, s22, s30
    s_cmp_lt_u32 s22, s32
    s_cbranch_scc1 L_probe_spin
    L_probe_exit:
    s_endpgm
    ''')


def untag(ll):
    for l in ll:
        for i in l:
            i.tag = None
    return ll


def build(ts=False, opts={}):
    c = Code()
    OPT.clear()
    OPT.update(opts)
    OPT['ts'] = ts
    SLOW.clear()
    PG = OPT.get('pg', 5)
    WP = OPT.get('wp', 4)
    WP2 = OPT.get('wp2', 0)
    c('.p2align 8')
    c(f'.type {KN},@function')
    c(f'{KN}:')
    c('s_cmp_ge_u32 s2, 256')
    c('s_cbranch_scc1 L_exit')
    stamp_begin(c, ts)
    ids(c)
    c(f's_cmp_ge_u32 {sSLOT}, 20')
    c('s_cbranch_scc1 L_side')
    srd(c, 12, A_K, NBYTES_SD)
    srd(c, 16, A_V, NBYTES_SD)
    srd(c, 20, A_SH, D * 8)
    srd(c, 24, A_SSMK, NBYTES_SD)
    srd(c, 28, A_SSMD, D * 2)
    srd(c, 44, A_Q, NBYTES_SD)
    srd(c, 8, WS, WS_USED)
    srd(c, 48, OUT, NBYTES_SD)
    srd(c, 52, DBG, 256)
    conv_ids(c)
    p0_kv_load(c, 's[12:15]', 's[16:19]', 's[20:23]')
    c.extend(mark(1))
    p23_ids(c)
    late = p1_k_load(c, 's[24:27]', 's[28:31]')
    late += p0_x_load(c, 's[44:47]')
    p0_kv(c, late)
    go_addr(c, 'v118')
    c.add(poll_load('v119', 'v118', DBGS, '0'))
    c.extend(mark(2))
    p1_k(c)
    flag_regs(c, 'v6', 'v7')
    c(f'''
    s_lshl_b32 s42, {sSG}, 2
    s_add_u32 s35, s42, {sWAVE}
    s_lshl_b32 s35, s35, 4
    s_add_u32 s35, s35, {sIDX}
    s_mul_i32 s35, s35, {FSP}
    s_add_u32 s35, s35, {F1_OFF}
    s_lshr_b32 s36, {sIDX}, 2
    s_add_u32 s36, s36, s42
    s_mul_i32 s36, s36, {16 * FSP}
    s_add_u32 s36, s36, {F1_OFF}
    v_and_b32 v8, 15, v0
    v_mul_u32_u24 v8, {FSP}, v8
    s_mul_i32 s46, {sWAVE}, 160
    s_add_u32 s46, s46, s34
    s_mul_i32 s46, s46, {FSP}
    s_add_u32 s46, s46, {F2_OFF}
    ''')
    c.extend(poll_check('go_c', 'v119', 'v118', DBGS, '0', 1))
    c('s_waitcnt vmcnt(0)')
    c(f'buffer_store_dword v7, v6, {WSR}, s35 offen{SC}')
    c.extend(mark(3))
    XL = OPT.get('xlate', 0)
    if not XL:
        p0_x_store(c)
    c(f's_cmp_ge_u32 {sWAVE}, 1')
    c('s_cbranch_scc1 L_s1_ok')
    c.add(poll_load('v9', 'v8', WSR, 's36'))
    c.extend(poll_check('s1', 'v9', 'v8', WSR, 's36', 1))
    c('s_waitcnt vmcnt(0)')
    c('s_barrier')
    c.extend(mark(4))
    p1_load_u(c)
    if XL:
        p0_x_store(c)
    fa_addr(c, 'v8', 'v9')
    fw_addr(c, 'v254')
    c('v_mov_b32 v7, 2')
    xf = [Ins('@vm xst'), Ins(f'buffer_store_dword v7, v6, {WSR}, s35 offen{SC}')]
    if not XL:
        c.extend(xf)
    FA, FB = OPT.get('fa', 70), OPT.get('fb', 170)
    inj = [(0, mark(5)), (FA, poll_check('fa', 'v9', 'v8', WSR, 's47', 2)), (FB, poll_check('fb', 'v255', 'v254', WSR, 's57', 1))]
    if XL:
        inj.append((XL, xf))
    if OPT.get('mk1'):
        inj += [(p, mark(k)) for k, p in ((10, FA + 1), (11, FB - 1), (12, FB + 1))]
    polls = [(FA - 36, FA - 30, [poll_load('v9', 'v8', WSR, 's47')]), (FB - 40, FB - 30, [poll_load('v255', 'v254', WSR, 's57')])]
    xj = [(FA + 2, 200, l) for l in p1_load_x()]
    gj = [(FB + 2, 285, l) for g in range(PG) for l in untag(p2_dma(g))]
    after = sum((untag(p2_dma(g)) for g in range(PG, RING)), [])
    p1_main(c, inj, [polls, xj, gj], after)
    c('s_branch L_p2')
    c('L_side:')
    c('@reset')
    srd(c, 12, A_Q, NBYTES_SD)
    srd(c, 16, B_WG, D * F * 2)
    srd(c, 20, B_WU, D * F * 2)
    srd(c, 24, B_WD, D * F * 2)
    srd(c, 8, WS, WS_USED)
    srd(c, 48, OUT, NBYTES_SD)
    srd(c, 52, DBG, 256)
    c(f's_cmp_ge_u32 {sSLOT}, 28')
    c('s_cbranch_scc1 L_side2')
    c(f'''
    s_sub_u32 s57, {sSLOT}, 20
    s_and_b32 s6, s57, 1
    s_lshr_b32 s7, s57, 1
    s_lshl_b32 s34, {sXCD}, 1
    s_add_u32 s6, s6, s34
    ''')
    if OPT.get('codepf', 1):
        c(f'''
        s_getpc_b64 s[34:35]
        L_pc:
        s_sub_u32 s34, s34, L_pc-{KN}
        s_subb_u32 s35, s35, 0
        s_lshl_b32 s36, {sWAVE}, 3
        s_add_u32 s36, s36, s57
        s_lshl_b32 s36, s36, 11
        v_and_b32 v1, 15, v0
        v_lshl_add_u32 v1, v1, 7, s36
        s_mov_b32 s36, L_code_end-{KN}-4
        v_mov_b32 v3, s35
        v_min_u32 v2, s36, v1
        v_add_co_u32 v2, vcc, s34, v2
        v_addc_co_u32 v3, vcc, 0, v3, vcc
        global_load_dword v250, v[2:3], off
        ''')
    side_w1_load(c, 's[16:19]', 's[20:23]', 's6', 's7')
    c.extend(mark(1))
    flag_regs(c, 'v6', 'v7')
    side_w1(c, 's6', 's7')
    c(f'''
    s_lshl_b32 s56, s6, 2
    s_add_u32 s56, s56, s7
    s_mul_i32 s56, s56, {FSP}
    s_add_u32 s56, s56, {FW1_OFF}
    s_branch L_side_pub
    ''')
    c('L_side2:')
    c('@reset')
    c('s_waitcnt lgkmcnt(0)')
    flag_regs(c, 'v6', 'v7')
    c(f'''
    s_lshl_b32 s34, {sXCD}, 2
    s_add_u32 s35, s34, {sWAVE}
    s_lshl_b32 s35, s35, 11
    s_add_u32 s35, s35, {FL_OFF}
    s_cmp_eq_u32 {sWAVE}, 0
    s_cselect_b32 s45, s34, 0x7f000000
    s_cmp_eq_u32 {sSLOT}, 28
    s_cselect_b32 s35, s35, 0x7f000000
    s_cselect_b32 s45, s45, 0x7f000000
    v_lshlrev_b32 v1, 4, v0
    v_mov_b32 v2, 0
    v_mov_b32 v3, 0
    v_mov_b32 v4, 0
    v_mov_b32 v5, 0
    ''')
    c(f'buffer_store_dwordx4 v[2:5], v1, {WSR}, s35 offen{SC}', 'z1')
    c(f'buffer_store_dwordx4 v[2:5], v1, {WSR}, s35 offen offset:1024{SC}', 'z1')

    def go_hook():
        c('@vm z1')
        c('s_barrier')
        c(f'buffer_store_dword v7, v6, {DBGS}, s45 offen{SC}')
        if OPT.get('wdearly', 1):
            side_wd_load(c, 's[24:27]', 's6', 's7')
    c(f'''
    s_and_b32 s7, {sXCD}, 3
    s_and_b32 s6, {sXCD}, 4
    s_add_u32 s6, s6, {sSLOT}
    s_sub_u32 s6, s6, 28
    ''')
    c(f'''
    s_lshl_b32 s56, {sXCD}, 2
    s_add_u32 s56, s56, {sSLOT}
    s_sub_u32 s56, s56, 28
    ''')
    p0_stats(c, 's[12:15]', 's56', go_hook)
    go_addr(c, 'v118')
    c.add(poll_load('v119', 'v118', DBGS, '0'))
    c(f's_mul_i32 s56, s56, {FSP}')
    c(f's_add_u32 s56, s56, {FX_OFF}')
    c('v_mov_b32 v7, 2')
    c.extend(poll_check('go_x', 'v119', 'v118', DBGS, '0', 1))
    wg_flag(c, 's56')
    c.extend(mark(1))
    if not OPT.get('wdearly', 1):
        side_wd_load(c, 's[24:27]', 's6', 's7')
    side_wd(c, 's6', 's7')
    c(f'''
    s_lshl_b32 s56, s6, 2
    s_add_u32 s56, s56, s7
    s_mul_i32 s56, s56, {FSP}
    s_add_u32 s56, s56, {FWD_OFF}
    L_side_pub:
    @reset
    ''')
    go_addr(c, 'v118')
    c.add(poll_load('v119', 'v118', DBGS, '0'))
    p23_ids(c)
    fw_addr(c, 'v8')
    c('v_lshlrev_b32 v1, 4, v0')
    c('v_and_b32 v10, 31, v0')
    c(f'v_mul_u32_u24 v10, {FSP}, v10')
    c(f's_mov_b32 s47, {FX_OFF}')
    c('s_waitcnt vmcnt(0)')
    c.extend(poll_check('go_d', 'v119', 'v118', DBGS, '0', 1))
    wg_flag(c, 's56')
    c.extend(mark(2))
    c.add(poll_load('v11', 'v10', WSR, 's47'))
    c.add(poll_load('v9', 'v8', WSR, 's57'))
    c.extend(poll_check('fx_s', 'v11', 'v10', WSR, 's47', 1))
    c.extend(poll_check('fw_s', 'v9', 'v8', WSR, 's57', 1))
    c.extend(mark(3))
    for g in range(RING):
        c.extend(sum(untag(p2_dma(g)), []))
    c('L_p2:')
    c('@reset')
    c('v_and_b32 v8, 3, v0')
    c(f'v_mul_u32_u24 v10, {FSP}, v8')
    c.add(poll_load('v9', 'v10', WSR, 's58'))
    p23_setup(c)
    c.extend(poll_check('fd', 'v9', 'v10', WSR, 's58', 1))
    for j in range(WP):
        c.extend(untag([p3_wload(j)])[0])
    c(f's_cmp_eq_u32 {sWAVE}, 3')
    c('s_cbranch_scc1 L_s2_ok')
    c.add(poll_load(vPV, vPA, WSR, 's47'))
    c('s_waitcnt vmcnt(0)')
    c.extend(poll_check('s2', vPV, vPA, WSR, 's47', 1))
    c('s_waitcnt vmcnt(0) lgkmcnt(0)')
    c('s_barrier')
    c.extend([] if OPT.get('mk1') else mark(7))
    p23_main(c, RING, WP)
    stamp_end(c, ts, 0)
    if OPT.get('spin100'):
        c('''
        L_sp100:
        s_memrealtime s[22:23]
        s_waitcnt lgkmcnt(0)
        s_sub_u32 s22, s22, s60
        s_cmp_lt_u32 s22, 10000
        s_cbranch_scc1 L_sp100
        ''')
    c('L_exit:')
    c('s_endpgm')
    c.extend(SLOW)
    c('L_code_end:')
    prb = OPT.get('prb')
    if prb is not None:
        probe(c, (0, 0, 'min'), (0, prb, 'max'), 10)
    st = {}
    body = text_of(finalize(c.ins, st))
    print(st, file=sys.stderr)
    out = HEADER
    if prb is not None:
        out += f'; @launch kernel={KN} grid=(256,1,1) block=(256,1,1) lds={LDS_TOTAL}\n'
        out += '; @launch kernel=probe_kernel grid=(1,1,1) block=(64,1,1) lds=0\n'
    else:
        out += f'; @launch grid=(256,1,1) block=(256,1,1) lds={LDS_TOTAL}\n'
    out += f'.amdgcn_target "amdgcn-amd-amdhsa--gfx950"\n.text\n.globl {KN}\n'
    out += body + '\n.section .rodata,"a"\n'
    out += '.p2align 6\n' + desc(KN, 512, 256) + '\n'
    if prb is not None:
        out += '.p2align 6\n' + desc('probe_kernel', 32, 32) + '\n'
    return out


if __name__ == '__main__':
    import argparse
    ap = argparse.ArgumentParser()
    ap.add_argument('-o', default='cdna_kernels/%s.s' % NAME)
    ap.add_argument('--ts', action='store_true')
    ap.add_argument('--opt', nargs='*', default=[])
    a = ap.parse_args()
    opts = {}
    for kv in a.opt:
        k, _, v = kv.partition('=')
        opts[k] = int(v) if v else 1
    open(a.o, 'w').write(build(a.ts, opts))
```

```python
import re

REG_RE = re.compile(r'\b([vas])(?:(\d+)\b|\[(\d+):(\d+)\])')
TRANS = ('v_exp_f32', 'v_log_f32', 'v_rcp_f32', 'v_rsq_f32', 'v_sqrt_f32', 'v_sin_f32', 'v_cos_f32')


def regs_of(op):
    out = []
    for m in REG_RE.finditer(op):
        f = m.group(1)
        if m.group(2) is not None:
            out.append((f, int(m.group(2))))
        else:
            out.extend((f, i) for i in range(int(m.group(3)), int(m.group(4)) + 1))
    if re.search(r'\bvcc\b', op):
        out.append(('s', 'vcc'))
    if re.search(r'\bm0\b', op):
        out.append(('s', 'm0'))
    if re.search(r'\bexec\b', op):
        out.append(('s', 'exec'))
    return out


def vr(base, n=1, f='v'):
    return f'{f}{base}' if n == 1 else f'{f}[{base}:{base + n - 1}]'


def ar(base, n=1):
    return vr(base, n, 'a')


def sr(base, n=1):
    return vr(base, n, 's')


class Ins:
    __slots__ = ('text', 'mn', 'ops', 'kind', 'rd', 'wr', 'tag', 'passes', 'srcc', 'srcab', 'wide_store', 'data', 'cost')

    def __init__(self, text, tag=None):
        self.text = text
        self.tag = tag
        t = text.split(';')[0].strip()
        self.passes = 0
        self.srcc = set()
        self.srcab = set()
        self.wide_store = False
        self.data = set()
        self.rd = set()
        self.wr = set()
        self.cost = 4
        if t.endswith(':') or t.startswith('.') or not t:
            self.mn = t
            self.kind = 'label' if t.endswith(':') else 'dir'
            self.ops = []
            self.cost = 0
            return
        if t.startswith('@'):
            p = t.split()
            self.mn = p[0]
            self.ops = p[1:]
            self.kind = 'pseudo'
            self.cost = 4
            return
        p = t.split(None, 1)
        mn = self.mn = p[0]
        ops = self.ops = [o.strip() for o in p[1].split(',')] if len(p) > 1 else []
        R = [set(regs_of(o)) for o in ops]
        allr = set().union(*R) if R else set()
        rest = set().union(*R[1:]) if len(R) > 1 else set()
        if mn.startswith('v_mfma'):
            self.kind = 'mfma'
            self.wr = R[0]
            self.srcab = R[1] | R[2]
            self.srcc = R[3]
            self.rd = rest
            self.passes = 8 if '32x32x16' in mn else 4
            assert '32x32x16' in mn or '16x16x32' in mn
            self.cost = 8
        elif mn.startswith('v_'):
            base = mn.replace('_e32', '').replace('_e64', '').replace('_dpp', '').replace('_sdwa', '')
            self.kind = 'trans' if base in TRANS else ('dot' if base.startswith('v_dot') else 'valu')
            self.wr = set(R[0])
            self.rd = set(rest)
            if base.startswith('v_permlane') or base == 'v_swap_b32':
                self.wr = set(allr)
                self.rd = set(allr)
                self.cost = 8
            if base.startswith(('v_fmac', 'v_dot2c', 'v_writelane')) or 'dpp' in mn or 'row_' in t or 'quad_perm' in t:
                self.rd |= R[0]
            if base.startswith(('v_add_co', 'v_sub_co', 'v_addc_co')):
                self.wr |= R[1]
                self.rd = set().union(*R[2:])
            if base == 'v_nop':
                self.wr = set()
            if self.kind == 'trans':
                self.cost = 8
        elif mn.startswith('ds_'):
            self.kind = 'ds'
            if mn.startswith(('ds_read', 'ds_bpermute', 'ds_permute', 'ds_swizzle')):
                self.wr = R[0]
                self.rd = rest
            else:
                self.rd = allr
                self.cost = 20 if mn == 'ds_write_b128' else 8
        elif mn.startswith(('buffer_', 'global_')):
            self.kind = 'vmem'
            self.cost = 12
            islds = bool(re.search(r'\blds\b', t)) or 'load_lds' in mn
            if mn in ('buffer_wbl2', 'buffer_inv'):
                pass
            elif 'load' in mn and not islds:
                self.wr = R[0]
                self.rd = rest
            elif islds:
                self.rd = allr | {('s', 'm0')}
            elif 'atomic' in mn and re.search(r'\bsc0\b', t):
                self.rd = allr
                self.wr = R[0]
            else:
                self.rd = allr
                if mn.startswith('buffer_'):
                    self.data = R[0]
                else:
                    self.data = R[1]
                self.wide_store = mn.endswith(('x3', 'x4'))
        elif mn.startswith('s_'):
            if mn.startswith(('s_load', 's_memtime', 's_memrealtime', 's_buffer_load')):
                self.kind = 'smem'
                self.wr = R[0]
                self.rd = rest
            elif mn.startswith(('s_cbranch', 's_branch', 's_endpgm', 's_setpc', 's_swappc')):
                self.kind = 'branch'
                self.rd = allr
            elif mn in ('s_waitcnt', 's_barrier', 's_nop', 's_setprio', 's_sleep'):
                self.kind = 'ctl'
            elif mn.startswith(('s_cmp', 's_bitcmp')):
                self.kind = 'salu'
                self.rd = allr
            else:
                self.kind = 'salu'
                self.wr = set(R[0])
                self.rd = set(rest)
                if mn.startswith(('s_addk', 's_mulk')):
                    self.rd |= R[0]
                if 'saveexec' in mn:
                    self.wr.add(('s', 'exec'))
        else:
            raise ValueError('unknown instruction: ' + text)

    def states(self):
        if self.kind in ('label', 'dir', 'pseudo'):
            return 0
        if self.mn == 's_nop':
            return int(self.ops[0], 0) + 1
        return 1

    def isvalu(self):
        return self.kind in ('valu', 'trans', 'dot')


def _vec(regs):
    return {r for r in regs if r[0] in 'va'}


def _sca(regs):
    return {r for r in regs if r[0] == 's'}


def need_states(p, c):
    n = 0
    ctext = c.text
    if p.isvalu():
        pv = _vec(p.wr)
        ps = _sca(p.wr)
        if c.kind == 'mfma' and pv & c.rd:
            n = max(n, 2)
        if c.isvalu():
            if c.mn.startswith('v_permlane') and pv & c.rd:
                n = max(n, 2)
            if ('dpp' in c.mn or 'row_' in ctext or 'quad_perm' in ctext) and pv & c.rd:
                n = max(n, 2)
            if c.mn.startswith(('v_readlane', 'v_readfirstlane')) and pv & c.rd:
                n = max(n, 1)
            if ps & c.rd:
                n = max(n, 4 if c.mn.startswith(('v_readlane', 'v_writelane')) else 2)
            if p.kind == 'trans' and pv & c.rd:
                n = max(n, 1)
            if ('sdwa' in p.mn or 'op_sel' in p.text) and pv & (c.rd | c.wr):
                n = max(n, 1)
        if c.kind == 'vmem' and ps & c.rd:
            n = max(n, 5)
        if c.kind in ('salu', 'smem', 'branch') and ps & c.rd:
            n = max(n, 1)
        if p.kind == 'dot' and pv & (c.rd | c.wr):
            same = c.mn == p.mn
            if same:
                ab = set(regs_of(c.ops[1])) | set(regs_of(c.ops[2]))
                if pv & ab:
                    n = max(n, 3)
            elif c.kind != 'ctl':
                n = max(n, 3)
    if p.kind == 'mfma':
        big = p.passes == 8
        if c.kind == 'mfma':
            if p.wr & c.srcab:
                n = max(n, 12 if big else 8)
            if p.wr & c.srcc and not (p.wr == c.srcc and p.passes == c.passes):
                n = max(n, 10 if big else 6)
            if p.wr & c.wr and not (p.wr & c.srcc):
                n = max(n, 12 if big else 8)
        elif c.isvalu() or c.kind in ('ds', 'vmem'):
            if p.wr & (c.rd | c.wr):
                n = max(n, 12 if big else 8)
            if c.isvalu() and p.srcc & c.wr:
                n = max(n, 7 if big else 3)
    if p.kind == 'salu' and ('s', 'm0') in p.wr and c.kind in ('vmem', 'ds') and ('s', 'm0') in c.rd:
        n = max(n, 1)
    if p.kind == 'vmem' and p.wide_store and p.data & c.wr:
        n = max(n, 2)
    return n


class Code:
    def __init__(self):
        self.ins = []

    def __call__(self, text, tag=None):
        for line in text.split('\n'):
            line = line.strip()
            if line:
                self.ins.append(Ins(line, tag))
        return self

    def add(self, i):
        self.ins.append(i)

    def extend(self, other):
        self.ins.extend(other.ins if isinstance(other, Code) else other)


def finalize(ins, stats=None):
    out = []
    vm = []
    lg = []
    nwait = nnop = 0

    def emit(i):
        nonlocal nnop
        need = 0
        dist = 0
        for p in reversed(out):
            if p.kind == 'pseudo' and p.mn == '@hz':
                break
            k = need_states(p, i) - dist
            need = max(need, k)
            dist += p.states()
            if dist >= 20:
                break
        while need > 0:
            k = min(need, 16)
            out.append(Ins(f's_nop {k - 1}'))
            nnop += 1
            need -= k
        out.append(i)

    def do_wait(nv, nl):
        nonlocal nwait
        parts = []
        if nv is not None and nv < len(vm):
            nv = min(nv, 63)
            del vm[:len(vm) - nv]
            parts.append(f'vmcnt({nv})')
        if nl is not None and nl < len(lg):
            if any(o.kind == 'smem' for o in lg):
                nl = 0
            nl2 = min(nl, 15)
            del lg[:len(lg) - nl2]
            parts.append(f'lgkmcnt({nl2})')
        if parts:
            nwait += 1
            out.append(Ins('s_waitcnt ' + ' '.join(parts)))

    def youngest(q, pred):
        for k in range(len(q) - 1, -1, -1):
            if pred(q[k]):
                return len(q) - 1 - k
        return None

    left = {}
    for i in ins:
        if i.tag is not None and i.kind in ('vmem', 'ds'):
            left[i.tag] = left.get(i.tag, 0) + 1
    for i in ins:
        if i.tag is not None and i.kind in ('vmem', 'ds'):
            left[i.tag] -= 1
        if i.kind == 'pseudo':
            if i.mn in ('@vm', '@lg', '@vmlg'):
                for t in i.ops:
                    assert left.get(t) == 0, ('tag not fully issued before wait', t, left.get(t))
            if i.mn == '@vm':
                do_wait(youngest(vm, lambda o: o.tag == i.ops[0]), None)
            elif i.mn == '@lg':
                do_wait(None, youngest(lg, lambda o: o.tag == i.ops[0]))
            elif i.mn == '@vmlg':
                do_wait(youngest(vm, lambda o: o.tag == i.ops[0]), youngest(lg, lambda o: o.tag == i.ops[1]))
            elif i.mn == '@reset':
                vm.clear()
                lg.clear()
            else:
                raise ValueError(i.text)
            continue
        if i.kind in ('label', 'dir'):
            out.append(i)
            continue
        if i.mn == 's_waitcnt':
            m = re.search(r'vmcnt\((\d+)\)', i.text)
            if m and int(m.group(1)) < len(vm):
                del vm[:len(vm) - int(m.group(1))]
            m = re.search(r'lgkmcnt\((\d+)\)', i.text)
            if m and int(m.group(1)) < len(lg):
                del lg[:len(lg) - int(m.group(1))]
            out.append(i)
            continue
        touched = i.rd | i.wr
        nv = youngest(vm, lambda o: o.wr & (i.rd if i.kind == 'vmem' else touched))
        nl = youngest(lg, lambda o: o.wr & (i.rd if (i.kind == 'ds' and o.kind == 'ds') else touched))
        do_wait(nv, nl)
        emit(i)
        if i.kind == 'vmem':
            vm.append(i)
        elif i.kind in ('ds', 'smem'):
            lg.append(i)
    if stats is not None:
        stats['waits'] = nwait
        stats['nops'] = nnop
        stats['n'] = sum(1 for o in out if o.kind not in ('label', 'dir'))
    return out


def weave(mf, pre, bg, vm=None, extra=None):
    vm = vm or {}
    extra = extra or {}
    out = []
    k = 0
    out.extend(vm.get(-1, []))
    out.extend(pre.get(-1, []))
    for idx, m in enumerate(mf):
        out.append(m)
        budget = (24 if m.passes == 8 else 8) + extra.get(idx, 0)
        used = 0
        for i in vm.get(idx, []) + pre.get(idx, []):
            out.append(i)
            used += i.cost
        while k < len(bg) and bg[k][0] <= idx and (used + bg[k][1].cost <= budget or (used == 0 and bg[k][1].cost > 8)):
            out.append(bg[k][1])
            used += bg[k][1].cost
            k += 1
    while k < len(bg):
        out.append(bg[k][1])
        k += 1
    return out


def pace(streams, tpos, spacing, start=0, avoid=()):
    vm, pre, where = {}, {}, {}
    heads = [0] * len(streams)
    nxt = -1e9
    for p in range(start, len(tpos)):
        if tpos[p] < nxt or p in avoid:
            continue
        best = None
        for k, st in enumerate(streams):
            if heads[k] < len(st) and st[heads[k]][0] <= p:
                if best is None or st[heads[k]][1] < streams[best][heads[best]][1]:
                    best = k
        if best is None:
            continue
        e, d, l = streams[best][heads[best]]
        heads[best] += 1
        assert p <= d, ('deadline missed', l[-1].text, p, d)
        vm.setdefault(p, []).append(l[-1])
        pre.setdefault(p - 1, []).extend(l[:-1])
        where[id(l[-1])] = p
        nxt = max(nxt, tpos[p] - 32) + spacing(p)
    assert all(h == len(st) for h, st in zip(heads, streams)), ('unplaced', [(h, len(st)) for h, st in zip(heads, streams)])
    return vm, pre, where


def text_of(ins):
    lines = []
    for i in ins:
        if i.kind == 'label':
            lines.append(i.text)
        else:
            lines.append('    ' + i.text)
    return '\n'.join(lines)
```

```python
import sys
from asmlib import *

S, D, F = 2048, 640, 1728
NBYTES_SD = S * D * 2
U_OFF = 0
X4_OFF = U_OFF + NBYTES_SD
H4_OFF = X4_OFF + NBYTES_SD
ST_OFF = H4_OFF + NBYTES_SD
W1_OFF = ST_OFF + 65536
WD_OFF = W1_OFF + 16 * 288 * 1024
HH_OFF = WD_OFF + 8 * 56 * 5 * 1024
FL_OFF = HH_OFF + 128 * 57344
FSP = 128
F1_OFF = FL_OFF
FX_OFF = F1_OFF + 640 * FSP
FW1_OFF = FX_OFF + 64 * FSP
FD_OFF = FW1_OFF + 128 * FSP
assert FD_OFF + 160 * FSP <= FL_OFF + 131072
F3_OFF = FL_OFF + 131072
F2_OFF = F3_OFF + 1024 * FSP
assert F2_OFF + 960 * FSP <= F3_OFF + 262144
TS_OFF = F3_OFF + 262144
WS_USED = TS_OFF + 262144

A_Q, A_K, A_V, A_SH, A_SSMK, A_SSMD, B_X, B_WG, B_WU, B_WD, OUT, DBG, WS = [8 * i for i in range(13)]

WSR = 's[8:11]'
sWAVE = 's33'
sXCD, sSLOT = 's4', 's5'
sSG, sIDX = 's6', 's7'
ONES = 0x3f803f80
OUTS, DBGS = 's[48:51]', 's[52:55]'
sP2W, sP2L, sP2T, sP3W = 's92', 's93', 's94', 's95'
sMT, sNI, sMT64, sDC = 's96', 's97', 's98', 's99'
SC = ' sc1'
SPIN = 30000
LDS_TOTAL = 163840

NB1 = 2
BLK_ORDER = [6, 0, 1, 2, 3, 4, 5]


OPT = {}
SLOW = []


def mark(k, p23=False):
    if not OPT.get('ts') or (OPT.get('mk23') and not p23):
        return []
    return [Ins(f's_mem{"" if OPT.get("cyc") else "real"}time s[{60 + 2 * k}:{61 + 2 * k}]')]


def mark1(k):
    return mark(k) if OPT.get('mk1') else []


def w1_seq(b, ks):
    bi = BLK_ORDER.index(b)
    if bi < NB1:
        return ks * NB1 + bi
    return NB1 * 41 + (bi - NB1) * 41 + ks


def srd(c, base, slot, nbytes):
    c(f's_load_dwordx2 s[{base}:{base + 1}], s[0:1], {slot}')
    c(f's_mov_b32 s{base + 2}, {nbytes}')
    c(f's_mov_b32 s{base + 3}, 0x20000')


def ids(c):
    c(f'v_lshrrev_b32 v1, 6, v0')
    c(f's_and_b32 {sXCD}, s2, 7')
    c(f'v_readfirstlane_b32 {sWAVE}, v1')
    c(f's_lshr_b32 {sSLOT}, s2, 3')
    c(f'v_and_b32 v0, 63, v0')


def conv_ids(c):
    c(f'''
    s_lshr_b32 {sSG}, {sXCD}, 2
    s_add_u32 {sSG}, {sSG}, 8
    s_and_b32 {sIDX}, {sXCD}, 3
    s_lshl_b32 {sIDX}, {sIDX}, 2
    s_add_u32 {sIDX}, {sIDX}, {sSLOT}
    s_sub_u32 {sIDX}, {sIDX}, 16
    s_cmp_lt_u32 {sSLOT}, 16
    s_cselect_b32 {sSG}, {sXCD}, {sSG}
    s_cselect_b32 {sIDX}, {sSLOT}, {sIDX}
    ''')


KR, VR, CF, PP, AC, VU, OG = 8, 30, 48, 56, 66, 74, 84


def p0_kv_load(c, KS, VS, SHS):
    c(f'''
    v_lshrrev_b32 v7, 4, v0
    v_and_b32 v6, 15, v0
    s_lshl_b32 s34, {sIDX}, 2
    s_add_u32 s34, s34, {sWAVE}
    s_mul_i32 s34, s34, {32 * 1280}
    s_lshl_b32 s35, {sSG}, 7
    s_add_u32 s34, s34, s35
    v_mul_u32_u24 v1, {8 * 1280}, v7
    v_lshl_add_u32 v1, v6, 3, v1
    v_add_u32 v1, s34, v1
    v_subrev_u32 v2, 3840, v1
    s_lshl_b32 s35, {sSG}, 9
    v_lshlrev_b32 v3, 5, v6
    s_movk_i32 s36, 5120
    ''')
    c(f'buffer_load_dwordx4 {vr(CF, 4)}, v3, {SHS}, s35 offen')
    c(f'buffer_load_dwordx4 {vr(CF + 4, 4)}, v3, {SHS}, s35 offen offset:16')
    for r in range(3):
        c(f'buffer_load_dwordx2 {vr(KR + 2 * r, 2)}, v2, {KS}, 0 offen offset:{1280 * r}')
    for r in range(8):
        c(f'buffer_load_dwordx2 {vr(KR + 6 + 2 * r, 2)}, v1, {KS}, {"s36" if r >= 4 else 0} offen offset:{1280 * (r & 3)}')
    for r in range(8):
        c(f'buffer_load_dwordx2 {vr(VR + 2 * r, 2)}, v1, {VS}, {"s36" if r >= 4 else 0} offen offset:{1280 * (r & 3)}')


def p0_kv(c0, late, st=SC):
    P = PP
    c = c0
    c(f'''
    s_lshl_b32 s35, {sWAVE}, 6
    v_mul_u32_u24 v4, 1040, v6
    v_lshl_add_u32 v4, v7, 4, v4
    v_add_u32 v4, s35, v4
    s_mul_i32 s35, {sWAVE}, {4 * 1040}
    v_lshlrev_b32 v3, 4, v0
    v_add_u32 v5, s35, v3
    s_lshl_b32 s34, {sSG}, 2
    s_add_u32 s34, s34, {sWAVE}
    s_lshl_b32 s34, s34, 16
    s_lshl_b32 s35, {sIDX}, 10
    s_add_u32 s34, s34, s35
    s_mov_b32 s40, 0x05040100
    s_mov_b32 s41, 0x07060302
    ''')
    if U_OFF:
        c(f's_add_u32 s34, s34, {U_OFF}')
    kr = lambda t, dw: KR + 2 * (t + 3) + dw
    c = Code()
    for ch in range(4):
        dw, hf = ch >> 1, ch & 1
        for t in range(-2, 8):
            c(f'v_perm_b32 v{P + t + 2}, v{kr(t - 1, dw)}, v{kr(t, dw)}, s{40 + hf}')
        for t in range(8):
            c(f'v_dot2_f32_bf16 v{AC + t}, v{P + t + 2}, v{CF + 2 * ch}, 0')
        for t in range(8):
            c(f'v_dot2_f32_bf16 v{AC + t}, v{P + t}, v{CF + 2 * ch + 1}, v{AC + t}')
        for t in range(8):
            if hf:
                c(f'v_and_b32 v{VU + t}, 0xffff0000, v{VR + 2 * t + dw}')
            else:
                c(f'v_lshlrev_b32 v{VU + t}, 16, v{VR + 2 * t + dw}')
        for t in range(0, 8, 2):
            c(f'v_pk_mul_f32 {vr(AC + t, 2)}, {vr(AC + t, 2)}, {vr(VU + t, 2)}')
        for p in range(4):
            c(f'v_cvt_pk_bf16_f32 v{OG + 4 * ch + p}, v{AC + p}, v{AC + p + 4}')
        c(f'ds_write_b128 v4, {vr(OG + 4 * ch, 4)} offset:{256 * ch}')
    k0, step = OPT.get('lk0', 36), OPT.get('lks', 30)
    for k, i in enumerate(c.ins):
        c0.add(i)
        if k == 10:
            c0.extend(mark1(7))
        if k == 34:
            c0.extend(mark1(8))
        if k0 and k >= k0 and (k - k0) % step == 0 and late:
            c0.extend(late.pop(0))
    c = c0
    c0.extend(mark1(9))
    c('s_waitcnt lgkmcnt(0)')
    c('s_barrier')
    for i in range(4):
        c(f'ds_read_b128 {vr(OG + 4 * i, 4)}, v5 offset:{1040 * i}')
    for i in range(4):
        c(f'buffer_store_dwordx4 {vr(OG + 4 * i, 4)}, v3, {WSR}, s34 offen{st}', 'ust')
        if i < 3:
            c('s_add_u32 s34, s34, 16384')


def ln_finish(c, s1, s2, tmp):
    c(f'v_mul_f32 v{s1}, 0xbacccccd, v{s1}')
    c(f'v_mul_f32 v{s2}, 0x3acccccd, v{s2}')
    c(f'v_fma_f32 v{s2}, -v{s1}, v{s1}, v{s2}')
    c(f'v_max_f32 v{s2}, 0, v{s2}')
    c(f'v_add_f32 v{s2}, 0x3727c5ac, v{s2}')
    c(f'v_rsq_f32 v{tmp}, v{s2}')


def p0_x(c, XS, sT, st=SC):
    XR, O, A = 16, 56, 100
    c(f'''
    v_lshrrev_b32 v13, 4, v0
    v_and_b32 v12, 15, v0
    s_lshl_b32 s38, {sT}, 2
    s_add_u32 s38, s38, {sWAVE}
    s_mul_i32 s34, s38, {8 * 1280}
    s_add_u32 s35, s34, 5120
    v_mul_u32_u24 v1, 1280, v13
    v_lshl_add_u32 v1, v12, 4, v1
    ''')
    for i in range(2):
        for m in range(5):
            c(f'buffer_load_dwordx4 {vr(XR + 20 * i + 4 * m, 4)}, v1, {XS}, s{34 + i} offen offset:{256 * m}')
    c(f'''
    s_mul_i32 s36, {sWAVE}, {8 * 1296}
    v_mul_u32_u24 v2, 1296, v13
    v_lshl_add_u32 v2, v12, 4, v2
    v_add_u32 v2, s36, v2
    s_mul_i32 s36, {sWAVE}, 320
    v_mul_u32_u24 v3, 1296, v12
    v_lshl_add_u32 v3, v13, 3, v3
    v_add_u32 v3, s36, v3
    v_lshlrev_b32 v4, 4, v0
    s_add_u32 s37, s34, {X4_OFF}
    s_lshl_b32 s38, s38, 10
    s_add_u32 s38, s38, {F3_OFF}
    s_and_b32 s36, {sWAVE}, 1
    s_lshl_b32 s36, s36, 7
    s_lshr_b32 s39, {sWAVE}, 1
    s_lshl_b32 s39, s39, 3
    s_add_u32 s36, s36, s39
    v_lshlrev_b32 v5, 4, v13
    v_add_u32 v5, s36, v5
    v_lshlrev_b32 v8, 2, v0
    s_lshl_b32 s36, {sT}, 8
    s_add_u32 s36, s36, {ST_OFF}
    s_cmp_eq_u32 {sWAVE}, 0
    s_cselect_b32 s36, s36, 0x70000000
    s_mov_b32 s40, {ONES}
    v_mov_b32 v96, 0
    v_mov_b32 v97, 0
    v_mov_b32 v98, 0
    v_mov_b32 v99, 0
    buffer_store_dwordx4 v[96:99], v4, {WSR}, s38 offen{st}
    ''')
    for i in range(2):
        for m in range(5):
            c(f'ds_write_b128 v2, {vr(XR + 20 * i + 4 * m, 4)} offset:{1296 * 4 * i + 256 * m}')
    c('s_waitcnt lgkmcnt(0)')
    c('s_barrier')
    c.extend(mark1(10))
    for i in range(10):
        c(f'ds_read_b64 {vr(O + 4 * i, 2)}, v3 offset:{32 * i}')
        c(f'ds_read_b64 {vr(O + 4 * i + 2, 2)}, v3 offset:{32 * i + 16 * 1296}')
    for i in range(10):
        if i and (i & 3) == 0:
            c('s_add_u32 s37, s37, 4096')
        c(f'buffer_store_dwordx4 {vr(O + 4 * i, 4)}, v4, {WSR}, s37 offen offset:{1024 * (i & 3)}{st}')
        for r in range(4 * i, 4 * i + 4):
            k = A + 2 * (r // 20)
            c(f'v_dot2_f32_bf16 v{k}, v{XR + r}, s40, {"0" if r % 20 == 0 else "v%d" % k}')
            c(f'v_dot2_f32_bf16 v{k + 1}, v{XR + r}, v{XR + r}, {"0" if r % 20 == 0 else "v%d" % (k + 1)}')
    for sh in (8, 4, 2, 1):
        for k in range(4):
            c(f'v_add_f32_dpp v{A + k}, v{A + k}, v{A + k} row_ror:{sh} row_mask:0xf bank_mask:0xf')
    for i in range(2):
        ln_finish(c, A + 2 * i, A + 2 * i + 1, A + 8 + 2 * i)
    for i in range(2):
        c(f'v_mul_f32 v{A + 9 + 2 * i}, v{A + 2 * i}, v{A + 8 + 2 * i}')
        c(f'ds_write_b64 v5, {vr(A + 8 + 2 * i, 2)} offset:{32 * 1296 + 64 * i}')
    c('s_waitcnt lgkmcnt(0)')
    c('s_barrier')
    c(f'ds_read_b32 v10, v8 offset:{32 * 1296}')
    c(f'buffer_store_dword v10, v8, {WSR}, s36 offen{st}')
    c.extend(mark1(11))


UBS = 10368
P1_LDS = 17664 + 4 * UBS + 4 * 2048
LB1 = LDS_TOTAL - P1_LDS
assert LB1 % 256 == 0
KY0 = LB1 + 256
UB0 = LB1 + 17664
EB0 = UB0 + 4 * UBS
KT = 100
cA, cACC, cB, cXQ, cSQ, cT = 16, 80, 176, 208, 224, 240
NBUF = 8


def p1_k_load(c, KKS, DS):
    T = KT
    c(f'''
    s_lshl_b32 s34, {sSG}, 4
    s_add_u32 s34, s34, {sIDX}
    s_lshl_b32 s35, s34, 2
    s_add_u32 s35, s35, {sWAVE}
    s_lshl_b32 s38, s35, 12
    s_lshl_b32 s39, s35, 1
    v_lshlrev_b32 v1, 4, v0
    v_mov_b32 v2, 0
    ''')
    o = [[Ins(f'buffer_load_dwordx4 {vr(T + 4 * i, 4)}, v1, {KKS}, s38 offen offset:{1024 * i}')] for i in range(4)]
    o[0].insert(0, Ins(f'buffer_load_ushort v{T + 16}, v2, {DS}, s39 offen'))
    return o


def p1_k(c):
    T = KT
    c(f'''
    s_lshl_b32 s34, {sSG}, 4
    s_add_u32 s34, s34, {sIDX}
    s_mul_i32 s37, {sWAVE}, 4352
    s_and_b32 s38, {sWAVE}, 1
    s_lshl_b32 s38, s38, 5
    s_add_u32 s37, s37, s38
    s_lshr_b32 s38, {sWAVE}, 1
    s_lshl_b32 s38, s38, 7
    s_add_u32 s37, s37, s38
    s_add_u32 s37, s37, {KY0}
    s_mul_i32 s38, {sWAVE}, {UBS}
    s_add_u32 s38, s38, {UB0}
    s_lshl_b32 s39, {sWAVE}, 11
    s_add_u32 s39, s39, {EB0}
    v_lshrrev_b32 v7, 4, v0
    v_and_b32 v6, 15, v0
    v_bfe_u32 v8, v0, 2, 2
    v_and_b32 v9, 3, v0
    v_lshlrev_b32 v3, 2, v0
    v_add_u32 v10, s38, v3
    v_mov_b32 v3, 0
    v_mov_b32 v4, 0
    v_mov_b32 v5, 0
    ds_write2st64_b32 v10, v2, v2 offset0:0 offset1:5
    ds_write2st64_b32 v10, v2, v2 offset0:10 offset1:15
    v_add_u32 v11, 5248, v10
    ds_write2st64_b32 v11, v2, v2 offset0:0 offset1:5
    ds_write2st64_b32 v11, v2, v2 offset0:10 offset1:15
    v_add_u32 v12, s39, v1
    ds_write_b128 v12, v[2:5]
    s_sub_u32 s42, s37, 32
    v_add_u32 v13, s42, v1
    ds_write_b128 v13, v[2:5]
    v_add_u32 v10, 128, v10
    v_add_u32 v11, 136, v11
    ''')
    c(f'''
    v_lshlrev_b32 v{T + 16}, 16, v{T + 16}
    v_lshlrev_b32 v{T + 17}, 16, v{T}
    v_add_f32 v{T + 16}, v{T + 16}, v{T + 17}
    v_cvt_pk_bf16_f32 v{T + 16}, v{T + 16}, v{T + 16}
    s_mov_b32 s42, 0xffff
    s_mov_b64 exec, 1
    v_bfi_b32 v{T}, s42, v{T + 16}, v{T}
    s_mov_b64 exec, -1
    ''')
    for i in range(4):
        c(f'ds_write_b128 v13, {vr(T + 4 * i, 4)} offset:{32 + 1024 * i}')
    c(f'''
    v_sub_u32 v14, v9, v8
    v_lshlrev_b32 v14, 3, v14
    v_lshl_add_u32 v14, v7, 6, v14
    v_add_u32 v14, s37, v14
    ''')
    for n in range(16):
        c(f'ds_read_b64_tr_b16 {vr(cA + 4 * n, 2)}, v14 offset:{256 * n + 32}')
        c(f'ds_read_b64_tr_b16 {vr(cA + 4 * n + 2, 2)}, v14 offset:{256 * n}')
    c(f'''
    v_lshlrev_b32 v14, 1, v7
    v_sub_u32 v14, v6, v14
    v_lshlrev_b32 v14, 3, v14
    v_and_b32 v13, 1, v6
    v_mul_u32_u24 v13, 5256, v13
    v_sub_u32 v14, v14, v13
    s_add_u32 s42, s38, {5248 + 64}
    v_add_u32 v14, s42, v14
    v_add_u32 v13, 16, v0
    v_subrev_u32 v15, 47, v0
    v_cmp_gt_u32 vcc, 48, v0
    v_lshlrev_b32 v2, 5, v6
    v_lshl_add_u32 v2, v7, 3, v2
    v_cndmask_b32 v13, v15, v13, vcc
    v_add_u32 v15, 64, v13
    v_add_u32 v2, s37, v2
    v_writelane_b32 v13, 64, 63
    v_writelane_b32 v15, 0, 63
    v_lshlrev_b32 v13, 4, v13
    v_lshlrev_b32 v15, 4, v15
    v_add_u32 v13, s39, v13
    v_add_u32 v15, s39, v15
    v_mul_u32_u24 v3, 4352, v8
    v_and_b32 v4, 1, v8
    v_lshl_add_u32 v3, v4, 5, v3
    v_lshrrev_b32 v4, 1, v8
    v_lshl_add_u32 v3, v4, 7, v3
    v_lshl_add_u32 v3, v7, 6, v3
    v_lshl_add_u32 v3, v9, 3, v3
    s_lshl_b32 s42, {sWAVE}, 8
    s_add_u32 s42, s42, {KY0}
    v_add_u32 v3, s42, v3
    ''')
    c(f'''
    v_lshlrev_b32 v4, 4, v6
    v_mul_u32_u24 v5, 40960, v7
    v_add_u32 v5, v5, v4
    v_lshl_add_u32 v4, v7, 10, v4
    s_lshl_b32 s43, s34, 14
    s_lshl_b32 s42, {sWAVE}, 8
    s_add_u32 s43, s43, s42
    s_mul_i32 s44, {sWAVE}, 163840
    s_lshl_b32 s42, s34, 8
    s_add_u32 s44, s44, s42
    s_lshl_b32 s45, {sWAVE}, 10
    s_add_u32 s45, s45, {ST_OFF}
    ''')
    if U_OFF:
        c(f's_add_u32 s43, s43, {U_OFF}')


def p1_load_u(c, ld=SC):
    T = cACC + 64
    for i in range(4):
        c(f'buffer_load_dwordx4 {vr(T + 4 * i, 4)}, v4, {WSR}, s43 offen{ld}')
        if i < 3:
            c('s_add_u32 s43, s43, 4096')


def p1_load_x(ld=SC):
    o = []
    for u in range(4):
        o.append([Ins(f's_add_u32 s43, s45, {4096 * u}'),
                  Ins(f'buffer_load_dwordx4 {vr(cSQ + 4 * u, 4)}, v1, {WSR}, s43 offen{ld}', f'sq{u}')])
        o.append([Ins(f's_add_u32 s43, s44, {X4_OFF + u * 655360}'),
                  Ins(f'buffer_load_dwordx4 {vr(cXQ + 4 * u, 4)}, v5, {WSR}, s43 offen{ld}', f'xq{u}')])
    return o


def p1_main(c, inject, jobs, st=SC):
    T = cACC + 64
    uw = []
    for i in range(4):
        for a in ('v10', 'v11'):
            uw.append(Ins(f'ds_write2st64_b32 {a}, v{T + 4 * i}, v{T + 4 * i + 1} offset0:{i} offset1:{5 + i}'))
            uw.append(Ins(f'ds_write2st64_b32 {a}, v{T + 4 * i + 2}, v{T + 4 * i + 3} offset0:{10 + i} offset1:{15 + i}'))
    c.extend(uw[:4])
    acc = lambda t, cp: cACC + 16 * (t % 3) + 4 * cp
    bfr = lambda cp, w: ar(16 * (w + 1) + 4 * cp, 4)
    mf = []
    first_use, last_of_tile, first_of_tile = {}, {}, {}
    for t in range(8):
        first_of_tile[t] = len(mf)
        for w in range(-1, 2 * t + 1):
            first_use.setdefault(w, len(mf))
            for cp in range(4):
                a = vr(acc(t, cp), 4)
                mf.append(Ins(f'v_mfma_f32_16x16x32_bf16 {a}, {vr(cA + 4 * (2 * t - w), 4)}, {bfr(cp, w)}, {"0" if w == -1 else a}'))
        last_of_tile[t] = len(mf) - 1
    rd = lambda cp, w: Ins(f'ds_read_b128 {bfr(cp, w)}, v14 offset:{64 * (w + 1) + 1280 * cp}', f'b{w}')
    pre = {-1: [rd(cp, w) for w in (-1, 0) for cp in range(4)]}
    P = lambda p, l: pre.setdefault(p, []).extend(l)
    seq = []
    for w in range(1, 15):
        if w in (3, 7, 11):
            seq += [(w, i) for i in uw[w + 1:w + 5]]
        seq += [(w, rd(cp, w)) for cp in range(4)]
    p = -1
    for w, i in seq:
        p = max(p + (1 if w < 5 else 2), first_use[w] - 60)
        assert p < first_use[w] - 6
        P(p, [i])
    for w in range(-1, 15, 2):
        P(first_use[w] - 1, [Ins(f'@lg b{w if w < 0 else w + 1}')])
    for p, l in inject:
        P(p, l)
    bg = []

    def B(pos, text, tag=None):
        bg.append((pos, Ins(text, tag)))

    def tile_epi(t):
        p = last_of_tile[t] + 4
        Y = [acc(t, cp) for cp in range(4)]
        B(p, f'v_add_f32 v{Y[3] + 1}, v{Y[3] + 1}, v{Y[1] + 3}')
        B(p, f'v_add_f32 v{Y[3] + 2}, v{Y[3] + 2}, v{Y[2] + 3}')
        B(p, f'v_add_f32 v{Y[3] + 1}, v{Y[3] + 1}, v{Y[2] + 2}')
        B(p, f'ds_write_b128 {"v15" if t & 1 else "v13"}, {vr(Y[3], 4)}')
        B(p, f'ds_read_b128 {vr(cT, 4)}, v12 offset:{1024 * (t & 1)}')
        B(p, f'v_add_f32 v{Y[0] + 1}, v{Y[0] + 1}, v{Y[1]}')
        B(p, f'v_add_f32 v{Y[0] + 2}, v{Y[0] + 2}, v{Y[1] + 1}')
        B(p, f'v_add_f32 v{Y[0] + 3}, v{Y[0] + 3}, v{Y[1] + 2}')
        B(p, f'v_add_f32 v{Y[0] + 2}, v{Y[0] + 2}, v{Y[2]}')
        B(p, f'v_add_f32 v{Y[0] + 3}, v{Y[0] + 3}, v{Y[2] + 1}')
        B(p, f'v_add_f32 v{Y[0] + 3}, v{Y[0] + 3}, v{Y[3]}')
        B(p + 10, f'v_add_f32 v{Y[0]}, v{Y[0]}, v{cT + 1}')
        B(p, f'v_add_f32 v{Y[0] + 1}, v{Y[0] + 1}, v{cT + 2}')
        B(p, f'v_add_f32 v{Y[0] + 2}, v{Y[0] + 2}, v{cT + 3}')
        B(p, f'v_cvt_pk_bf16_f32 v{Y[0]}, v{Y[0]}, v{Y[0] + 1}')
        B(p, f'v_cvt_pk_bf16_f32 v{Y[0] + 1}, v{Y[0] + 2}, v{Y[0] + 3}')
        B(p, f'ds_write_b64 v2, {vr(Y[0], 2)} offset:{512 * t}', f'y{t}')

    R, Tm, HX = cT + 4, cT + 8, 160

    def tail_r(u):
        B(0, f'ds_read_b64_tr_b16 {vr(R, 2)}, v3 offset:{1024 * u}')
        B(0, f'ds_read_b64_tr_b16 {vr(R + 2, 2)}, v3 offset:{1024 * u + 32}')

    def tail_x(u, p):
        B(p, f's_add_u32 s42, s44, {H4_OFF + u * 655360}')
        for k in range(4):
            x, rs, nm = cXQ + 4 * u + k, cSQ + 4 * u + (k >> 1) * 2, cSQ + 4 * u + (k >> 1) * 2 + 1
            B(0, f'v_lshlrev_b32 v{HX + 4 * k}, 16, v{x}')
            B(0, f'v_and_b32 v{HX + 4 * k + 1}, 0xffff0000, v{x}')
            B(0, f'v_fma_f32 v{HX + 4 * k + 2}, v{HX + 4 * k}, v{rs}, v{nm}')
            B(0, f'v_fma_f32 v{HX + 4 * k + 3}, v{HX + 4 * k + 1}, v{rs}, v{nm}')

    def tail_y(u):
        for k in range(4):
            B(0, f'v_lshlrev_b32 v{Tm}, 16, v{R + k}')
            B(0, f'v_and_b32 v{Tm + 1}, 0xffff0000, v{R + k}')
            if u == 3:
                B(0, f'v_pk_fma_f32 {vr(HX + 4 * k, 2)}, {vr(HX + 4 * k + 2, 2)}, {vr(Tm, 2)}, {vr(HX + 4 * k, 2)}')
            else:
                B(0, f'v_fmac_f32 v{HX + 4 * k}, v{HX + 4 * k + 2}, v{Tm}')
                B(0, f'v_fmac_f32 v{HX + 4 * k + 1}, v{HX + 4 * k + 3}, v{Tm + 1}')
            B(0, f'v_cvt_pk_bf16_f32 v{cXQ + 4 * u + k}, v{HX + 4 * k}, v{HX + 4 * k + 1}')
        B(0, f'buffer_store_dwordx4 {vr(cXQ + 4 * u, 4)}, v5, {WSR}, s42 offen{st}', f'hst{u}')

    def flag(k):
        if k:
            B(0, f's_add_u32 s46, s46, {160 * FSP}')
        B(0, f'buffer_store_dword v253, v252, {WSR}, s46 offen{st}', f'fl{k}')

    tpos = [17 * k for k in range(len(mf))]
    vm, pre2, where = pace(jobs, tpos, lambda p: OPT.get('sp1', 66))
    for p, l in pre2.items():
        P(p, l)
    print('p1 prefetch ends at mfma', max(where.values()), file=sys.stderr)
    xq = {i.tag: where[id(i)] for _, _, l in sum(jobs, []) for i in l if i.tag and i.tag[1] == 'q'}
    LAG = OPT.get('xlag', 50)
    for t in range(4):
        tile_epi(t)
    B(0, '@lg y3')
    B(0, 's_barrier')
    tail_r(0)
    tail_x(0, xq['xq0'] + LAG)
    tail_y(0)
    tail_r(1)
    tail_x(1, xq['xq1'] + LAG)
    tail_y(1)
    tile_epi(4)
    tile_epi(5)
    tail_x(2, xq['xq2'] + LAG)
    B(OPT.get('b5', 0), '@vmlg hst1 y5')
    B(0, 's_barrier')
    tail_r(2)
    flag(0)
    tail_y(2)
    tile_epi(6)
    for i in wd_reads() + wd_stores():
        bg.append((OPT.get('wdp', 235), i))
    tail_x(3, 0)
    tile_epi(7)
    B(0, '@vmlg hst2 y7')
    B(0, 's_barrier')
    tail_r(3)
    flag(1)
    tail_y(3)
    for i in mark(6):
        bg.append((0, i))
    out = weave(mf, pre, bg, vm)
    pos = {id(i): k for k, i in enumerate(out)}
    at = lambda t: max(j for j in range(len(mf)) if pos[id(mf[j])] < pos[id(next(x for x in out if x.tag == t))])
    for t in range(5):
        assert at(f'y{t}') < first_of_tile[t + 3] - 1, t
    print('p1:', ' '.join(f'{t}@{at(t)}' for t in ('y0', 'y3', 'y4', 'hst0', 'hst1', 'y5', 'fl0', 'hst2', 'y6', 'wds')),
          'after last mfma', len(out) - pos[id(mf[-1])], file=sys.stderr)
    c.extend(out)


WJB = 49152
UR = 64 * 448 + 32


def side_w1(c, WGS, WUS, sNP, sK0, sSL, sFOUR, st=SC):
    c(f'''
    v_mul_u32_u24 v1, 147, v0
    v_lshrrev_b32 v1, 11, v1
    v_mul_u32_u24 v2, 14, v1
    v_sub_u32 v2, v0, v2
    v_lshlrev_b32 v2, 4, v2
    v_and_b32 v3, 1, v1
    v_mul_u32_u24 v3, 216, v3
    v_lshrrev_b32 v1, 1, v1
    v_mul_u32_u24 v1, 3456, v1
    v_add3_u32 v1, v1, v2, v3
    s_lshl_b32 s46, {sK0}, 2
    s_add_u32 s46, s46, {sWAVE}
    s_mul_i32 s46, s46, {4 * 3456}
    s_mul_i32 s47, {sNP}, 432
    s_add_u32 s46, s46, s47
    s_mul_i32 s47, {sWAVE}, {4 * 448}
    s_add_u32 s47, s47, {WJB}
    s_mov_b32 exec_hi, 0x00ffffff
    ''')
    for ks in range(4):
        if ks == 3:
            c(f's_add_u32 s46, s46, {sFOUR}')
        for j in range(2):
            c(f's_add_u32 s45, s46, {(16 * ks + 2 * j) * 3456}')
            for m, srd_ in enumerate((WGS, WUS)):
                c(f's_add_u32 m0, s47, {UR * m + 448 * (16 * ks + 2 * j)}')
                c(f'buffer_load_dwordx4 v1, {srd_}, s45 offen lds', f'w1k{ks}')
    c.extend(mark1(12))
    c(f'''
    s_mov_b64 exec, -1
    v_and_b32 v2, 7, v0
    v_mul_u32_u24 v2, 224, v2
    v_bfe_u32 v3, v0, 3, 1
    v_sub_u32 v8, 1, v3
    v_mul_u32_u24 v8, 0x3f80, v8
    v_mov_b32 v9, 0
    v_mul_u32_u24 v3, {UR}, v3
    v_add3_u32 v2, v2, v3, s47
    v_lshrrev_b32 v12, 5, v0
    v_bfe_u32 v13, v0, 2, 2
    v_lshl_add_u32 v3, v12, 3, v13
    v_mul_u32_u24 v3, 448, v3
    v_bfe_u32 v13, v0, 4, 1
    v_mul_u32_u24 v13, {UR}, v13
    v_add_u32 v3, v3, v13
    v_and_b32 v13, 1, v0
    v_lshl_add_u32 v3, v13, 4, v3
    v_bfe_u32 v13, v0, 1, 1
    v_lshl_add_u32 v3, v13, 3, v3
    s_lshl_b32 s36, {sWAVE}, 5
    s_add_u32 s36, s36, {WJB}
    v_add_u32 v3, s36, v3
    v_lshlrev_b32 v4, 4, v0
    s_lshl_b32 s36, {sWAVE}, 9
    v_lshl_add_u32 v5, v0, 1, s36
    v_add_u32 v10, s36, v4
    s_mov_b32 s44, {ONES}
    s_mul_i32 s45, {sNP}, {2 * 288 * 1024}
    s_add_u32 s45, s45, {W1_OFF}
    ''')
    for r in range(4):
        tb = []
        for w in range(4):
            p = 4 * r + w
            tb.append((288 * (p // 7) + w1_seq(p % 7, 0), w1_seq(p % 7, 1) - w1_seq(p % 7, 0)) if p < 14 else (0x100000, 0))
        c(f's_mov_b32 s{34 + r}, {tb[0][0]}')
        c(f's_mov_b32 s{38 + r}, {tb[0][1]}')
        for w in range(1, 4):
            c(f's_cmp_eq_u32 {sWAVE}, {w}')
            c(f's_cselect_b32 s{34 + r}, {tb[w][0]}, s{34 + r}')
            c(f's_cselect_b32 s{38 + r}, {tb[w][1]}, s{38 + r}')
        c(f'''
        s_lshl_b32 s{34 + r}, s{34 + r}, 10
        s_lshl_b32 s{38 + r}, s{38 + r}, 10
        s_add_u32 s{34 + r}, s{34 + r}, s45
        s_mul_i32 s{28 + r}, s{38 + r}, 40
        s_add_u32 s{28 + r}, s{28 + r}, s{34 + r}
        s_lshl_b32 s42, {sSL}, 6
        s_add_u32 s{28 + r}, s{28 + r}, s42
        s_mul_i32 s42, {sK0}, s{38 + r}
        s_add_u32 s{34 + r}, s{34 + r}, s42
        ''')
    for ks in range(4):
        FR = 16 + 16 * ks
        c(f'''
        @vm w1k{ks}
        ds_write_b64 v2, v[8:9] offset:{448 * 16 * ks + 216}
        s_waitcnt lgkmcnt(0)
        s_barrier
        ''')
        c.extend(mark1(7) if ks == 0 else (mark1(8) if ks == 3 else []))
        for r in range(4):
            for h in range(2):
                c(f'ds_read_b64_tr_b16 {vr(FR + 4 * r + 2 * h, 2)}, v3 offset:{448 * (16 * ks + 4 * h) + 128 * r}')
        for r in range(4):
            c(f'buffer_store_dwordx4 {vr(FR + 4 * r, 4)}, v4, {WSR}, s{34 + r} offen{st}')
            if ks < 3:
                c(f's_add_u32 s{34 + r}, s{34 + r}, s{38 + r}')
            if ks == 2:
                c(f's_add_u32 s{34 + r}, s{34 + r}, {sFOUR}')
            for k in range(4):
                c(f'v_dot2_f32_bf16 v{100 + r}, v{FR + 4 * r + k}, s44, {"0" if ks + k == 0 else "v%d" % (100 + r)}')
    for r in range(4):
        c(f'v_mov_b32 v{104 + r}, v{100 + r}')
    for r in range(4):
        c(f'v_permlane32_swap_b32 v{100 + r}, v{104 + r}')
    c('s_mov_b32 vcc_lo, 0')
    c('s_mov_b32 vcc_hi, -1')
    for r in range(4):
        c(f'''
        v_add_f32 v{100 + r}, v{100 + r}, v{104 + r}
        v_cvt_pk_bf16_f32 v{104 + r}, v{100 + r}, v{100 + r}
        v_and_b32 v{104 + r}, 0xffff0000, v{104 + r}
        v_sub_f32 v{104 + r}, v{100 + r}, v{104 + r}
        v_cndmask_b32 v{100 + r}, v{100 + r}, v{104 + r}, vcc
        v_cvt_pk_bf16_f32 v{100 + r}, v{100 + r}, v{100 + r}
        ds_write_b16 v5, v{100 + r} offset:{128 * r}
        ''')
    c(f's_cmp_eq_u32 {sFOUR}, 0')
    c('s_cselect_b32 exec_lo, 0xff, 15')
    c('s_mov_b32 exec_hi, 0')
    for r in range(4):
        c(f'ds_read_b128 {vr(104 + 4 * r, 4)}, v10 offset:{128 * r}')
    for r in range(4):
        c(f'buffer_store_dwordx4 {vr(104 + 4 * r, 4)}, v4, {WSR}, s{28 + r} offen{st}')
    c('s_mov_b64 exec, -1')
    c.extend(mark1(9))


WDA, WDF = 128, 176


def wd_setup(c):
    assert BLK_ORDER == [6, 0, 1, 2, 3, 4, 5]
    for i in range(5):
        c(f'''
        v_add_u32 v{WDA + 8}, {64 * i}, v0
        v_mul_u32_u24 v{WDA + 9}, 1639, v{WDA + 8}
        v_lshrrev_b32 v{WDA + 9}, 16, v{WDA + 9}
        v_mul_u32_u24 v{WDA + 9}, 640, v{WDA + 9}
        v_lshl_add_u32 v{WDA + i}, v{WDA + 8}, 4, v{WDA + 9}
        ''')
    c(f'''
    s_mul_i32 s100, {sWAVE}, 5120
    s_add_u32 s100, s100, 20480
    v_lshrrev_b32 v{WDA + 8}, 4, v0
    v_bfe_u32 v{WDA + 9}, v0, 2, 2
    v_mul_u32_u24 v{WDA + 5}, 160, v{WDA + 8}
    v_mul_u32_u24 v{WDA + 9}, 640, v{WDA + 9}
    v_add3_u32 v{WDA + 5}, v{WDA + 5}, v{WDA + 9}, s100
    v_and_b32 v{WDA + 9}, 3, v0
    v_lshl_add_u32 v{WDA + 6}, v{WDA + 9}, 3, v{WDA + 5}
    v_lshl_add_u32 v{WDA + 5}, v{WDA + 9}, 4, v{WDA + 5}
    v_mul_u32_u24 v{WDA + 7}, {56 * 5120}, v{WDA + 8}
    v_and_b32 v{WDA + 9}, 15, v0
    v_lshl_add_u32 v{WDA + 7}, v{WDA + 9}, 4, v{WDA + 7}
    s_lshl_b32 s16, s34, 2
    s_add_u32 s16, s16, {sWAVE}
    s_mul_i32 s17, s16, 2341
    s_lshr_b32 s17, s17, 16
    s_mul_i32 s18, s17, 28
    s_sub_u32 s18, s16, s18
    s_and_b32 s19, s18, 1
    s_lshr_b32 s18, s18, 1
    s_mul_i32 s101, s17, 108
    s_lshl_b32 s20, s18, 3
    s_add_u32 s101, s101, s20
    s_lshl_b32 s101, s101, 1
    s_add_u32 s101, s101, s19
    s_mul_i32 s101, s101, 640
    s_mul_i32 s56, s19, {4 * 56}
    s_lshr_b32 s20, s17, 2
    s_mul_i32 s20, s20, 14
    s_add_u32 s56, s56, s20
    s_bfe_u32 s20, s17, 0x10001
    s_add_u32 s56, s56, s20
    s_and_b32 s20, s18, 14
    s_add_u32 s20, s20, 2
    s_cmp_eq_u32 s20, 14
    s_cselect_b32 s20, 0, s20
    s_add_u32 s56, s56, s20
    s_mul_i32 s56, s56, 20
    s_and_b32 s20, s17, 1
    s_lshl_b32 s20, s20, 1
    s_add_u32 s56, s56, s20
    s_and_b32 s20, s18, 1
    s_add_u32 s56, s56, s20
    s_lshl_b32 s56, s56, 8
    s_add_u32 s56, s56, {WD_OFF}
    s_cmp_eq_u32 s18, 13
    s_cselect_b32 s58, 0, -1
    s_cmp_lt_u32 s16, 448
    s_cselect_b32 s101, s101, 0x70000000
    s_cselect_b32 s56, s56, 0x70000000
    ''')


def wd_loads(WDS):
    return [[Ins(f's_add_u32 m0, s100, {1024 * i}'),
             Ins(f'buffer_load_dwordx4 v{WDA + i}, {WDS}, s101 offen lds', 'wdl')] for i in range(5)]


def wd_reads():
    c = Code()
    c('@vm wdl')
    for b in range(5):
        for h in range(2):
            if b < 4:
                c(f'ds_read_b64_tr_b16 {vr(WDF + 4 * b + 2 * h, 2)}, v{WDA + 5} offset:{2560 * h + 64 * (b >> 1) + 8 * (b & 1)}')
            else:
                c(f'ds_read_b64_tr_b16 {vr(WDF + 4 * b + 2 * h, 2)}, v{WDA + 6} offset:{2560 * h + 128}')
    for b in range(5):
        c(f'v_and_b32 v{WDF + 4 * b + 2}, s58, v{WDF + 4 * b + 2}')
        c(f'v_and_b32 v{WDF + 4 * b + 3}, s58, v{WDF + 4 * b + 3}')
    return c.ins


def wd_stores(st=SC):
    c = Code()
    for b in range(5):
        if b == 4:
            c('s_add_u32 s56, s56, 4096')
        c(f'buffer_store_dwordx4 {vr(WDF + 4 * b, 4)}, v{WDA + 7}, {WSR}, s56 offen offset:{1024 * (b & 3)}{st}', 'wds')
    return c.ins


def poll_load(vval, vaddr, srd_, soff):
    return Ins(f'buffer_load_dword {vval}, {vaddr}, {srd_}, {soff} offen{SC}')


def poll_check(name, vval, vaddr, srd_, soff, need, sleep=None, first='', more=()):
    sleep = sleep or OPT.get('sleep')
    comb = f'v_min3_u32 {vval}, {vval}, {more[0][0]}, {more[1][0]}' if more else ''
    cc = Code()
    cc(f'''
    L_{name}_slow:
    @reset
    {first}
    s_mov_b32 s32, {SPIN}
    L_{name}_spin:
    {('s_sleep %d' % sleep) if sleep else ''}
    buffer_load_dword {vval}, {vaddr}, {srd_}, {soff} offen{SC}
    ''')
    for v, a in more:
        cc(f'buffer_load_dword {v}, {a}, {srd_}, {soff} offen{SC}')
    cc(f'''
    s_sub_u32 s32, s32, 1
    s_waitcnt vmcnt(0)
    {comb}
    v_cmp_gt_u32 vcc, {need}, {vval}
    s_cbranch_scc1 L_{name}_ok
    s_nop 0
    s_cbranch_vccnz L_{name}_spin
    s_branch L_{name}_ok
    ''')
    SLOW.extend(cc.ins)
    return ([Ins(comb)] if more else []) + [Ins(f'v_cmp_gt_u32 vcc, {need}, {vval}'), Ins('s_nop 0'), Ins(f's_cbranch_vccnz L_{name}_slow'), Ins(f'L_{name}_ok:')]


def flag_regs(c, voob, vone):
    c(f'v_mov_b32 {voob}, 0x80000000')
    c(f'v_mov_b32 {vone}, 1')
    c(f'v_writelane_b32 {voob}, 0, 0')


RING = 9
gHF, gMF, gACC, gT = 8, 168, 172, 236
NWB = 8
NHB = 33
vOOB, vFV, vPA, vPV = 'v252', 'v253', 'v254', 'v255'


def p23_ids(c):
    c(f'''
    s_lshr_b32 s34, {sSLOT}, 2
    s_and_b32 s35, {sSLOT}, 3
    s_and_b32 s36, {sXCD}, 1
    s_lshr_b32 s37, {sXCD}, 1
    s_lshl_b32 {sMT}, s34, 1
    s_add_u32 {sMT}, {sMT}, s36
    s_lshl_b32 {sNI}, s37, 2
    s_add_u32 {sNI}, {sNI}, s35
    s_lshl_b32 {sMT64}, {sMT}, 1
    s_and_b32 s36, s37, 1
    s_add_u32 {sMT64}, {sMT64}, s36
    s_and_b32 {sDC}, {sXCD}, 4
    s_add_u32 {sDC}, {sDC}, s35
    s_mul_i32 {sP2W}, {sNI}, {288 * 1024}
    s_lshl_b32 {sP2L}, {sWAVE}, 12
    s_add_u32 {sP2W}, {sP2W}, {sP2L}
    s_add_u32 {sP2W}, {sP2W}, {W1_OFF}
    s_mul_i32 {sP3W}, {sDC}, 56
    s_mul_i32 s35, {sWAVE}, 14
    s_add_u32 {sP3W}, {sP3W}, s35
    s_mul_i32 {sP3W}, {sP3W}, 5120
    s_add_u32 {sP3W}, {sP3W}, {WD_OFF}
    ''')


def fa_addr(c, va, t1):
    c(f'''
    v_and_b32 {t1}, 3, v0
    v_and_b32 {va}, 12, v0
    v_lshl_add_u32 {va}, {va}, 2, {t1}
    v_mul_u32_u24 {va}, {FSP}, {va}
    s_mul_i32 s47, {sWAVE}, {4 * FSP}
    s_add_u32 s47, s47, {FX_OFF}
    ''')


def fw_addr(c, va):
    c(f'''
    v_min_u32 {va}, 11, v0
    v_mul_u32_u24 {va}, {FSP}, {va}
    s_lshr_b32 s57, {sNI}, 1
    s_mul_i32 s57, s57, {16 * FSP}
    s_add_u32 s57, s57, {FW1_OFF}
    ''')


def f2_addr(c, va):
    c(f'''
    s_lshl_b32 s39, {sWAVE}, 6
    v_add_u32 {va}, s39, v0
    v_min_u32 {va}, 159, {va}
    v_mul_u32_u24 {va}, {FSP}, {va}
    ''')


def p2_dma(g, base=sP2W, every=False):
    o = []
    for k in range(4):
        l = [Ins(f's_add_u32 m0, {sP2L}, {(g % RING) * 16384}')] if k == 0 or (every and g >= 12) else []
        if k == 0:
            l.append(Ins(f's_add_u32 {sP2T}, {base}, {g * 16384}'))
        l.append(Ins(f'buffer_load_dwordx4 v1, {WSR}, {sP2T} offen offset:{1024 * k}{SC} lds', f'g{g}'))
        o.append(l)
    return o


def wfrag(j):
    if j < 56:
        return ar(32 + 4 * j, 4)
    if j < 58:
        return vr(244 + 4 * (j - 56), 4)
    return ar(4 * (j - 58), 4)


def p3_wload(j, R=''):
    o = []
    if j < 60:
        if j and (j & 3) == 0:
            o.append(Ins(f's_add_u32 {sP3W}, {sP3W}, 4096'))
        o.append(Ins(f'buffer_load_dwordx4 {wfrag(j)}, v1, {WSR}, {sP3W} offen offset:{1024 * (j & 3)}{SC}', f'{R}wd{j}'))
    else:
        k = j - 60
        if k and (k & 3) == 0:
            o.append(Ins(f's_add_u32 {sWL}, {sWL}, 4096'))
        o.append(Ins(f's_add_u32 m0, {sSTG}, {4096 * (k >> 2)}'))
        o.append(Ins(f'buffer_load_dwordx4 v1, {WSR}, {sWL} offen offset:{1024 * (k & 3)}{SC} lds', f'{R}wl'))
    return o


sH, sHHS, sF3, sF3P, sF3Q, sHR, sHB, sRES, sRES4, sOUT, sF2P, sSTG, sWL = 's16', 's17', 's18', 's19', 's20', 21, 's25', 's26', 's27', 's28', 's29', 's30', 's31'


def p23_scalars(c):
    t, u = 's12', 's13'
    c(f'''
    s_lshl_b32 {u}, {sMT}, 2
    s_add_u32 {u}, {u}, {sWAVE}
    s_mul_i32 {sH}, {u}, 40960
    s_add_u32 {sH}, {sH}, {H4_OFF}
    s_mul_i32 {sHHS}, {u}, {2 * 57344}
    s_lshr_b32 {t}, {sNI}, 2
    s_mul_i32 {t}, {t}, {56 * 256}
    s_add_u32 {sHHS}, {sHHS}, {t}
    s_and_b32 {t}, {sNI}, 3
    s_lshl_b32 {t}, {t}, 9
    s_add_u32 {sHHS}, {sHHS}, {t}
    s_add_u32 {sHHS}, {sHHS}, {HH_OFF}
    s_mul_i32 {sF3P}, {u}, {4 * FSP}
    s_add_u32 {sF3P}, {sF3P}, {F3_OFF}
    s_mul_i32 {sF3Q}, {sMT}, {16 * FSP}
    s_mul_i32 {sF3}, {sNI}, {FSP}
    s_add_u32 {sF3}, {sF3}, {sF3Q}
    s_add_u32 {sF3}, {sF3}, {F3_OFF}
    s_add_u32 {sF3Q}, {sF3Q}, {F3_OFF + 3 * 256 * FSP}
    s_cmp_eq_u32 {sWAVE}, 0
    s_cselect_b32 {sF3}, {sF3}, 0x70000000
    s_lshl_b32 {u}, {sMT64}, 2
    s_add_u32 {u}, {u}, {sWAVE}
    s_mul_i32 {sOUT}, {u}, {16 * 1280}
    s_mul_i32 {t}, {sDC}, 160
    s_add_u32 {sOUT}, {sOUT}, {t}
    s_mul_i32 {sHB}, {u}, 57344
    s_add_u32 {sHB}, {sHB}, {HH_OFF + 48 * 256}
    s_lshr_b32 {sRES}, {u}, 1
    s_mul_i32 {sRES}, {sRES}, 40960
    s_and_b32 {t}, {sWAVE}, 1
    s_lshl_b32 {t}, {t}, 3
    s_add_u32 {sRES}, {sRES}, {t}
    s_mul_i32 {t}, {sDC}, {20 * 256}
    s_add_u32 {sRES}, {sRES}, {t}
    s_add_u32 {sRES}, {sRES}, {H4_OFF}
    s_add_u32 {sRES4}, {sRES}, 4096
    s_sub_u32 {sF2P}, {sMT}, 10
    s_cmp_lt_u32 {sMT}, 12
    s_cselect_b32 {sF2P}, 1, {sF2P}
    s_cmp_lt_u32 {sMT}, 8
    s_cselect_b32 {sF2P}, 0, {sF2P}
    s_mul_i32 {sF2P}, {sF2P}, {160 * FSP}
    s_add_u32 {sF2P}, {sF2P}, {F2_OFF}
    s_mul_i32 {sSTG}, {sWAVE}, 10240
    s_add_u32 {sWL}, {sP3W}, {60 * 1024}
    s_mul_i32 {u}, {sMT64}, {4 * 57344}
    s_mul_i32 {t}, {sWAVE}, {56 * 256}
    s_add_u32 {u}, {u}, {t}
    s_add_u32 {u}, {u}, {HH_OFF}
    ''')
    for r in range(4):
        c(f'''
        s_add_u32 {t}, {sWAVE}, {r + 1}
        s_and_b32 {t}, {t}, 3
        s_mul_i32 s{sHR + r}, {t}, 57344
        s_add_u32 s{sHR + r}, s{sHR + r}, {u}
        ''')
    for o, r in (('nowd', [sP3W, sWL]), ('nog', [sP2W]), ('nohh', [f's{sHR + r}' for r in range(4)] + [sHB]), ('noh', [sH])):
        if OPT.get(o):
            for x in r:
                c(f's_mov_b32 {x}, 0x70000000')


def p23_vectors():
    c = Code()
    t = gT
    c(f'''
    v_add_u32 v4, 0x10000, v1
    v_add_u32 v5, 0x20000, v1
    v_bfe_u32 v2, v0, 4, 1
    v_mul_u32_u24 v2, 57344, v2
    v_lshrrev_b32 v{t}, 5, v0
    v_lshl_add_u32 v2, v{t}, 8, v2
    v_bfe_u32 v3, v0, 2, 2
    v_lshl_add_u32 v3, v{t}, 3, v3
    v_lshlrev_b32 v3, 6, v3
    v_and_b32 v7, 3, v0
    v_lshl_add_u32 v3, v7, 3, v3
    v_and_b32 v7, 16, v0
    v_lshl_add_u32 v3, v7, 1, v3
    v_and_b32 v7, 15, v0
    v_lshlrev_b32 v7, 4, v7
    v_add_u32 v2, v2, v7
    v_lshrrev_b32 v{t}, 4, v0
    v_lshl_add_u32 v6, v{t}, 9, v7
    v_lshl_add_u32 v7, v{t}, 8, v7
    v_and_b32 {vPA}, 3, v0
    v_mul_u32_u24 {vPA}, {FSP}, {vPA}
    v_min_u32 v243, 27, v0
    v_mul_u32_u24 v243, {FSP}, v243
    s_mul_i32 s58, {sWAVE}, {28 * FSP}
    s_add_u32 s58, s58, {FD_OFF}
    ''')
    return c.ins


def p23_main(c, R, pre_groups, wpre, issued=None):
    ld = st = SC
    O = lambda k, d: OPT.get(R + k, OPT.get(k, d))
    HPRE = O('hpre', 13)
    nacc = NB1 + 1
    assert nacc == 3
    accof = lambda bi: gACC + 16 * (bi % nacc)
    order = []
    for ks in range(40):
        for bi in range(NB1):
            order.append((ks * NB1 + bi, bi, ks))
    late = [(40 * NB1 + bi, bi, 40) for bi in range(NB1)]
    rest = []
    for bi in range(NB1, 7):
        for ks in range(41):
            rest.append((NB1 * 41 + (bi - NB1) * 41 + ks, bi, ks))
    LATE_AT = 14
    order += rest[:LATE_AT] + late + rest[LATE_AT:]
    latebuf = {s: NWB + k for k, (s, _, _) in enumerate(late)}
    bufof = {}
    k = 0
    for s in range(287):
        if s in latebuf:
            bufof[s] = latebuf[s]
        else:
            bufof[s] = k % NWB
            k += 1
    gRES = 220
    wbuf = lambda s: ar(4 * bufof[s], 4) if bufof[s] < NWB else vr(gRES + 4 * (bufof[s] - NWB), 4)
    mf = []
    mpos = {}
    last_of_blk = {}
    for s, bi, ks in order:
        a = vr(accof(bi), 16)
        h = vr(gHF + 4 * ks, 4) if ks < 40 else vr(gMF, 4)
        mpos[s] = len(mf)
        last_of_blk[bi] = len(mf)
        mf.append(Ins(f'v_mfma_f32_32x32x16_bf16 {a}, {wbuf(s)}, {h}, {"0" if ks == 0 else a}'))
    N2 = len(mf)
    pre = {}
    P = lambda pos, i: pre.setdefault(pos, []).append(i)
    cs_seq = {s for s, _, ks in order if ks == 40}

    def rd(s):
        off = (s % (16 * RING)) * 1024
        if s in cs_seq:
            f, r = REG_RE.match(wbuf(s)).group(1, 3)
            return [Ins(f'v_add_u32 v{gT + 6}, {off}, v3'),
                    Ins(f'ds_read_b64_tr_b16 {vr(int(r), 2, f)}, v{gT + 6}', f'{R}w{s}'),
                    Ins(f'ds_read_b64_tr_b16 {vr(int(r) + 2, 2, f)}, v{gT + 6} offset:256', f'{R}w{s}')]
        return [Ins(f'ds_read_b128 {wbuf(s)}, {["v1", "v4", "v5"][off >> 16]} offset:{off & 0xffff}', f'{R}w{s}')]

    def hload(ks):
        o = []
        if ks and (ks & 3) == 0:
            o.append(Ins(f's_add_u32 {sH}, {sH}, 4096'))
        o.append(Ins(f'buffer_load_dwordx4 {vr(gHF + 4 * ks, 4)}, v1, {WSR}, {sH} offen offset:{1024 * (ks & 3)}{ld}', f'{R}h{ks}'))
        return o

    def dma(g):
        ll = p2_dma(g, every=True)
        for l in ll:
            l[-1].tag = f'{R}g{g}'
        return ll
    DIST = NWB - 2
    rpos = {}
    seen = {}
    for s in range(287):
        want = s - DIST - 1
        b = bufof[s]
        if b in seen:
            want = max(want, mpos[seen[b]])
        seen[b] = s
        rpos[s] = max(-1, want, rpos.get(s - 1, -1))
        assert rpos[s] < mpos[s]
    bars = [48, 96, 136, 184, 216, 248]
    GPRE = issued or pre_groups
    if pre_groups < RING:
        bars = sorted(set([rpos[16 * g] for g in range(pre_groups, 7)] + [b for b in bars if b > 100] + [rpos[16 * 7]]))
    head = []
    gjobs = []
    for g in range(pre_groups, 18):
        e = -1 if g < RING else min(b for b in bars if b >= max(mpos[s] for s in range(16 * (g - RING), 16 * (g - RING) + 16))) + 2
        cert = max(b for b in bars if b <= rpos[16 * g])
        if g >= GPRE:
            assert e + 10 < cert, g
            for l in dma(g):
                gjobs.append((e, cert - O('gmargin', 2), l))
        P(cert, Ins(f'@vm {R}g{g}'))
    for b in bars:
        P(b, Ins('s_barrier'))
    for s in range(287):
        for i in rd(s):
            P(rpos[s], i)
    SS = gT
    DB = O('db', 4)
    for ks in range(40):
        p = mpos[ks * NB1] - 3
        P(max(p, -1), Ins(f'@vm {R}h{ks}'))
        P(max(p, -1), Ins(f'v_permlane16_swap_b32 v{gHF + 4 * ks}, v{gHF + 4 * ks + 2}'))
        P(max(p + 1, -1), Ins(f'v_permlane16_swap_b32 v{gHF + 4 * ks + 1}, v{gHF + 4 * ks + 3}'))
        if ks % DB == DB - 1:
            q = mpos[ks * NB1]
            for r in range(4 * (ks - DB + 1), 4 * (ks + 1)):
                x = gHF + r
                P(q, Ins(f'v_dot2_f32_bf16 v{SS}, v{x}, v{x}, {"0" if r == 0 else "v%d" % SS}'))
    quads = list(range(140, 172, 4)) + list(range(204, 236, 4))[:7] + [188, 192, 196, 200, 232]
    acc3 = lambda r, b: quads[5 * r + b]
    seq3 = [(r, ks) for ks in range(6) for r in range(4)] + [(r, ks) for ks in (6, 7) for r in range(3)]
    seq3 += [(r, ks) for r in range(3) for ks in range(8, 12)] + [(3, ks) for ks in range(6, 12)] + [(4, k) for k in range(8)]
    usepos = {x: N2 + 5 * i for i, x in enumerate(seq3)}
    lorder = [x for x in seq3 if x[0] < 4 and x[1] < 10 and x != (3, 8) and x != (3, 9)]
    lorder += [x for x in seq3 if x not in lorder]
    free_at = {i: mpos[NB1 * 41 + 4 * 41 + i] for i in range(NHB)}
    hbuf = {}
    CP1 = mpos[NB1 * 41 + 4 * 41] + O('cp1', 0)
    CP2 = N2 + O('cp2', 45)
    CP3 = N2 + O('cp3', 115)
    CP4 = N2 + O('cp4', 185)
    hjobs, rjobs = [], []
    for b in range(5):
        if b < 4:
            i = Ins(f'buffer_load_dwordx2 {vr(gRES + 2 * b, 2)}, v6, {WSR}, {sRES} offen offset:{2048 * (b >> 1) + 256 * (b & 1)}{ld}')
        else:
            i = Ins(f'buffer_load_dwordx2 {vr(gRES + 2 * b, 2)}, v7, {WSR}, {sRES4} offen{ld}')
        rjobs.append((mpos[late[-1][0]] + 1, CP1 - 10, [i]))
    for x in lorder:
        r, ks = x
        b = min(free_at, key=lambda k_: (free_at[k_], k_))
        cp = CP4 if r == 4 else (CP3 if ks >= 10 else (CP2 if ks >= 6 else CP1))
        e = max(cp + 1, free_at[b])
        hbuf[x] = b
        free_at[b] = usepos[x] + 4
        l = []
        if r < 4:
            if ks and (ks & 3) == 0:
                l.append(Ins(f's_add_u32 s{sHR + r}, s{sHR + r}, 4096'))
            so, off = f's{sHR + r}', 1024 * (ks & 3)
        else:
            if ks and (ks & 1) == 0:
                l.append(Ins(f's_add_u32 {sHB}, {sHB}, {56 * 256}'))
            so, off = sHB, 1024 * (ks & 1)
        l.append(Ins(f'buffer_load_dwordx4 {vr(gHF + 4 * b, 4)}, v1, {WSR}, {so} offen offset:{off}{ld}', f'{R}hq{r}_{ks}'))
        hjobs.append((e, usepos[x] - 1, l))
    done3, wlast = {}, {}
    for r, ks in seq3:
        for b in range(5):
            a = vr(acc3(min(r, 3), b), 4)
            if r < 4:
                wlast[5 * ks + b] = len(mf)
            mf.append(Ins(f'v_mfma_f32_16x16x32_bf16 {a}, {wfrag(5 * ks + b)}, {vr(gHF + 4 * hbuf[(r, ks)], 4)}, {"0" if ks == 0 and r < 3 else a}'))
        done3[r] = len(mf) - 1
    P(CP3 + 2, Ins(f'v_and_b32 {vPA}, 15, v0'))
    P(CP3 + 3, Ins(f'v_mul_u32_u24 {vPA}, {FSP}, {vPA}'))
    pjobs = []
    for nm, cp, lead in (('cp1', CP1, O('l1', 24)), ('cp2', CP2, O('l2', 45)), ('cp3', CP3, O('l3', 45)), ('cp4', CP4, O('l4', 45))):
        so = sF3Q if nm == 'cp4' else sF3P
        pjobs.append((cp - lead, cp - lead + 6, [poll_load(vPV, vPA, WSR, so)]))
        for i in poll_check(R + nm, vPV, vPA, WSR, so, 0 if OPT.get('nocp') else 1, 2):
            P(cp, i)
        if nm in ('cp1', 'cp2'):
            P(cp + 1, Ins(f's_add_u32 {sF3P}, {sF3P}, {256 * FSP}'))
    POST = {2: O('po3', 184), 4: O('po5', 264), 5: N2 + O('po6', 30), 6: N2 + O('po7', 90)}
    for bi, p in POST.items():
        if p in bars:
            pre[p].insert(0, Ins(f'@vm {R}hh{bi}'))
        else:
            P(p, Ins(f'@vm {R}hh{bi}'))
            if bi == 6:
                P(p, Ins(f'@vm {R}wl'))
            P(p, Ins('s_barrier'))
        pjobs.append((p + 1, p + 6, ([Ins(f's_add_u32 {sF3}, {sF3}, {256 * FSP}')] if bi > 2 else []) +
                      [Ins(f'buffer_store_dword {vFV}, {vOOB}, {WSR}, {sF3} offen{st}')]))
    pjobs.sort(key=lambda x: x[0])
    assert POST[2] + 6 < CP1 and POST[4] + 6 < CP2 and POST[5] + 6 < CP3 and POST[6] + 6 < CP4
    BARW = POST[6]
    CPD = O('cpd', 60)
    pjobs.insert(0, (CPD - 26, CPD - 20, [poll_load(vPV, 'v243', WSR, 's58')]))
    for i in poll_check(R + 'cpd', vPV, 'v243', WSR, 's58', 1, 2):
        P(CPD, i)
    wjobs = [(CPD + 2 if j < 58 else N2, usepos[(0, j // 5)] - 1, p3_wload(j, R)) for j in range(wpre, 60)]
    ljobs = [(min(b for b in bars if b >= mpos[16 * 12 - 1]) + 2, BARW - 40, p3_wload(j, R)) for j in range(60, 70)]
    h2jobs = [(0, mpos[ks * NB1] - 4, hload(ks)) for ks in range(HPRE, 40)]
    tpos, t = [], 0
    for k, m in enumerate(mf):
        tpos.append(t)
        t += 33 if m.passes == 8 else 17
        if k < 40 * NB1 and k % (DB * NB1) == (DB - 1) * NB1:
            t += 12 + 16 * DB
    vm, pre2, where = pace([h2jobs, gjobs, wjobs, hjobs, pjobs, rjobs, ljobs], tpos,
                           lambda p: O('spa', 66) if p < 40 * NB1 else (O('spb', 66) if p < N2 else O('spc', 72)))
    vm[-1] = sum((hload(ks) for ks in range(HPRE)), [])
    for p, l in pre2.items():
        for i in l:
            P(p, i)
    lead = sorted((tpos[d] - tpos[where[id(l[-1])]], l[-1].tag) for _, d, l in h2jobs + wjobs + hjobs)
    print(R, 'smallest leads', lead[:5], 'last vm at', max(where.values()) - N2, file=sys.stderr)
    k = 0
    while k < 287:
        n = 2 if k < 40 * NB1 + LATE_AT + 2 else O('lgn', 3)
        P(k - 1, Ins(f'@lg {R}w{max(x[0] for x in order[k:k + n])}'))
        k += n
    p = BARW + 1
    for j in range(40):
        p = max(p + 2, wlast[j])
        while p in vm:
            p += 1
        assert p < usepos[(4, j // 5)] - 8
        P(p, Ins(f'ds_read_b128 {wfrag(j)}, v1 offset:{1024 * j}'))
    for r in range(3):
        p = done3[r]
        for b in range(5):
            p += O('pws', 4)
            P(p, Ins(f'ds_write_b128 v{2 + r}, {vr(acc3(r, b), 4)} offset:{1024 * (5 * r + b)}', f'{R}pw{r}'))
    PRD = p + 5
    mk = ((8, 0), (9, 80), (10, N2 - 1), (11, N2 + 140), (12, len(mf) - 1))
    if OPT.get('mk23') == 2:
        mk = [(k + 1, N2 - 1 + 25 * k) for k in range(12)]
    if OPT.get('mk23') == 3:
        mk = [(k + 1, 26 * k) for k in range(12)]
    for k, p in ([] if OPT.get('mk1') else mk):
        for i in mark(k, True):
            P(p, i)
    bg = []
    B = lambda pos, t, tag=None: bg.append((pos, Ins(t, tag and R + tag)))
    p = mpos[39 * NB1 + NB1 - 1] + 2
    NM, VA, RS, C1, T2 = gT + 1, gT, gT + 2, gT + 3, gT + 4
    B(p, f'v_mov_b32 v{T2}, v{SS}')
    B(p, f'v_mov_b32 v{NM}, v{accof(0) + 4}')
    B(p, f'v_mov_b32 v{T2 + 1}, v{accof(0) + 4}')
    B(p, f'v_permlane32_swap_b32 v{SS}, v{T2}')
    B(p, f'v_permlane32_swap_b32 v{T2 + 1}, v{NM}')
    B(p, f'v_add_f32 v{VA}, v{SS}, v{T2}')
    cc = Code()
    ln_finish(cc, NM, VA, RS)
    for i in cc.ins:
        bg.append((p, i))
    B(p, f'v_cvt_pk_bf16_f32 v{gMF}, v{NM}, v{NM}')
    B(p, f'v_mov_b32 v{gMF + 1}, v{gMF}')
    B(p, f'v_mov_b32 v{gMF + 2}, v{gMF}')
    B(p, f'v_mov_b32 v{gMF + 3}, v{gMF}', 'mf')
    B(p, f'v_mul_f32 v{C1}, 0xbfb8aa3b, v{RS}')
    B(p, f'v_mul_f32 v{VA}, v{VA}, v{RS}')
    epi_last = {}

    for bi in range(7):
        a = accof(bi)
        p = last_of_blk[bi] + 3
        if bi == 6:
            for b in range(5):
                q = acc3(3, b)
                B(0, f'v_lshlrev_b32 v{q}, 16, v{gRES + 2 * b}')
                B(0, f'v_and_b32 v{q + 1}, 0xffff0000, v{gRES + 2 * b}')
                B(0, f'v_lshlrev_b32 v{q + 2}, 16, v{gRES + 2 * b + 1}')
                B(0, f'v_and_b32 v{q + 3}, 0xffff0000, v{gRES + 2 * b + 1}', 'res')
            p += 2
        for r in range(8):
            B(p, f'v_mul_f32 v{a + r}, v{C1}, v{a + r}')
        for r in range(8):
            B(p, f'v_exp_f32 v{a + r}, v{a + r}')
            if r:
                B(p, f'v_fma_f32 v{a + r - 1}, v{a + r - 1}, v{VA}, v{VA}')
        B(p, f'v_rcp_f32 v{a}, v{a}')
        B(p, f'v_fma_f32 v{a + 7}, v{a + 7}, v{VA}, v{VA}')
        for r in range(1, 8):
            B(p, f'v_rcp_f32 v{a + r}, v{a + r}')
            B(p, f'v_mul_f32 v{a + 8 + r - 1}, v{a + 8 + r - 1}, v{a + r - 1}')
        B(p, f'v_cvt_pk_bf16_f32 v{a}, v{a + 8}, v{a + 9}')
        B(p, f'v_mul_f32 v{a + 15}, v{a + 15}, v{a + 7}')
        for r in range(1, 4):
            B(p, f'v_cvt_pk_bf16_f32 v{a + r}, v{a + 8 + 2 * r}, v{a + 9 + 2 * r}')
        B(p, f'buffer_store_dwordx4 {vr(a, 4)}, v2, {WSR}, {sHHS} offen offset:{2048 * (bi & 1)}{st}', f'hh{bi}')
        epi_last[bi] = bg[-1][1]
        if bi & 1:
            B(p, f's_add_u32 {sHHS}, {sHHS}, 4096')
    for r in range(4):
        B(0, f's_add_u32 s39, {sWAVE}, {r + 1}')
        B(0, f's_and_b32 s39, s39, 3')
        B(0, f's_mul_i32 s39, s39, {15 * 1024}')
        B(0, f's_add_u32 s39, s39, 65536')
        B(0, f'v_add_u32 v{2 + r}, s39, v1')
    B(0, f'v_lshrrev_b32 v{gT}, 4, v0')
    B(0, f'v_and_b32 v6, 15, v0')
    B(0, f'v_mul_u32_u24 v6, 1280, v6')
    B(0, f'v_lshl_add_u32 v7, v{gT}, 3, v6')
    B(0, f'v_lshl_add_u32 v6, v{gT}, 4, v6', 'adr')
    B(PRD, f'@lg {R}pw2')
    B(0, 's_barrier')
    for b in range(5):
        for r in range(3):
            B(0, f'ds_read_b128 {vr(acc3(r, b), 4)}, v5 offset:{1024 * (5 * r + b)}')
    for b in range(5):
        for r in (1, 2):
            for k in range(4):
                B(PRD + 16, f'v_add_f32 v{acc3(0, b) + k}, v{acc3(0, b) + k}, v{acc3(r, b) + k}', 'sum')
    p = len(mf)
    OR = gACC
    for b in range(5):
        for k in (0, 2):
            B(p, f'v_pk_add_f32 {vr(acc3(0, b) + k, 2)}, {vr(acc3(0, b) + k, 2)}, {vr(acc3(3, b) + k, 2)}')
        for k in (0, 2):
            B(p, f'v_cvt_pk_bf16_f32 v{OR + 2 * b + k // 2}, v{acc3(0, b) + k}, v{acc3(0, b) + k + 1}')
        if b in (1, 3):
            B(p, f'buffer_store_dwordx4 {vr(OR + 2 * b - 2, 4)}, v6, {OUTS}, {sOUT} offen offset:{32 * (b - 1)}')
    B(p, f'buffer_store_dwordx2 {vr(OR + 8, 2)}, v7, {OUTS}, {sOUT} offen offset:128')
    xtra = {k: O('xb', 4) for k in range(N2, N2 + 40)}
    xtra.update({k: O('xa', 0) + (O('xa1', 4) if k < 165 else 0) for k in range(80, N2)})
    out = weave(mf, pre, bg, vm, xtra)
    pos = {id(i): k for k, i in enumerate(out)}
    tagged = lambda t: [i for _, i in bg if i.tag == R + t][-1]
    at = lambda t: max(j for j in range(len(mf)) if pos[id(mf[j])] < pos[id(tagged(t))])
    assert at('mf') < mpos[late[0][0]] - 1, 'mean fragment not ready'
    for bi in range(nacc, 7):
        assert at(f'hh{bi - nacc}') < mpos[NB1 * 41 + (bi - NB1) * 41] - 1, ('acc reuse', bi)
    assert at('hh5') < N2 + 4 and at('res') < N2 + 8, (at('hh5'), at('res'))
    assert at('adr') < done3[0] and BARW < done3[0]
    print(R, ' '.join(f'{t}@{at(t) - N2}' for t in ('hh0', 'hh1', 'hh2', 'hh3', 'hh4', 'hh5', 'res', 'hh6', 'sum')),
          'cp', CP1 - N2, CP2 - N2, CP3 - N2, CP4 - N2, 'prd', PRD - N2, 'after last mfma', len(out) - pos[id(mf[-1])], file=sys.stderr)
    c.extend(out)
```

```python
import sys
from asmlib import *
from phases import *
import phases

NAME = 'sequential_preLN__ssm_conv_h3__glu_gated_glu__prompt'
KN = NAME + '_kernel'
HEADER = open('cdna_kernels/%s.s.ref' % NAME).read().split('; Override launch')[0]


def stamp_begin(c, ts):
    if ts:
        for k in range(1, 13):
            c(f's_mov_b32 s{60 + 2 * k}, 0')
        c('s_memtime s[86:87]')


def stamp_end(c, ts, k):
    if ts:
        c(f'''
        s_waitcnt vmcnt(0) lgkmcnt(0)
        s_memrealtime s[90:91]
        s_memtime s[88:89]
        s_lshl_b32 s59, s2, 2
        s_add_u32 s59, s59, {sWAVE}
        s_lshl_b32 s59, s59, 6
        s_add_u32 s59, s59, {TS_OFF + k * 65536}
        s_waitcnt lgkmcnt(0)
        ''')
        for j in range(16):
            c(f'v_mov_b32 v{j}, s{60 + 2 * j}')
        c('v_mov_b32 v16, 0')
        c('s_mov_b64 exec, 1')
        for j in range(4):
            c(f'buffer_store_dwordx4 v[{4 * j}:{4 * j + 3}], v16, {WSR}, s59 offen offset:{16 * j}')


def desc(name, vgpr, accum):
    return f'''.amdhsa_kernel {name}
  .amdhsa_next_free_vgpr {vgpr}
  .amdhsa_next_free_sgpr 102
  .amdhsa_accum_offset {accum}
  .amdhsa_group_segment_fixed_size 0
  .amdhsa_kernarg_size 104
  .amdhsa_user_sgpr_count 2
  .amdhsa_user_sgpr_kernarg_segment_ptr 1
  .amdhsa_system_sgpr_workgroup_id_x 1
  .amdhsa_float_denorm_mode_32 3
.end_amdhsa_kernel'''


def go_addr(c, va):
    c(f'v_and_b32 {va}, 7, v0')
    c(f'v_lshlrev_b32 {va}, 5, {va}')


def wg_flag(c, soff, wait='s_waitcnt vmcnt(0)'):
    c(wait)
    c('s_barrier')
    c(f's_cmp_eq_u32 {sWAVE}, 0')
    c(f's_cselect_b32 s42, {soff}, 0x7f000000')
    c(f'buffer_store_dword v7, v6, {WSR}, s42 offen{SC}')


def probe(c, a, b, mult):
    c('.p2align 8')
    c('.type probe_kernel,@function')
    c('probe_kernel:')
    c('@reset')
    c('s_cmp_ge_u32 s2, 1')
    c('s_cbranch_scc1 L_probe_exit')
    srd(c, 8, WS, WS_USED)
    c('v_lshlrev_b32 v1, 6, v0')
    c('s_waitcnt lgkmcnt(0)')
    for k, (kn, wd, op) in enumerate([(0, 0, 'min'), a, b]):
        c(f's_mov_b32 s20, {TS_OFF + kn * 65536 + wd * 4}')
        for i in range(16):
            c(f'buffer_load_dword v{8 + i}, v1, {WSR}, s20 offen')
            c('s_add_u32 s20, s20, 4096')
        for i in range(1, 16):
            c(f'v_{op}_u32 v8, v8, v{8 + i}')
        c(f'v_readlane_b32 s{30 + k}, v8, 0')
        for l in range(1, 64):
            c(f'v_readlane_b32 s21, v8, {l}')
            c(f's_{op}_u32 s{30 + k}, s{30 + k}, s21')
    c(f'''
    s_sub_u32 s32, s32, s31
    s_min_u32 s32, s32, 20000
    s_mul_i32 s32, s32, {mult}
    s_add_u32 s32, s32, 10000
    L_probe_spin:
    s_memrealtime s[22:23]
    s_waitcnt lgkmcnt(0)
    s_sub_u32 s22, s22, s30
    s_cmp_lt_u32 s22, s32
    s_cbranch_scc1 L_probe_spin
    L_probe_exit:
    s_endpgm
    ''')


def untag(ll):
    for l in ll:
        for i in l:
            i.tag = None
    return ll


def build(ts=False, opts={}):
    c = Code()
    OPT.clear()
    OPT.update(opts)
    OPT['ts'] = ts
    SLOW.clear()
    c('.p2align 8')
    c(f'.type {KN},@function')
    c(f'{KN}:')
    if ts:
        c('s_memrealtime s[60:61]')
    c('s_cmp_lt_u32 s2, 160')
    c('s_cbranch_scc1 L_conv')
    c('s_cmp_ge_u32 s2, 256')
    c('s_cbranch_scc1 L_exit')
    if OPT.get('codepf', 1):
        c(f'''
        s_cmp_lt_u32 s2, 240
        s_cbranch_scc1 L_side
        s_getpc_b64 s[34:35]
        L_pc:
        s_and_b32 s36, s2, 8
        s_lshl_b32 s36, s36, 12
        v_lshl_add_u32 v1, v0, 7, s36
        v_min_u32 v2, L_code_end-L_pc-4, v1
        v_mov_b32 v3, s35
        v_add_co_u32 v2, vcc, s34, v2
        v_addc_co_u32 v3, vcc, 0, v3, vcc
        global_load_dword v250, v[2:3], off
        ''')
    c('s_branch L_side')
    c('L_conv:')
    c('@reset')
    for base, slot in ((12, A_K), (16, A_V), (20, A_SH)):
        c(f's_load_dwordx2 s[{base}:{base + 1}], s[0:1], {slot}')
    c(f'''
    s_mov_b32 s14, {NBYTES_SD}
    s_mov_b32 s15, 0x20000
    s_mov_b64 s[18:19], s[14:15]
    s_movk_i32 s22, {D * 8}
    s_mov_b32 s23, s15
    ''')
    ids(c)
    conv_ids(c)
    p0_kv_load(c, 's[12:15]', 's[16:19]', 's[20:23]')
    srd(c, 24, A_SSMK, NBYTES_SD)
    srd(c, 28, A_SSMD, D * 2)
    srd(c, 8, WS, WS_USED)
    srd(c, 48, OUT, NBYTES_SD)
    srd(c, 52, DBG, 256)
    stamp_begin(c, ts)
    c.extend(mark(1))
    p23_ids(c)
    late = p1_k_load(c, 's[24:27]', 's[28:31]')
    wd_setup(c)
    p0_kv(c, late)
    assert not late
    go_addr(c, 'v122')
    c.add(poll_load('v123', 'v122', DBGS, '0'))
    c.extend(mark(2))
    flag_regs(c, vOOB, vFV)
    c(f'''
    s_lshl_b32 s37, {sSG}, 2
    s_add_u32 s35, s37, {sWAVE}
    s_lshl_b32 s35, s35, 4
    s_add_u32 s35, s35, {sIDX}
    s_mul_i32 s35, s35, {FSP}
    s_add_u32 s35, s35, {F1_OFF}
    s_lshr_b32 s36, {sIDX}, 2
    s_add_u32 s36, s36, s37
    s_mul_i32 s36, s36, {16 * FSP}
    s_add_u32 s36, s36, {F1_OFF}
    ''')
    p23_scalars(c)
    c.extend(poll_check('go_c', 'v123', 'v122', DBGS, '0', 1))
    c('@vm ust')
    c(f'buffer_store_dword {vFV}, {vOOB}, {WSR}, s35 offen{SC}')
    c.extend(mark(3))
    srd(c, 12, B_WD, D * F * 2)
    p1_k(c)
    c(f'''
    v_and_b32 v8, 15, v0
    v_mul_u32_u24 v8, {FSP}, v8
    s_mul_i32 s46, s34, {FSP}
    s_add_u32 s46, s46, {F2_OFF}
    s_add_u32 s41, {sWAVE}, 2
    s_mul_i32 s41, s41, {160 * FSP}
    s_add_u32 s41, s41, s46
    s_sub_u32 s40, s46, {F2_OFF - FD_OFF}
    ''')
    fa_addr(c, 'v138', 'v139')
    fw_addr(c, 'v140')
    f2_addr(c, 'v142')
    c(f'''
    s_cmp_ge_u32 {sWAVE}, 1
    s_cselect_b32 s46, 0x70000000, s46
    s_cselect_b32 s40, 0x70000000, s40
    s_waitcnt lgkmcnt(0)
    s_cbranch_scc1 L_s1_ok
    ''')
    c.add(poll_load('v9', 'v8', WSR, 's36'))
    c.extend(poll_check('s1', 'v9', 'v8', WSR, 's36', 1))
    c('s_waitcnt vmcnt(0)')
    c('s_barrier')
    c.extend(mark(4))
    p1_load_u(c)
    c.add(poll_load('v139', 'v138', WSR, 's47'))
    FA, FP = OPT.get('fa', 12), OPT.get('fp', 250)
    inj = [(0, mark(5)), (FA, poll_check('fa', 'v139', 'v138', WSR, 's47', 1, 2))]
    if OPT.get('mk1'):
        inj += [(p, mark(k)) for k, p in ((10, 96), (11, 192), (12, 287))]
    polls = [(FP, 286, [poll_load('v141', 'v140', WSR, 's57')])]
    sj = [(FA + 2, 200, l) for l in p1_load_x()]
    sj += [(OPT.get('wdl', 144), 200, l) for l in wd_loads('s[12:15]')]
    p1_main(c, inj, [polls, sj])
    fl3 = f'buffer_store_dword {vFV}, {vOOB}, {WSR}, s41 offen{SC}'
    first = 's_waitcnt vmcnt(0)\n' + fl3
    c.extend(poll_check('fw_c', 'v141', 'v140', WSR, 's57', 1, 4, first=first))
    G1, G2 = OPT.get('g1', 2), OPT.get('g2', 4)

    def groups(lo, hi):
        for g in range(lo, hi):
            for l in p2_dma(g):
                l[-1].tag = f'cg{g}'
                c.extend(l)
    groups(0, G1)
    c.extend(p23_vectors())
    c('@vm hst3')
    c(fl3)
    c.add(poll_load('v143', 'v142', WSR, sF2P))
    groups(G1, G2)
    c.extend(poll_check('s2c', 'v143', 'v142', WSR, sF2P, 1, 2))
    c('s_barrier')
    c(f'buffer_store_dword {vFV}, {vOOB}, {WSR}, s40 offen{SC}')
    c.extend([] if OPT.get('mk1') else mark(7))
    p23_main(c, 'c', G1, 0, G2)
    if ts:
        c('s_branch L_end')
    else:
        c('s_endpgm')
    c('L_side:')
    c('@reset')
    srd(c, 12, A_Q, NBYTES_SD)
    srd(c, 16, B_WG, D * F * 2)
    srd(c, 20, B_WU, D * F * 2)
    srd(c, 8, WS, WS_USED)
    srd(c, 48, OUT, NBYTES_SD)
    srd(c, 52, DBG, 256)
    ids(c)
    stamp_begin(c, ts)
    flag_regs(c, 'v6', 'v7')
    go_addr(c, 'v122')
    c(f's_cmp_ge_u32 {sSLOT}, 28')
    c('s_cbranch_scc1 L_side2')
    c('s_sub_u32 s56, s2, 160')
    p0_x(c, 's[12:15]', 's56')
    c.add(poll_load('v123', 'v122', DBGS, '0'))
    c(f'''
    s_mul_i32 s56, s56, {FSP}
    s_add_u32 s56, s56, {FX_OFF}
    s_sub_u32 s7, {sSLOT}, 20
    s_mul_i32 s6, s7, 3
    s_mov_b32 s57, s7
    s_mov_b32 s58, 0x30000000
    ''')
    c.extend(poll_check('go_a', 'v123', 'v122', DBGS, '0', 1, 4))
    wg_flag(c, 's56')
    c('s_branch L_w1')
    c('L_side2:')
    c('@reset')
    c('s_waitcnt lgkmcnt(0)')
    c(f'''
    s_sub_u32 s56, s2, 224
    s_lshl_b32 s45, s56, 2
    s_add_u32 s45, s45, {sWAVE}
    s_lshl_b32 s45, s45, 12
    s_add_u32 s45, s45, {FL_OFF}
    s_lshl_b32 s46, s56, 5
    s_cmp_eq_u32 {sWAVE}, 0
    s_cselect_b32 s46, s46, 0x70000000
    s_cmp_lt_u32 s56, 8
    s_cselect_b32 s45, s45, 0x70000000
    v_lshlrev_b32 v14, 4, v0
    v_mov_b32 v200, 0
    v_mov_b32 v201, 0
    v_mov_b32 v202, 0
    v_mov_b32 v203, 0
    ''')
    for k in range(4):
        c(f'buffer_store_dwordx4 v[200:203], v14, {WSR}, s45 offen offset:{1024 * k}{SC}')
    TG = OPT.get('tlb', 17)
    if TG:
        c(f'''
        s_lshl_b32 s34, {sWAVE}, {6 + TG}
        s_cmp_eq_u32 {sSLOT}, 29
        s_cselect_b32 s34, s34, 0x70000000
        v_lshlrev_b32 v1, {TG}, v0
        buffer_load_dword v251, v1, {WSR}, s34 offen
        buffer_load_dword v249, v1, {OUTS}, s34 offen
        ''')
    c(f'''
    s_sub_u32 s7, {sSLOT}, 20
    s_lshl_b32 s6, s7, 2
    s_sub_u32 s6, s6, 8
    s_lshl_b32 s57, s7, 1
    s_sub_u32 s57, s57, 8
    s_mov_b32 s58, 0
    s_waitcnt vmcnt(0)
    s_barrier
    buffer_store_dword v7, v6, {DBGS}, s46 offen{SC}
    L_w1:
    @reset
    ''')
    c.extend(mark(1))
    side_w1(c, 's[16:19]', 's[20:23]', sXCD, 's6', 's57', 's58')
    c.add(poll_load('v123', 'v122', DBGS, '0'))
    c(f'''
    s_lshl_b32 s56, {sXCD}, 4
    s_add_u32 s56, s56, s7
    s_mul_i32 s56, s56, {FSP}
    s_add_u32 s56, s56, {FW1_OFF}
    ''')
    p23_ids(c)
    p23_scalars(c)
    fw_addr(c, 'v8')
    f2_addr(c, 'v12')
    c(f'''
    v_lshlrev_b32 v1, 4, v0
    v_mul_u32_u24 v13, {FSP}, v0
    s_mov_b32 s47, {FX_OFF}
    ''')
    flag_regs(c, vOOB, vFV)
    c.extend(poll_check('go_b', 'v123', 'v122', DBGS, '0', 1, 4))
    wg_flag(c, 's56')
    c.extend(mark(2))
    c.extend(p23_vectors())
    c(f's_cmp_lg_u32 {sWAVE}, 0')
    c('s_cbranch_scc1 L_fw_s_ok')
    c.add(poll_load('v14', 'v13', WSR, 's47'))
    c.add(poll_load('v9', 'v8', WSR, 's57'))
    c.extend(poll_check('fx_s', 'v14', 'v13', WSR, 's47', 1, 8))
    c.extend(poll_check('fw_s', 'v9', 'v8', WSR, 's57', 1, 8))
    c('s_barrier')
    c.extend(mark(3))
    SG = OPT.get('sg', RING)
    for g in range(SG):
        c.extend(sum(untag(p2_dma(g)), []))
    c.extend(mark(4))
    c(f's_cmp_eq_u32 {sWAVE}, 3')
    c('s_cbranch_scc1 L_s2_ok')
    c.add(poll_load('v11', 'v12', WSR, sF2P))
    c.extend(poll_check('s2', 'v11', 'v12', WSR, sF2P, 1, OPT.get('s2sleep', 2)))
    c('s_waitcnt vmcnt(0)')
    c('s_barrier')
    c.extend([] if OPT.get('mk1') else mark(7))
    p23_main(c, 's', SG, 0)
    c('L_end:')
    c('@reset')
    stamp_end(c, ts, 0)
    if OPT.get('spin100'):
        c('''
        L_sp100:
        s_memrealtime s[22:23]
        s_waitcnt lgkmcnt(0)
        s_sub_u32 s22, s22, s60
        s_cmp_lt_u32 s22, 10000
        s_cbranch_scc1 L_sp100
        ''')
    c('L_exit:')
    c('s_endpgm')
    c.extend(SLOW)
    c('L_code_end:')
    prb = OPT.get('prb')
    if prb is not None:
        probe(c, (0, 0, 'min'), (0, prb, 'max'), 10)
    st = {}
    body = text_of(finalize(c.ins, st))
    print(st, file=sys.stderr)
    out = HEADER
    if prb is not None:
        out += f'; @launch kernel={KN} grid=(256,1,1) block=(256,1,1) lds={LDS_TOTAL}\n'
        out += '; @launch kernel=probe_kernel grid=(1,1,1) block=(64,1,1) lds=0\n'
    else:
        out += f'; @launch grid=(256,1,1) block=(256,1,1) lds={LDS_TOTAL}\n'
    out += f'.amdgcn_target "amdgcn-amd-amdhsa--gfx950"\n.text\n.globl {KN}\n'
    out += body + '\n.section .rodata,"a"\n'
    out += '.p2align 6\n' + desc(KN, 512, 256) + '\n'
    if prb is not None:
        out += '.p2align 6\n' + desc('probe_kernel', 32, 32) + '\n'
    return out


if __name__ == '__main__':
    import argparse
    ap = argparse.ArgumentParser()
    ap.add_argument('-o', default='cdna_kernels/%s.s' % NAME)
    ap.add_argument('--ts', action='store_true')
    ap.add_argument('--opt', nargs='*', default=[])
    a = ap.parse_args()
    opts = {}
    for kv in a.opt:
        k, _, v = kv.partition('=')
        opts[k] = int(v) if v else 1
    open(a.o, 'w').write(build(a.ts, opts))
```

```python
import sys
from asmlib import *

S, D, F = 2048, 640, 1728
NBYTES_SD = S * D * 2
U_OFF = 0
X4_OFF = U_OFF + NBYTES_SD
H4_OFF = X4_OFF + NBYTES_SD
ST_OFF = H4_OFF + NBYTES_SD
W1_OFF = ST_OFF + 65536
WD_OFF = W1_OFF + 16 * 288 * 1024
HH_OFF = WD_OFF + 8 * 56 * 5 * 1024
FL_OFF = HH_OFF + 128 * 57344
FSP = 128
F1_OFF = FL_OFF
FX_OFF = F1_OFF + 640 * FSP
FW1_OFF = FX_OFF + 64 * FSP
FD_OFF = FW1_OFF + 128 * FSP
assert FD_OFF + 160 * FSP <= FL_OFF + 131072
F3_OFF = FL_OFF + 131072
F2_OFF = F3_OFF + 1024 * FSP
assert F2_OFF + 960 * FSP <= F3_OFF + 262144
TS_OFF = F3_OFF + 262144
WS_USED = TS_OFF + 262144

A_Q, A_K, A_V, A_SH, A_SSMK, A_SSMD, B_X, B_WG, B_WU, B_WD, OUT, DBG, WS = [8 * i for i in range(13)]

WSR = 's[8:11]'
sWAVE = 's33'
sXCD, sSLOT = 's4', 's5'
sSG, sIDX = 's6', 's7'
ONES = 0x3f803f80
OUTS, DBGS = 's[48:51]', 's[52:55]'
sP2W, sP2L, sP2T, sP3W = 's92', 's93', 's94', 's95'
sMT, sNI, sMT64, sDC = 's96', 's97', 's98', 's99'
SC = ' sc1'
SPIN = 30000
LDS_TOTAL = 163840

NB1 = 2
BLK_ORDER = [6, 0, 1, 2, 3, 4, 5]


OPT = {}
SLOW = []


def mark(k, p23=False):
    if not OPT.get('ts') or OPT.get('nomk') or (OPT.get('mk23') and not p23):
        return []
    return [Ins(f's_mem{"" if OPT.get("cyc") else "real"}time s[{60 + 2 * k}:{61 + 2 * k}]')]


def mark1(k):
    return mark(k) if OPT.get('mk1') else []


def w1_seq(b, ks):
    bi = BLK_ORDER.index(b)
    if bi < NB1:
        return ks * NB1 + bi
    return NB1 * 41 + (bi - NB1) * 41 + ks


def srd(c, base, slot, nbytes):
    c(f's_load_dwordx2 s[{base}:{base + 1}], s[0:1], {slot}')
    c(f's_mov_b32 s{base + 2}, {nbytes}')
    c(f's_mov_b32 s{base + 3}, 0x20000')


def ids(c):
    c(f'v_lshrrev_b32 v1, 6, v0')
    c(f's_and_b32 {sXCD}, s2, 7')
    c(f'v_readfirstlane_b32 {sWAVE}, v1')
    c(f's_lshr_b32 {sSLOT}, s2, 3')
    c(f'v_and_b32 v0, 63, v0')


def conv_ids(c):
    c(f'''
    s_lshr_b32 {sSG}, {sXCD}, 2
    s_add_u32 {sSG}, {sSG}, 8
    s_and_b32 {sIDX}, {sXCD}, 3
    s_lshl_b32 {sIDX}, {sIDX}, 2
    s_add_u32 {sIDX}, {sIDX}, {sSLOT}
    s_sub_u32 {sIDX}, {sIDX}, 16
    s_cmp_lt_u32 {sSLOT}, 16
    s_cselect_b32 {sSG}, {sXCD}, {sSG}
    s_cselect_b32 {sIDX}, {sSLOT}, {sIDX}
    ''')


KR, VR, CF, PP, AC, VU, OG = 8, 30, 48, 56, 66, 74, 84


def p0_kv_load(c, KS, VS, SHS):
    c(f'''
    v_lshrrev_b32 v7, 4, v0
    v_and_b32 v6, 15, v0
    s_lshl_b32 s34, {sIDX}, 2
    s_add_u32 s34, s34, {sWAVE}
    s_mul_i32 s34, s34, {32 * 1280}
    s_lshl_b32 s35, {sSG}, 7
    s_add_u32 s34, s34, s35
    v_mul_u32_u24 v1, {8 * 1280}, v7
    v_lshl_add_u32 v1, v6, 3, v1
    v_add_u32 v1, s34, v1
    v_subrev_u32 v2, 3840, v1
    s_lshl_b32 s35, {sSG}, 9
    v_lshlrev_b32 v3, 5, v6
    s_movk_i32 s36, 5120
    ''')
    c(f'buffer_load_dwordx4 {vr(CF, 4)}, v3, {SHS}, s35 offen')
    c(f'buffer_load_dwordx4 {vr(CF + 4, 4)}, v3, {SHS}, s35 offen offset:16')
    for r in range(3):
        c(f'buffer_load_dwordx2 {vr(KR + 2 * r, 2)}, v2, {KS}, 0 offen offset:{1280 * r}')
    for r in range(8):
        c(f'buffer_load_dwordx2 {vr(KR + 6 + 2 * r, 2)}, v1, {KS}, {"s36" if r >= 4 else 0} offen offset:{1280 * (r & 3)}')
    for r in range(8):
        c(f'buffer_load_dwordx2 {vr(VR + 2 * r, 2)}, v1, {VS}, {"s36" if r >= 4 else 0} offen offset:{1280 * (r & 3)}')


def p0_kv(c0, late, st=SC):
    P = PP
    c = c0
    c(f'''
    s_lshl_b32 s35, {sWAVE}, 6
    v_mul_u32_u24 v4, 1040, v6
    v_lshl_add_u32 v4, v7, 4, v4
    v_add_u32 v4, s35, v4
    s_mul_i32 s35, {sWAVE}, {4 * 1040}
    v_lshlrev_b32 v3, 4, v0
    v_add_u32 v5, s35, v3
    s_lshl_b32 s34, {sSG}, 2
    s_add_u32 s34, s34, {sWAVE}
    s_lshl_b32 s34, s34, 16
    s_lshl_b32 s35, {sIDX}, 10
    s_add_u32 s34, s34, s35
    s_mov_b32 s40, 0x05040100
    s_mov_b32 s41, 0x07060302
    ''')
    if U_OFF:
        c(f's_add_u32 s34, s34, {U_OFF}')
    kr = lambda t, dw: KR + 2 * (t + 3) + dw
    c = Code()
    for ch in range(4):
        dw, hf = ch >> 1, ch & 1
        for t in range(-2, 8):
            c(f'v_perm_b32 v{P + t + 2}, v{kr(t - 1, dw)}, v{kr(t, dw)}, s{40 + hf}')
        for t in range(8):
            c(f'v_dot2_f32_bf16 v{AC + t}, v{P + t + 2}, v{CF + 2 * ch}, 0')
        for t in range(8):
            c(f'v_dot2_f32_bf16 v{AC + t}, v{P + t}, v{CF + 2 * ch + 1}, v{AC + t}')
        for t in range(8):
            if hf:
                c(f'v_and_b32 v{VU + t}, 0xffff0000, v{VR + 2 * t + dw}')
            else:
                c(f'v_lshlrev_b32 v{VU + t}, 16, v{VR + 2 * t + dw}')
        for t in range(0, 8, 2):
            c(f'v_pk_mul_f32 {vr(AC + t, 2)}, {vr(AC + t, 2)}, {vr(VU + t, 2)}')
        for p in range(4):
            c(f'v_cvt_pk_bf16_f32 v{OG + 4 * ch + p}, v{AC + p}, v{AC + p + 4}')
        c(f'ds_write_b128 v4, {vr(OG + 4 * ch, 4)} offset:{256 * ch}')
    k0, step = OPT.get('lk0', 36), OPT.get('lks', 130 // max(1, len(late)))
    for k, i in enumerate(c.ins):
        c0.add(i)
        if k == 10:
            c0.extend(mark1(7))
        if k == 34:
            c0.extend(mark1(8))
        if k0 and k >= k0 and (k - k0) % step == 0 and late:
            c0.extend(late.pop(0))
    c = c0
    c0.extend(mark1(9))
    c('s_waitcnt lgkmcnt(0)')
    c('s_barrier')
    for i in range(4):
        c(f'ds_read_b128 {vr(OG + 4 * i, 4)}, v5 offset:{1040 * i}')
    for i in range(4):
        c(f'buffer_store_dwordx4 {vr(OG + 4 * i, 4)}, v3, {WSR}, s34 offen{st}', 'ust')
        if i < 3:
            c('s_add_u32 s34, s34, 16384')


def ln_finish(c, s1, s2, tmp):
    c(f'v_mul_f32 v{s1}, 0xbacccccd, v{s1}')
    c(f'v_mul_f32 v{s2}, 0x3acccccd, v{s2}')
    c(f'v_fma_f32 v{s2}, -v{s1}, v{s1}, v{s2}')
    c(f'v_max_f32 v{s2}, 0, v{s2}')
    c(f'v_add_f32 v{s2}, 0x3727c5ac, v{s2}')
    c(f'v_rsq_f32 v{tmp}, v{s2}')


def p0_x(c, XS, sT, st=SC):
    XR, O, A = 16, 56, 100
    c(f'''
    v_lshrrev_b32 v13, 4, v0
    v_and_b32 v12, 15, v0
    s_lshl_b32 s38, {sT}, 2
    s_add_u32 s38, s38, {sWAVE}
    s_mul_i32 s34, s38, {8 * 1280}
    s_add_u32 s35, s34, 5120
    v_mul_u32_u24 v1, 1280, v13
    v_lshl_add_u32 v1, v12, 4, v1
    ''')
    for i in range(2):
        for m in range(5):
            c(f'buffer_load_dwordx4 {vr(XR + 20 * i + 4 * m, 4)}, v1, {XS}, s{34 + i} offen offset:{256 * m}')
    c(f'''
    s_mul_i32 s36, {sWAVE}, {8 * 1296}
    v_mul_u32_u24 v2, 1296, v13
    v_lshl_add_u32 v2, v12, 4, v2
    v_add_u32 v2, s36, v2
    s_mul_i32 s36, {sWAVE}, 320
    v_mul_u32_u24 v3, 1296, v12
    v_lshl_add_u32 v3, v13, 3, v3
    v_add_u32 v3, s36, v3
    v_lshlrev_b32 v4, 4, v0
    s_add_u32 s37, s34, {X4_OFF}
    s_lshl_b32 s38, s38, 10
    s_add_u32 s38, s38, {F3_OFF}
    s_and_b32 s36, {sWAVE}, 1
    s_lshl_b32 s36, s36, 7
    s_lshr_b32 s39, {sWAVE}, 1
    s_lshl_b32 s39, s39, 3
    s_add_u32 s36, s36, s39
    v_lshlrev_b32 v5, 4, v13
    v_add_u32 v5, s36, v5
    v_lshlrev_b32 v8, 2, v0
    s_lshl_b32 s36, {sT}, 8
    s_add_u32 s36, s36, {ST_OFF}
    s_cmp_eq_u32 {sWAVE}, 0
    s_cselect_b32 s36, s36, 0x70000000
    s_mov_b32 s40, {ONES}
    v_mov_b32 v96, 0
    v_mov_b32 v97, 0
    v_mov_b32 v98, 0
    v_mov_b32 v99, 0
    buffer_store_dwordx4 v[96:99], v4, {WSR}, s38 offen{st}
    ''')
    for i in range(2):
        for m in range(5):
            c(f'ds_write_b128 v2, {vr(XR + 20 * i + 4 * m, 4)} offset:{1296 * 4 * i + 256 * m}')
    c('s_waitcnt lgkmcnt(0)')
    c('s_barrier')
    c.extend(mark1(10))
    for i in range(10):
        c(f'ds_read_b64 {vr(O + 4 * i, 2)}, v3 offset:{32 * i}')
        c(f'ds_read_b64 {vr(O + 4 * i + 2, 2)}, v3 offset:{32 * i + 16 * 1296}')
    for i in range(10):
        if i and (i & 3) == 0:
            c('s_add_u32 s37, s37, 4096')
        c(f'buffer_store_dwordx4 {vr(O + 4 * i, 4)}, v4, {WSR}, s37 offen offset:{1024 * (i & 3)}{st}')
        for r in range(4 * i, 4 * i + 4):
            k = A + 2 * (r // 20)
            c(f'v_dot2_f32_bf16 v{k}, v{XR + r}, s40, {"0" if r % 20 == 0 else "v%d" % k}')
            c(f'v_dot2_f32_bf16 v{k + 1}, v{XR + r}, v{XR + r}, {"0" if r % 20 == 0 else "v%d" % (k + 1)}')
    for sh in (8, 4, 2, 1):
        for k in range(4):
            c(f'v_add_f32_dpp v{A + k}, v{A + k}, v{A + k} row_ror:{sh} row_mask:0xf bank_mask:0xf')
    for i in range(2):
        ln_finish(c, A + 2 * i, A + 2 * i + 1, A + 8 + 2 * i)
    for i in range(2):
        c(f'v_mul_f32 v{A + 9 + 2 * i}, v{A + 2 * i}, v{A + 8 + 2 * i}')
        c(f'ds_write_b64 v5, {vr(A + 8 + 2 * i, 2)} offset:{32 * 1296 + 64 * i}')
    c('s_waitcnt lgkmcnt(0)')
    c('s_barrier')
    c(f'ds_read_b32 v10, v8 offset:{32 * 1296}')
    c(f'buffer_store_dword v10, v8, {WSR}, s36 offen{st}')
    c.extend(mark1(11))


UBS = 10368
P1_LDS = 17664 + 4 * UBS + 4 * 2048
LB1 = LDS_TOTAL - P1_LDS
assert LB1 % 256 == 0
KY0 = LB1 + 256
UB0 = LB1 + 17664
EB0 = UB0 + 4 * UBS
KT = 100
cA, cACC, cB, cXQ, cSQ, cT = 16, 80, 176, 208, 224, 240
NBUF = 8


def p1_k_load(c, KKS, DS):
    T = KT
    c(f'''
    s_lshl_b32 s34, {sSG}, 4
    s_add_u32 s34, s34, {sIDX}
    s_lshl_b32 s35, s34, 2
    s_add_u32 s35, s35, {sWAVE}
    s_lshl_b32 s38, s35, 12
    s_lshl_b32 s39, s35, 1
    v_lshlrev_b32 v1, 4, v0
    v_mov_b32 v2, 0
    ''')
    o = [[Ins(f'buffer_load_dwordx4 {vr(T + 4 * i, 4)}, v1, {KKS}, s38 offen offset:{1024 * i}')] for i in range(4)]
    o[0].insert(0, Ins(f'buffer_load_ushort v{T + 16}, v2, {DS}, s39 offen'))
    return o


def p1_k(c):
    T = KT
    c(f'''
    s_lshl_b32 s34, {sSG}, 4
    s_add_u32 s34, s34, {sIDX}
    s_mul_i32 s37, {sWAVE}, 4352
    s_and_b32 s38, {sWAVE}, 1
    s_lshl_b32 s38, s38, 5
    s_add_u32 s37, s37, s38
    s_lshr_b32 s38, {sWAVE}, 1
    s_lshl_b32 s38, s38, 7
    s_add_u32 s37, s37, s38
    s_add_u32 s37, s37, {KY0}
    s_mul_i32 s38, {sWAVE}, {UBS}
    s_add_u32 s38, s38, {UB0}
    s_lshl_b32 s39, {sWAVE}, 11
    s_add_u32 s39, s39, {EB0}
    v_lshrrev_b32 v7, 4, v0
    v_and_b32 v6, 15, v0
    v_bfe_u32 v8, v0, 2, 2
    v_and_b32 v9, 3, v0
    v_lshlrev_b32 v3, 2, v0
    v_add_u32 v10, s38, v3
    v_mov_b32 v3, 0
    v_mov_b32 v4, 0
    v_mov_b32 v5, 0
    ds_write2st64_b32 v10, v2, v2 offset0:0 offset1:5
    ds_write2st64_b32 v10, v2, v2 offset0:10 offset1:15
    v_add_u32 v11, 5248, v10
    ds_write2st64_b32 v11, v2, v2 offset0:0 offset1:5
    ds_write2st64_b32 v11, v2, v2 offset0:10 offset1:15
    v_add_u32 v12, s39, v1
    ds_write_b128 v12, v[2:5]
    s_sub_u32 s42, s37, 32
    v_add_u32 v13, s42, v1
    ds_write_b128 v13, v[2:5]
    v_add_u32 v10, 128, v10
    v_add_u32 v11, 136, v11
    ''')
    c(f'''
    v_lshlrev_b32 v{T + 16}, 16, v{T + 16}
    v_lshlrev_b32 v{T + 17}, 16, v{T}
    v_add_f32 v{T + 16}, v{T + 16}, v{T + 17}
    v_cvt_pk_bf16_f32 v{T + 16}, v{T + 16}, v{T + 16}
    s_mov_b32 s42, 0xffff
    s_mov_b64 exec, 1
    v_bfi_b32 v{T}, s42, v{T + 16}, v{T}
    s_mov_b64 exec, -1
    ''')
    for i in range(4):
        c(f'ds_write_b128 v13, {vr(T + 4 * i, 4)} offset:{32 + 1024 * i}')
    c(f'''
    v_sub_u32 v14, v9, v8
    v_lshlrev_b32 v14, 3, v14
    v_lshl_add_u32 v14, v7, 6, v14
    v_add_u32 v14, s37, v14
    ''')
    for n in range(16):
        c(f'ds_read_b64_tr_b16 {vr(cA + 4 * n, 2)}, v14 offset:{256 * n + 32}')
        c(f'ds_read_b64_tr_b16 {vr(cA + 4 * n + 2, 2)}, v14 offset:{256 * n}')
    c(f'''
    v_lshlrev_b32 v14, 1, v7
    v_sub_u32 v14, v6, v14
    v_lshlrev_b32 v14, 3, v14
    v_and_b32 v13, 1, v6
    v_mul_u32_u24 v13, 5256, v13
    v_sub_u32 v14, v14, v13
    s_add_u32 s42, s38, {5248 + 64}
    v_add_u32 v14, s42, v14
    v_add_u32 v13, 16, v0
    v_subrev_u32 v15, 47, v0
    v_cmp_gt_u32 vcc, 48, v0
    v_lshlrev_b32 v2, 5, v6
    v_lshl_add_u32 v2, v7, 3, v2
    v_cndmask_b32 v13, v15, v13, vcc
    v_add_u32 v15, 64, v13
    v_add_u32 v2, s37, v2
    v_writelane_b32 v13, 64, 63
    v_writelane_b32 v15, 0, 63
    v_lshlrev_b32 v13, 4, v13
    v_lshlrev_b32 v15, 4, v15
    v_add_u32 v13, s39, v13
    v_add_u32 v15, s39, v15
    v_mul_u32_u24 v3, 4352, v8
    v_and_b32 v4, 1, v8
    v_lshl_add_u32 v3, v4, 5, v3
    v_lshrrev_b32 v4, 1, v8
    v_lshl_add_u32 v3, v4, 7, v3
    v_lshl_add_u32 v3, v7, 6, v3
    v_lshl_add_u32 v3, v9, 3, v3
    s_lshl_b32 s42, {sWAVE}, 8
    s_add_u32 s42, s42, {KY0}
    v_add_u32 v3, s42, v3
    ''')
    c(f'''
    v_lshlrev_b32 v4, 4, v6
    v_mul_u32_u24 v5, 40960, v7
    v_add_u32 v5, v5, v4
    v_lshl_add_u32 v4, v7, 10, v4
    s_lshl_b32 s43, s34, 14
    s_lshl_b32 s42, {sWAVE}, 8
    s_add_u32 s43, s43, s42
    s_mul_i32 s44, {sWAVE}, 163840
    s_lshl_b32 s42, s34, 8
    s_add_u32 s44, s44, s42
    s_lshl_b32 s45, {sWAVE}, 10
    s_add_u32 s45, s45, {ST_OFF}
    ''')
    if U_OFF:
        c(f's_add_u32 s43, s43, {U_OFF}')


def p1_load_u(c, ld=SC):
    T = cACC + 64
    for i in range(4):
        c(f'buffer_load_dwordx4 {vr(T + 4 * i, 4)}, v4, {WSR}, s43 offen{ld}')
        if i < 3:
            c('s_add_u32 s43, s43, 4096')


def p1_load_x(ld=SC):
    o = []
    for u in range(4):
        o.append([Ins(f's_add_u32 s43, s45, {4096 * u}'),
                  Ins(f'buffer_load_dwordx4 {vr(cSQ + 4 * u, 4)}, v1, {WSR}, s43 offen{ld}', f'sq{u}')])
        o.append([Ins(f's_add_u32 s43, s44, {X4_OFF + u * 655360}'),
                  Ins(f'buffer_load_dwordx4 {vr(cXQ + 4 * u, 4)}, v5, {WSR}, s43 offen{ld}', f'xq{u}')])
    return o


def p1_main(c, inject, jobs, st=SC):
    T = cACC + 64
    uw = []
    for i in range(4):
        for a in ('v10', 'v11'):
            uw.append(Ins(f'ds_write2st64_b32 {a}, v{T + 4 * i}, v{T + 4 * i + 1} offset0:{i} offset1:{5 + i}'))
            uw.append(Ins(f'ds_write2st64_b32 {a}, v{T + 4 * i + 2}, v{T + 4 * i + 3} offset0:{10 + i} offset1:{15 + i}'))
    c.extend(uw[:4])
    accb = {0: 80, 1: 96, 2: 112, 3: 80, 4: 96, 5: 112, 6: 144, 7: 80}
    acc = lambda t, cp: accb[t] + 4 * cp
    res = lambda cp, w: ar((16 * (w + 1) if w < 1 else 160 + 16 * (w - 1)) + 4 * cp, 4)
    steps = [([t], w) for t in range(4) for w in range(-1, 2 * t + 1)]
    for t, hi in ((4, 8), (6, 12)):
        steps += [([t, t + 1], w) for w in range(7, hi + 1)]
        steps += [([t], w) for w in range(-1, 7)]
        steps += [([t + 1], w) for w in list(range(-1, 7)) + [hi + 1, hi + 2]]
    mf = []
    first_use, last_of_tile, first_of_tile = {}, {}, {}
    started = set()
    strm = []
    for tiles, w in steps:
        if w < 7:
            first_use.setdefault(w, len(mf))
        for cp in range(4):
            if w >= 7:
                breg = vr(cB + 4 * (len(strm) % 8), 4)
                strm.append((cp, w, len(mf), len(mf) + len(tiles) - 1))
            for t in tiles:
                a = vr(acc(t, cp), 4)
                first_of_tile.setdefault(t, len(mf))
                last_of_tile[t] = len(mf)
                mf.append(Ins(f'v_mfma_f32_16x16x32_bf16 {a}, {vr(cA + 4 * (2 * t - w), 4)}, {res(cp, w) if w < 7 else breg}, {a if (t, cp) in started else "0"}'))
                started.add((t, cp))
    off = lambda cp, w: 64 * (w + 1) + 1280 * cp
    rd = lambda cp, w: Ins(f'ds_read_b128 {res(cp, w)}, v14 offset:{off(cp, w)}', f'b{w}')
    pre = {-1: [rd(cp, w) for w in (-1, 0) for cp in range(4)]}
    P = lambda p, l: pre.setdefault(p, []).extend(l)
    seq = []
    for w in range(1, 7):
        if w == 3:
            seq += [(w, i) for i in uw[4:8]]
        seq += [(w, rd(cp, w)) for cp in range(4)]
    p = -1
    for w, i in seq:
        p += 1 if w < 5 else 2
        assert p < first_use[w] - 6
        P(p, [i])
    for i in uw[8:]:
        p += 2
        P(p, [i])
    for w in range(-1, 7, 2):
        P(first_use[w] - 1, [Ins(f'@lg b{w if w < 0 else w + 1}')])
    for k, (cp, w, f, l) in enumerate(strm):
        p = max(p + 1, strm[k - 8][3] if k >= 8 else 0, f - 24)
        assert p < f - 5, k
        P(p, [Ins(f'ds_read_b128 {vr(cB + 4 * (k % 8), 4)}, v14 offset:{off(cp, w)}', f's{k}')])
        if k % 4 == 3:
            P(strm[k - 3][2] - 1, [Ins(f'@lg s{k}')])
    for p, l in inject:
        P(p, l)
    bg = []

    def B(pos, text, tag=None):
        bg.append((pos, Ins(text, tag)))

    def tile_epi(t):
        p = last_of_tile[t] + 4
        Y = [acc(t, cp) for cp in range(4)]
        B(p, f'v_add_f32 v{Y[3] + 1}, v{Y[3] + 1}, v{Y[1] + 3}')
        B(p, f'v_add_f32 v{Y[3] + 2}, v{Y[3] + 2}, v{Y[2] + 3}')
        B(p, f'v_add_f32 v{Y[3] + 1}, v{Y[3] + 1}, v{Y[2] + 2}')
        B(p, f'ds_write_b128 {"v15" if t & 1 else "v13"}, {vr(Y[3], 4)}')
        B(p, f'ds_read_b128 {vr(cT, 4)}, v12 offset:{1024 * (t & 1)}')
        B(p, f'v_add_f32 v{Y[0] + 1}, v{Y[0] + 1}, v{Y[1]}')
        B(p, f'v_add_f32 v{Y[0] + 2}, v{Y[0] + 2}, v{Y[1] + 1}')
        B(p, f'v_add_f32 v{Y[0] + 3}, v{Y[0] + 3}, v{Y[1] + 2}')
        B(p, f'v_add_f32 v{Y[0] + 2}, v{Y[0] + 2}, v{Y[2]}')
        B(p, f'v_add_f32 v{Y[0] + 3}, v{Y[0] + 3}, v{Y[2] + 1}')
        B(p, f'v_add_f32 v{Y[0] + 3}, v{Y[0] + 3}, v{Y[3]}')
        B(p + 10, f'v_add_f32 v{Y[0]}, v{Y[0]}, v{cT + 1}')
        B(p, f'v_add_f32 v{Y[0] + 1}, v{Y[0] + 1}, v{cT + 2}')
        B(p, f'v_add_f32 v{Y[0] + 2}, v{Y[0] + 2}, v{cT + 3}')
        B(p, f'v_cvt_pk_bf16_f32 v{Y[0]}, v{Y[0]}, v{Y[0] + 1}')
        B(p, f'v_cvt_pk_bf16_f32 v{Y[0] + 1}, v{Y[0] + 2}, v{Y[0] + 3}')
        B(p, f'ds_write_b64 v2, {vr(Y[0], 2)} offset:{512 * t}', f'y{t}')

    R, Tm, HX = cT + 4, cT + 8, 160

    def tail_r(u):
        B(0, f'ds_read_b64_tr_b16 {vr(R, 2)}, v3 offset:{1024 * u}')
        B(0, f'ds_read_b64_tr_b16 {vr(R + 2, 2)}, v3 offset:{1024 * u + 32}')

    def tail_x(u, p):
        B(p, f's_add_u32 s42, s44, {H4_OFF + u * 655360}')
        for k in range(4):
            x, rs, nm = cXQ + 4 * u + k, cSQ + 4 * u + (k >> 1) * 2, cSQ + 4 * u + (k >> 1) * 2 + 1
            B(0, f'v_lshlrev_b32 v{HX + 4 * k}, 16, v{x}')
            B(0, f'v_and_b32 v{HX + 4 * k + 1}, 0xffff0000, v{x}')
            B(0, f'v_fma_f32 v{HX + 4 * k + 2}, v{HX + 4 * k}, v{rs}, v{nm}')
            B(0, f'v_fma_f32 v{HX + 4 * k + 3}, v{HX + 4 * k + 1}, v{rs}, v{nm}')

    def tail_y(u):
        for k in range(4):
            B(0, f'v_lshlrev_b32 v{Tm}, 16, v{R + k}')
            B(0, f'v_and_b32 v{Tm + 1}, 0xffff0000, v{R + k}')
            if u == 3:
                B(0, f'v_pk_fma_f32 {vr(HX + 4 * k, 2)}, {vr(HX + 4 * k + 2, 2)}, {vr(Tm, 2)}, {vr(HX + 4 * k, 2)}')
            else:
                B(0, f'v_fmac_f32 v{HX + 4 * k}, v{HX + 4 * k + 2}, v{Tm}')
                B(0, f'v_fmac_f32 v{HX + 4 * k + 1}, v{HX + 4 * k + 3}, v{Tm + 1}')
            B(0, f'v_cvt_pk_bf16_f32 v{cXQ + 4 * u + k}, v{HX + 4 * k}, v{HX + 4 * k + 1}')
        B(0, f'buffer_store_dwordx4 {vr(cXQ + 4 * u, 4)}, v5, {WSR}, s42 offen{st}', f'hst{u}')

    def flag(k):
        if k:
            B(0, f's_add_u32 s46, s46, {160 * FSP}')
        B(0, f'buffer_store_dword v253, v252, {WSR}, s46 offen{st}', f'fl{k}')

    tpos = [17 * k for k in range(len(mf))]
    vm, pre2, where = pace(jobs, tpos, lambda p: OPT.get('sp1', 66) if p < 60 else OPT.get('sp2', 100))
    for p, l in pre2.items():
        P(p, l)
    print('p1 prefetch ends at mfma', max(where.values()), file=sys.stderr)
    xq = {i.tag: where[id(i)] for _, _, l in sum(jobs, []) for i in l if i.tag and i.tag[1] == 'q'}
    LAG = OPT.get('xlag', 50)
    for t in range(4):
        tile_epi(t)
    B(0, '@lg y3')
    B(0, 's_barrier')
    tail_r(0)
    tail_x(0, xq['xq0'] + LAG)
    tail_y(0)
    tail_r(1)
    tail_x(1, xq['xq1'] + LAG)
    tile_epi(4)
    tail_y(1)
    tile_epi(5)
    tail_x(2, xq['xq2'] + LAG)
    B(OPT.get('b5', 200), '@vmlg hst1 y5')
    B(0, 's_barrier')
    tail_r(2)
    flag(0)
    tail_y(2)
    tail_x(3, 0)
    tile_epi(6)
    tile_epi(7)
    B(0, '@vmlg hst2 y7')
    B(0, 's_barrier')
    tail_r(3)
    flag(1)
    tail_y(3)
    for i in mark(6):
        bg.append((0, i))
    out = weave(mf, pre, bg, vm)
    pos = {id(i): k for k, i in enumerate(out)}
    at = lambda t: max(j for j in range(len(mf)) if pos[id(mf[j])] < pos[id(next(x for x in out if x.tag == t))])
    for t, u in ((0, 3), (1, 4), (2, 5), (3, 7)):
        assert at(f'y{t}') < first_of_tile[u] - 1, t
    print('p1:', ' '.join(f'{t}@{at(t)}' for t in ('y0', 'y3', 'y4', 'hst0', 'hst1', 'y5', 'fl0', 'hst2', 'y6')),
          'after last mfma', len(out) - pos[id(mf[-1])], file=sys.stderr)
    c.extend(out)


WJB = 49152
UR = 64 * 448 + 32


def side_w1(c, WGS, WUS, sNP, sK0, sSL, sFOUR, mid, st=SC):
    c(f'''
    v_mul_u32_u24 v1, 147, v0
    v_lshrrev_b32 v1, 11, v1
    v_mul_u32_u24 v2, 14, v1
    v_sub_u32 v2, v0, v2
    v_lshlrev_b32 v2, 4, v2
    v_and_b32 v3, 1, v1
    v_mul_u32_u24 v3, 216, v3
    v_lshrrev_b32 v1, 1, v1
    v_mul_u32_u24 v1, 3456, v1
    v_add3_u32 v1, v1, v2, v3
    s_lshl_b32 s46, {sK0}, 2
    s_add_u32 s46, s46, {sWAVE}
    s_mul_i32 s46, s46, {4 * 3456}
    s_mul_i32 s47, {sNP}, 432
    s_add_u32 s46, s46, s47
    s_mul_i32 s47, {sWAVE}, {4 * 448}
    s_add_u32 s47, s47, {WJB}
    s_mov_b32 exec_hi, 0x00ffffff
    ''')
    for ks in range(4):
        if ks == 3:
            c(f's_add_u32 s46, s46, {sFOUR}')
        if ks == OPT.get('w1pre', 1):
            c('s_mov_b64 exec, -1')
            mid()
            c('s_mov_b32 exec_hi, 0x00ffffff')
        for j in range(2):
            c(f's_add_u32 s45, s46, {(16 * ks + 2 * j) * 3456}')
            for m, srd_ in enumerate((WGS, WUS)):
                c(f's_add_u32 m0, s47, {UR * m + 448 * (16 * ks + 2 * j)}')
                c(f'buffer_load_dwordx4 v1, {srd_}, s45 offen lds', f'w1k{ks}')
    c.extend(mark1(12))
    c(f'''
    s_mov_b64 exec, -1
    v_and_b32 v2, 7, v0
    v_mul_u32_u24 v2, 224, v2
    v_bfe_u32 v3, v0, 3, 1
    v_sub_u32 v8, 1, v3
    v_mul_u32_u24 v8, 0x3f80, v8
    v_mov_b32 v9, 0
    v_mul_u32_u24 v3, {UR}, v3
    v_add3_u32 v2, v2, v3, s47
    v_lshrrev_b32 v12, 5, v0
    v_bfe_u32 v13, v0, 2, 2
    v_lshl_add_u32 v3, v12, 3, v13
    v_mul_u32_u24 v3, 448, v3
    v_bfe_u32 v13, v0, 4, 1
    v_mul_u32_u24 v13, {UR}, v13
    v_add_u32 v3, v3, v13
    v_and_b32 v13, 1, v0
    v_lshl_add_u32 v3, v13, 4, v3
    v_bfe_u32 v13, v0, 1, 1
    v_lshl_add_u32 v3, v13, 3, v3
    s_lshl_b32 s36, {sWAVE}, 5
    s_add_u32 s36, s36, {WJB}
    v_add_u32 v3, s36, v3
    v_lshlrev_b32 v4, 4, v0
    s_lshl_b32 s36, {sWAVE}, 9
    v_lshl_add_u32 v5, v0, 1, s36
    v_add_u32 v10, s36, v4
    s_mov_b32 s44, {ONES}
    s_mul_i32 s45, {sNP}, {2 * 288 * 1024}
    s_add_u32 s45, s45, {W1_OFF}
    ''')
    for r in range(4):
        tb = []
        for w in range(4):
            p = 4 * r + w
            tb.append((288 * (p // 7) + w1_seq(p % 7, 0), w1_seq(p % 7, 1) - w1_seq(p % 7, 0)) if p < 14 else (0x100000, 0))
        c(f's_mov_b32 s{34 + r}, {tb[0][0]}')
        c(f's_mov_b32 s{38 + r}, {tb[0][1]}')
        for w in range(1, 4):
            c(f's_cmp_eq_u32 {sWAVE}, {w}')
            c(f's_cselect_b32 s{34 + r}, {tb[w][0]}, s{34 + r}')
            c(f's_cselect_b32 s{38 + r}, {tb[w][1]}, s{38 + r}')
        c(f'''
        s_lshl_b32 s{34 + r}, s{34 + r}, 10
        s_lshl_b32 s{38 + r}, s{38 + r}, 10
        s_add_u32 s{34 + r}, s{34 + r}, s45
        s_mul_i32 s{28 + r}, s{38 + r}, 40
        s_add_u32 s{28 + r}, s{28 + r}, s{34 + r}
        s_lshl_b32 s42, {sSL}, 6
        s_add_u32 s{28 + r}, s{28 + r}, s42
        s_mul_i32 s42, {sK0}, s{38 + r}
        s_add_u32 s{34 + r}, s{34 + r}, s42
        ''')
    for ks in range(4):
        FR = 16 + 16 * ks
        if ks == 3:
            c(f's_cmp_lg_u32 {sFOUR}, 0')
            c('s_cbranch_scc1 L_w1_three')
        c(f'''
        @vm w1k{ks}
        ds_write_b64 v2, v[8:9] offset:{448 * 16 * ks + 216}
        s_waitcnt lgkmcnt(0)
        s_barrier
        ''')
        c.extend(mark1(7) if ks == 0 else (mark1(8) if ks == 3 else []))
        for r in range(4):
            for h in range(2):
                c(f'ds_read_b64_tr_b16 {vr(FR + 4 * r + 2 * h, 2)}, v3 offset:{448 * (16 * ks + 4 * h) + 128 * r}')
        for r in range(4):
            c(f'buffer_store_dwordx4 {vr(FR + 4 * r, 4)}, v4, {WSR}, s{34 + r} offen{st}')
            if ks < 3:
                c(f's_add_u32 s{34 + r}, s{34 + r}, s{38 + r}')
            for k in range(4):
                c(f'v_dot2_f32_bf16 v{100 + r}, v{FR + 4 * r + k}, s44, {"0" if ks + k == 0 else "v%d" % (100 + r)}')
    c('L_w1_three:')
    c('s_nop 2')
    for r in range(4):
        c(f'v_mov_b32 v{104 + r}, v{100 + r}')
    for r in range(4):
        c(f'v_permlane32_swap_b32 v{100 + r}, v{104 + r}')
    c('s_mov_b32 vcc_lo, 0')
    c('s_mov_b32 vcc_hi, -1')
    for r in range(4):
        c(f'''
        v_add_f32 v{100 + r}, v{100 + r}, v{104 + r}
        v_cvt_pk_bf16_f32 v{104 + r}, v{100 + r}, v{100 + r}
        v_and_b32 v{104 + r}, 0xffff0000, v{104 + r}
        v_sub_f32 v{104 + r}, v{100 + r}, v{104 + r}
        v_cndmask_b32 v{100 + r}, v{100 + r}, v{104 + r}, vcc
        v_cvt_pk_bf16_f32 v{100 + r}, v{100 + r}, v{100 + r}
        ds_write_b16 v5, v{100 + r} offset:{128 * r}
        ''')
    c(f's_cmp_eq_u32 {sFOUR}, 0')
    c('s_cselect_b32 exec_lo, 0xff, 15')
    c('s_mov_b32 exec_hi, 0')
    for r in range(4):
        c(f'ds_read_b128 {vr(104 + 4 * r, 4)}, v10 offset:{128 * r}')
    for r in range(4):
        c(f'buffer_store_dwordx4 {vr(104 + 4 * r, 4)}, v4, {WSR}, s{28 + r} offen{st}')
    c('s_mov_b64 exec, -1')
    c.extend(mark1(9))


WDA, WDF = 128, 176


def wd_setup(c):
    assert BLK_ORDER == [6, 0, 1, 2, 3, 4, 5]
    for i in range(5):
        c(f'''
        v_add_u32 v{WDA + 8}, {64 * i}, v0
        v_mul_u32_u24 v{WDA + 9}, 1639, v{WDA + 8}
        v_lshrrev_b32 v{WDA + 9}, 16, v{WDA + 9}
        v_mul_u32_u24 v{WDA + 9}, 640, v{WDA + 9}
        v_lshl_add_u32 v{WDA + i}, v{WDA + 8}, 4, v{WDA + 9}
        ''')
    c(f'''
    s_mul_i32 s100, {sWAVE}, 5120
    s_add_u32 s100, s100, 20480
    v_lshrrev_b32 v{WDA + 8}, 4, v0
    v_bfe_u32 v{WDA + 9}, v0, 2, 2
    v_mul_u32_u24 v{WDA + 5}, 160, v{WDA + 8}
    v_mul_u32_u24 v{WDA + 9}, 640, v{WDA + 9}
    v_add3_u32 v{WDA + 5}, v{WDA + 5}, v{WDA + 9}, s100
    v_and_b32 v{WDA + 9}, 3, v0
    v_lshl_add_u32 v{WDA + 6}, v{WDA + 9}, 3, v{WDA + 5}
    v_lshl_add_u32 v{WDA + 5}, v{WDA + 9}, 4, v{WDA + 5}
    v_mul_u32_u24 v{WDA + 7}, {56 * 5120}, v{WDA + 8}
    v_and_b32 v{WDA + 9}, 15, v0
    v_lshl_add_u32 v{WDA + 7}, v{WDA + 9}, 4, v{WDA + 7}
    s_lshl_b32 s16, s34, 2
    s_add_u32 s16, s16, {sWAVE}
    s_mul_i32 s17, s16, 2341
    s_lshr_b32 s17, s17, 16
    s_mul_i32 s18, s17, 28
    s_sub_u32 s18, s16, s18
    s_and_b32 s19, s18, 1
    s_lshr_b32 s18, s18, 1
    s_mul_i32 s101, s17, 108
    s_lshl_b32 s20, s18, 3
    s_add_u32 s101, s101, s20
    s_lshl_b32 s101, s101, 1
    s_add_u32 s101, s101, s19
    s_mul_i32 s101, s101, 640
    s_mul_i32 s56, s19, {4 * 56}
    s_lshr_b32 s20, s17, 2
    s_mul_i32 s20, s20, 14
    s_add_u32 s56, s56, s20
    s_bfe_u32 s20, s17, 0x10001
    s_add_u32 s56, s56, s20
    s_and_b32 s20, s18, 14
    s_add_u32 s20, s20, 2
    s_cmp_eq_u32 s20, 14
    s_cselect_b32 s20, 0, s20
    s_add_u32 s56, s56, s20
    s_mul_i32 s56, s56, 20
    s_and_b32 s20, s17, 1
    s_lshl_b32 s20, s20, 1
    s_add_u32 s56, s56, s20
    s_and_b32 s20, s18, 1
    s_add_u32 s56, s56, s20
    s_lshl_b32 s56, s56, 8
    s_add_u32 s56, s56, {WD_OFF}
    s_cmp_eq_u32 s18, 13
    s_cselect_b32 s58, 0, -1
    s_cmp_lt_u32 s16, 448
    s_cselect_b32 s101, s101, 0x70000000
    s_cselect_b32 s56, s56, 0x70000000
    ''')


def wd_loads(WDS):
    return [[Ins(f's_add_u32 m0, s100, {1024 * i}'),
             Ins(f'buffer_load_dwordx4 v{WDA + i}, {WDS}, s101 offen lds', 'wdl')] for i in range(5)]


def wd_reads():
    c = Code()
    c('@vm wdl')
    for b in range(5):
        for h in range(2):
            if b < 4:
                c(f'ds_read_b64_tr_b16 {vr(WDF + 4 * b + 2 * h, 2)}, v{WDA + 5} offset:{2560 * h + 64 * (b >> 1) + 8 * (b & 1)}')
            else:
                c(f'ds_read_b64_tr_b16 {vr(WDF + 4 * b + 2 * h, 2)}, v{WDA + 6} offset:{2560 * h + 128}')
    for b in range(5):
        c(f'v_and_b32 v{WDF + 4 * b + 2}, s58, v{WDF + 4 * b + 2}')
        c(f'v_and_b32 v{WDF + 4 * b + 3}, s58, v{WDF + 4 * b + 3}')
    return c.ins


def wd_stores(st=SC):
    c = Code()
    for b in range(5):
        if b == 4:
            c('s_add_u32 s56, s56, 4096')
        c(f'buffer_store_dwordx4 {vr(WDF + 4 * b, 4)}, v{WDA + 7}, {WSR}, s56 offen offset:{1024 * (b & 3)}{st}', 'wds')
    return c.ins


def poll_load(vval, vaddr, srd_, soff):
    return Ins(f'buffer_load_dword {vval}, {vaddr}, {srd_}, {soff} offen{SC}')


def poll_check(name, vval, vaddr, srd_, soff, need, sleep=None, first='', more=()):
    sleep = sleep or OPT.get('sleep')
    comb = f'v_min3_u32 {vval}, {vval}, {more[0][0]}, {more[1][0]}' if more else ''
    cc = Code()
    cc(f'''
    L_{name}_slow:
    @reset
    {first}
    s_mov_b32 s32, {SPIN}
    L_{name}_spin:
    {('s_sleep %d' % sleep) if sleep else ''}
    buffer_load_dword {vval}, {vaddr}, {srd_}, {soff} offen{SC}
    ''')
    for v, a in more:
        cc(f'buffer_load_dword {v}, {a}, {srd_}, {soff} offen{SC}')
    cc(f'''
    s_sub_u32 s32, s32, 1
    s_waitcnt vmcnt(0)
    {comb}
    v_cmp_gt_u32 vcc, {need}, {vval}
    s_cbranch_scc1 L_{name}_ok
    s_nop 0
    s_cbranch_vccnz L_{name}_spin
    s_branch L_{name}_ok
    ''')
    SLOW.extend(cc.ins)
    return ([Ins(comb)] if more else []) + [Ins(f'v_cmp_gt_u32 vcc, {need}, {vval}'), Ins('s_nop 0'), Ins(f's_cbranch_vccnz L_{name}_slow'), Ins(f'L_{name}_ok:')]


def flag_regs(c, voob, vone):
    c(f'v_mov_b32 {voob}, 0x80000000')
    c(f'v_mov_b32 {vone}, 1')
    c(f'v_writelane_b32 {voob}, 0, 0')


RING = 9
gHF, gMF, gACC, gT = 8, 168, 172, 236
NWB = 8
NHB = 33
vOOB, vFV, vPA, vPV = 'v252', 'v253', 'v254', 'v255'


def p23_ids(c):
    c(f'''
    s_lshr_b32 s34, {sSLOT}, 2
    s_sub_u32 s34, 7, s34
    s_and_b32 s35, {sSLOT}, 3
    s_and_b32 s36, {sXCD}, 1
    s_lshr_b32 s37, {sXCD}, 1
    s_lshl_b32 {sMT}, s34, 1
    s_add_u32 {sMT}, {sMT}, s36
    s_lshl_b32 {sNI}, s37, 2
    s_add_u32 {sNI}, {sNI}, s35
    s_lshl_b32 {sMT64}, {sMT}, 1
    s_and_b32 s36, s37, 1
    s_add_u32 {sMT64}, {sMT64}, s36
    s_and_b32 {sDC}, {sXCD}, 4
    s_add_u32 {sDC}, {sDC}, s35
    s_mul_i32 {sP2W}, {sNI}, {288 * 1024}
    s_lshl_b32 {sP2L}, {sWAVE}, 12
    s_add_u32 {sP2W}, {sP2W}, {sP2L}
    s_add_u32 {sP2W}, {sP2W}, {W1_OFF}
    s_mul_i32 {sP3W}, {sDC}, 56
    s_mul_i32 s35, {sWAVE}, 14
    s_add_u32 {sP3W}, {sP3W}, s35
    s_mul_i32 {sP3W}, {sP3W}, 5120
    s_add_u32 {sP3W}, {sP3W}, {WD_OFF}
    ''')


def fa_addr(c, va, t1):
    c(f'''
    v_and_b32 {t1}, 3, v0
    v_and_b32 {va}, 12, v0
    v_lshl_add_u32 {va}, {va}, 2, {t1}
    v_mul_u32_u24 {va}, {FSP}, {va}
    s_mul_i32 s47, {sWAVE}, {4 * FSP}
    s_add_u32 s47, s47, {FX_OFF}
    ''')


def fw_addr(c, va):
    c(f'''
    v_min_u32 {va}, 11, v0
    v_mul_u32_u24 {va}, {FSP}, {va}
    s_lshr_b32 s57, {sNI}, 1
    s_mul_i32 s57, s57, {16 * FSP}
    s_add_u32 s57, s57, {FW1_OFF}
    ''')


def fd_addr(c, va):
    c(f'''
    v_min_u32 {va}, 27, v0
    v_mul_u32_u24 {va}, {FSP}, {va}
    s_mul_i32 s58, {sWAVE}, {28 * FSP}
    s_add_u32 s58, s58, {FD_OFF}
    ''')


def f2_addr(c, va):
    c(f'''
    s_lshl_b32 s39, {sWAVE}, 6
    v_add_u32 {va}, s39, v0
    v_min_u32 {va}, 159, {va}
    v_mul_u32_u24 {va}, {FSP}, {va}
    ''')


def p2_dma(g, base=sP2W, every=False):
    o = []
    for k in range(4):
        l = [Ins(f's_add_u32 m0, {sP2L}, {(g % RING) * 16384}')] if k == 0 or (every and g >= 12) else []
        if k == 0:
            l.append(Ins(f's_add_u32 {sP2T}, {base}, {g * 16384}'))
        l.append(Ins(f'buffer_load_dwordx4 v1, {WSR}, {sP2T} offen offset:{1024 * k}{SC} lds', f'g{g}'))
        o.append(l)
    return o


def wfrag(j):
    if j < 56:
        return ar(32 + 4 * j, 4)
    if j < 58:
        return vr(244 + 4 * (j - 56), 4)
    return ar(4 * (j - 58), 4)


def p3_wload(j, R=''):
    o = []
    if j < 60:
        if j and (j & 3) == 0:
            o.append(Ins(f's_add_u32 {sP3W}, {sP3W}, 4096'))
        o.append(Ins(f'buffer_load_dwordx4 {wfrag(j)}, v1, {WSR}, {sP3W} offen offset:{1024 * (j & 3)}{SC}', f'{R}wd{j}'))
    else:
        k = j - 60
        if k and (k & 3) == 0:
            o.append(Ins(f's_add_u32 {sWL}, {sWL}, 4096'))
        o.append(Ins(f's_add_u32 m0, {sSTG}, {4096 * (k >> 2)}'))
        o.append(Ins(f'buffer_load_dwordx4 v1, {WSR}, {sWL} offen offset:{1024 * (k & 3)}{SC} lds', f'{R}wl'))
    return o


sH, sHHS, sF3, sF3P, sF3Q, sHR, sHB, sRES, sRES4, sOUT, sF2P, sSTG, sWL = 's16', 's17', 's18', 's19', 's20', 21, 's25', 's26', 's27', 's28', 's29', 's30', 's31'


def p23_scalars(c):
    t, u = 's12', 's13'
    c(f'''
    s_lshl_b32 {u}, {sMT}, 2
    s_add_u32 {u}, {u}, {sWAVE}
    s_mul_i32 {sH}, {u}, 40960
    s_add_u32 {sH}, {sH}, {H4_OFF}
    s_mul_i32 {sHHS}, {u}, {2 * 57344}
    s_lshr_b32 {t}, {sNI}, 2
    s_mul_i32 {t}, {t}, {56 * 256}
    s_add_u32 {sHHS}, {sHHS}, {t}
    s_and_b32 {t}, {sNI}, 3
    s_lshl_b32 {t}, {t}, 9
    s_add_u32 {sHHS}, {sHHS}, {t}
    s_add_u32 {sHHS}, {sHHS}, {HH_OFF}
    s_mul_i32 {sF3P}, {u}, {4 * FSP}
    s_add_u32 {sF3P}, {sF3P}, {F3_OFF}
    s_mul_i32 {sF3Q}, {sMT}, {16 * FSP}
    s_mul_i32 {sF3}, {sNI}, {FSP}
    s_add_u32 {sF3}, {sF3}, {sF3Q}
    s_add_u32 {sF3}, {sF3}, {F3_OFF}
    s_add_u32 {sF3Q}, {sF3Q}, {F3_OFF + 3 * 256 * FSP}
    s_cmp_eq_u32 {sWAVE}, 0
    s_cselect_b32 {sF3}, {sF3}, 0x70000000
    s_lshl_b32 {u}, {sMT64}, 2
    s_add_u32 {u}, {u}, {sWAVE}
    s_mul_i32 {sOUT}, {u}, {16 * 1280}
    s_mul_i32 {t}, {sDC}, 160
    s_add_u32 {sOUT}, {sOUT}, {t}
    s_mul_i32 {sHB}, {u}, 57344
    s_add_u32 {sHB}, {sHB}, {HH_OFF + 48 * 256}
    s_lshr_b32 {sRES}, {u}, 1
    s_mul_i32 {sRES}, {sRES}, 40960
    s_and_b32 {t}, {sWAVE}, 1
    s_lshl_b32 {t}, {t}, 3
    s_add_u32 {sRES}, {sRES}, {t}
    s_mul_i32 {t}, {sDC}, {20 * 256}
    s_add_u32 {sRES}, {sRES}, {t}
    s_add_u32 {sRES}, {sRES}, {H4_OFF}
    s_add_u32 {sRES4}, {sRES}, 4096
    s_sub_u32 {sF2P}, {sMT}, 10
    s_cmp_lt_u32 {sMT}, 12
    s_cselect_b32 {sF2P}, 1, {sF2P}
    s_cmp_lt_u32 {sMT}, 8
    s_cselect_b32 {sF2P}, 0, {sF2P}
    s_mul_i32 {sF2P}, {sF2P}, {160 * FSP}
    s_add_u32 {sF2P}, {sF2P}, {F2_OFF}
    s_mul_i32 {sSTG}, {sWAVE}, 10240
    s_add_u32 {sWL}, {sP3W}, {60 * 1024}
    s_mul_i32 {u}, {sMT64}, {4 * 57344}
    s_mul_i32 {t}, {sWAVE}, {56 * 256}
    s_add_u32 {u}, {u}, {t}
    s_add_u32 {u}, {u}, {HH_OFF}
    ''')
    for r in range(4):
        c(f'''
        s_add_u32 {t}, {sWAVE}, {r + 1}
        s_and_b32 {t}, {t}, 3
        s_mul_i32 s{sHR + r}, {t}, 57344
        s_add_u32 s{sHR + r}, s{sHR + r}, {u}
        ''')
    for o, r in (('nowd', [sP3W, sWL]), ('nog', [sP2W]), ('nohh', [f's{sHR + r}' for r in range(4)] + [sHB]), ('noh', [sH])):
        if OPT.get(o):
            for x in r:
                c(f's_mov_b32 {x}, 0x70000000')


def p23_vectors():
    c = Code()
    t = gT
    c(f'''
    v_add_u32 v4, 0x10000, v1
    v_add_u32 v5, 0x20000, v1
    v_bfe_u32 v2, v0, 4, 1
    v_mul_u32_u24 v2, 57344, v2
    v_lshrrev_b32 v{t}, 5, v0
    v_lshl_add_u32 v2, v{t}, 8, v2
    v_bfe_u32 v3, v0, 2, 2
    v_lshl_add_u32 v3, v{t}, 3, v3
    v_lshlrev_b32 v3, 6, v3
    v_and_b32 v7, 3, v0
    v_lshl_add_u32 v3, v7, 3, v3
    v_and_b32 v7, 16, v0
    v_lshl_add_u32 v3, v7, 1, v3
    v_and_b32 v7, 15, v0
    v_lshlrev_b32 v7, 4, v7
    v_add_u32 v2, v2, v7
    v_lshrrev_b32 v{t}, 4, v0
    v_lshl_add_u32 v6, v{t}, 9, v7
    v_lshl_add_u32 v7, v{t}, 8, v7
    v_and_b32 {vPA}, 3, v0
    v_mul_u32_u24 {vPA}, {FSP}, {vPA}
    ''')
    return c.ins


def p23_main(c, R, pre_groups, wpre, issued=None):
    ld = st = SC
    O = lambda k, d: OPT.get(R + k, OPT.get(k, d))
    HPRE = O('hpre', 13)
    nacc = NB1 + 1
    assert nacc == 3
    accof = lambda bi: gACC + 16 * (bi % nacc)
    order = []
    for ks in range(40):
        for bi in range(NB1):
            order.append((ks * NB1 + bi, bi, ks))
    late = [(40 * NB1 + bi, bi, 40) for bi in range(NB1)]
    rest = []
    for bi in range(NB1, 7):
        for ks in range(41):
            rest.append((NB1 * 41 + (bi - NB1) * 41 + ks, bi, ks))
    LATE_AT = 14
    order += rest[:LATE_AT] + late + rest[LATE_AT:]
    latebuf = {s: NWB + k for k, (s, _, _) in enumerate(late)}
    bufof = {}
    k = 0
    for s in range(287):
        if s in latebuf:
            bufof[s] = latebuf[s]
        else:
            bufof[s] = k % NWB
            k += 1
    gRES = 220
    wbuf = lambda s: ar(4 * bufof[s], 4) if bufof[s] < NWB else vr(gRES + 4 * (bufof[s] - NWB), 4)
    mf = []
    mpos = {}
    last_of_blk = {}
    for s, bi, ks in order:
        a = vr(accof(bi), 16)
        h = vr(gHF + 4 * ks, 4) if ks < 40 else vr(gMF, 4)
        mpos[s] = len(mf)
        last_of_blk[bi] = len(mf)
        mf.append(Ins(f'v_mfma_f32_32x32x16_bf16 {a}, {wbuf(s)}, {h}, {"0" if ks == 0 else a}'))
    N2 = len(mf)
    pre = {}
    P = lambda pos, i: pre.setdefault(pos, []).append(i)
    cs_seq = {s for s, _, ks in order if ks == 40}

    def rd(s):
        off = (s % (16 * RING)) * 1024
        if s in cs_seq:
            f, r = REG_RE.match(wbuf(s)).group(1, 3)
            return [Ins(f'v_add_u32 v{gT + 6}, {off}, v3'),
                    Ins(f'ds_read_b64_tr_b16 {vr(int(r), 2, f)}, v{gT + 6}', f'{R}w{s}'),
                    Ins(f'ds_read_b64_tr_b16 {vr(int(r) + 2, 2, f)}, v{gT + 6} offset:256', f'{R}w{s}')]
        return [Ins(f'ds_read_b128 {wbuf(s)}, {["v1", "v4", "v5"][off >> 16]} offset:{off & 0xffff}', f'{R}w{s}')]

    def hload(ks):
        o = []
        if ks and (ks & 3) == 0:
            o.append(Ins(f's_add_u32 {sH}, {sH}, 4096'))
        o.append(Ins(f'buffer_load_dwordx4 {vr(gHF + 4 * ks, 4)}, v1, {WSR}, {sH} offen offset:{1024 * (ks & 3)}{ld}', f'{R}h{ks}'))
        return o

    def dma(g):
        ll = p2_dma(g, every=True)
        for l in ll:
            l[-1].tag = f'{R}g{g}'
        return ll
    DIST = NWB - 2
    rpos = {}
    seen = {}
    for s in range(287):
        want = s - DIST - 1
        b = bufof[s]
        if b in seen:
            want = max(want, mpos[seen[b]])
        seen[b] = s
        rpos[s] = max(-1, want, rpos.get(s - 1, -1))
        assert rpos[s] < mpos[s]
    bars = [48, 96, 136, 184, 216, 248]
    GPRE = issued or pre_groups
    assert pre_groups >= 4
    head = []
    gjobs = []
    for g in range(pre_groups, 18):
        e = -1 if g < RING else min(b for b in bars if b >= max(mpos[s] for s in range(16 * (g - RING), 16 * (g - RING) + 16))) + 2
        cert = max(b for b in bars if b <= rpos[16 * g])
        if g >= GPRE:
            assert e + 10 < cert, g
            for l in dma(g):
                gjobs.append((e, cert - O('gmargin', 2), l))
        P(cert, Ins(f'@vm {R}g{g}'))
    for b in bars:
        P(b, Ins('s_barrier'))
    for s in range(287):
        for i in rd(s):
            P(rpos[s], i)
    SS = gT
    DB = O('db', 4)
    for ks in range(40):
        p = mpos[ks * NB1] - 3
        P(max(p, -1), Ins(f'@vm {R}h{ks}'))
        P(max(p, -1), Ins(f'v_permlane16_swap_b32 v{gHF + 4 * ks}, v{gHF + 4 * ks + 2}'))
        P(max(p + 1, -1), Ins(f'v_permlane16_swap_b32 v{gHF + 4 * ks + 1}, v{gHF + 4 * ks + 3}'))
        if ks % DB == DB - 1:
            q = mpos[ks * NB1]
            for r in range(4 * (ks - DB + 1), 4 * (ks + 1)):
                x = gHF + r
                P(q, Ins(f'v_dot2_f32_bf16 v{SS}, v{x}, v{x}, {"0" if r == 0 else "v%d" % SS}'))
    quads = list(range(140, 172, 4)) + list(range(204, 236, 4))[:7] + [188, 192, 196, 200, 232]
    acc3 = lambda r, b: quads[5 * r + b]
    seq3 = [(r, ks) for ks in range(6) for r in range(4)] + [(r, ks) for ks in (6, 7) for r in range(3)]
    seq3 += [(r, ks) for r in range(3) for ks in range(8, 12)] + [(3, ks) for ks in range(6, 12)] + [(4, k) for k in range(8)]
    if O('ord', 1):
        seq3 = [(r, ks) for ks in range(6) for r in range(4)] + [(r, ks) for ks in range(6, 10) for r in range(3)]
        for r in range(3):
            seq3 += [(r, 10), (r, 11), (3, 6 + 2 * r), (3, 7 + 2 * r)]
        seq3 += [(4, k) for k in range(8)]
    usepos = {x: N2 + 5 * i for i, x in enumerate(seq3)}
    lorder = [x for x in seq3 if x[0] < 4 and x[1] < 10 and x != (3, 8) and x != (3, 9)]
    lorder += [x for x in seq3 if x not in lorder]
    if O('ord', 1):
        lorder = seq3
    free_at = {i: mpos[NB1 * 41 + 4 * 41 + i] for i in range(NHB)}
    hbuf = {}
    CP1 = mpos[NB1 * 41 + 4 * 41] + O('cp1', 0)
    CP2 = N2 + O('cp2', 55)
    CP3 = N2 + O('cp3', 115)
    CP4 = N2 + O('cp4', 185)
    hjobs, rjobs = [], []
    for b in range(5):
        if b < 4:
            i = Ins(f'buffer_load_dwordx2 {vr(gRES + 2 * b, 2)}, v6, {WSR}, {sRES} offen offset:{2048 * (b >> 1) + 256 * (b & 1)}{ld}')
        else:
            i = Ins(f'buffer_load_dwordx2 {vr(gRES + 2 * b, 2)}, v7, {WSR}, {sRES4} offen{ld}')
        rjobs.append((mpos[late[-1][0]] + 1, CP1 - 10, [i]))
    for x in lorder:
        r, ks = x
        b = min(free_at, key=lambda k_: (free_at[k_], k_))
        cp = CP4 if r == 4 else (CP3 if ks >= 10 else (CP2 if ks >= 6 else CP1))
        e = max(cp + 1, free_at[b])
        hbuf[x] = b
        free_at[b] = usepos[x] + 4
        l = []
        if r < 4:
            if ks and (ks & 3) == 0:
                l.append(Ins(f's_add_u32 s{sHR + r}, s{sHR + r}, 4096'))
            so, off = f's{sHR + r}', 1024 * (ks & 3)
        else:
            if ks and (ks & 1) == 0:
                l.append(Ins(f's_add_u32 {sHB}, {sHB}, {56 * 256}'))
            so, off = sHB, 1024 * (ks & 1)
        l.append(Ins(f'buffer_load_dwordx4 {vr(gHF + 4 * b, 4)}, v1, {WSR}, {so} offen offset:{off}{ld}', f'{R}hq{r}_{ks}'))
        hjobs.append((e, usepos[x] - 2, l))
        if seq3.index(x) % 2 == 0:
            P(usepos[x] - 1, Ins(f'@vm {R}hq%d_%d' % max(seq3[seq3.index(x):seq3.index(x) + 2], key=lorder.index)))
    done3, wlast = {}, {}
    for r, ks in seq3:
        for b in range(5):
            a = vr(acc3(min(r, 3), b), 4)
            if r < 4:
                wlast[5 * ks + b] = len(mf)
            mf.append(Ins(f'v_mfma_f32_16x16x32_bf16 {a}, {wfrag(5 * ks + b)}, {vr(gHF + 4 * hbuf[(r, ks)], 4)}, {"0" if ks == 0 and r < 3 else a}'))
        done3[r] = len(mf) - 1
    P(CP3 + 2, Ins(f'v_and_b32 {vPA}, 15, v0'))
    P(CP3 + 3, Ins(f'v_mul_u32_u24 {vPA}, {FSP}, {vPA}'))
    pjobs = []
    for nm, cp, lead in (('cp1', CP1, O('l1', 24)), ('cp2', CP2, O('l2', 45)), ('cp3', CP3, O('l3', 45)), ('cp4', CP4, O('l4', 45))):
        so = sF3Q if nm == 'cp4' else sF3P
        pjobs.append((cp - lead, cp - lead + 6, [poll_load(vPV, vPA, WSR, so)]))
        for i in poll_check(R + nm, vPV, vPA, WSR, so, 0 if OPT.get('nocp') else 1, 2):
            P(cp, i)
        if nm in ('cp1', 'cp2'):
            P(cp + 1, Ins(f's_add_u32 {sF3P}, {sF3P}, {256 * FSP}'))
    POST = {2: O('po3', 184), 4: O('po5', 264), 5: N2 + O('po6', 35), 6: N2 + O('po7', 90)}
    for bi, p in POST.items():
        if p in bars:
            pre[p].insert(0, Ins(f'@vm {R}hh{bi}'))
        else:
            P(p, Ins(f'@vm {R}hh{bi}'))
            if bi == 6:
                P(p, Ins(f'@vm {R}wl'))
            P(p, Ins('s_barrier'))
        pjobs.append((p + 1, p + 6, ([Ins(f's_add_u32 {sF3}, {sF3}, {256 * FSP}')] if bi > 2 else []) +
                      [Ins(f'buffer_store_dword {vFV}, {vOOB}, {WSR}, {sF3} offen{st}')]))
    pjobs.sort(key=lambda x: x[0])
    assert POST[2] + 6 < CP1 and POST[4] + 6 < CP2 and POST[5] + 6 < CP3 and POST[6] + 6 < CP4
    BARW = POST[6]
    wjobs = [(0 if j < 58 else N2, usepos[(0, j // 5)] - 1, p3_wload(j, R)) for j in range(wpre, 60)]
    ljobs = [(min(b for b in bars if b >= mpos[16 * 12 - 1]) + 2, BARW - 40, p3_wload(j, R)) for j in range(60, 70)]
    h2jobs = [(0, mpos[ks * NB1] - 4, hload(ks)) for ks in range(HPRE, 40)]
    tpos, t = [], 0
    for k, m in enumerate(mf):
        tpos.append(t)
        t += 33 if m.passes == 8 else 17
        if k < 40 * NB1 and k % (DB * NB1) == (DB - 1) * NB1:
            t += 12 + 16 * DB
    for r in range(3):
        p = done3[r]
        for b in range(5):
            p += O('pws', 4) if r < 2 or b == 0 else O('pws2', 3)
            while p in pre:
                p += 1
            P(p, Ins(f'ds_write_b128 v{2 + r}, {vr(acc3(r, b), 4)} offset:{1024 * (5 * r + b)}', f'{R}pw{r}'))
    PRD = p + 3
    vm, pre2, where = pace([h2jobs, gjobs, wjobs, hjobs, pjobs, rjobs, ljobs], tpos,
                           lambda p: O('spa', 66) if p < 40 * NB1 else (O('spb', 76) if p < N2 else O('spc', 70)),
                           avoid={p for p in pre if p >= N2})
    vm[-1] = sum((hload(ks) for ks in range(HPRE)), [])
    for p, l in pre2.items():
        for i in l:
            P(p, i)
    lead = sorted((tpos[d] - tpos[where[id(l[-1])]], l[-1].tag) for _, d, l in h2jobs + wjobs + hjobs)
    print(R, 'smallest leads', lead[:5], 'last vm at', max(where.values()) - N2, file=sys.stderr)
    k = 0
    while k < 287:
        n = 2 if k < 40 * NB1 + LATE_AT + 2 else O('lgn', 3)
        P(k - 1, Ins(f'@lg {R}w{max(x[0] for x in order[k:k + n])}'))
        k += n
    p = BARW + 1
    for j in range(40):
        p = max(p + 2, wlast[j])
        while p in vm or sum(i.cost for i in pre.get(p, [])) > 4:
            p += 1
        assert p < usepos[(4, j // 5)] - 8
        P(p, Ins(f'ds_read_b128 {wfrag(j)}, v1 offset:{1024 * j}'))
    mk = ((8, 0), (9, 80), (10, N2 - 1), (11, N2 + 140), (12, len(mf) - 1))
    if OPT.get('mk23') == 2:
        mk = [(k + 1, N2 - 1 + 25 * k) for k in range(12)]
    if OPT.get('mk23') == 3:
        mk = [(k + 1, 26 * k) for k in range(12)]
    for k, p in ([] if OPT.get('mk1') else mk):
        for i in mark(k, True):
            P(p, i)
    bg = []
    B = lambda pos, t, tag=None: bg.append((pos, Ins(t, tag and R + tag)))
    p = mpos[39 * NB1 + NB1 - 1] + 2
    NM, VA, RS, C1, T2 = gT + 1, gT, gT + 2, gT + 3, gT + 4
    B(p, f'v_mov_b32 v{T2}, v{SS}')
    B(p, f'v_mov_b32 v{NM}, v{accof(0) + 4}')
    B(p, f'v_mov_b32 v{T2 + 1}, v{accof(0) + 4}')
    B(p, f'v_permlane32_swap_b32 v{SS}, v{T2}')
    B(p, f'v_permlane32_swap_b32 v{T2 + 1}, v{NM}')
    B(p, f'v_add_f32 v{VA}, v{SS}, v{T2}')
    cc = Code()
    ln_finish(cc, NM, VA, RS)
    for i in cc.ins:
        bg.append((p, i))
    B(p, f'v_cvt_pk_bf16_f32 v{gMF}, v{NM}, v{NM}')
    B(p, f'v_mov_b32 v{gMF + 1}, v{gMF}')
    B(p, f'v_mov_b32 v{gMF + 2}, v{gMF}')
    B(p, f'v_mov_b32 v{gMF + 3}, v{gMF}', 'mf')
    B(p, f'v_mul_f32 v{C1}, 0xbfb8aa3b, v{RS}')
    B(p, f'v_mul_f32 v{VA}, v{VA}, v{RS}')
    epi_last = {}

    for bi in range(7):
        a = accof(bi)
        p = last_of_blk[bi] + 3
        if bi == 6:
            for b in range(5):
                q = acc3(3, b)
                B(0, f'v_lshlrev_b32 v{q}, 16, v{gRES + 2 * b}')
                B(0, f'v_and_b32 v{q + 1}, 0xffff0000, v{gRES + 2 * b}')
                B(0, f'v_lshlrev_b32 v{q + 2}, 16, v{gRES + 2 * b + 1}')
                B(0, f'v_and_b32 v{q + 3}, 0xffff0000, v{gRES + 2 * b + 1}', 'res')
            p += 2
        for r in range(8):
            B(p, f'v_mul_f32 v{a + r}, v{C1}, v{a + r}')
        for r in range(8):
            B(p, f'v_exp_f32 v{a + r}, v{a + r}')
            if r:
                B(p, f'v_fma_f32 v{a + r - 1}, v{a + r - 1}, v{VA}, v{VA}')
        B(p, f'v_rcp_f32 v{a}, v{a}')
        B(p, f'v_fma_f32 v{a + 7}, v{a + 7}, v{VA}, v{VA}')
        for r in range(1, 8):
            B(p, f'v_rcp_f32 v{a + r}, v{a + r}')
            B(p, f'v_mul_f32 v{a + 8 + r - 1}, v{a + 8 + r - 1}, v{a + r - 1}')
        B(p, f'v_cvt_pk_bf16_f32 v{a}, v{a + 8}, v{a + 9}')
        B(p, f'v_mul_f32 v{a + 15}, v{a + 15}, v{a + 7}')
        for r in range(1, 4):
            B(p, f'v_cvt_pk_bf16_f32 v{a + r}, v{a + 8 + 2 * r}, v{a + 9 + 2 * r}')
        B(p, f'buffer_store_dwordx4 {vr(a, 4)}, v2, {WSR}, {sHHS} offen offset:{2048 * (bi & 1)}{st}', f'hh{bi}')
        epi_last[bi] = bg[-1][1]
        if bi & 1:
            B(p, f's_add_u32 {sHHS}, {sHHS}, 4096')
    for r in range(4):
        B(0, f's_add_u32 s39, {sWAVE}, {r + 1}')
        B(0, f's_and_b32 s39, s39, 3')
        B(0, f's_mul_i32 s39, s39, {15 * 1024}')
        B(0, f's_add_u32 s39, s39, 65536')
        B(0, f'v_add_u32 v{2 + r}, s39, v1')
    B(0, f'v_lshrrev_b32 v{gT}, 4, v0')
    B(0, f'v_and_b32 v6, 15, v0')
    B(0, f'v_mul_u32_u24 v6, 1280, v6')
    B(0, f'v_lshl_add_u32 v7, v{gT}, 3, v6')
    B(0, f'v_lshl_add_u32 v6, v{gT}, 4, v6', 'adr')
    B(PRD, f'@lg {R}pw2')
    B(0, 's_barrier')
    for b in range(5):
        for r in range(3):
            B(0, f'ds_read_b128 {vr(acc3(r, b), 4)}, v5 offset:{1024 * (5 * r + b)}')
    for b in range(5):
        for r in (1, 2):
            for k in range(4):
                B(PRD + 10, f'v_add_f32 v{acc3(0, b) + k}, v{acc3(0, b) + k}, v{acc3(r, b) + k}', 'sum')
    p = len(mf)
    OR = gACC
    for b in range(5):
        for k in (0, 2):
            B(p, f'v_pk_add_f32 {vr(acc3(0, b) + k, 2)}, {vr(acc3(0, b) + k, 2)}, {vr(acc3(3, b) + k, 2)}')
        for k in (0, 2):
            B(p, f'v_cvt_pk_bf16_f32 v{OR + 2 * b + k // 2}, v{acc3(0, b) + k}, v{acc3(0, b) + k + 1}')
        if b in (1, 3):
            B(p, f'buffer_store_dwordx4 {vr(OR + 2 * b - 2, 4)}, v6, {OUTS}, {sOUT} offen offset:{32 * (b - 1)}')
    B(p, f'buffer_store_dwordx2 {vr(OR + 8, 2)}, v7, {OUTS}, {sOUT} offen offset:128')
    xtra = {k: O('xb', 4) for k in range(N2, N2 + 40)}
    xtra.update({k: O('xa', 0) + (O('xa1', 4) if k < 165 else 0) for k in range(80, N2)})
    out = weave(mf, pre, bg, vm, xtra)
    pos = {id(i): k for k, i in enumerate(out)}
    tagged = lambda t: [i for _, i in bg if i.tag == R + t][-1]
    at = lambda t: max(j for j in range(len(mf)) if pos[id(mf[j])] < pos[id(tagged(t))])
    assert at('mf') < mpos[late[0][0]] - 1, 'mean fragment not ready'
    for bi in range(nacc, 7):
        assert at(f'hh{bi - nacc}') < mpos[NB1 * 41 + (bi - NB1) * 41] - 1, ('acc reuse', bi)
    assert at('hh5') < N2 + 4 and at('res') < N2 + 8, (at('hh5'), at('res'))
    assert at('adr') < done3[0] and BARW < done3[0]
    print(R, ' '.join(f'{t}@{at(t) - N2}' for t in ('hh0', 'hh1', 'hh2', 'hh3', 'hh4', 'hh5', 'res', 'hh6', 'sum')),
          'cp', CP1 - N2, CP2 - N2, CP3 - N2, CP4 - N2, 'prd', PRD - N2, 'after last mfma', len(out) - pos[id(mf[-1])], file=sys.stderr)
    c.extend(out)
```

```python
import sys
from asmlib import *
from phases import *
import phases

NAME = 'sequential_preLN__ssm_conv_h3__glu_gated_glu__prompt'
KN = NAME + '_kernel'
HEADER = open('cdna_kernels/%s.s.ref' % NAME).read().split('; Override launch')[0]


def stamp_begin(c, ts):
    if ts:
        for k in range(1, 13):
            c(f's_mov_b32 s{60 + 2 * k}, 0')
        c('s_memtime s[86:87]')


def stamp_end(c, ts, k):
    if ts:
        c(f'''
        s_waitcnt vmcnt(0) lgkmcnt(0)
        s_memrealtime s[90:91]
        s_memtime s[88:89]
        s_lshl_b32 s59, s2, 2
        s_add_u32 s59, s59, {sWAVE}
        s_lshl_b32 s59, s59, 6
        s_add_u32 s59, s59, {TS_OFF + k * 65536}
        s_waitcnt lgkmcnt(0)
        ''')
        for j in range(16):
            c(f'v_mov_b32 v{j}, s{60 + 2 * j}')
        c('v_mov_b32 v16, 0')
        c('s_mov_b64 exec, 1')
        for j in range(4):
            c(f'buffer_store_dwordx4 v[{4 * j}:{4 * j + 3}], v16, {WSR}, s59 offen offset:{16 * j}')


def desc(name, vgpr, accum):
    return f'''.amdhsa_kernel {name}
  .amdhsa_next_free_vgpr {vgpr}
  .amdhsa_next_free_sgpr 102
  .amdhsa_accum_offset {accum}
  .amdhsa_group_segment_fixed_size 0
  .amdhsa_kernarg_size 104
  .amdhsa_user_sgpr_count 2
  .amdhsa_user_sgpr_kernarg_segment_ptr 1
  .amdhsa_system_sgpr_workgroup_id_x 1
  .amdhsa_float_denorm_mode_32 3
.end_amdhsa_kernel'''


def go_addr(c, va):
    c(f'v_and_b32 {va}, 7, v0')
    c(f'v_lshlrev_b32 {va}, 5, {va}')


def wg_flag(c, soff, wait='s_waitcnt vmcnt(0)'):
    c(wait)
    c('s_barrier')
    c(f's_cmp_eq_u32 {sWAVE}, 0')
    c(f's_cselect_b32 s42, {soff}, 0x7f000000')
    c(f'buffer_store_dword v7, v6, {WSR}, s42 offen{SC}')


def probe(c, a, b, mult):
    c('.p2align 8')
    c('.type probe_kernel,@function')
    c('probe_kernel:')
    c('@reset')
    c('s_cmp_ge_u32 s2, 1')
    c('s_cbranch_scc1 L_probe_exit')
    srd(c, 8, WS, WS_USED)
    c('v_lshlrev_b32 v1, 6, v0')
    c('s_waitcnt lgkmcnt(0)')
    for k, (kn, wd, op) in enumerate([(0, 0, 'min'), a, b]):
        c(f's_mov_b32 s20, {TS_OFF + kn * 65536 + wd * 4}')
        for i in range(16):
            c(f'buffer_load_dword v{8 + i}, v1, {WSR}, s20 offen')
            c('s_add_u32 s20, s20, 4096')
        for i in range(1, 16):
            c(f'v_{op}_u32 v8, v8, v{8 + i}')
        c(f'v_readlane_b32 s{30 + k}, v8, 0')
        for l in range(1, 64):
            c(f'v_readlane_b32 s21, v8, {l}')
            c(f's_{op}_u32 s{30 + k}, s{30 + k}, s21')
    c(f'''
    s_sub_u32 s32, s32, s31
    s_min_u32 s32, s32, 20000
    s_mul_i32 s32, s32, {mult}
    s_add_u32 s32, s32, 10000
    L_probe_spin:
    s_memrealtime s[22:23]
    s_waitcnt lgkmcnt(0)
    s_sub_u32 s22, s22, s30
    s_cmp_lt_u32 s22, s32
    s_cbranch_scc1 L_probe_spin
    L_probe_exit:
    s_endpgm
    ''')


def untag(ll):
    for l in ll:
        for i in l:
            i.tag = None
    return ll


def build(ts=False, opts={}):
    c = Code()
    OPT.clear()
    OPT.update(opts)
    OPT['ts'] = ts
    SLOW.clear()
    c('.p2align 8')
    c(f'.type {KN},@function')
    c(f'{KN}:')
    if ts:
        c('s_memrealtime s[60:61]')
    c('s_cmp_lt_u32 s2, 160')
    c('s_cbranch_scc1 L_conv')
    c('s_cmp_ge_u32 s2, 256')
    c('s_cbranch_scc1 L_exit')
    if OPT.get('codepf', 1):
        c(f'''
        s_cmp_lt_u32 s2, 240
        s_cbranch_scc1 L_side
        s_getpc_b64 s[34:35]
        L_pc:
        s_and_b32 s36, s2, 8
        s_lshl_b32 s36, s36, 12
        v_lshl_add_u32 v1, v0, 7, s36
        v_min_u32 v2, L_code_end-L_pc-4, v1
        v_mov_b32 v3, s35
        v_add_co_u32 v2, vcc, s34, v2
        v_addc_co_u32 v3, vcc, 0, v3, vcc
        global_load_dword v250, v[2:3], off
        ''')
    c('s_branch L_side')
    c('L_conv:')
    c('@reset')
    for base, slot in ((12, A_K), (16, A_V), (20, A_SH)):
        c(f's_load_dwordx2 s[{base}:{base + 1}], s[0:1], {slot}')
    c(f'''
    s_mov_b32 s14, {NBYTES_SD}
    s_mov_b32 s15, 0x20000
    s_mov_b64 s[18:19], s[14:15]
    s_movk_i32 s22, {D * 8}
    s_mov_b32 s23, s15
    ''')
    ids(c)
    conv_ids(c)
    p0_kv_load(c, 's[12:15]', 's[16:19]', 's[20:23]')
    srd(c, 24, A_SSMK, NBYTES_SD)
    srd(c, 28, A_SSMD, D * 2)
    srd(c, 8, WS, WS_USED)
    srd(c, 48, OUT, NBYTES_SD)
    srd(c, 52, DBG, 256)
    stamp_begin(c, ts)
    c.extend(mark(1))
    p23_ids(c)
    late = p1_k_load(c, 's[24:27]', 's[28:31]')
    srd(c, 44, B_WD, D * F * 2)
    wd_setup(c)
    WDL = OPT.get('wdl', 1)
    if WDL:
        late += wd_loads('s[44:47]')
    else:
        c.extend(sum(wd_loads('s[44:47]'), []))
    p0_kv(c, late)
    assert not late
    go_addr(c, 'v122')
    c.add(poll_load('v123', 'v122', DBGS, '0'))
    c.extend(mark(2))
    flag_regs(c, vOOB, vFV)
    c(f'''
    s_lshl_b32 s37, {sSG}, 2
    s_add_u32 s35, s37, {sWAVE}
    s_lshl_b32 s35, s35, 4
    s_add_u32 s35, s35, {sIDX}
    s_mul_i32 s35, s35, {FSP}
    s_add_u32 s35, s35, {F1_OFF}
    s_lshr_b32 s36, {sIDX}, 2
    s_add_u32 s36, s36, s37
    s_mul_i32 s36, s36, {16 * FSP}
    s_add_u32 s36, s36, {F1_OFF}
    ''')
    p23_scalars(c)
    c.extend(poll_check('go_c', 'v123', 'v122', DBGS, '0', 1))
    c('@vm ust')
    c(f'buffer_store_dword {vFV}, {vOOB}, {WSR}, s35 offen{SC}')
    c.extend(mark(3))
    WDS = OPT.get('wds', 0)
    c.extend(wd_reads() + ([] if WDS else wd_stores()))
    p1_k(c)
    c(f'''
    v_and_b32 v8, 15, v0
    v_mul_u32_u24 v8, {FSP}, v8
    s_mul_i32 s46, s34, {FSP}
    s_add_u32 s46, s46, {F2_OFF}
    s_add_u32 s41, {sWAVE}, 2
    s_mul_i32 s41, s41, {160 * FSP}
    s_add_u32 s41, s41, s46
    s_sub_u32 s40, s46, {F2_OFF - FD_OFF}
    ''')
    fa_addr(c, 'v138', 'v139')
    fw_addr(c, 'v140')
    f2_addr(c, 'v142')
    c(f'''
    s_cmp_ge_u32 {sWAVE}, 1
    s_cselect_b32 s46, 0x70000000, s46
    s_cselect_b32 s40, 0x70000000, s40
    s_waitcnt lgkmcnt(0)
    s_cbranch_scc1 L_s1_ok
    ''')
    c.add(poll_load('v9', 'v8', WSR, 's36'))
    c.extend(poll_check('s1', 'v9', 'v8', WSR, 's36', 1))
    c('s_waitcnt vmcnt(0)')
    c('s_barrier')
    c.extend(mark(4))
    p1_load_u(c)
    c.add(poll_load('v139', 'v138', WSR, 's47'))
    fdpost = [Ins(f'buffer_store_dword {vFV}, {vOOB}, {WSR}, s40 offen{SC}')]
    c.extend(wd_stores() if WDS else fdpost)
    fd_addr(c, 'v128')
    FA, FD, FP, WP = OPT.get('fa', 12), OPT.get('fd', 75), OPT.get('fp', 250), OPT.get('wp', 32)
    inj = [(0, mark(5)), (FA, poll_check('fa', 'v139', 'v138', WSR, 's47', 1, 2)), (FD, poll_check('fd_c', 'v129', 'v128', WSR, 's58', 1, 2))]
    if WDS:
        inj.append((WDS, [Ins('@vm wds'), Ins('s_barrier')] + fdpost))
    if OPT.get('mk1'):
        inj += [(p, mark(k)) for k, p in ((10, 96), (11, 192), (12, 287))]
    polls = [(FD - 40, FD - 30, [poll_load('v129', 'v128', WSR, 's58')]), (FP, FP + 8, [poll_load('v141', 'v140', WSR, 's57')])]
    sj = [(FA + 2, 200, l) for l in p1_load_x()]
    sj += [(FD + 2, 287, l) for l in untag([p3_wload(j) for j in range(WP)])]
    p1_main(c, inj, [polls, sj])
    fl3 = f'buffer_store_dword {vFV}, {vOOB}, {WSR}, s41 offen{SC}'
    first = 's_waitcnt vmcnt(0)\n' + fl3
    c.extend(poll_check('fw_c', 'v141', 'v140', WSR, 's57', 1, 4, first=first))
    G1, G2 = OPT.get('g1', 2), OPT.get('g2', 6)
    for g in range(G1):
        c.extend(sum(untag(p2_dma(g)), []))
    c.extend(p23_vectors())
    c('@vm hst3')
    c(fl3)
    c('s_branch L_ring')
    c('L_side:')
    c('@reset')
    srd(c, 12, A_Q, NBYTES_SD)
    srd(c, 16, B_WG, D * F * 2)
    srd(c, 20, B_WU, D * F * 2)
    srd(c, 8, WS, WS_USED)
    srd(c, 48, OUT, NBYTES_SD)
    srd(c, 52, DBG, 256)
    ids(c)
    stamp_begin(c, ts)
    flag_regs(c, 'v6', 'v7')
    go_addr(c, 'v122')
    c(f's_cmp_ge_u32 {sSLOT}, 28')
    c('s_cbranch_scc1 L_side2')
    c('s_sub_u32 s56, s2, 160')
    p0_x(c, 's[12:15]', 's56')
    c.add(poll_load('v123', 'v122', DBGS, '0'))
    c(f'''
    s_mul_i32 s56, s56, {FSP}
    s_add_u32 s56, s56, {FX_OFF}
    s_sub_u32 s7, {sSLOT}, 20
    s_mul_i32 s6, s7, 3
    s_mov_b32 s57, s7
    s_mov_b32 s58, 0x30000000
    ''')
    c('s_branch L_w1')
    c('L_side2:')
    c('@reset')
    c('s_waitcnt lgkmcnt(0)')
    c(f'''
    s_sub_u32 s56, s2, 224
    s_lshl_b32 s45, s56, 2
    s_add_u32 s45, s45, {sWAVE}
    s_lshl_b32 s45, s45, 12
    s_add_u32 s45, s45, {FL_OFF}
    s_lshl_b32 s46, s56, 5
    s_cmp_eq_u32 {sWAVE}, 0
    s_cselect_b32 s46, s46, 0x70000000
    s_cmp_lt_u32 s56, 8
    s_cselect_b32 s45, s45, 0x70000000
    v_lshlrev_b32 v14, 4, v0
    v_mov_b32 v200, 0
    v_mov_b32 v201, 0
    v_mov_b32 v202, 0
    v_mov_b32 v203, 0
    ''')
    for k in range(4):
        c(f'buffer_store_dwordx4 v[200:203], v14, {WSR}, s45 offen offset:{1024 * k}{SC}')
    TG = OPT.get('tlb', 17)
    if TG:
        c(f'''
        s_lshl_b32 s34, {sWAVE}, {6 + TG}
        s_cmp_eq_u32 {sSLOT}, 29
        s_cselect_b32 s34, s34, 0x70000000
        v_lshlrev_b32 v1, {TG}, v0
        buffer_load_dword v251, v1, {WSR}, s34 offen
        buffer_load_dword v249, v1, {OUTS}, s34 offen
        ''')
    c(f'''
    s_sub_u32 s7, {sSLOT}, 20
    s_lshl_b32 s6, s7, 2
    s_sub_u32 s6, s6, 8
    s_lshl_b32 s57, s7, 1
    s_sub_u32 s57, s57, 8
    s_mov_b32 s58, 0
    s_mov_b32 s56, 0x70000000
    s_waitcnt vmcnt(0)
    s_barrier
    buffer_store_dword v7, v6, {DBGS}, s46 offen{SC}
    L_w1:
    @reset
    ''')

    def mid():
        c('s_cmp_eq_u32 s58, 0')
        c('s_cbranch_scc1 L_nofx')
        c(f's_waitcnt vmcnt({4 * OPT.get("w1pre", 1)})')
        c.extend(poll_check('go_a', 'v123', 'v122', DBGS, '0', 1, 4))
        c('s_barrier')
        c('L_nofx:')
        c(f's_cmp_eq_u32 {sWAVE}, 0')
        c('s_cselect_b32 s42, s56, 0x70000000')
        c(f'buffer_store_dword v7, v6, {WSR}, s42 offen{SC}')
        c.extend(mark(1))
    side_w1(c, 's[16:19]', 's[20:23]', sXCD, 's6', 's57', 's58', mid)
    c.add(poll_load('v123', 'v122', DBGS, '0'))
    c(f'''
    s_lshl_b32 s56, {sXCD}, 4
    s_add_u32 s56, s56, s7
    s_mul_i32 s56, s56, {FSP}
    s_add_u32 s56, s56, {FW1_OFF}
    ''')
    p23_ids(c)
    p23_scalars(c)
    fw_addr(c, 'v8')
    f2_addr(c, 'v142')
    c(f'''
    v_lshlrev_b32 v1, 4, v0
    v_mul_u32_u24 v13, {FSP}, v0
    s_mov_b32 s47, {FX_OFF}
    ''')
    flag_regs(c, vOOB, vFV)
    c.extend(poll_check('go_b', 'v123', 'v122', DBGS, '0', 1, 4))
    wg_flag(c, 's56')
    c.extend(mark(2))
    c.extend(p23_vectors())
    fd_addr(c, 'v10')
    c.add(poll_load('v11', 'v10', WSR, 's58'))
    c.extend(poll_check('fd_s', 'v11', 'v10', WSR, 's58', 1, 8))
    for j in range(WP):
        c.extend(untag([p3_wload(j)])[0])
    c(f's_cmp_lg_u32 {sWAVE}, 0')
    c('s_cbranch_scc1 L_fw_s_ok')
    c.add(poll_load('v14', 'v13', WSR, 's47'))
    c.add(poll_load('v9', 'v8', WSR, 's57'))
    c.extend(poll_check('fx_s', 'v14', 'v13', WSR, 's47', 1, 8))
    c.extend(poll_check('fw_s', 'v9', 'v8', WSR, 's57', 1, 8))
    c('s_barrier')
    c.extend(mark(3))
    for g in range(RING):
        if g == G1:
            c('L_ring:')
            c('@reset')
        if g == 5:
            c('s_barrier')
        if g == G2:
            c.add(poll_load('v11', 'v142', WSR, sF2P))
        for l in p2_dma(g):
            l[-1].tag = f'sg{g}'
            c.extend(l)
    if G2 == RING:
        c.add(poll_load('v11', 'v142', WSR, sF2P))
    c.extend(poll_check('s2', 'v11', 'v142', WSR, sF2P, 1, OPT.get('s2sleep', 2)))
    c('s_barrier')
    c.extend([] if OPT.get('mk1') else mark(7))
    p23_main(c, 's', G2, WP, RING)
    c('L_end:')
    c('@reset')
    stamp_end(c, ts, 0)
    if OPT.get('spin100'):
        c('''
        L_sp100:
        s_memrealtime s[22:23]
        s_waitcnt lgkmcnt(0)
        s_sub_u32 s22, s22, s60
        s_cmp_lt_u32 s22, 10000
        s_cbranch_scc1 L_sp100
        ''')
    c('L_exit:')
    c('s_endpgm')
    c.extend(SLOW)
    c('L_code_end:')
    prb = OPT.get('prb')
    if prb is not None:
        probe(c, (0, 0, 'min'), (0, prb, 'max'), 10)
    st = {}
    body = text_of(finalize(c.ins, st))
    print(st, file=sys.stderr)
    out = HEADER
    if prb is not None:
        out += f'; @launch kernel={KN} grid=(256,1,1) block=(256,1,1) lds={LDS_TOTAL}\n'
        out += '; @launch kernel=probe_kernel grid=(1,1,1) block=(64,1,1) lds=0\n'
    else:
        out += f'; @launch grid=(256,1,1) block=(256,1,1) lds={LDS_TOTAL}\n'
    out += f'.amdgcn_target "amdgcn-amd-amdhsa--gfx950"\n.text\n.globl {KN}\n'
    out += body + '\n.section .rodata,"a"\n'
    out += '.p2align 6\n' + desc(KN, 512, 256) + '\n'
    if prb is not None:
        out += '.p2align 6\n' + desc('probe_kernel', 32, 32) + '\n'
    return out


if __name__ == '__main__':
    import argparse
    ap = argparse.ArgumentParser()
    ap.add_argument('-o', default='cdna_kernels/%s.s' % NAME)
    ap.add_argument('--ts', action='store_true')
    ap.add_argument('--opt', nargs='*', default=[])
    a = ap.parse_args()
    opts = {}
    for kv in a.opt:
        k, _, v = kv.partition('=')
        opts[k] = int(v) if v else 1
    open(a.o, 'w').write(build(a.ts, opts))
```

```python
import re

REG_RE = re.compile(r'\b([vas])(?:(\d+)\b|\[(\d+):(\d+)\])')
TRANS = ('v_exp_f32', 'v_log_f32', 'v_rcp_f32', 'v_rsq_f32', 'v_sqrt_f32', 'v_sin_f32', 'v_cos_f32')


def regs_of(op):
    out = []
    for m in REG_RE.finditer(op):
        f = m.group(1)
        if m.group(2) is not None:
            out.append((f, int(m.group(2))))
        else:
            out.extend((f, i) for i in range(int(m.group(3)), int(m.group(4)) + 1))
    if re.search(r'\bvcc\b', op):
        out.append(('s', 'vcc'))
    if re.search(r'\bm0\b', op):
        out.append(('s', 'm0'))
    if re.search(r'\bexec\b', op):
        out.append(('s', 'exec'))
    return out


def vr(base, n=1, f='v'):
    return f'{f}{base}' if n == 1 else f'{f}[{base}:{base + n - 1}]'


def ar(base, n=1):
    return vr(base, n, 'a')


def sr(base, n=1):
    return vr(base, n, 's')


SHORT = [1]
BRC = [4]


class Ins:
    __slots__ = ('text', 'mn', 'ops', 'kind', 'rd', 'wr', 'tag', 'passes', 'srcc', 'srcab', 'wide_store', 'data', 'cost')

    def __init__(self, text, tag=None):
        if SHORT[0]:
            m = re.match(r's_add_u32 (s\d+), (s\d+), (\d+)$', text)
            if m and m.group(1) == m.group(2) and 64 < int(m.group(3)) < 32768:
                text = f's_addk_i32 {m.group(1)}, {m.group(3)}'
            m = re.match(r'v_dot2_f32_bf16 (v\d+), (v\d+), ([vs]\d+), (v\d+)$', text)
            if m and m.group(1) == m.group(4):
                text = f'v_dot2c_f32_bf16 {m.group(1)}, {m.group(3)}, {m.group(2)}'
            text = text.replace(', 0xffff0000, v', ', s59, v')
        self.text = text
        self.tag = tag
        t = text.split(';')[0].strip()
        self.passes = 0
        self.srcc = set()
        self.srcab = set()
        self.wide_store = False
        self.data = set()
        self.rd = set()
        self.wr = set()
        self.cost = 4
        if t.endswith(':') or t.startswith('.') or not t:
            self.mn = t
            self.kind = 'label' if t.endswith(':') else 'dir'
            self.ops = []
            self.cost = 0
            return
        if t.startswith('@'):
            p = t.split()
            self.mn = p[0]
            self.ops = p[1:]
            self.kind = 'pseudo'
            self.cost = 4
            return
        p = t.split(None, 1)
        mn = self.mn = p[0]
        ops = self.ops = [o.strip() for o in p[1].split(',')] if len(p) > 1 else []
        R = [set(regs_of(o)) for o in ops]
        allr = set().union(*R) if R else set()
        rest = set().union(*R[1:]) if len(R) > 1 else set()
        if mn.startswith('v_mfma'):
            self.kind = 'mfma'
            self.wr = R[0]
            self.srcab = R[1] | R[2]
            self.srcc = R[3]
            self.rd = rest
            self.passes = 8 if '32x32x16' in mn else 4
            assert '32x32x16' in mn or '16x16x32' in mn or '16x16x16' in mn
            self.cost = 8
        elif mn.startswith('v_'):
            base = mn.replace('_e32', '').replace('_e64', '').replace('_dpp', '').replace('_sdwa', '')
            self.kind = 'trans' if base in TRANS else ('dot' if base.startswith('v_dot') else 'valu')
            self.wr = set(R[0])
            self.rd = set(rest)
            if base.startswith('v_permlane') or base == 'v_swap_b32':
                self.wr = set(allr)
                self.rd = set(allr)
                self.cost = 8
            if base.startswith(('v_fmac', 'v_dot2c', 'v_writelane')) or 'dpp' in mn or 'row_' in t or 'quad_perm' in t:
                self.rd |= R[0]
            if base.startswith(('v_add_co', 'v_sub_co', 'v_addc_co')):
                self.wr |= R[1]
                self.rd = set().union(*R[2:])
            if base == 'v_nop':
                self.wr = set()
            if self.kind == 'trans':
                self.cost = 8
        elif mn.startswith('ds_'):
            self.kind = 'ds'
            if mn.startswith(('ds_read', 'ds_bpermute', 'ds_permute', 'ds_swizzle')):
                self.wr = R[0]
                self.rd = rest
            else:
                self.rd = allr
                self.cost = 20 if mn == 'ds_write_b128' else 8
        elif mn.startswith(('buffer_', 'global_')):
            self.kind = 'vmem'
            self.cost = 8
            islds = bool(re.search(r'\blds\b', t)) or 'load_lds' in mn
            if mn in ('buffer_wbl2', 'buffer_inv'):
                pass
            elif 'load' in mn and not islds:
                self.wr = R[0]
                self.rd = rest
            elif islds:
                self.rd = allr | {('s', 'm0')}
            elif 'atomic' in mn and re.search(r'\bsc0\b', t):
                self.rd = allr
                self.wr = R[0]
            else:
                self.rd = allr
                if mn.startswith('buffer_'):
                    self.data = R[0]
                else:
                    self.data = R[1]
                self.wide_store = mn.endswith(('x3', 'x4'))
        elif mn.startswith('s_'):
            if mn.startswith(('s_load', 's_memtime', 's_memrealtime', 's_buffer_load')):
                self.kind = 'smem'
                self.wr = R[0]
                self.rd = rest
            elif mn.startswith(('s_cbranch', 's_branch', 's_endpgm', 's_setpc', 's_swappc')):
                self.kind = 'branch'
                self.cost = BRC[0]
                self.rd = allr
            elif mn in ('s_waitcnt', 's_barrier', 's_nop', 's_setprio', 's_sleep'):
                self.kind = 'ctl'
            elif mn.startswith(('s_cmp', 's_bitcmp')):
                self.kind = 'salu'
                self.rd = allr
            else:
                self.kind = 'salu'
                self.wr = set(R[0])
                self.rd = set(rest)
                if mn.startswith(('s_addk', 's_mulk')):
                    self.rd |= R[0]
                if 'saveexec' in mn:
                    self.wr.add(('s', 'exec'))
        else:
            raise ValueError('unknown instruction: ' + text)

    def states(self):
        if self.kind in ('label', 'dir', 'pseudo'):
            return 0
        if self.mn == 's_nop':
            return int(self.ops[0], 0) + 1
        return 1

    def isvalu(self):
        return self.kind in ('valu', 'trans', 'dot')


def _vec(regs):
    return {r for r in regs if r[0] in 'va'}


def _sca(regs):
    return {r for r in regs if r[0] == 's'}


def need_states(p, c):
    n = 0
    ctext = c.text
    if p.isvalu():
        pv = _vec(p.wr)
        ps = _sca(p.wr)
        if c.kind == 'mfma' and pv & c.rd:
            n = max(n, 2)
        if c.isvalu():
            if c.mn.startswith('v_permlane') and pv & c.rd:
                n = max(n, 2)
            if ('dpp' in c.mn or 'row_' in ctext or 'quad_perm' in ctext) and pv & c.rd:
                n = max(n, 2)
            if c.mn.startswith(('v_readlane', 'v_readfirstlane')) and pv & c.rd:
                n = max(n, 1)
            if ps & c.rd:
                n = max(n, 4 if c.mn.startswith(('v_readlane', 'v_writelane')) else 2)
            if p.kind == 'trans' and pv & c.rd:
                n = max(n, 1)
            if ('sdwa' in p.mn or 'op_sel' in p.text) and pv & (c.rd | c.wr):
                n = max(n, 1)
        if c.kind == 'vmem' and ps & c.rd:
            n = max(n, 5)
        if c.kind in ('salu', 'smem', 'branch') and ps & c.rd:
            n = max(n, 1)
        if p.kind == 'dot' and pv & (c.rd | c.wr):
            same = c.mn == p.mn
            if same:
                ab = set(regs_of(c.ops[1])) | set(regs_of(c.ops[2]))
                if pv & ab:
                    n = max(n, 3)
            elif c.kind != 'ctl':
                n = max(n, 3)
    if p.kind == 'mfma':
        big = p.passes == 8
        if c.kind == 'mfma':
            if p.wr & c.srcab:
                n = max(n, 12 if big else 8)
            if p.wr & c.srcc and not (p.wr == c.srcc and p.mn == c.mn):
                n = max(n, 10 if big else 6)
            if p.wr & c.wr and not (p.wr & c.srcc):
                n = max(n, 12 if big else 8)
        elif c.isvalu() or c.kind in ('ds', 'vmem'):
            if p.wr & (c.rd | c.wr):
                n = max(n, 12 if big else 8)
            if c.isvalu() and p.srcc & c.wr:
                n = max(n, 7 if big else 3)
    if p.kind == 'salu' and ('s', 'm0') in p.wr and c.kind in ('vmem', 'ds') and ('s', 'm0') in c.rd:
        n = max(n, 1)
    if p.kind == 'vmem' and p.wide_store and p.data & c.wr:
        n = max(n, 2)
    return n


class Code:
    def __init__(self):
        self.ins = []

    def __call__(self, text, tag=None):
        for line in text.split('\n'):
            line = line.strip()
            if line:
                self.ins.append(Ins(line, tag))
        return self

    def add(self, i):
        self.ins.append(i)

    def extend(self, other):
        self.ins.extend(other.ins if isinstance(other, Code) else other)


def finalize(ins, stats=None):
    out = []
    vm = []
    lg = []
    nwait = nnop = 0

    def emit(i):
        nonlocal nnop
        need = 0
        dist = 0
        for p in reversed(out):
            if p.kind == 'pseudo' and p.mn == '@hz':
                break
            k = need_states(p, i) - dist
            need = max(need, k)
            dist += p.states()
            if dist >= 20:
                break
        while need > 0:
            k = min(need, 16)
            out.append(Ins(f's_nop {k - 1}'))
            nnop += 1
            need -= k
        out.append(i)

    def do_wait(nv, nl):
        nonlocal nwait
        parts = []
        if nv is not None and nv < len(vm):
            nv = min(nv, 63)
            del vm[:len(vm) - nv]
            parts.append(f'vmcnt({nv})')
        if nl is not None and nl < len(lg):
            if any(o.kind == 'smem' for o in lg):
                nl = 0
            nl2 = min(nl, 15)
            del lg[:len(lg) - nl2]
            parts.append(f'lgkmcnt({nl2})')
        if parts:
            nwait += 1
            out.append(Ins('s_waitcnt ' + ' '.join(parts)))

    def youngest(q, pred):
        for k in range(len(q) - 1, -1, -1):
            if pred(q[k]):
                return len(q) - 1 - k
        return None

    left = {}
    for i in ins:
        if i.tag is not None and i.kind in ('vmem', 'ds'):
            left[i.tag] = left.get(i.tag, 0) + 1
    for i in ins:
        if i.tag is not None and i.kind in ('vmem', 'ds'):
            left[i.tag] -= 1
        if i.kind == 'pseudo':
            if i.mn in ('@vm', '@lg', '@vmlg'):
                for t in i.ops:
                    assert left.get(t) == 0, ('tag not fully issued before wait', t, left.get(t))
            if i.mn == '@vm':
                do_wait(youngest(vm, lambda o: o.tag == i.ops[0]), None)
            elif i.mn == '@lg':
                do_wait(None, youngest(lg, lambda o: o.tag == i.ops[0]))
            elif i.mn == '@vmlg':
                do_wait(youngest(vm, lambda o: o.tag == i.ops[0]), youngest(lg, lambda o: o.tag == i.ops[1]))
            elif i.mn == '@reset':
                vm.clear()
                lg.clear()
            else:
                raise ValueError(i.text)
            continue
        if i.kind in ('label', 'dir'):
            out.append(i)
            continue
        if i.mn == 's_waitcnt':
            m = re.search(r'vmcnt\((\d+)\)', i.text)
            if m and int(m.group(1)) < len(vm):
                del vm[:len(vm) - int(m.group(1))]
            m = re.search(r'lgkmcnt\((\d+)\)', i.text)
            if m and int(m.group(1)) < len(lg):
                del lg[:len(lg) - int(m.group(1))]
            out.append(i)
            continue
        touched = i.rd | i.wr
        nv = youngest(vm, lambda o: o.wr & (i.rd if i.kind == 'vmem' else touched))
        nl = youngest(lg, lambda o: o.wr & (i.rd if (i.kind == 'ds' and o.kind == 'ds') else touched))
        do_wait(nv, nl)
        emit(i)
        if i.kind == 'vmem':
            vm.append(i)
        elif i.kind in ('ds', 'smem'):
            lg.append(i)
    if stats is not None:
        stats['waits'] = nwait
        stats['nops'] = nnop
        stats['n'] = sum(1 for o in out if o.kind not in ('label', 'dir'))
    return out


def weave(mf, pre, bg, vm=None, extra=None, window=12):
    vm = vm or {}
    extra = extra or {}
    out = []
    bg = list(bg)
    out.extend(vm.get(-1, []))
    out.extend(pre.get(-1, []))
    last = 0
    plain = lambda i: i.kind in ('valu', 'trans') and not i.mn.startswith(('v_cmp', 'v_pk', 'v_cndmask'))
    for idx, m in enumerate(mf):
        out.append(m)
        budget = (24 if m.passes == 8 else 8) + extra.get(idx, 0)
        used = 0
        for i in vm.get(idx, []) + pre.get(idx, []):
            out.append(i)
            used += i.cost
        while bg:
            room = budget - used
            cand, rd, wr = [], set(), set()
            for k, (e, i) in enumerate(bg[:window]):
                if (e if e >= 0 else last - e) > idx or (k and (e < 0 or not plain(i))):
                    break
                if not (i.rd & wr or i.wr & (rd | wr)):
                    dist, ok = 0, True
                    for p in reversed(out[-4:]):
                        if p.kind != 'mfma' and need_states(p, i) > dist:
                            ok = False
                        dist += 1 if p.kind == 'pseudo' else p.states()
                    if ok and (i.cost <= room or (k == 0 and used <= (4 if budget < 24 else 0) and not plain(i))):
                        cand.append(k)
                if not plain(i):
                    break
                rd |= i.rd
                wr |= i.wr
            if not cand:
                break
            k = cand[0]
            if room >= 8 and bg[k][1].cost == 4:
                k = next((j for j in cand if bg[j][1].cost == 8), k)
            out.append(bg[k][1])
            used += bg[k][1].cost
            last = idx
            del bg[k]
    out.extend(i for _, i in bg)
    return out


def pace(streams, tpos, spacing, start=0, avoid=(), load=None):
    vm, pre, where = {}, {}, {}
    heads = [0] * len(streams)
    nxt = -1e9
    lastp = -1
    for p in range(start, len(tpos)):
        if tpos[p] < nxt or p in avoid:
            continue
        best = None
        for k, st in enumerate(streams):
            if heads[k] < len(st) and st[heads[k]][0] <= p:
                if best is None or st[heads[k]][1] < streams[best][heads[best]][1]:
                    best = k
        if best is None:
            continue
        e, d, l = streams[best][heads[best]]
        heads[best] += 1
        assert p <= d, ('deadline missed', l[-1].text, p, d)
        vm.setdefault(p, []).append(l[-1])
        q0 = lastp
        for i in l[:-1]:
            opts = [q for q in range(max(q0, p - 4), p) if load is not None and load.get(q, 0) == 4 and q not in vm]
            q0 = opts[0] if opts else p - 1
            pre.setdefault(q0, []).append(i)
            if load is not None:
                load[q0] = load.get(q0, 0) + i.cost
        lastp = p
        where[id(l[-1])] = p
        nxt = max(nxt, tpos[p] - 32) + spacing(p)
    assert all(h == len(st) for h, st in zip(heads, streams)), ('unplaced', [(h, len(st)) for h, st in zip(heads, streams)])
    return vm, pre, where


def text_of(ins):
    lines = []
    for i in ins:
        if i.kind == 'label':
            lines.append(i.text)
        else:
            lines.append('    ' + i.text)
    return '\n'.join(lines)
```

```python
import sys
from asmlib import *

S, D, F = 2048, 640, 1728
NBYTES_SD = S * D * 2
U_OFF = 0
X4_OFF = U_OFF + NBYTES_SD
H4_OFF = X4_OFF + NBYTES_SD
ST_OFF = H4_OFF + NBYTES_SD
W1_OFF = ST_OFF + 65536
WD_OFF = W1_OFF + 16 * 288 * 1024
HH_OFF = WD_OFF + 8 * 56 * 5 * 1024
FL_OFF = HH_OFF + 128 * 57344
FSP = 128
F1_OFF = FL_OFF
FX_OFF = F1_OFF + 640 * FSP
FW1_OFF = FX_OFF + 64 * FSP
FD_OFF = FW1_OFF + 128 * FSP
assert FD_OFF + 160 * FSP <= FL_OFF + 131072
F3_OFF = FL_OFF + 131072
F2_OFF = F3_OFF + 1024 * FSP
assert F2_OFF + 960 * FSP <= F3_OFF + 262144
TS_OFF = F3_OFF + 262144
WS_USED = TS_OFF + 262144

A_Q, A_K, A_V, A_SH, A_SSMK, A_SSMD, B_X, B_WG, B_WU, B_WD, OUT, DBG, WS = [8 * i for i in range(13)]

WSR = 's[8:11]'
sWAVE = 's33'
sXCD, sSLOT = 's4', 's5'
sSG, sIDX = 's6', 's7'
ONES = 0x3f803f80
OUTS, DBGS = 's[48:51]', 's[52:55]'
sP2W, sP2L, sP2T, sP3W = 's92', 's93', 's94', 's95'
sMT, sNI, sMT64, sDC = 's96', 's97', 's98', 's99'
SC = ' sc1'
SPIN = 30000
LDS_TOTAL = 163840

NB1 = 2
BLK_ORDER = [6, 0, 1, 2, 3, 4, 5]


OPT = {}
SLOW = []


def nwb():
    return OPT.get('nwb', 10)


def mark(k, p23=False):
    if not OPT.get('ts') or OPT.get('nomk') or (OPT.get('mk23') and not p23):
        return []
    return [Ins(f's_mem{"" if OPT.get("cyc") else "real"}time s[{60 + 2 * k}:{61 + 2 * k}]')]


def mark1(k):
    return mark(k) if OPT.get('mk1') else []


def w1_slot(bi, ks, m=0):
    if bi < 2:
        return 4 * ks + 2 * bi + m if ks < 20 else 80 + bi
    return 82 + 41 * (bi - 2) + 2 * ks + m


def w1_seq(b, ks, m=0):
    return w1_slot(BLK_ORDER.index(b), ks, m)


def srd(c, base, slot, nbytes):
    c(f's_load_dwordx2 s[{base}:{base + 1}], s[0:1], {slot}')
    c(f's_mov_b32 s{base + 2}, {nbytes}')
    c(f's_mov_b32 s{base + 3}, 0x20000')


def ids(c):
    c(f'v_lshrrev_b32 v1, 6, v0')
    c(f's_and_b32 {sXCD}, s2, 7')
    c(f'v_readfirstlane_b32 {sWAVE}, v1')
    c(f's_lshr_b32 {sSLOT}, s2, 3')
    c(f'v_and_b32 v0, 63, v0')


def conv_ids(c):
    c(f'''
    s_lshr_b32 {sSG}, {sXCD}, 2
    s_add_u32 {sSG}, {sSG}, 8
    s_and_b32 {sIDX}, {sXCD}, 3
    s_lshl_b32 {sIDX}, {sIDX}, 2
    s_add_u32 {sIDX}, {sIDX}, {sSLOT}
    s_sub_u32 {sIDX}, {sIDX}, 16
    s_cmp_lt_u32 {sSLOT}, 16
    s_cselect_b32 {sSG}, {sXCD}, {sSG}
    s_cselect_b32 {sIDX}, {sSLOT}, {sIDX}
    ''')


KR, VR, CF, PP, AC, VU, OG = 8, 30, 48, 56, 66, 74, 84


def p0_kv_load(c, KS, VS, SHS):
    c(f'''
    v_lshrrev_b32 v7, 4, v0
    v_and_b32 v6, 15, v0
    s_lshl_b32 s34, {sIDX}, 2
    s_add_u32 s34, s34, {sWAVE}
    s_mul_i32 s34, s34, {32 * 1280}
    s_lshl_b32 s35, {sSG}, 7
    s_add_u32 s34, s34, s35
    v_mul_u32_u24 v1, {8 * 1280}, v7
    v_lshl_add_u32 v1, v6, 3, v1
    v_add_u32 v1, s34, v1
    v_subrev_u32 v2, 3840, v1
    s_lshl_b32 s35, {sSG}, 9
    v_lshlrev_b32 v3, 5, v6
    s_movk_i32 s36, 5120
    ''')
    c(f'buffer_load_dwordx4 {vr(CF, 4)}, v3, {SHS}, s35 offen')
    c(f'buffer_load_dwordx4 {vr(CF + 4, 4)}, v3, {SHS}, s35 offen offset:16')
    for r in range(3):
        c(f'buffer_load_dwordx2 {vr(KR + 2 * r, 2)}, v2, {KS}, 0 offen offset:{1280 * r}')
    for r in range(8):
        c(f'buffer_load_dwordx2 {vr(KR + 6 + 2 * r, 2)}, v1, {KS}, {"s36" if r >= 4 else 0} offen offset:{1280 * (r & 3)}')
    for r in range(8):
        c(f'buffer_load_dwordx2 {vr(VR + 2 * r, 2)}, v1, {VS}, {"s36" if r >= 4 else 0} offen offset:{1280 * (r & 3)}')


def p0_kv(c0, late, st=SC):
    P = PP
    c = c0
    c(f'''
    s_lshl_b32 s35, {sWAVE}, 6
    v_mul_u32_u24 v4, 1040, v6
    v_lshl_add_u32 v4, v7, 4, v4
    v_add_u32 v4, s35, v4
    s_mul_i32 s35, {sWAVE}, {4 * 1040}
    v_lshlrev_b32 v3, 4, v0
    v_add_u32 v5, s35, v3
    s_lshl_b32 s34, {sSG}, 2
    s_add_u32 s34, s34, {sWAVE}
    s_lshl_b32 s34, s34, 16
    s_lshl_b32 s35, {sIDX}, 10
    s_add_u32 s34, s34, s35
    s_mov_b32 s40, 0x05040100
    s_mov_b32 s41, 0x07060302
    ''')
    if U_OFF:
        c(f's_add_u32 s34, s34, {U_OFF}')
    kr = lambda t, dw: KR + 2 * (t + 3) + dw
    c = Code()
    KF = OPT.get('kf', 1)
    A = lambda ch: 144 + 8 * ch if KF else AC
    for part in ((0, 1) if KF else (2,)):
        for ch in range(4):
            dw, hf = ch >> 1, ch & 1
            if part != 1:
                for t in range(-2, 8):
                    c(f'v_perm_b32 v{P + t + 2}, v{kr(t - 1, dw)}, v{kr(t, dw)}, s{40 + hf}')
                for t in range(8):
                    c(f'v_dot2_f32_bf16 v{A(ch) + t}, v{P + t + 2}, v{CF + 2 * ch}, 0')
                for t in range(8):
                    c(f'v_dot2_f32_bf16 v{A(ch) + t}, v{P + t}, v{CF + 2 * ch + 1}, v{A(ch) + t}')
            if part != 0:
                for t in range(8):
                    if hf:
                        c(f'v_and_b32 v{VU + t}, 0xffff0000, v{VR + 2 * t + dw}')
                    else:
                        c(f'v_lshlrev_b32 v{VU + t}, 16, v{VR + 2 * t + dw}')
                for t in range(0, 8, 2):
                    c(f'v_pk_mul_f32 {vr(A(ch) + t, 2)}, {vr(A(ch) + t, 2)}, {vr(VU + t, 2)}')
                for p in range(4):
                    c(f'v_cvt_pk_bf16_f32 v{OG + 4 * ch + p}, v{A(ch) + p}, v{A(ch) + p + 4}')
                c(f'ds_write_b128 v4, {vr(OG + 4 * ch, 4)} offset:{256 * ch}')
    k0 = OPT.get('lk0', 120)
    step = OPT.get('lks', (166 - k0) // max(1, len(late)))
    for k, i in enumerate(c.ins):
        c0.add(i)
        if k == 10:
            c0.extend(mark1(7))
        if k == 34:
            c0.extend(mark1(8))
        if k0 and k >= k0 and (k - k0) % step == 0 and late:
            c0.extend(late.pop(0))
    c = c0
    c0.extend(mark1(9))
    c('s_waitcnt lgkmcnt(0)')
    c('s_barrier')
    for i in range(4):
        c(f'ds_read_b128 {vr(OG + 4 * i, 4)}, v5 offset:{1040 * i}')
    for i in range(4):
        c(f'buffer_store_dwordx4 {vr(OG + 4 * i, 4)}, v3, {WSR}, s34 offen{st}', 'ust')
        if i < 3:
            c('s_add_u32 s34, s34, 16384')


def ln_finish(c, s1, s2, tmp):
    c(f'v_mul_f32 v{s1}, 0xbacccccd, v{s1}')
    c(f'v_mul_f32 v{s2}, 0x3acccccd, v{s2}')
    c(f'v_fma_f32 v{s2}, -v{s1}, v{s1}, v{s2}')
    c(f'v_max_f32 v{s2}, 0, v{s2}')
    c(f'v_add_f32 v{s2}, 0x3727c5ac, v{s2}')
    c(f'v_rsq_f32 v{tmp}, v{s2}')


def p0_x(c, XS, sT, hook, st=SC):
    XR, O, A = 16, 56, 100
    c(f'''
    v_lshrrev_b32 v13, 4, v0
    v_and_b32 v12, 15, v0
    s_lshl_b32 s38, {sT}, 2
    s_add_u32 s38, s38, {sWAVE}
    s_mul_i32 s34, s38, {8 * 1280}
    s_add_u32 s35, s34, 5120
    v_mul_u32_u24 v1, 1280, v13
    v_lshl_add_u32 v1, v12, 4, v1
    ''')
    for i in range(2):
        for m in range(5):
            c(f'buffer_load_dwordx4 {vr(XR + 20 * i + 4 * m, 4)}, v1, {XS}, s{34 + i} offen offset:{256 * m}')
    c(f'''
    s_mul_i32 s36, {sWAVE}, {8 * 1296}
    v_mul_u32_u24 v2, 1296, v13
    v_lshl_add_u32 v2, v12, 4, v2
    v_add_u32 v2, s36, v2
    s_mul_i32 s36, {sWAVE}, 320
    v_mul_u32_u24 v3, 1296, v12
    v_lshl_add_u32 v3, v13, 3, v3
    v_add_u32 v3, s36, v3
    v_lshlrev_b32 v4, 4, v0
    s_add_u32 s37, s34, {X4_OFF}
    s_lshl_b32 s38, s38, 10
    s_add_u32 s38, s38, {F3_OFF}
    s_and_b32 s36, {sWAVE}, 1
    s_lshl_b32 s36, s36, 7
    s_lshr_b32 s39, {sWAVE}, 1
    s_lshl_b32 s39, s39, 3
    s_add_u32 s36, s36, s39
    v_lshlrev_b32 v5, 4, v13
    v_add_u32 v5, s36, v5
    v_lshlrev_b32 v8, 2, v0
    s_lshl_b32 s36, {sT}, 8
    s_add_u32 s36, s36, {ST_OFF}
    s_cmp_eq_u32 {sWAVE}, 0
    s_cselect_b32 s36, s36, 0x70000000
    s_mov_b32 s40, {ONES}
    v_mov_b32 v96, 0
    v_mov_b32 v97, 0
    v_mov_b32 v98, 0
    v_mov_b32 v99, 0
    buffer_store_dwordx4 v[96:99], v4, {WSR}, s38 offen{st}
    ''')
    PU = OPT.get('pu', 12)
    n = (16 - PU) * 160
    if n:
        c(f's_add_u32 s38, s38, {(H4_OFF + PU * 163840 - F3_OFF) & 0xffffffff}')
        for k in range(4):
            c(f'v_mov_b32 v{112 + k}, -1')
    for k in range(0, n, 256):
        if n - k < 256:
            c(f's_cmp_lt_u32 {sT}, {(n - k) // 4}')
            c('s_cselect_b32 s38, s38, 0x70000000')
        c(f'buffer_store_dwordx4 v[112:115], v4, {WSR}, s38 offen{st}')
        c(f's_add_u32 s38, s38, {256 * 1024}')
    hook(0)
    for i in range(2):
        for m in range(5):
            c(f'ds_write_b128 v2, {vr(XR + 20 * i + 4 * m, 4)} offset:{1296 * 4 * i + 256 * m}')
    hook(1)
    c('s_waitcnt lgkmcnt(0)')
    c('s_barrier')
    c.extend(mark1(10))
    for i in range(10):
        c(f'ds_read_b64 {vr(O + 4 * i, 2)}, v3 offset:{32 * i}')
        c(f'ds_read_b64 {vr(O + 4 * i + 2, 2)}, v3 offset:{32 * i + 16 * 1296}')
    for i in range(10):
        if i and (i & 3) == 0:
            c('s_add_u32 s37, s37, 4096')
        c(f'buffer_store_dwordx4 {vr(O + 4 * i, 4)}, v4, {WSR}, s37 offen offset:{1024 * (i & 3)}{st}')
        for r in range(4 * i, 4 * i + 4):
            k = A + 2 * (r // 20)
            c(f'v_dot2_f32_bf16 v{k}, v{XR + r}, s40, {"0" if r % 20 == 0 else "v%d" % k}')
            c(f'v_dot2_f32_bf16 v{k + 1}, v{XR + r}, v{XR + r}, {"0" if r % 20 == 0 else "v%d" % (k + 1)}')
    for sh in (8, 4, 2, 1):
        for k in range(4):
            c(f'v_add_f32_dpp v{A + k}, v{A + k}, v{A + k} row_ror:{sh} row_mask:0xf bank_mask:0xf')
    for i in range(2):
        ln_finish(c, A + 2 * i, A + 2 * i + 1, A + 8 + 2 * i)
    for i in range(2):
        c(f'v_mul_f32 v{A + 9 + 2 * i}, v{A + 2 * i}, v{A + 8 + 2 * i}')
        c(f'ds_write_b64 v5, {vr(A + 8 + 2 * i, 2)} offset:{32 * 1296 + 64 * i}')
    c('s_waitcnt lgkmcnt(0)')
    c('s_barrier')
    c(f'ds_read_b32 v10, v8 offset:{32 * 1296}')
    c(f'buffer_store_dword v10, v8, {WSR}, s36 offen{st}')
    c.extend(mark1(11))


UBS = 10368
P1_LDS = 17664 + 4 * UBS + 4 * 2048
LB1 = LDS_TOTAL - P1_LDS
assert LB1 % 256 == 0
KY0 = LB1 + 256
UB0 = LB1 + 17664
EB0 = UB0 + 4 * UBS
KT = 100
cA, cACC, cB, cXQ, cSQ, cT = 16, 80, 176, 208, 224, 240
NBUF = 8


def p1_k_load(c, KKS, DS):
    T = KT
    c(f'''
    s_lshl_b32 s34, {sSG}, 4
    s_add_u32 s34, s34, {sIDX}
    s_lshl_b32 s35, s34, 2
    s_add_u32 s35, s35, {sWAVE}
    s_lshl_b32 s38, s35, 12
    s_lshl_b32 s39, s35, 1
    v_lshlrev_b32 v1, 4, v0
    v_mov_b32 v2, 0
    ''')
    o = [[Ins(f'buffer_load_dwordx4 {vr(T + 4 * i, 4)}, v1, {KKS}, s38 offen offset:{1024 * i}')] for i in range(4)]
    o[0].insert(0, Ins(f'buffer_load_ushort v{T + 16}, v2, {DS}, s39 offen'))
    return o


def p1_k(c):
    T = KT
    c(f'''
    s_lshl_b32 s34, {sSG}, 4
    s_add_u32 s34, s34, {sIDX}
    s_mul_i32 s37, {sWAVE}, 4352
    s_and_b32 s38, {sWAVE}, 1
    s_lshl_b32 s38, s38, 5
    s_add_u32 s37, s37, s38
    s_lshr_b32 s38, {sWAVE}, 1
    s_lshl_b32 s38, s38, 7
    s_add_u32 s37, s37, s38
    s_add_u32 s37, s37, {KY0}
    s_mul_i32 s38, {sWAVE}, {UBS}
    s_add_u32 s38, s38, {UB0}
    s_lshl_b32 s39, {sWAVE}, 11
    s_add_u32 s39, s39, {EB0}
    v_lshrrev_b32 v7, 4, v0
    v_and_b32 v6, 15, v0
    v_bfe_u32 v8, v0, 2, 2
    v_and_b32 v9, 3, v0
    v_lshlrev_b32 v3, 2, v0
    v_add_u32 v10, s38, v3
    v_mov_b32 v3, 0
    v_mov_b32 v4, 0
    v_mov_b32 v5, 0
    ds_write2st64_b32 v10, v2, v2 offset0:0 offset1:5
    ds_write2st64_b32 v10, v2, v2 offset0:10 offset1:15
    v_add_u32 v11, 5248, v10
    ds_write2st64_b32 v11, v2, v2 offset0:0 offset1:5
    ds_write2st64_b32 v11, v2, v2 offset0:10 offset1:15
    v_add_u32 v12, s39, v1
    ds_write_b128 v12, v[2:5]
    s_sub_u32 s42, s37, 32
    v_add_u32 v13, s42, v1
    ds_write_b128 v13, v[2:5]
    v_add_u32 v10, 128, v10
    v_add_u32 v11, 136, v11
    ''')
    c(f'''
    v_lshlrev_b32 v{T + 16}, 16, v{T + 16}
    v_lshlrev_b32 v{T + 17}, 16, v{T}
    v_add_f32 v{T + 16}, v{T + 16}, v{T + 17}
    v_cvt_pk_bf16_f32 v{T + 16}, v{T + 16}, v{T + 16}
    s_mov_b32 s42, 0xffff
    s_mov_b64 exec, 1
    v_bfi_b32 v{T}, s42, v{T + 16}, v{T}
    s_mov_b64 exec, -1
    ''')
    for i in range(4):
        c(f'ds_write_b128 v13, {vr(T + 4 * i, 4)} offset:{32 + 1024 * i}')
    c(f'''
    v_sub_u32 v14, v9, v8
    v_lshlrev_b32 v14, 3, v14
    v_lshl_add_u32 v14, v7, 6, v14
    v_add_u32 v14, s37, v14
    ''')
    for n in range(16):
        c(f'ds_read_b64_tr_b16 {vr(cA + 4 * n, 2)}, v14 offset:{256 * n + 32}')
        c(f'ds_read_b64_tr_b16 {vr(cA + 4 * n + 2, 2)}, v14 offset:{256 * n}')
    c(f'''
    v_lshlrev_b32 v14, 1, v7
    v_sub_u32 v14, v6, v14
    v_lshlrev_b32 v14, 3, v14
    v_and_b32 v13, 1, v6
    v_mul_u32_u24 v13, 5256, v13
    v_sub_u32 v14, v14, v13
    s_add_u32 s42, s38, {5248 + 64}
    v_add_u32 v14, s42, v14
    v_add_u32 v13, 16, v0
    v_subrev_u32 v15, 47, v0
    v_cmp_gt_u32 vcc, 48, v0
    v_lshlrev_b32 v2, 5, v6
    v_lshl_add_u32 v2, v7, 3, v2
    v_cndmask_b32 v13, v15, v13, vcc
    v_add_u32 v15, 64, v13
    v_add_u32 v2, s37, v2
    v_writelane_b32 v13, 64, 63
    v_writelane_b32 v15, 0, 63
    v_lshlrev_b32 v13, 4, v13
    v_lshlrev_b32 v15, 4, v15
    v_add_u32 v13, s39, v13
    v_add_u32 v15, s39, v15
    v_mul_u32_u24 v3, 4352, v8
    v_and_b32 v4, 1, v8
    v_lshl_add_u32 v3, v4, 5, v3
    v_lshrrev_b32 v4, 1, v8
    v_lshl_add_u32 v3, v4, 7, v3
    v_lshl_add_u32 v3, v7, 6, v3
    v_lshl_add_u32 v3, v9, 3, v3
    s_lshl_b32 s42, {sWAVE}, 8
    s_add_u32 s42, s42, {KY0}
    v_add_u32 v3, s42, v3
    ''')
    c(f'''
    v_lshlrev_b32 v4, 4, v6
    v_mul_u32_u24 v5, 40960, v7
    v_add_u32 v5, v5, v4
    v_lshl_add_u32 v4, v7, 10, v4
    s_lshl_b32 s43, s34, 14
    s_lshl_b32 s42, {sWAVE}, 8
    s_add_u32 s43, s43, s42
    s_mul_i32 s44, {sWAVE}, 163840
    s_lshl_b32 s42, s34, 8
    s_add_u32 s44, s44, s42
    s_lshl_b32 s45, {sWAVE}, 10
    s_add_u32 s45, s45, {ST_OFF}
    ''')
    if U_OFF:
        c(f's_add_u32 s43, s43, {U_OFF}')


def p1_load_u(c, ld=SC):
    T = cACC + 64
    for i in range(4):
        c(f'buffer_load_dwordx4 {vr(T + 4 * i, 4)}, v4, {WSR}, s43 offen{ld}')
        if i < 3:
            c('s_add_u32 s43, s43, 4096')


def p1_load_x(ld=SC):
    o = []
    for u in range(4):
        o.append([Ins(f's_add_u32 s43, s45, {4096 * u}'),
                  Ins(f'buffer_load_dwordx4 {vr(cSQ + 4 * u, 4)}, v1, {WSR}, s43 offen{ld}', f'sq{u}')])
        o.append([Ins(f's_add_u32 s43, s44, {X4_OFF + u * 655360}'),
                  Ins(f'buffer_load_dwordx4 {vr(cXQ + 4 * u, 4)}, v5, {WSR}, s43 offen{ld}', f'xq{u}')])
    return o


def p1_main(c, inject, jobs, st=SC):
    T = cACC + 64
    uw = []
    for i in range(4):
        for a in ('v10', 'v11'):
            uw.append(Ins(f'ds_write2st64_b32 {a}, v{T + 4 * i}, v{T + 4 * i + 1} offset0:{i} offset1:{5 + i}'))
            uw.append(Ins(f'ds_write2st64_b32 {a}, v{T + 4 * i + 2}, v{T + 4 * i + 3} offset0:{10 + i} offset1:{15 + i}'))
    c.extend(uw[:4])
    accb = {0: 80, 1: 96, 2: 112, 3: 80, 4: 96, 5: 112, 6: 144, 7: 80}
    acc = lambda t, cp: accb[t] + 4 * cp
    res = lambda cp, w: ar(16 * (w + 1) + 4 * cp + (128 if 4 * (w + 1) + cp >= nwb() else 0), 4)
    chain = lambda t, ws: [(t, cp, w) for cp in range(4) for w in ws]
    steps = []
    for t in range(4):
        steps += chain(t, range(-1, 2 * t - 1)) + chain(t, (2 * t - 1, 2 * t))
    for t, hi in ((4, 8), (6, 12)):
        joint = [x for w in range(7, hi, 2) for cp in range(4) for x in ((t, cp, w), (t, cp, w + 1), (t + 1, cp, w + 1), (t + 1, cp, w))]
        own = chain(t, range(-1, 7))
        steps += own + joint if t == 4 or OPT.get('j6', 0) else joint + own
        if t == 6 and OPT.get('v7', 1):
            steps += [(7, cp, w) for cp in (3, 2, 1, 0) for w in list(range(-1, 7)) + [13, 14]]
        else:
            steps += chain(t + 1, range(-1, 7)) + chain(t + 1, (hi + 1, hi + 2))
    mf = []
    first_use, last_of_tile, first_of_tile = {}, {}, {}
    started = set()
    strm, sidx = [], {}
    for t, cp, w in steps:
        if w < 7:
            first_use.setdefault(w, len(mf))
            breg = res(cp, w)
        else:
            if (t >> 1, cp, w) not in sidx:
                sidx[(t >> 1, cp, w)] = len(strm)
                strm.append([cp, w, len(mf), 0])
            strm[sidx[(t >> 1, cp, w)]][3] = len(mf)
            breg = vr(cB + 4 * (sidx[(t >> 1, cp, w)] % 8), 4)
        a = vr(acc(t, cp), 4)
        first_of_tile.setdefault(t, len(mf))
        last_of_tile[t] = len(mf)
        mf.append(Ins(f'v_mfma_f32_16x16x32_bf16 {a}, {vr(cA + 4 * (2 * t - w), 4)}, {breg}, {a if (t, cp) in started else "0"}'))
        started.add((t, cp))
    off = lambda cp, w: 64 * (w + 1) + 1280 * cp
    rd = lambda cp, w: Ins(f'ds_read_b128 {res(cp, w)}, v14 offset:{off(cp, w)}', f'b{w}')
    pre = {-1: [rd(cp, w) for cp in range(4) for w in (-1, 0)]}
    P = lambda p, l: pre.setdefault(p, []).extend(l)
    seq = []
    for w in range(1, 7):
        if w == 3:
            seq += [(w, i) for i in uw[4:8]]
        seq += [(w, rd(cp, w)) for cp in range(4)]
    p = -1
    for w, i in seq:
        p += 1 if w < 3 else 2
        assert p < first_use[w] - 6
        P(p, [i])
    for i in uw[8:]:
        p += OPT.get('uws', 4)
        P(p, [i])
    for w in range(1, 7, 2):
        P(first_use[w] - 1, [Ins(f'@lg b{w + 1}')])
    for k, (cp, w, f, l) in enumerate(strm):
        p = max(p + 2, strm[k - 8][3] if k >= 8 else 0, f - 28)
        assert p < f - 5, k
        P(p, [Ins(f'ds_read_b128 {vr(cB + 4 * (k % 8), 4)}, v14 offset:{off(cp, w)}', f's{k}')])
        if k % 2 == 1:
            P(strm[k - 1][2] - 1, [Ins(f'@lg s{k}')])
    for p, l in inject:
        P(p, l)
    bg = []

    def B(pos, text, tag=None):
        bg.append((pos, Ins(text, tag)))

    def tile_epi(t):
        p = last_of_tile[t] + 4
        Y = [acc(t, cp) for cp in range(4)]
        if t == 7 and OPT.get('v7', 1):
            B(p - 20, f'v_add_f32 v{Y[3] + 2}, v{Y[3] + 2}, v{Y[2] + 3}')
            B(0, f'v_add_f32 v{Y[3] + 1}, v{Y[3] + 1}, v{Y[2] + 2}')
            B(0, f'v_add_f32 v{Y[2] + 1}, v{Y[2] + 1}, v{Y[3]}')
            B(p - 11, f'v_add_f32 v{Y[3] + 1}, v{Y[3] + 1}, v{Y[1] + 3}')
            B(0, f'ds_write_b128 v15, {vr(Y[3], 4)}')
            B(0, f'ds_read_b128 {vr(cT, 4)}, v12 offset:1024')
            B(0, f'v_add_f32 v{Y[1] + 1}, v{Y[1] + 1}, v{Y[2]}')
            B(0, f'v_add_f32 v{Y[1] + 2}, v{Y[1] + 2}, v{Y[2] + 1}')
            B(p, f'v_add_f32 v{cT + 2}, v{cT + 2}, v{Y[1]}')
            B(p, f'v_add_f32 v{cT + 3}, v{cT + 3}, v{Y[1] + 1}')
            for k, x in enumerate((cT + 1, cT + 2, cT + 3, Y[1] + 2)):
                B(p, f'v_add_f32 v{Y[0] + k}, v{Y[0] + k}, v{x}')
            B(p, f'v_cvt_pk_bf16_f32 v{Y[0]}, v{Y[0]}, v{Y[0] + 1}')
            B(p, f'v_cvt_pk_bf16_f32 v{Y[0] + 1}, v{Y[0] + 2}, v{Y[0] + 3}')
            B(p, f'ds_write_b64 v2, {vr(Y[0], 2)} offset:{512 * t}', f'y{t}')
            return
        B(p, f'v_add_f32 v{Y[3] + 1}, v{Y[3] + 1}, v{Y[1] + 3}')
        B(p, f'v_add_f32 v{Y[3] + 2}, v{Y[3] + 2}, v{Y[2] + 3}')
        B(p, f'v_add_f32 v{Y[3] + 1}, v{Y[3] + 1}, v{Y[2] + 2}')
        B(p, f'ds_write_b128 {"v15" if t & 1 else "v13"}, {vr(Y[3], 4)}')
        B(p, f'ds_read_b128 {vr(cT, 4)}, v12 offset:{1024 * (t & 1)}')
        B(p, f'v_add_f32 v{Y[0] + 1}, v{Y[0] + 1}, v{Y[1]}')
        B(p, f'v_add_f32 v{Y[0] + 2}, v{Y[0] + 2}, v{Y[1] + 1}')
        B(p, f'v_add_f32 v{Y[0] + 3}, v{Y[0] + 3}, v{Y[1] + 2}')
        B(p, f'v_add_f32 v{Y[0] + 2}, v{Y[0] + 2}, v{Y[2]}')
        B(p, f'v_add_f32 v{Y[0] + 3}, v{Y[0] + 3}, v{Y[2] + 1}')
        B(p, f'v_add_f32 v{Y[0] + 3}, v{Y[0] + 3}, v{Y[3]}')
        B(-OPT.get('ed', 4), f'v_add_f32 v{Y[0]}, v{Y[0]}, v{cT + 1}')
        B(p, f'v_add_f32 v{Y[0] + 1}, v{Y[0] + 1}, v{cT + 2}')
        B(p, f'v_add_f32 v{Y[0] + 2}, v{Y[0] + 2}, v{cT + 3}')
        B(p, f'v_cvt_pk_bf16_f32 v{Y[0]}, v{Y[0]}, v{Y[0] + 1}')
        B(p, f'v_cvt_pk_bf16_f32 v{Y[0] + 1}, v{Y[0] + 2}, v{Y[0] + 3}')
        B(p, f'ds_write_b64 v2, {vr(Y[0], 2)} offset:{512 * t}', f'y{t}')

    Tm = cT + 8
    RR = {0: cT + 4, 1: 132, 2: cT + 4, 3: cT + 4}
    HH = {0: 160, 1: 144, 2: 160, 3: 96}

    def tail_r(u):
        B(0, f'ds_read_b64_tr_b16 {vr(RR[u], 2)}, v3 offset:{1024 * u}')
        B(0, f'ds_read_b64_tr_b16 {vr(RR[u] + 2, 2)}, v3 offset:{1024 * u + 32}')

    def tail_x(u, p):
        HX = HH[u]
        for k in range(4):
            x, rs, nm = cXQ + 4 * u + k, cSQ + 4 * u + (k >> 1) * 2, cSQ + 4 * u + (k >> 1) * 2 + 1
            B(p, f'v_lshlrev_b32 v{HX + 4 * k}, 16, v{x}')
            B(0, f'v_and_b32 v{HX + 4 * k + 1}, 0xffff0000, v{x}')
            B(0, f'v_fma_f32 v{HX + 4 * k + 2}, v{HX + 4 * k}, v{rs}, v{nm}')
            B(0, f'v_fma_f32 v{HX + 4 * k + 3}, v{HX + 4 * k + 1}, v{rs}, v{nm}')

    def tail_y(u):
        R, HX = RR[u], HH[u]
        B(0, f's_add_u32 s42, s44, {H4_OFF + u * 655360}')
        for k in range(4):
            B(0, f'v_lshlrev_b32 v{Tm}, 16, v{R + k}')
            B(0, f'v_and_b32 v{Tm + 1}, 0xffff0000, v{R + k}')
            if u == 3:
                B(0, f'v_pk_fma_f32 {vr(HX + 4 * k, 2)}, {vr(HX + 4 * k + 2, 2)}, {vr(Tm, 2)}, {vr(HX + 4 * k, 2)}')
            else:
                B(0, f'v_fmac_f32 v{HX + 4 * k}, v{HX + 4 * k + 2}, v{Tm}')
                B(0, f'v_fmac_f32 v{HX + 4 * k + 1}, v{HX + 4 * k + 3}, v{Tm + 1}')
            B(0, f'v_cvt_pk_bf16_f32 v{cXQ + 4 * u + k}, v{HX + 4 * k}, v{HX + 4 * k + 1}')
        B(0, f'buffer_store_dwordx4 {vr(cXQ + 4 * u, 4)}, v5, {WSR}, s42 offen{st}', f'hst{u}')

    def flag(k):
        if k:
            B(0, f's_add_u32 s46, s46, {160 * FSP}')
        B(0, f'buffer_store_dword v253, v252, {WSR}, s46 offen{st}', f'fl{k}')

    tpos = [17 * k for k in range(len(mf))]
    vm, pre2, where = pace(jobs, tpos, lambda p: OPT.get('sp1', 66) if p < 60 else OPT.get('sp2', 72),
                           avoid={p for p in pre if p > 60}, load={p: sum(i.cost for i in l) for p, l in pre.items()})
    for p, l in pre2.items():
        P(p, l)
    print('p1 prefetch ends at mfma', max(where.values()), file=sys.stderr)
    xq = {i.tag: where[id(i)] for _, _, l in sum(jobs, []) for i in l if i.tag and i.tag[1] == 'q'}
    LAG = OPT.get('xlag', 60)
    for t in range(4):
        tile_epi(t)
    tail_x(0, xq['xq0'] + LAG)
    B(0, '@lg y3')
    B(0, 's_barrier')
    tail_r(0)
    tail_r(1)
    tail_x(1, xq['xq1'] + LAG)
    tail_y(0)
    tail_y(1)
    tile_epi(4)
    tile_epi(5)
    tail_x(2, xq['xq2'] + LAG)
    B(OPT.get('b5', 215), '@vmlg hst1 y5')
    B(0, 's_barrier')
    tail_r(2)
    flag(0)
    tail_x(3, 0)
    tail_y(2)
    tile_epi(6)
    tile_epi(7)
    B(0, '@vmlg hst2 y7')
    B(0, 's_barrier')
    tail_r(3)
    flag(1)
    tail_y(3)
    for i in mark(6):
        bg.append((0, i))
    out = weave(mf, pre, bg, vm, {k: 4 for k in range(100, 280, OPT.get('x1', 8))})
    pos = {id(i): k for k, i in enumerate(out)}
    at = lambda t: max(j for j in range(len(mf)) if pos[id(mf[j])] < pos[id(next(x for x in out if x.tag == t))])
    for t, u in ((0, 3), (1, 4), (2, 5), (3, 7)):
        assert at(f'y{t}') < first_of_tile[u] - 1, t
    assert at('hst1') < first_of_tile[6] - 1 and pos[id(uw[-1])] < pos[id(next(x for x in out if x.tag == 'y3'))]
    print('p1:', ' '.join(f'{t}@{at(t)}' for t in ('y0', 'y3', 'y4', 'hst0', 'hst1', 'y5', 'fl0', 'hst2', 'y6')),
          'after last mfma', len(out) - pos[id(mf[-1])], file=sys.stderr)
    c.extend(out)


WJB = 49152


def side_w1_load(c, WGS, WUS, sNP, sK0, N, two, pre, mid):
    UR = 16 * N * 448 + 32
    R = f'n{two}'
    c(f'''
    v_mul_u32_u24 v116, 147, v0
    v_lshrrev_b32 v116, 11, v116
    v_mul_u32_u24 v117, 14, v116
    v_sub_u32 v117, v0, v117
    v_lshlrev_b32 v117, 4, v117
    v_and_b32 v118, 1, v116
    v_mul_u32_u24 v118, 216, v118
    v_lshrrev_b32 v116, 1, v116
    v_mul_u32_u24 v116, 3456, v116
    v_add3_u32 v116, v116, v117, v118
    s_lshl_b32 s46, {sK0}, 2
    s_add_u32 s46, s46, {sWAVE}
    s_mul_i32 s46, s46, {4 * 3456}
    s_mul_i32 s47, {sNP}, 432
    s_add_u32 s46, s46, s47
    s_mul_i32 s47, {sWAVE}, {4 * 448}
    s_add_u32 s47, s47, {WJB}
    s_mov_b32 exec_hi, 0x00ffffff
    ''')
    for ks in range(N):
        if ks == pre:
            c('s_mov_b64 exec, -1')
            mid()
            c('s_mov_b32 exec_hi, 0x00ffffff')
        for j in range(2):
            c(f's_add_u32 s45, s46, {(16 * ks + 2 * j) * 3456}')
            for m, srd_ in enumerate((WGS, WUS)):
                c(f's_add_u32 m0, s47, {UR * m + 448 * (16 * ks + 2 * j)}')
                c(f'buffer_load_dwordx4 v116, {srd_}, s45 offen lds', f'{R}w1k{ks}')
    c('s_mov_b64 exec, -1')
    if pre == N:
        mid()
    c.extend(mark1(12))


def side_w1(c, sNP, sK0, sSL, N, two, part=3, st=SC):
    UR = 16 * N * 448 + 32
    R = f'n{two}'
    c0 = c
    if not part & 1:
        c = Code()
    c(f'''
    s_mul_i32 s47, {sWAVE}, {4 * 448}
    s_add_u32 s47, s47, {WJB}
    v_and_b32 v2, 7, v0
    v_mul_u32_u24 v2, 224, v2
    v_bfe_u32 v3, v0, 3, 1
    v_sub_u32 v8, 1, v3
    v_mul_u32_u24 v8, 0x3f80, v8
    v_mov_b32 v9, 0
    v_mul_u32_u24 v3, {UR}, v3
    v_add3_u32 v2, v2, v3, s47
    v_lshrrev_b32 v12, 5, v0
    v_bfe_u32 v13, v0, 2, 2
    v_lshl_add_u32 v3, v12, 3, v13
    v_mul_u32_u24 v3, 448, v3
    v_bfe_u32 v13, v0, 4, 1
    v_mul_u32_u24 v13, {UR}, v13
    v_add_u32 v3, v3, v13
    v_and_b32 v13, 3, v0
    v_lshl_add_u32 v3, v13, 3, v3
    v_and_b32 v11, 15, v0
    v_lshlrev_b32 v11, 4, v11
    v_lshl_add_u32 v11, v12, 8, v11
    v_and_b32 v13, 16, v0
    v_lshl_add_u32 v11, v13, 6, v11
    s_lshl_b32 s36, {sWAVE}, 5
    s_add_u32 s36, s36, {WJB}
    v_add_u32 v3, s36, v3
    v_lshlrev_b32 v4, 4, v0
    s_lshl_b32 s36, {sWAVE}, 9
    v_lshl_add_u32 v5, v0, 1, s36
    v_add_u32 v10, s36, v4
    s_mov_b32 s44, {ONES}
    s_mul_i32 s26, {sNP}, {2 * 288 * 1024}
    s_add_u32 s26, s26, {W1_OFF}
    ''')
    for r in range(4):
        tb = []
        for w in range(4):
            p = 4 * r + w
            o = 288 * (p // 7)
            tb.append((o + w1_seq(p % 7, 0), w1_seq(p % 7, 1) - w1_seq(p % 7, 0), o + w1_seq(p % 7, 20)) if p < 14 else (0x100000, 0, 0x100000))
        for k, x in enumerate((34, 38, 28)):
            c(f's_mov_b32 s{x + r}, {tb[0][k] << 10}')
        for w in range(1, 4):
            c(f's_cmp_eq_u32 {sWAVE}, {w}')
            for k, x in enumerate((34, 38, 28)):
                c(f's_cselect_b32 s{x + r}, {tb[w][k] << 10}, s{x + r}')
        c(f'''
        s_add_u32 s{34 + r}, s{34 + r}, s26
        s_add_u32 s{28 + r}, s{28 + r}, s26
        s_lshl_b32 s42, {sSL}, 6
        s_add_u32 s{28 + r}, s{28 + r}, s42
        ''')
    c = c0
    if not part & 2:
        return
    for ks in range(N):
        FR = 16 + 16 * (ks % 4)
        c(f'''
        @vm {R}w1k{ks}
        ds_write_b64 v2, v[8:9] offset:{448 * 16 * ks + 216}
        s_waitcnt lgkmcnt(0)
        s_barrier
        ''')
        c.extend(mark1(7) if ks == 0 else (mark1(8) if ks == N - 1 else []))
        for r in range(4):
            for h in range(2):
                c(f'ds_read_b64_tr_b16 {vr(FR + 4 * r + 2 * h, 2)}, v3 offset:{448 * (16 * ks + 4 * h) + 128 * r}')
        c(f'''
        s_add_u32 s24, {sK0}, {ks}
        s_and_b32 s25, s24, 1
        s_lshl_b32 s25, s25, 9
        s_lshr_b32 s24, s24, 1
        ''')
        for r in range(4):
            c(f's_mul_i32 s42, s24, s{38 + r}')
            c(f's_add_u32 s42, s42, s25')
            c(f's_add_u32 s42, s42, s{34 + r}')
            c(f'buffer_store_dwordx4 {vr(FR + 4 * r, 4)}, v11, {WSR}, s42 offen{st}')
            for k in range(4):
                c(f'v_dot2_f32_bf16 v{100 + r}, v{FR + 4 * r + k}, s44, {"0" if ks + k == 0 else "v%d" % (100 + r)}')
    for r in range(4):
        c(f'v_mov_b32 v{104 + r}, v{100 + r}')
    for r in range(4):
        c(f'v_permlane32_swap_b32 v{100 + r}, v{104 + r}')
    c('s_mov_b32 vcc_lo, 0')
    c('s_mov_b32 vcc_hi, -1')
    for r in range(4):
        c(f'''
        v_add_f32 v{100 + r}, v{100 + r}, v{104 + r}
        v_cvt_pk_bf16_f32 v{104 + r}, v{100 + r}, v{100 + r}
        v_and_b32 v{104 + r}, 0xffff0000, v{104 + r}
        v_sub_f32 v{104 + r}, v{100 + r}, v{104 + r}
        v_cndmask_b32 v{100 + r}, v{100 + r}, v{104 + r}, vcc
        v_cvt_pk_bf16_f32 v{100 + r}, v{100 + r}, v{100 + r}
        ds_write_b16 v5, v{100 + r} offset:{128 * r}
        ''')
    c(f's_mov_b64 exec, {"0xff" if two else 15}')
    for r in range(4):
        c(f'ds_read_b128 {vr(104 + 4 * r, 4)}, v10 offset:{128 * r}')
    for r in range(4):
        c(f'buffer_store_dwordx4 {vr(104 + 4 * r, 4)}, v4, {WSR}, s{28 + r} offen{st}')
    c('s_mov_b64 exec, -1')
    c.extend(mark1(9))


WDA, WDF = 128, 176


def wd_setup(c):
    assert BLK_ORDER == [6, 0, 1, 2, 3, 4, 5]
    for i in range(5):
        c(f'''
        v_add_u32 v{WDA + 8}, {64 * i}, v0
        v_mul_u32_u24 v{WDA + 9}, 1639, v{WDA + 8}
        v_lshrrev_b32 v{WDA + 9}, 16, v{WDA + 9}
        v_mul_u32_u24 v{WDA + 9}, 640, v{WDA + 9}
        v_lshl_add_u32 v{WDA + i}, v{WDA + 8}, 4, v{WDA + 9}
        ''')
    c(f'''
    s_mul_i32 s100, {sWAVE}, 5120
    s_add_u32 s100, s100, 20480
    v_lshrrev_b32 v{WDA + 8}, 4, v0
    v_bfe_u32 v{WDA + 9}, v0, 2, 2
    v_mul_u32_u24 v{WDA + 5}, 160, v{WDA + 8}
    v_mul_u32_u24 v{WDA + 9}, 640, v{WDA + 9}
    v_add3_u32 v{WDA + 5}, v{WDA + 5}, v{WDA + 9}, s100
    v_and_b32 v{WDA + 9}, 3, v0
    v_lshl_add_u32 v{WDA + 6}, v{WDA + 9}, 3, v{WDA + 5}
    v_lshl_add_u32 v{WDA + 5}, v{WDA + 9}, 4, v{WDA + 5}
    v_mul_u32_u24 v{WDA + 7}, {56 * 5120}, v{WDA + 8}
    v_and_b32 v{WDA + 9}, 15, v0
    v_lshl_add_u32 v{WDA + 7}, v{WDA + 9}, 4, v{WDA + 7}
    s_lshl_b32 s16, s34, 2
    s_add_u32 s16, s16, {sWAVE}
    s_sub_u32 s16, s16, {4 * OPT.get('wg0', 0)}
    s_mul_i32 s17, s16, 2341
    s_lshr_b32 s17, s17, 16
    s_mul_i32 s18, s17, 28
    s_sub_u32 s18, s16, s18
    s_and_b32 s19, s18, 1
    s_lshr_b32 s18, s18, 1
    s_mul_i32 s101, s17, 108
    s_lshl_b32 s20, s18, 3
    s_add_u32 s101, s101, s20
    s_lshl_b32 s101, s101, 1
    s_add_u32 s101, s101, s19
    s_mul_i32 s101, s101, 640
    s_mul_i32 s56, s19, {4 * 56}
    s_lshr_b32 s20, s17, 2
    s_mul_i32 s20, s20, 14
    s_add_u32 s56, s56, s20
    s_bfe_u32 s20, s17, 0x10001
    s_add_u32 s56, s56, s20
    s_and_b32 s20, s18, 14
    s_add_u32 s20, s20, 2
    s_cmp_eq_u32 s20, 14
    s_cselect_b32 s20, 0, s20
    s_add_u32 s56, s56, s20
    s_mul_i32 s56, s56, 20
    s_and_b32 s20, s17, 1
    s_lshl_b32 s20, s20, 1
    s_add_u32 s56, s56, s20
    s_and_b32 s20, s18, 1
    s_add_u32 s56, s56, s20
    s_lshl_b32 s56, s56, 8
    s_add_u32 s56, s56, {WD_OFF}
    s_cmp_eq_u32 s18, 13
    s_cselect_b32 s58, 0, -1
    s_cmp_lt_u32 s16, 448
    s_cselect_b32 s101, s101, 0x70000000
    s_cselect_b32 s56, s56, 0x70000000
    ''')


def wd_loads(WDS):
    return [[Ins(f's_add_u32 m0, s100, {1024 * i}'),
             Ins(f'buffer_load_dwordx4 v{WDA + i}, {WDS}, s101 offen lds', 'wdl')] for i in range(5)]


def wd_reads():
    c = Code()
    c('@vm wdl')
    for b in range(5):
        for h in range(2):
            if b < 4:
                c(f'ds_read_b64_tr_b16 {vr(WDF + 4 * b + 2 * h, 2)}, v{WDA + 5} offset:{2560 * h + 64 * (b >> 1) + 8 * (b & 1)}')
            else:
                c(f'ds_read_b64_tr_b16 {vr(WDF + 4 * b + 2 * h, 2)}, v{WDA + 6} offset:{2560 * h + 128}')
    for b in range(5):
        c(f'v_and_b32 v{WDF + 4 * b + 2}, s58, v{WDF + 4 * b + 2}')
        c(f'v_and_b32 v{WDF + 4 * b + 3}, s58, v{WDF + 4 * b + 3}')
    return c.ins


def wd_stores(st=SC):
    c = Code()
    for b in range(5):
        if b == 4:
            c('s_add_u32 s56, s56, 4096')
        c(f'buffer_store_dwordx4 {vr(WDF + 4 * b, 4)}, v{WDA + 7}, {WSR}, s56 offen offset:{1024 * (b & 3)}{st}', 'wds')
    return c.ins


def poll_load(vval, vaddr, srd_, soff):
    return Ins(f'buffer_load_dword {vval}, {vaddr}, {srd_}, {soff} offen{SC}')


def poll_check(name, vval, vaddr, srd_, soff, need, sleep=None, first='', more=()):
    sleep = sleep or OPT.get('sleep')
    comb = f'v_min3_u32 {vval}, {vval}, {more[0][0]}, {more[1][0]}' if more else ''
    cc = Code()
    cc(f'''
    L_{name}_slow:
    @reset
    {first}
    s_mov_b32 s32, {SPIN}
    L_{name}_spin:
    {('s_sleep %d' % sleep) if sleep else ''}
    buffer_load_dword {vval}, {vaddr}, {srd_}, {soff} offen{SC}
    ''')
    for v, a in more:
        cc(f'buffer_load_dword {v}, {a}, {srd_}, {soff} offen{SC}')
    cc(f'''
    s_sub_u32 s32, s32, 1
    s_waitcnt vmcnt(0)
    {comb}
    v_cmp_gt_u32 vcc, {need}, {vval}
    s_cbranch_scc1 L_{name}_ok
    s_nop 0
    s_cbranch_vccnz L_{name}_spin
    s_branch L_{name}_ok
    ''')
    SLOW.extend(cc.ins)
    return ([Ins(comb)] if more else []) + [Ins(f'v_cmp_gt_u32 vcc, {need}, {vval}'), Ins('s_nop 0'), Ins(f's_cbranch_vccnz L_{name}_slow'), Ins(f'L_{name}_ok:')]


def flag_regs(c, voob, vone):
    c(f'v_mov_b32 {voob}, 0x80000000')
    c(f'v_mov_b32 {vone}, 1')
    c(f'v_writelane_b32 {voob}, 0, 0')


RING = 9
gHF, gMF, gACC, gT = 8, 168, 172, 236
NHB = 33
vOOB, vFV, vPA, vPV = 'v252', 'v253', 'v254', 'v255'


def p23_ids(c):
    c(f'''
    s_lshr_b32 s34, {sSLOT}, 2
    {'' if OPT.get('noalt') else 's_sub_u32 s34, 7, s34'}
    s_and_b32 s35, {sSLOT}, 3
    s_and_b32 s36, {sXCD}, 1
    s_lshr_b32 s37, {sXCD}, 1
    s_lshl_b32 {sMT}, s34, 1
    s_add_u32 {sMT}, {sMT}, s36
    s_lshl_b32 {sNI}, s37, 2
    s_add_u32 {sNI}, {sNI}, s35
    s_lshl_b32 {sMT64}, {sMT}, 1
    s_and_b32 s36, s37, 1
    s_add_u32 {sMT64}, {sMT64}, s36
    s_and_b32 {sDC}, {sXCD}, 4
    s_add_u32 {sDC}, {sDC}, s35
    s_mul_i32 {sP2W}, {sNI}, {288 * 1024}
    s_lshl_b32 {sP2L}, {sWAVE}, 12
    s_add_u32 {sP2W}, {sP2W}, {sP2L}
    s_add_u32 {sP2W}, {sP2W}, {W1_OFF}
    s_mul_i32 {sP3W}, {sDC}, 56
    s_mul_i32 s35, {sWAVE}, 14
    s_add_u32 {sP3W}, {sP3W}, s35
    s_mul_i32 {sP3W}, {sP3W}, 5120
    s_add_u32 {sP3W}, {sP3W}, {WD_OFF}
    ''')


def fa_addr(c, va, t1):
    c(f'''
    v_and_b32 {t1}, 3, v0
    v_and_b32 {va}, 12, v0
    v_lshl_add_u32 {va}, {va}, 2, {t1}
    v_mul_u32_u24 {va}, {FSP}, {va}
    s_mul_i32 s47, {sWAVE}, {4 * FSP}
    s_add_u32 s47, s47, {FX_OFF}
    ''')


def fw_addr(c, va):
    c(f'''
    v_min_u32 {va}, 11, v0
    v_mul_u32_u24 {va}, {FSP}, {va}
    s_lshr_b32 s57, {sNI}, 1
    s_mul_i32 s57, s57, {16 * FSP}
    s_add_u32 s57, s57, {FW1_OFF}
    ''')


def fd_addr(c, va):
    c(f'''
    v_min_u32 {va}, 27, v0
    v_mul_u32_u24 {va}, {FSP}, {va}
    s_mul_i32 s58, {sWAVE}, {28 * FSP}
    s_add_u32 s58, s58, {FD_OFF + OPT.get('wg0', 0) * FSP}
    ''')


def f2_addr(c, va):
    c(f'''
    s_lshl_b32 s39, {sWAVE}, 6
    v_add_u32 {va}, s39, v0
    v_min_u32 {va}, 159, {va}
    v_mul_u32_u24 {va}, {FSP}, {va}
    ''')


def p2_dma(g, base=sP2W, every=False):
    o = []
    for k in range(4):
        l = [Ins(f's_add_u32 m0, {sP2L}, {(g % RING) * 16384}')] if k == 0 or (every and g >= 12) else []
        if k == 0:
            l.append(Ins(f's_add_u32 {sP2T}, {base}, {g * 16384}'))
        l.append(Ins(f'buffer_load_dwordx4 v1, {WSR}, {sP2T} offen offset:{1024 * k}{SC} lds', f'g{g}'))
        o.append(l)
    return o


def wfrag(j):
    n = 64 - nwb()
    if j < n:
        return ar(4 * (nwb() + j), 4)
    if j < n + 2:
        return vr(244 + 4 * (j - n), 4)
    return ar(4 * (j - n - 2), 4)


def p3_wload(j, R=''):
    o = []
    if j < 60:
        if j and (j & 3) == 0:
            o.append(Ins(f's_add_u32 {sP3W}, {sP3W}, 4096'))
        o.append(Ins(f'buffer_load_dwordx4 {wfrag(j)}, v1, {WSR}, {sP3W} offen offset:{1024 * (j & 3)}{SC}', f'{R}wd{j}'))
    else:
        k = j - 60
        if k and (k & 3) == 0:
            o.append(Ins(f's_add_u32 {sWL}, {sWL}, 4096'))
        if (k & 3) == 0:
            o.append(Ins(f's_add_u32 m0, {sSTG}, {4096 * (k >> 2)}'))
        o.append(Ins(f'buffer_load_dwordx4 v1, {WSR}, {sWL} offen offset:{1024 * (k & 3)}{SC} lds', f'{R}wl'))
    return o


sH, sHHS, sF3, sF3P, sF3Q, sHR, sHB, sRES, sRES4, sOUT, sF2P, sSTG, sWL = 's16', 's17', 's18', 's19', 's20', 21, 's25', 's26', 's27', 's28', 's29', 's30', 's31'


def p23_scalars(c):
    t, u = 's12', 's13'
    c(f'''
    s_lshl_b32 {u}, {sMT}, 2
    s_add_u32 {u}, {u}, {sWAVE}
    s_mul_i32 {sH}, {u}, 40960
    s_add_u32 {sH}, {sH}, {H4_OFF}
    s_mul_i32 {sHHS}, {u}, {2 * 57344}
    s_lshr_b32 {t}, {sNI}, 2
    s_mul_i32 {t}, {t}, {56 * 256}
    s_add_u32 {sHHS}, {sHHS}, {t}
    s_and_b32 {t}, {sNI}, 3
    s_lshl_b32 {t}, {t}, 9
    s_add_u32 {sHHS}, {sHHS}, {t}
    s_add_u32 {sHHS}, {sHHS}, {HH_OFF}
    s_mul_i32 {sF3P}, {u}, {4 * FSP}
    s_add_u32 {sF3P}, {sF3P}, {F3_OFF}
    s_mul_i32 {sF3Q}, {sMT}, {16 * FSP}
    s_mul_i32 {sF3}, {sNI}, {FSP}
    s_add_u32 {sF3}, {sF3}, {sF3Q}
    s_add_u32 {sF3}, {sF3}, {F3_OFF}
    s_add_u32 {sF3Q}, {sF3Q}, {F3_OFF + 3 * 256 * FSP}
    s_cmp_eq_u32 {sWAVE}, 0
    s_cselect_b32 {sF3}, {sF3}, 0x70000000
    s_lshl_b32 {u}, {sMT64}, 2
    s_add_u32 {u}, {u}, {sWAVE}
    s_mul_i32 {sOUT}, {u}, {16 * 1280}
    s_mul_i32 {t}, {sDC}, 160
    s_add_u32 {sOUT}, {sOUT}, {t}
    s_mul_i32 {sHB}, {u}, 57344
    s_add_u32 {sHB}, {sHB}, {HH_OFF + 48 * 256}
    s_lshr_b32 {sRES}, {u}, 1
    s_mul_i32 {sRES}, {sRES}, 40960
    s_and_b32 {t}, {sWAVE}, 1
    s_lshl_b32 {t}, {t}, 3
    s_add_u32 {sRES}, {sRES}, {t}
    s_mul_i32 {t}, {sDC}, {20 * 256}
    s_add_u32 {sRES}, {sRES}, {t}
    s_add_u32 {sRES}, {sRES}, {H4_OFF}
    s_add_u32 {sRES4}, {sRES}, 4096
    s_sub_u32 {sF2P}, {sMT}, 10
    s_cmp_lt_u32 {sMT}, 12
    s_cselect_b32 {sF2P}, 1, {sF2P}
    s_cmp_lt_u32 {sMT}, 8
    s_cselect_b32 {sF2P}, 0, {sF2P}
    s_mul_i32 {sF2P}, {sF2P}, {160 * FSP}
    s_add_u32 {sF2P}, {sF2P}, {F2_OFF}
    s_cmp_lt_u32 {sMT}, {OPT.get('pu', 12)}
    s_cselect_b32 s14, {sF2P}, {F2_OFF}
    s_cselect_b32 s15, 1, 0
    s_mov_b32 s3, {sH}
    s_mul_i32 {sSTG}, {sWAVE}, 10240
    s_add_u32 {sWL}, {sP3W}, {60 * 1024}
    s_mul_i32 {u}, {sMT64}, {4 * 57344}
    s_mul_i32 {t}, {sWAVE}, {56 * 256}
    s_add_u32 {u}, {u}, {t}
    s_add_u32 {u}, {u}, {HH_OFF}
    ''')
    for r in range(4):
        c(f'''
        s_add_u32 {t}, {sWAVE}, {r + 1}
        s_and_b32 {t}, {t}, 3
        s_mul_i32 s{sHR + r}, {t}, 57344
        s_add_u32 s{sHR + r}, s{sHR + r}, {u}
        ''')
    for o, r in (('nowd', [sP3W, sWL]), ('nog', [sP2W]), ('nohh', [f's{sHR + r}' for r in range(4)] + [sHB]), ('noh', [sH])):
        if OPT.get(o):
            for x in r:
                c(f's_mov_b32 {x}, 0x70000000')


def p23_vectors():
    c = Code()
    t = gT
    c(f'''
    v_add_u32 v4, 0x10000, v1
    v_add_u32 v5, 0x20000, v1
    v_bfe_u32 v2, v0, 4, 1
    v_mul_u32_u24 v2, 57344, v2
    v_lshrrev_b32 v{t}, 5, v0
    v_lshl_add_u32 v2, v{t}, 8, v2
    v_lshrrev_b32 v3, 2, v0
    v_lshlrev_b32 v3, 6, v3
    v_and_b32 v7, 3, v0
    v_lshl_add_u32 v3, v7, 3, v3
    v_and_b32 v7, 15, v0
    v_lshlrev_b32 v7, 4, v7
    v_add_u32 v2, v2, v7
    v_lshrrev_b32 v{t}, 4, v0
    v_lshl_add_u32 v6, v{t}, 9, v7
    v_lshl_add_u32 v7, v{t}, 8, v7
    v_and_b32 {vPA}, 3, v0
    v_mul_u32_u24 {vPA}, {FSP}, {vPA}
    ''')
    return c.ins


def p23_main(c, R, pre_groups, wpre, issued=None):
    ld = st = SC
    O = lambda k, d: OPT.get(R + k, OPT.get(k, d))
    HPRE = O('hpre', 13)
    nacc, NWB = 3, nwb()
    accof = lambda bi: gACC + 16 * (bi % nacc)
    LA = O('la', 6)
    units = [(bi, kp, m) for kp in range(10) for bi in range(2) for m in range(2)]
    blk = lambda bi: [(bi, kp, m) for kp in range(10) for m in range(2)] + [(bi, 10, 0)]
    units += blk(2)[:LA] + [(0, 10, 0), (1, 10, 0)] + blk(2)[LA:]
    for bi in range(3, 7):
        units += blk(bi)
    up = {x: 4 * k for k, x in enumerate(units)}
    slots = lambda x: [w1_slot(x[0], 2 * x[1] + j, x[2]) for j in range(2)] if x[1] < 10 else [w1_slot(x[0], 20)]
    gRES = 220
    home = {80: vr(gRES, 4), 81: vr(gRES + 4, 4)}
    runits = units[:40] + [(0, 10, 0), (1, 10, 0)] + [x for x in units[40:] if x[0] > 1]
    wbuf, rpos, lastuse, holder = dict(home), {}, {}, {}
    k, prev = 0, -2
    for x in runits:
        for s in slots(x):
            lastuse[s] = up[x] + 3
            want = prev + 2
            if s not in home:
                wbuf[s] = ar(4 * (k % NWB), 4)
                want = max(want if prev >= 0 else -2, lastuse[holder[k % NWB]] + 1 if k >= NWB else -2)
                holder[k % NWB] = s
                k += 1
            rpos[s] = prev = want
            assert want < up[x] - (5 if up[x] > 8 else 0), (x, want)
    rpos = {s: max(p, -1) for s, p in rpos.items()}
    mf, last_of_blk, first_of_blk, started = [], {}, {}, set()
    half = lambda q, j: vr(int(REG_RE.match(q).group(3)) + 2 * j, 2, q[0])
    for x in units:
        bi, kp, m = x
        first_of_blk.setdefault(bi, len(mf))
        for t, j in ((m, 0), (m, 1), (1 - m, 1), (1 - m, 0)):
            if kp < 10:
                a = vr(accof(bi) + 8 * m + 4 * t, 4)
                mf.append(Ins(f'v_mfma_f32_16x16x32_bf16 {a}, {wbuf[slots(x)[j]]}, {vr(gHF + 16 * kp + 8 * j + 4 * t, 4)}, {a if (bi, m, t) in started else "0"}'))
                started.add((bi, m, t))
            else:
                a = vr(accof(bi) + 8 * t + 4 * j, 4)
                mf.append(Ins(f'v_mfma_f32_16x16x16_bf16 {a}, {half(wbuf[slots(x)[0]], t)}, {vr(gMF + 2 * j, 2)}, {a}'))
        last_of_blk[bi] = len(mf) - 1
    N2 = len(mf)
    pre = {}
    P = lambda pos, i: pre.setdefault(pos, []).append(i)

    def hload(k):
        o = []
        if k and (k & 3) == 0:
            o.append(Ins(f's_add_u32 {sH}, {sH}, 4096'))
        o.append(Ins(f'buffer_load_dwordx4 {vr(gHF + 4 * k, 4)}, v6, {WSR}, {sH} offen offset:{hoff(k)}{ld}', f'{R}h{k}'))
        return o
    hoff = lambda k: 2048 * ((k >> 1) & 1) + 256 * (k & 1)

    def dma(g):
        ll = p2_dma(g)
        for l in ll:
            l[-1].tag = f'{R}g{g}'
        return ll
    grp = lambda g: range(16 * g, min(16 * g + 16, 287))
    first_rd = lambda g: min(rpos[s] for s in grp(g))
    bars = sorted({first_rd(min(pre_groups, 3)) - 1} | {first_rd(g) - 1 for g in (5, 7, 9, 12, 14, 16)})
    GPRE = issued or pre_groups
    gjobs = []
    for g in range(pre_groups, 18):
        e = -1 if g < RING else min(b for b in bars if b >= max(lastuse[s] for s in grp(g - RING))) + 2
        cert = max(b for b in bars if b <= first_rd(g))
        if g >= GPRE:
            assert e + 20 < cert, g
            for l in dma(g):
                gjobs.append((e, cert - 4, l))
        if not any(i.mn == '@vm' for i in pre.get(cert, [])):
            P(cert, Ins(f'@vm {R}g{max(g2 for g2 in range(g, 18) if max(b for b in bars if b <= first_rd(g2)) == cert)}'))
    for b in bars:
        P(b, Ins('s_barrier'))
    for x in runits:
        for s in slots(x):
            off = (s % (16 * RING)) * 1024
            if x[1] == 10:
                P(rpos[s] - 2, Ins(f'v_add_u32 v{gT + 6}, {off}, v3'))
                for m in range(2):
                    P(rpos[s], Ins(f'ds_read_b64_tr_b16 {half(wbuf[s], m)}, v{gT + 6} offset:{32 * m}', f'{R}w{s}'))
            else:
                P(rpos[s], Ins(f'ds_read_b128 {wbuf[s]}, {["v1", "v4", "v5"][off >> 16]} offset:{off & 0xffff}', f'{R}w{s}'))
    LG = O('lgn', 2)
    for k in range(0, len(units), LG):
        s = max((s for x in units[k:k + LG] for s in slots(x)), key=lambda s_: (rpos[s_], s_))
        P(max(4 * k - 2, -1), Ins(f'@lg {R}w{s}'))
    DB = 4
    sq = lambda j, k: gT + 2 * (j & 1) + k
    dpos = lambda j: (-1, 5)[j] if j < 2 else 16 * j - 19

    def dots(j):
        o = [f'v_mov_b32 v{sq(j, k)}, {"0" if j == 0 else "v%d" % sq(j - 1, k)}' for k in range(2)]
        return o + [f'v_dot2_f32_bf16 v{sq(j, (r >> 1) & 1)}, v{gHF + 16 * j + r}, v{gHF + 16 * j + r}, v{sq(j, (r >> 1) & 1)}' for r in range(16)]
    cc = Code()
    for j in range(10):
        p = dpos(j)
        P(p, Ins(f'@vm {R}h{4 * j + 3}'))
        P(p, Ins(f'L_hb{j}:'))
        for t in dots(j):
            P(p, Ins(t))
        P(p + 1 if j else p, Ins(f'v_cmp_u_f32 vcc, v{sq(j, 0)}, v{sq(j, 1)}'))
        for t in (['s_nop 0'] if j == 0 else []) + [f's_cbranch_vccnz L_hv{j}', f'L_hok{j}:']:
            P(p + 3 if j else p, Ins(t))
        cc(f'''
        L_hv{j}:
        s_cmp_lg_u32 s15, 0
        s_cbranch_scc1 L_hok{j}
        s_movk_i32 s14, {j}
        s_branch L_hwait
        ''')
    T = gACC + 32
    cc(f'''
    L_hwait:
    @reset
    {'s_add_u32 s82, s14, 1' if OPT.get('cnt') else ''}
    v_mul_u32_u24 v{T}, {FSP}, v0
    v_add_u32 v{T + 1}, {64 * FSP}, v{T}
    v_add_u32 v{T + 2}, {96 * FSP}, v{T}
    s_branch L_hspin_slow
    L_hspin_ok:
    s_mov_b32 s15, 1
    ''')
    poll_check('hspin', f'v{T + 3}', f'v{T}', WSR, sF2P, 1, 2, more=((f'v{T + 4}', f'v{T + 1}'), (f'v{T + 5}', f'v{T + 2}')))
    for j in range(10):
        if j < 9:
            cc(f's_cmp_gt_u32 s14, {j}')
            cc(f's_cbranch_scc1 L_hskip{j}')
        for k in range(4):
            cc(f'buffer_load_dwordx4 {vr(gHF + 16 * j + 4 * k, 4)}, v6, {WSR}, s3 offen offset:{hoff(k)}{ld}')
        cc(f'L_hskip{j}:')
        cc('s_add_u32 s3, s3, 4096')
    cc('s_waitcnt vmcnt(0)')
    for j in range(9):
        cc(f's_cmp_eq_u32 s14, {j}')
        cc(f's_cbranch_scc1 L_hr{j}')
    cc('s_branch L_hr9')
    for j in range(10):
        cc(f'L_hr{j}:')
        for t in dots(j):
            cc(t)
        cc('s_nop 2')
        cc(f's_branch L_hok{j}')
    SLOW.extend(cc.ins)
    for j in range(10):
        for k in range(4):
            x = gHF + 16 * j + 8 * (k >> 1) + 2 + (k & 1)
            i = Ins(f'v_swap_b32 v{x}, v{x + 2}')
            if j == 1:
                pre.setdefault(9 + 2 * k, []).insert(0, i)
            else:
                P(16 * j - 13 + 4 * k if j else -1, i)
    quads = list(range(140, 172, 4)) + list(range(204, 236, 4))[:7] + [188, 192, 196, 200, 232]
    acc3 = lambda r, b: quads[5 * r + b]
    pairs = [(r, k) for k in (0, 2, 4) for r in range(4)] + [(r, k) for k in (6, 8) for r in range(3)]
    pairs += [[(0, 10), (3, 6), (1, 10), (3, 8), (2, 10), (3, 10)], [(0, 10), (3, 6), (1, 10), (2, 10), (3, 8), (3, 10)],
              [(0, 10), (1, 10), (2, 10), (3, 6), (3, 8), (3, 10)]][O('ord', 0)]
    pairs += [(4, k) for k in (0, 2, 4, 6)]
    seq3 = lorder = [(r, k + j) for r, k in pairs for j in range(2)]
    usepos = {x: N2 + 5 * (i & ~1) for i, x in enumerate(seq3)}
    if O('tl', 1):
        usepos[(4, 6)] = usepos[(4, 7)] = usepos[(4, 4)] + 2
    free_at = {i: up[(6, i >> 2, 1)] + 3 for i in range(NHB)}
    hbuf = {}
    CP1 = first_of_blk[6] + O('cp1', 5)
    CP2 = N2 + O('cp2', 65)
    CP3 = N2 + O('cp3', 130)
    CP4 = N2 + O('cp4', 192)
    hjobs, rjobs = [], []
    for b in range(5):
        if b < 4:
            i = Ins(f'buffer_load_dwordx2 {vr(gRES + 2 * b, 2)}, v6, {WSR}, {sRES} offen offset:{2048 * (b >> 1) + 256 * (b & 1)}{ld}')
        else:
            i = Ins(f'buffer_load_dwordx2 {vr(gRES + 2 * b, 2)}, v7, {WSR}, {sRES4} offen{ld}')
        rjobs.append((up[(1, 10, 0)] + 4, CP1 - 20, [i]))
    for x in lorder:
        r, ks = x
        b = min(free_at, key=lambda k_: (free_at[k_], k_))
        cp = CP4 if r == 4 else (CP3 if ks >= 10 else (CP2 if ks >= 6 else CP1))
        e = max(cp + 1, free_at[b])
        hbuf[x] = b
        free_at[b] = usepos[x] + 9
        l = []
        if r < 4:
            if ks and (ks & 3) == 0:
                l.append(Ins(f's_add_u32 s{sHR + r}, s{sHR + r}, 4096'))
            so, off = f's{sHR + r}', 1024 * (ks & 3)
        else:
            if ks and (ks & 1) == 0:
                l.append(Ins(f's_add_u32 {sHB}, {sHB}, {56 * 256}'))
            so, off = sHB, 1024 * (ks & 1)
        l.append(Ins(f'buffer_load_dwordx4 {vr(gHF + 4 * b, 4)}, v1, {WSR}, {so} offen offset:{off}{ld}', f'{R}hq{r}_{ks}'))
        hjobs.append((e, usepos[x] - 2, l))
        if seq3.index(x) % 2 == 0:
            P(usepos[x] - 1, Ins(f'@vm {R}hq%d_%d' % max(seq3[seq3.index(x):seq3.index(x) + 2], key=lorder.index)))
    done3, wlast = {}, {}
    TL = O('tl', 1)
    fin = {}
    for r, k in pairs:
        if TL and (r, k) == (4, 6):
            continue
        kk = [k, k + 1] + ([6, 7] if TL and (r, k) == (4, 4) else [])
        for b in range(5):
            a = vr(acc3(min(r, 3), b), 4)
            for n, ks in enumerate(kk if b & 1 == 0 else kk[::-1]):
                if r < 4:
                    wlast[5 * ks + b] = len(mf)
                mf.append(Ins(f'v_mfma_f32_16x16x32_bf16 {a}, {wfrag(5 * ks + b)}, {vr(gHF + 4 * hbuf[(r, ks)], 4)}, {"0" if k == 0 and n == 0 and r < 3 else a}'))
            fin[b] = len(mf) - 1
        done3[r] = len(mf) - 1
    P(CP3 + 2, Ins(f'v_and_b32 {vPA}, 15, v0'))
    P(CP3 + 3, Ins(f'v_mul_u32_u24 {vPA}, {FSP}, {vPA}'))
    pjobs = []
    for nm, cp, lead in (('cp1', CP1, O('l1', 48)), ('cp2', CP2, O('l2', 45)), ('cp3', CP3, O('l3', 45)), ('cp4', CP4, O('l4', 45))):
        so = sF3Q if nm == 'cp4' else sF3P
        pjobs.append((cp - lead, cp - lead + 10, [poll_load(vPV, vPA, WSR, so)]))
        for i in poll_check(R + nm, vPV, vPA, WSR, so, 0 if OPT.get('nocp') else 1, 2):
            P(cp, i)
        if nm in ('cp1', 'cp2'):
            P(cp + 1, Ins(f's_add_u32 {sF3P}, {sF3P}, {256 * FSP}'))
    POST = {2: first_rd(12) - 1, 4: N2 - O('po5', 47), 5: N2 + O('po6', 24), 6: N2 + O('po7', 75)}
    for bi, p in POST.items():
        if p in bars:
            pre[p].insert(0, Ins(f'@vm {R}hh{bi}'))
        else:
            P(p, Ins(f'@vm {R}hh{bi}'))
            if bi == 6:
                P(p, Ins(f'@vm {R}wl'))
            P(p, Ins('s_barrier'))
        pjobs.append((p + 1, p + 10, ([Ins(f's_add_u32 {sF3}, {sF3}, {256 * FSP}')] if bi > 2 else []) +
                      [Ins(f'buffer_store_dword {vFV}, {vOOB}, {WSR}, {sF3} offen{st}')]))
    pjobs.sort(key=lambda x: x[0])
    assert POST[2] + 6 < CP1 and POST[4] + 6 < CP2 and POST[5] + 6 < CP3 and POST[6] + 6 < CP4
    BARW = POST[6]
    wjobs = [(0 if j < 66 - NWB else N2, usepos[(0, j // 5)] - 1, p3_wload(j, R)) for j in range(wpre, 60)]
    ljobs = [(min(b for b in bars if b >= max(lastuse[s] for s in grp(11))) + 2, BARW - 40, p3_wload(j, R)) for j in range(60, 70)]
    h2jobs = [(0, dpos(ks >> 2) - 1, hload(ks)) for ks in range(HPRE, 40)]
    tpos, t = [], 0
    for k, m in enumerate(mf):
        tpos.append(t)
        t += 16.6
        if k in [dpos(j) for j in range(10)]:
            t += 12 + 16 * DB
    for r in range(3):
        p = max(done3[r] + 1, p if r else 0)
        for b in range(5):
            p += O('pws', 3)
            while p in pre:
                p += 1
            P(p, Ins(f'ds_write_b128 v{2 + r}, {vr(acc3(r, b), 4)} offset:{1024 * (5 * r + b)}', f'{R}pw{r}'))
    PRD = p + 3
    vm, pre2, where = pace([h2jobs, gjobs + ljobs, wjobs, hjobs, pjobs, rjobs], tpos,
                           lambda p: O('spa', 50) if p < 144 else (O('spb', 100) if p < O('xe', 340) else (O('spd', 72) if p < N2 else O('spc', 68))),
                           avoid={p for p, l in pre.items() if p >= 144 or (sum(i.cost for i in l) > O('av', 0) and p not in [dpos(j) for j in range(10)])},
                           load={p: sum(i.cost for i in l) for p, l in pre.items()})
    vm[-1] = sum((hload(ks) for ks in range(HPRE)), [])
    for p, l in pre2.items():
        for i in l:
            P(p, i)
    lead = sorted((int(tpos[d] - tpos[where[id(l[-1])]]), l[-1].tag) for _, d, l in h2jobs + wjobs + hjobs)
    print(R, 'smallest leads', lead[:5], 'last vm at', max(where.values()) - N2, file=sys.stderr)
    p = BARW + 1
    for j in range(40):
        p = max(p + 2, wlast[j])
        while p in vm or sum(i.cost for i in pre.get(p, [])) > 4:
            p += 1
        assert p < usepos[(4, j // 5)] - 8
        P(p, Ins(f'ds_read_b128 {wfrag(j)}, v1 offset:{1024 * j}'))
    mk = ((8, 0), (9, 160), (10, N2 - 1), (11, N2 + 140), (12, len(mf) - 1))
    if OPT.get('mk23') == 2:
        mk = [(k + 1, N2 - 1 + 25 * k) for k in range(12)]
    if OPT.get('mk23') == 4:
        mk = []
    if OPT.get('mk23') == 3:
        mk = [(k + 1, 53 * k) for k in range(12)]
    for k, p in ([] if OPT.get('mk1') else mk):
        for i in ([] if k == 11 and OPT.get('cnt') else mark(k, True)):
            P(p, i)
    bg = []
    B = lambda pos, t, tag=None: bg.append((pos, Ins(t, tag and R + tag)))
    p = 160
    NM, VA, RS, C1, T2 = gT + 1, gT, gT + 2, gT + 3, gT + 4
    SA, SB = sq(9, 0), sq(9, 1)
    B(130, f'v_permlane16_swap_b32 v{SA}, v{SB}')
    B(130, f'v_add_f32 v{VA}, v{SA}, v{SB}')
    B(130, f'v_add_f32 v{T2}, v{SA}, v{SB}')
    B(up[(0, 9, 0)] + 8, f'v_mov_b32 v{T2 + 1}, v{accof(0)}')
    B(0, f'v_mov_b32 v{NM}, v{accof(0) + 4}')
    B(0, f'v_permlane32_swap_b32 v{VA}, v{T2}')
    B(0, f'v_permlane16_swap_b32 v{T2 + 1}, v{NM}')
    B(0, f'v_add_f32 v{VA}, v{VA}, v{T2}')
    B(0, f'v_mov_b32 v{T2 + 1}, v{NM}')
    B(-1, f'v_permlane32_swap_b32 v{T2 + 1}, v{NM}')
    cc = Code()
    ln_finish(cc, NM, VA, RS)
    for i in cc.ins:
        bg.append((0, i))
    for k in range(4):
        B(0, f'v_cvt_pk_bf16_f32 v{gMF + k}, v{NM}, v{NM}')
    B(0, f'v_permlane16_swap_b32 v{gMF}, v{gMF + 2}')
    B(0, f'v_permlane16_swap_b32 v{gMF + 1}, v{gMF + 3}', 'mf')
    B(0, f'v_mul_f32 v{C1}, 0xbfb8aa3b, v{RS}')
    B(0, f'v_mul_f32 v{T2}, 0xbfb8aa3b, v{RS}')
    B(0, f'v_mul_f32 v{NM}, v{VA}, v{RS}')
    B(0, f'v_mul_f32 v{VA}, v{VA}, v{RS}')
    B(0, f'v_permlane16_swap_b32 v{C1}, v{T2}')
    B(-1, f'v_permlane16_swap_b32 v{VA}, v{NM}')
    c1 = lambda r: C1 + (r >> 2)
    sd = lambda r: VA + (r >> 2)
    epi_last = {}
    for bi in range(7):
        a = accof(bi)
        p = last_of_blk[bi] + 3
        if bi == 6:
            for b in range(5):
                q = acc3(3, b)
                B(0, f'v_lshlrev_b32 v{q}, 16, v{gRES + 2 * b}')
                B(0, f'v_and_b32 v{q + 1}, 0xffff0000, v{gRES + 2 * b}')
                B(0, f'v_lshlrev_b32 v{q + 2}, 16, v{gRES + 2 * b + 1}')
                B(0, f'v_and_b32 v{q + 3}, 0xffff0000, v{gRES + 2 * b + 1}', 'res')
        B(p, f'v_mul_f32 v{a}, v{c1(0)}, v{a}')
        for r in range(8):
            if r < 7:
                B(p, f'v_mul_f32 v{a + r + 1}, v{c1(r + 1)}, v{a + r + 1}')
            else:
                B(p, f'v_fma_f32 v{a}, v{a}, v{sd(0)}, v{sd(0)}')
            B(p, f'v_exp_f32 v{a + r}, v{a + r}')
        for r in range(8):
            if r < 7:
                B(p, f'v_fma_f32 v{a + r + 1}, v{a + r + 1}, v{sd(r + 1)}, v{sd(r + 1)}')
            else:
                B(p, f'v_mul_f32 v{a + 8}, v{a + 8}, v{a}')
            B(p, f'v_rcp_f32 v{a + r}, v{a + r}')
        for r in range(1, 8):
            B(p, f'v_mul_f32 v{a + 8 + r}, v{a + 8 + r}, v{a + r}')
        for r in (0, 2, 1, 3):
            B(p, f'v_cvt_pk_bf16_f32 v{a + r}, v{a + 8 + 2 * r}, v{a + 9 + 2 * r}')
        B(p, f'v_permlane16_swap_b32 v{a}, v{a + 2}')
        B(p, f'v_permlane16_swap_b32 v{a + 1}, v{a + 3}')
        B(p, f'buffer_store_dwordx4 {vr(a, 4)}, v2, {WSR}, {sHHS} offen offset:{2048 * (bi & 1)}{st}', f'hh{bi}')
        epi_last[bi] = bg[-1][1]
        if bi & 1:
            B(p, f's_add_u32 {sHHS}, {sHHS}, 4096')
    for r in range(4):
        B(0, f's_add_u32 s39, {sWAVE}, {r + 1}')
        B(0, f's_and_b32 s39, s39, 3')
        B(0, f's_mul_i32 s39, s39, {15 * 1024}')
        B(0, f's_add_u32 s39, s39, 65536')
        B(0, f'v_add_u32 v{2 + r}, s39, v1')
    B(0, f'v_lshrrev_b32 v{gT}, 4, v0')
    B(0, f'v_and_b32 v6, 15, v0')
    B(0, f'v_mul_u32_u24 v6, 1280, v6')
    B(0, f'v_lshl_add_u32 v7, v{gT}, 3, v6')
    B(0, f'v_lshl_add_u32 v6, v{gT}, 4, v6', 'adr')
    B(PRD, f'@lg {R}pw2')
    B(0, 's_barrier')
    for b in range(5):
        for r in range(3):
            B(0, f'ds_read_b128 {vr(acc3(r, b), 4)}, v5 offset:{1024 * (5 * r + b)}')
    for b in range(5):
        for r in (1, 2):
            for k in range(4):
                B(PRD + 10, f'v_add_f32 v{acc3(0, b) + k}, v{acc3(0, b) + k}, v{acc3(r, b) + k}', 'sum')
    p = len(mf)
    OR = gACC
    OS = ['', ' sc1', ' nt', ' sc1 nt', ' sc0 sc1'][O('os', 0)]
    for b in range(5):
        p = fin[b] + 4 if TL else len(mf)
        if TL and b < 3:
            for k in range(4):
                B(p, f'v_add_f32 v{acc3(0, b) + k}, v{acc3(0, b) + k}, v{acc3(3, b) + k}')
        else:
            p = len(mf)
            for k in (0, 2):
                B(p, f'v_pk_add_f32 {vr(acc3(0, b) + k, 2)}, {vr(acc3(0, b) + k, 2)}, {vr(acc3(3, b) + k, 2)}')
        for k in (0, 2):
            B(p, f'v_cvt_pk_bf16_f32 v{OR + 2 * b + k // 2}, v{acc3(0, b) + k}, v{acc3(0, b) + k + 1}')
        if b in (1, 3):
            B(p, f'buffer_store_dwordx4 {vr(OR + 2 * b - 2, 4)}, v6, {OUTS}, {sOUT} offen offset:{32 * (b - 1)}{OS}')
    B(p, f'buffer_store_dwordx2 {vr(OR + 8, 2)}, v7, {OUTS}, {sOUT} offen offset:128{OS}')
    xtra = {k: O('xb', 8) for k in range(N2, N2 + 40)}
    xtra.update({k: 4 for k in range(140, N2) if k % O('xa', 32) == 0 or (k < O('xe', 340) and k % O('xa1', 2) == 0)})
    out = weave(mf, pre, bg, vm, xtra)
    pos = {id(i): k for k, i in enumerate(out)}
    tagged = lambda t: [i for _, i in bg if i.tag == R + t][-1]
    at = lambda t: max(j for j in range(len(mf)) if pos[id(mf[j])] < pos[id(tagged(t))])
    assert at('mf') < up[(0, 10, 0)] - 1, ('mean fragment not ready', at('mf'))
    for bi in range(nacc, 7):
        assert at(f'hh{bi - nacc}') < first_of_blk[bi] - 1, ('acc reuse', bi, at(f'hh{bi - nacc}'))
    assert at('hh5') < N2 + 12 and at('res') < N2 + 20, (at('hh5'), at('res'))
    assert at('adr') < done3[0] and BARW < done3[0]
    print(R, ' '.join(f'{t}@{at(t) - N2}' for t in ('hh0', 'hh1', 'hh2', 'hh3', 'hh4', 'hh5', 'res', 'hh6', 'sum')),
          'cp', CP1 - N2, CP2 - N2, CP3 - N2, CP4 - N2, 'prd', PRD - N2, 'after last mfma', len(out) - pos[id(mf[-1])], file=sys.stderr)
    c.extend(out)
```

```python
import sys
from asmlib import *
from phases import *
import phases

NAME = 'sequential_preLN__ssm_conv_h3__glu_gated_glu__prompt'
KN = NAME + '_kernel'
HEADER = open('cdna_kernels/%s.s.ref' % NAME).read().split('; Override launch')[0]


def stamp_begin(c, ts):
    if ts:
        for k in range(1, 13):
            c(f's_mov_b32 s{60 + 2 * k}, 0')
        c('s_memtime s[86:87]')


def stamp_end(c, ts, k):
    if ts:
        c(f'''
        s_waitcnt vmcnt(0) lgkmcnt(0)
        s_memrealtime s[90:91]
        s_memtime s[88:89]
        s_lshl_b32 s34, s2, 2
        s_add_u32 s34, s34, {sWAVE}
        s_lshl_b32 s34, s34, 6
        s_add_u32 s34, s34, {TS_OFF + k * 65536}
        s_waitcnt lgkmcnt(0)
        ''')
        for j in range(16):
            c(f'v_mov_b32 v{j}, s{60 + 2 * j}')
        c('v_mov_b32 v16, 0')
        c('s_mov_b64 exec, 1')
        for j in range(4):
            c(f'buffer_store_dwordx4 v[{4 * j}:{4 * j + 3}], v16, {WSR}, s34 offen offset:{16 * j}')


def desc(name, vgpr, accum):
    return f'''.amdhsa_kernel {name}
  .amdhsa_next_free_vgpr {vgpr}
  .amdhsa_next_free_sgpr 102
  .amdhsa_accum_offset {accum}
  .amdhsa_group_segment_fixed_size 0
  .amdhsa_kernarg_size 104
  .amdhsa_user_sgpr_count 2
  .amdhsa_user_sgpr_kernarg_segment_ptr 1
  .amdhsa_system_sgpr_workgroup_id_x 1
  .amdhsa_float_denorm_mode_32 3
.end_amdhsa_kernel'''


def go_addr(c, va):
    c(f'v_and_b32 {va}, 7, v0')
    c(f'v_lshlrev_b32 {va}, 5, {va}')


def wg_flag(c, soff, wait='s_waitcnt vmcnt(0)'):
    c(wait)
    c('s_barrier')
    c(f's_cmp_eq_u32 {sWAVE}, 0')
    c(f's_cselect_b32 s42, {soff}, 0x7f000000')
    c(f'buffer_store_dword v7, v6, {WSR}, s42 offen{SC}')


def probe(c, a, b, mult):
    c('.p2align 8')
    c('.type probe_kernel,@function')
    c('probe_kernel:')
    c('@reset')
    c('s_cmp_ge_u32 s2, 1')
    c('s_cbranch_scc1 L_probe_exit')
    srd(c, 8, WS, WS_USED)
    c('v_lshlrev_b32 v1, 6, v0')
    c('s_waitcnt lgkmcnt(0)')
    for k, (kn, wd, op) in enumerate([(0, 0, 'min'), a, b]):
        c(f's_mov_b32 s20, {TS_OFF + kn * 65536 + wd * 4}')
        for i in range(16):
            c(f'buffer_load_dword v{8 + i}, v1, {WSR}, s20 offen')
            c('s_add_u32 s20, s20, 4096')
        for i in range(1, 16):
            c(f'v_{op}_u32 v8, v8, v{8 + i}')
        c(f'v_readlane_b32 s{30 + k}, v8, 0')
        for l in range(1, 64):
            c(f'v_readlane_b32 s21, v8, {l}')
            c(f's_{op}_u32 s{30 + k}, s{30 + k}, s21')
    c(f'''
    s_sub_u32 s32, s32, s31
    s_min_u32 s32, s32, 20000
    s_mul_i32 s32, s32, {mult}
    s_add_u32 s32, s32, 10000
    L_probe_spin:
    s_memrealtime s[22:23]
    s_waitcnt lgkmcnt(0)
    s_sub_u32 s22, s22, s30
    s_cmp_lt_u32 s22, s32
    s_cbranch_scc1 L_probe_spin
    L_probe_exit:
    s_endpgm
    ''')


def untag(ll):
    for l in ll:
        for i in l:
            i.tag = None
    return ll


def build(ts=False, opts={}):
    c = Code()
    OPT.clear()
    OPT.update(opts)
    OPT['ts'] = ts
    SLOW.clear()
    SHORT[0] = OPT.get('short', 1)
    c('.p2align 8')
    c(f'.type {KN},@function')
    c(f'{KN}:')
    if ts:
        c('s_memrealtime s[60:61]')
    c('s_cmp_lt_u32 s2, 160')
    c('s_cbranch_scc1 L_conv')
    c('s_cmp_ge_u32 s2, 256')
    c('s_cbranch_scc1 L_exit')
    if OPT.get('codepf', 1):
        c(f'''
        s_cmp_lt_u32 s2, 240
        s_cbranch_scc1 L_side
        s_getpc_b64 s[34:35]
        L_pc:
        s_and_b32 s36, s2, 8
        s_lshl_b32 s36, s36, 12
        v_lshl_add_u32 v1, v0, 7, s36
        v_min_u32 v2, L_code_end-L_pc-4, v1
        v_mov_b32 v3, s35
        v_add_co_u32 v2, vcc, s34, v2
        v_addc_co_u32 v3, vcc, 0, v3, vcc
        global_load_dword v250, v[2:3], off
        ''')
    c('s_branch L_side')
    c('L_conv:')
    c('@reset')
    for base, slot in ((12, A_K), (16, A_V), (20, A_SH)):
        c(f's_load_dwordx2 s[{base}:{base + 1}], s[0:1], {slot}')
    c(f'''
    s_mov_b32 s14, {NBYTES_SD}
    s_mov_b32 s15, 0x20000
    s_mov_b64 s[18:19], s[14:15]
    s_movk_i32 s22, {D * 8}
    s_mov_b32 s23, s15
    ''')
    ids(c)
    conv_ids(c)
    p0_kv_load(c, 's[12:15]', 's[16:19]', 's[20:23]')
    srd(c, 24, A_SSMK, NBYTES_SD)
    srd(c, 28, A_SSMD, D * 2)
    srd(c, 8, WS, WS_USED)
    srd(c, 48, OUT, NBYTES_SD)
    srd(c, 52, DBG, 256)
    c('s_mov_b32 s59, 0xffff0000')
    stamp_begin(c, ts)
    c.extend(mark(1))
    p23_ids(c)
    late = p1_k_load(c, 's[24:27]', 's[28:31]')
    srd(c, 44, B_WD, D * F * 2)
    wd_setup(c)
    WDL = OPT.get('wdl', 0)
    if WDL:
        late += wd_loads('s[44:47]')
    else:
        c.extend(sum(wd_loads('s[44:47]'), []))
    for k in range(OPT.get('le', 0)):
        c.extend(late.pop(0))
    p0_kv(c, late)
    assert not late
    go_addr(c, 'v122')
    c.add(poll_load('v123', 'v122', DBGS, '0'))
    WDS = OPT.get('wds', 0)
    if WDS < 0:
        c.extend(wd_reads() + wd_stores())
    c.extend(mark(2))
    flag_regs(c, vOOB, vFV)
    c(f'''
    s_lshl_b32 s37, {sSG}, 2
    s_add_u32 s35, s37, {sWAVE}
    s_lshl_b32 s35, s35, 4
    s_add_u32 s35, s35, {sIDX}
    s_mul_i32 s35, s35, {FSP}
    s_add_u32 s35, s35, {F1_OFF}
    s_lshr_b32 s36, {sIDX}, 2
    s_add_u32 s36, s36, s37
    s_mul_i32 s36, s36, {16 * FSP}
    s_add_u32 s36, s36, {F1_OFF}
    ''')
    p23_scalars(c)
    c.extend(poll_check('go_c', 'v123', 'v122', DBGS, '0', 1))
    c('@vm ust')
    c(f'buffer_store_dword {vFV}, {vOOB}, {WSR}, s35 offen{SC}')
    c.extend(mark(3))
    if WDS >= 0:
        c.extend(wd_reads() + ([] if WDS else wd_stores()))
    p1_k(c)
    c(f'''
    v_and_b32 v8, 15, v0
    v_mul_u32_u24 v8, {FSP}, v8
    s_mul_i32 s46, s34, {FSP}
    s_add_u32 s46, s46, {F2_OFF}
    s_add_u32 s41, {sWAVE}, 2
    s_mul_i32 s41, s41, {160 * FSP}
    s_add_u32 s41, s41, s46
    s_sub_u32 s40, s46, {F2_OFF - FD_OFF}
    ''')
    fa_addr(c, 'v138', 'v139')
    fw_addr(c, 'v140')
    f2_addr(c, 'v142')
    c(f'''
    s_cmp_ge_u32 {sWAVE}, 1
    s_cselect_b32 s46, 0x70000000, s46
    s_cselect_b32 s40, 0x70000000, s40
    s_waitcnt lgkmcnt(0)
    s_cbranch_scc1 L_s1_ok
    ''')
    c.add(poll_load('v9', 'v8', WSR, 's36'))
    c.extend(poll_check('s1', 'v9', 'v8', WSR, 's36', 1, OPT.get('s1sleep', 0)))
    c('s_waitcnt vmcnt(0)')
    c('s_barrier')
    c.extend(mark(4))
    p1_load_u(c)
    c.add(poll_load('v139', 'v138', WSR, 's47'))
    fdpost = [Ins(f'buffer_store_dword {vFV}, {vOOB}, {WSR}, s40 offen{SC}')]
    c.extend(wd_stores() if WDS > 0 else fdpost)
    fd_addr(c, 'v128')
    FA, FD, FP, WP = OPT.get('fa', 28), OPT.get('fd', 125), OPT.get('fp', 250), OPT.get('wp', 32)
    inj = [(0, mark(5)), (FA, poll_check('fa', 'v139', 'v138', WSR, 's47', 1, 2)), (FD, poll_check('fd_c', 'v129', 'v128', WSR, 's58', 1, 2))]
    if WDS > 0:
        inj.append((WDS, [Ins('@vm wds'), Ins('s_barrier')] + fdpost))
    if OPT.get('mk1'):
        inj += [(p, mark(k)) for k, p in ((10, 96), (11, 192), (12, 287))]
    if OPT.get('mk23') == 4:
        inj += [(26 * k + 1, mark(k + 1, True)) for k in range(12)]
    polls = [(FD - 40, FD - 30, [poll_load('v129', 'v128', WSR, 's58')]), (FP, FP + 8, [poll_load('v141', 'v140', WSR, 's57')])]
    sj = [(FA + 2, 200, l) for l in p1_load_x()]
    sj += [(FD + 2, 287, l) for l in untag([p3_wload(j) for j in range(WP)])]
    p1_main(c, inj, [polls, sj])
    fl3 = f'buffer_store_dword {vFV}, {vOOB}, {WSR}, s41 offen{SC}'
    first = 's_waitcnt vmcnt(0)\n' + fl3
    c.extend(poll_check('fw_c', 'v141', 'v140', WSR, 's57', 1, 4, first=first))
    G1, G2, GI = OPT.get('g1', 2), OPT.get('g2', 5), OPT.get('gi', 7)
    for g in range(G1):
        c.extend(sum(untag(p2_dma(g)), []))
    c.extend(p23_vectors())
    c('@vm hst3')
    c(fl3)
    c('s_branch L_ring')
    c('L_side:')
    c('@reset')
    srd(c, 12, A_Q, NBYTES_SD)
    srd(c, 16, B_WG, D * F * 2)
    srd(c, 20, B_WU, D * F * 2)
    srd(c, 8, WS, WS_USED)
    srd(c, 48, OUT, NBYTES_SD)
    srd(c, 52, DBG, 256)
    ids(c)
    c('s_mov_b32 s59, 0xffff0000')
    stamp_begin(c, ts)
    flag_regs(c, 'v6', 'v7')
    go_addr(c, 'v122')
    c(f's_cmp_ge_u32 {sSLOT}, 28')
    c('s_cbranch_scc1 L_side2')
    N1 = OPT.get('n1', 3)
    N2 = (40 - 8 * N1) // 4
    c(f'''
    s_sub_u32 s56, s2, 160
    s_sub_u32 s43, {sSLOT}, 20
    s_mov_b32 s7, {sXCD}
    s_mul_i32 s6, s7, {N1}
    ''')

    def mid1():
        side_w1(c, 's43', 's6', 's7', N1, 0, 1)
        c.extend(poll_check('go_a', 'v123', 'v122', DBGS, '0', 1, 4))
        wg_flag(c, 's56', '')
        c.extend(mark(1))
    W1AT = OPT.get('w1at', 2)
    p0_x(c, 's[12:15]', 's56', lambda k: side_w1_load(c, 's[16:19]', 's[20:23]', 's43', 's6', N1, 0, -1, None) if k == W1AT else None)
    c.add(poll_load('v123', 'v122', DBGS, '0'))
    c(f's_mul_i32 s56, s56, {FSP}')
    c(f's_add_u32 s56, s56, {FX_OFF}')
    if W1AT == 2:
        side_w1_load(c, 's[16:19]', 's[20:23]', 's43', 's6', N1, 0, OPT.get('w1pre', 1), mid1)
    else:
        mid1()
    side_w1(c, 's43', 's6', 's7', N1, 0, 2)
    c('s_branch L_w1_done')
    c('L_side2:')
    c('@reset')
    c('s_waitcnt lgkmcnt(0)')
    c(f'''
    s_sub_u32 s56, s2, 224
    s_lshl_b32 s45, s56, 2
    s_add_u32 s45, s45, {sWAVE}
    s_lshl_b32 s45, s45, 12
    s_add_u32 s45, s45, {FL_OFF}
    s_lshl_b32 s58, s56, 5
    s_cmp_eq_u32 {sWAVE}, 0
    s_cselect_b32 s58, s58, 0x70000000
    s_cmp_lt_u32 s56, 8
    s_cselect_b32 s45, s45, 0x70000000
    v_lshlrev_b32 v14, 4, v0
    v_mov_b32 v200, 0
    v_mov_b32 v201, 0
    v_mov_b32 v202, 0
    v_mov_b32 v203, 0
    ''')
    for k in range(4):
        c(f'buffer_store_dwordx4 v[200:203], v14, {WSR}, s45 offen offset:{1024 * k}{SC}', 'za')
    c(f'''
    s_and_b32 s43, {sXCD}, 1
    s_lshl_b32 s43, s43, 2
    s_add_u32 s43, s43, {sSLOT}
    s_sub_u32 s43, s43, 28
    s_lshr_b32 s7, {sXCD}, 1
    s_mul_i32 s6, s7, {N2}
    s_add_u32 s6, s6, {8 * N1}
    s_lshl_b32 s57, s7, 1
    s_add_u32 s57, s57, 8
    s_add_u32 s7, s7, 8
    ''')

    def mid2():
        side_w1(c, 's43', 's6', 's57', N2, 1, 1)
        c('@vm za')
        c('s_barrier')
        c(f'buffer_store_dword v7, v6, {DBGS}, s58 offen{SC}')
        c.extend(mark(1))
    side_w1_load(c, 's[16:19]', 's[20:23]', 's43', 's6', N2, 1, OPT.get('w2pre', 2), mid2)
    side_w1(c, 's43', 's6', 's57', N2, 1, 2)
    c('L_w1_done:')
    c('@reset')
    c.add(poll_load('v123', 'v122', DBGS, '0'))
    c(f'''
    s_lshl_b32 s56, s43, 4
    s_add_u32 s56, s56, s7
    s_mul_i32 s56, s56, {FSP}
    s_add_u32 s56, s56, {FW1_OFF}
    ''')
    p23_ids(c)
    p23_scalars(c)
    fw_addr(c, 'v8')
    f2_addr(c, 'v142')
    c(f'''
    v_lshlrev_b32 v1, 4, v0
    v_mul_u32_u24 v13, {FSP}, v0
    s_mov_b32 s47, {FX_OFF}
    ''')
    flag_regs(c, vOOB, vFV)
    c.extend(poll_check('go_b', 'v123', 'v122', DBGS, '0', 1, 4))
    wg_flag(c, 's56')
    c.extend(mark(2))
    c.extend(p23_vectors())
    fd_addr(c, 'v10')
    c.add(poll_load('v11', 'v10', WSR, 's58'))
    c.extend(poll_check('fd_s', 'v11', 'v10', WSR, 's58', 1, 8))
    for j in range(WP):
        c.extend(untag([p3_wload(j)])[0])
    c(f's_cmp_lg_u32 {sWAVE}, 0')
    c('s_cbranch_scc1 L_fw_s_ok')
    c.add(poll_load('v14', 'v13', WSR, 's47'))
    c.add(poll_load('v9', 'v8', WSR, 's57'))
    c.extend(poll_check('fx_s', 'v14', 'v13', WSR, 's47', 1, 8))
    c.extend(poll_check('fw_s', 'v9', 'v8', WSR, 's57', 1, 8))
    c('s_barrier')
    c.extend(mark(3))
    for g in range(GI):
        if g == G1:
            c('L_ring:')
            c('@reset')
        if g == 5:
            c('s_barrier')
        if g == G2:
            c.add(poll_load('v11', 'v142', WSR, 's14'))
        for l in p2_dma(g):
            l[-1].tag = f'sg{g}'
            c.extend(l)
    if G2 == GI:
        c.add(poll_load('v11', 'v142', WSR, 's14'))
    c.extend(poll_check('s2', 'v11', 'v142', WSR, 's14', 1, OPT.get('s2sleep', 2)))
    c('s_barrier')
    c.extend([] if OPT.get('mk1') else mark(7))
    p23_main(c, 's', G2, WP, GI)
    c('L_end:')
    c('@reset')
    stamp_end(c, ts, 0)
    if OPT.get('spin100'):
        c('''
        L_sp100:
        s_memrealtime s[22:23]
        s_waitcnt lgkmcnt(0)
        s_sub_u32 s22, s22, s60
        s_cmp_lt_u32 s22, 10000
        s_cbranch_scc1 L_sp100
        ''')
    c('L_exit:')
    c('s_endpgm')
    c.extend(SLOW)
    c('L_code_end:')
    prb = OPT.get('prb')
    if prb is not None:
        probe(c, (0, 0, 'min'), (0, prb, 'max'), 10)
    st = {}
    body = text_of(finalize(c.ins, st))
    print(st, file=sys.stderr)
    out = HEADER
    if prb is not None:
        out += f'; @launch kernel={KN} grid=(256,1,1) block=(256,1,1) lds={LDS_TOTAL}\n'
        out += '; @launch kernel=probe_kernel grid=(1,1,1) block=(64,1,1) lds=0\n'
    else:
        out += f'; @launch grid=(256,1,1) block=(256,1,1) lds={LDS_TOTAL}\n'
    out += f'.amdgcn_target "amdgcn-amd-amdhsa--gfx950"\n.text\n.globl {KN}\n'
    out += body + '\n.section .rodata,"a"\n'
    out += '.p2align 6\n' + desc(KN, 512, 256) + '\n'
    if prb is not None:
        out += '.p2align 6\n' + desc('probe_kernel', 32, 32) + '\n'
    return out


if __name__ == '__main__':
    import argparse
    ap = argparse.ArgumentParser()
    ap.add_argument('-o', default='cdna_kernels/%s.s' % NAME)
    ap.add_argument('--ts', action='store_true')
    ap.add_argument('--opt', nargs='*', default=[])
    a = ap.parse_args()
    opts = {}
    for kv in a.opt:
        k, _, v = kv.partition('=')
        opts[k] = int(v) if v else 1
    open(a.o, 'w').write(build(a.ts, opts))
```

```python
import sys
from asmlib import *
from phases import *
import phases

NAME = 'sequential_preLN__ssm_conv_h3__glu_gated_glu__prompt'
KN = NAME + '_kernel'
HEADER = open('cdna_kernels/%s.s.ref' % NAME).read().split('; Override launch')[0]


def stamp_begin(c, ts):
    if ts:
        for k in range(1, 13):
            c(f's_mov_b32 s{60 + 2 * k}, 0')
        c('s_memtime s[86:87]')


def stamp_end(c, ts, k):
    if ts:
        c(f'''
        s_waitcnt vmcnt(0) lgkmcnt(0)
        s_memrealtime s[90:91]
        s_memtime s[88:89]
        s_lshl_b32 s34, s2, 2
        s_add_u32 s34, s34, {sWAVE}
        s_lshl_b32 s34, s34, 6
        s_add_u32 s34, s34, {TS_OFF + k * 65536}
        s_waitcnt lgkmcnt(0)
        ''')
        for j in range(16):
            c(f'v_mov_b32 v{j}, s{60 + 2 * j}')
        c('v_mov_b32 v16, 0')
        c('s_mov_b64 exec, 1')
        for j in range(4):
            c(f'buffer_store_dwordx4 v[{4 * j}:{4 * j + 3}], v16, {WSR}, s34 offen offset:{16 * j}')


def desc(name, vgpr, accum):
    return f'''.amdhsa_kernel {name}
  .amdhsa_next_free_vgpr {vgpr}
  .amdhsa_next_free_sgpr 102
  .amdhsa_accum_offset {accum}
  .amdhsa_group_segment_fixed_size 0
  .amdhsa_kernarg_size 104
  .amdhsa_user_sgpr_count 2
  .amdhsa_user_sgpr_kernarg_segment_ptr 1
  .amdhsa_system_sgpr_workgroup_id_x 1
  .amdhsa_float_denorm_mode_32 3
.end_amdhsa_kernel'''


def go_addr(c, va):
    c(f'v_and_b32 {va}, 7, v0')
    c(f'v_lshlrev_b32 {va}, 5, {va}')


def wg_flag(c, soff, wait='s_waitcnt vmcnt(0)'):
    c(wait)
    c('s_barrier')
    c(f's_cmp_eq_u32 {sWAVE}, 0')
    c(f's_cselect_b32 s42, {soff}, 0x7f000000')
    c(f'buffer_store_dword v7, v6, {WSR}, s42 offen{SC}')


def probe(c, a, b, mult, rng=(0, 16), raw=False):
    c('.p2align 8')
    c('.type probe_kernel,@function')
    c('probe_kernel:')
    c('@reset')
    c('s_cmp_ge_u32 s2, 1')
    c('s_cbranch_scc1 L_probe_exit')
    srd(c, 8, WS, WS_USED)
    c('v_lshlrev_b32 v1, 6, v0')
    c('s_waitcnt lgkmcnt(0)')
    for k, (kn, wd, op) in enumerate([(0, 0, 'min'), a, b]):
        c(f's_mov_b32 s20, {TS_OFF + kn * 65536 + wd * 4}')
        for i in range(16):
            c(f'buffer_load_dword v{8 + i}, v1, {WSR}, s20 offen')
            c('s_add_u32 s20, s20, 4096')
        lo, hi = rng if k == 2 else (0, 16)
        if lo:
            c(f'v_mov_b32 v8, v{8 + lo}')
        for i in range(lo + 1, hi):
            c(f'v_{op}_u32 v8, v8, v{8 + i}')
        c(f'v_readlane_b32 s{30 + k}, v8, 0')
        for l in range(1, 64):
            c(f'v_readlane_b32 s21, v8, {l}')
            c(f's_{op}_u32 s{30 + k}, s{30 + k}, s21')
    c(f'''
    {'s_mul_i32 s32, s32, 100' if raw else 's_sub_u32 s32, s32, s31'}
    s_min_u32 s32, s32, 20000
    s_mul_i32 s32, s32, {mult}
    s_add_u32 s32, s32, 10000
    L_probe_spin:
    s_memrealtime s[22:23]
    s_waitcnt lgkmcnt(0)
    s_sub_u32 s22, s22, s30
    s_cmp_lt_u32 s22, s32
    s_cbranch_scc1 L_probe_spin
    L_probe_exit:
    s_endpgm
    ''')


def untag(ll):
    for l in ll:
        for i in l:
            i.tag = None
    return ll


def build(ts=False, opts={}):
    c = Code()
    OPT.clear()
    OPT.update(opts)
    OPT['ts'] = ts
    SLOW.clear()
    SHORT[0] = OPT.get('short', 1)
    c('.p2align 8')
    c(f'.type {KN},@function')
    c(f'{KN}:')
    if ts:
        c('s_memrealtime s[60:61]')
    c('s_cmp_lt_u32 s2, 160')
    c('s_cbranch_scc1 L_conv')
    c('s_cmp_ge_u32 s2, 256')
    c('s_cbranch_scc1 L_exit')
    if OPT.get('codepf', 1):
        c(f'''
        s_cmp_lt_u32 s2, 240
        s_cbranch_scc1 L_side
        s_getpc_b64 s[34:35]
        L_pc:
        s_and_b32 s36, s2, 8
        s_lshl_b32 s36, s36, 12
        v_lshl_add_u32 v1, v0, 7, s36
        v_min_u32 v2, L_code_end-L_pc-4, v1
        v_mov_b32 v3, s35
        v_add_co_u32 v2, vcc, s34, v2
        v_addc_co_u32 v3, vcc, 0, v3, vcc
        global_load_dword v250, v[2:3], off
        ''')
    c('s_branch L_side')
    c('L_conv:')
    c('@reset')
    for base, slot in ((12, A_K), (16, A_V), (20, A_SH)):
        c(f's_load_dwordx2 s[{base}:{base + 1}], s[0:1], {slot}')
    c(f'''
    s_mov_b32 s14, {NBYTES_SD}
    s_mov_b32 s15, 0x20000
    s_mov_b64 s[18:19], s[14:15]
    s_movk_i32 s22, {D * 8}
    s_mov_b32 s23, s15
    ''')
    ids(c)
    conv_ids(c)
    p0_kv_load(c, 's[12:15]', 's[16:19]', 's[20:23]')
    srd(c, 24, A_SSMK, NBYTES_SD)
    srd(c, 28, A_SSMD, D * 2)
    srd(c, 8, WS, WS_USED)
    srd(c, 48, OUT, NBYTES_SD)
    srd(c, 52, DBG, 256)
    c('s_mov_b32 s59, 0xffff0000')
    stamp_begin(c, ts)
    c.extend(mark(1))
    p23_ids(c)
    late = p1_k_load(c, 's[24:27]', 's[28:31]')
    srd(c, 44, B_WD, D * F * 2)
    wd_setup(c)
    WDL = OPT.get('wdl', 0)
    if WDL:
        late += wd_loads('s[44:47]')
    else:
        c.extend(sum(wd_loads('s[44:47]'), []))
    for k in range(OPT.get('le', 0)):
        c.extend(late.pop(0))
    p0_kv(c, late)
    assert not late
    go_addr(c, 'v122')
    c.add(poll_load('v123', 'v122', DBGS, '0'))
    WDS = OPT.get('wds', 0)
    if WDS < 0:
        c.extend(wd_reads() + wd_stores())
    c.extend(mark(2))
    flag_regs(c, vOOB, vFV)
    c(f'''
    s_lshl_b32 s37, {sSG}, 2
    s_add_u32 s35, s37, {sWAVE}
    s_lshl_b32 s35, s35, 4
    s_add_u32 s35, s35, {sIDX}
    s_mul_i32 s35, s35, {FSP}
    s_add_u32 s35, s35, {F1_OFF}
    s_lshr_b32 s36, {sIDX}, 2
    s_add_u32 s36, s36, s37
    s_mul_i32 s36, s36, {16 * FSP}
    s_add_u32 s36, s36, {F1_OFF}
    ''')
    p23_scalars(c)
    c.extend(poll_check('go_c', 'v123', 'v122', DBGS, '0', 1))
    c('@vm ust')
    c(f'buffer_store_dword {vFV}, {vOOB}, {WSR}, s35 offen{SC}')
    c.extend(mark(3))
    if WDS >= 0:
        c.extend(wd_reads() + ([] if WDS else wd_stores()))
    p1_k(c)
    c(f'''
    v_and_b32 v8, 15, v0
    v_mul_u32_u24 v8, {FSP}, v8
    s_mul_i32 s46, s34, {FSP}
    s_add_u32 s46, s46, {F2_OFF}
    s_add_u32 s41, {sWAVE}, 2
    s_mul_i32 s41, s41, {160 * FSP}
    s_add_u32 s41, s41, s46
    s_sub_u32 s40, s46, {F2_OFF - FD_OFF}
    ''')
    fa_addr(c, 'v138', 'v139')
    fw_addr(c, 'v140')
    f2_addr(c, 'v142')
    c(f'''
    s_cmp_ge_u32 {sWAVE}, 1
    s_cselect_b32 s46, 0x70000000, s46
    s_cselect_b32 s40, 0x70000000, s40
    s_waitcnt lgkmcnt(0)
    s_cbranch_scc1 L_s1_ok
    ''')
    c.add(poll_load('v9', 'v8', WSR, 's36'))
    c.extend(poll_check('s1', 'v9', 'v8', WSR, 's36', 1, OPT.get('s1sleep', 0)))
    c('s_waitcnt vmcnt(0)')
    c('s_barrier')
    c.extend(mark(4))
    p1_load_u(c)
    c.add(poll_load('v139', 'v138', WSR, 's47'))
    fdpost = [Ins(f'buffer_store_dword {vFV}, {vOOB}, {WSR}, s40 offen{SC}')]
    c.extend(wd_stores() if WDS > 0 else fdpost)
    fd_addr(c, 'v128')
    FA, FD, FP, WP = OPT.get('fa', 28), OPT.get('fd', 125), OPT.get('fp', 250), OPT.get('wp', 32)
    inj = [(0, mark(5)), (FA, poll_check('fa', 'v139', 'v138', WSR, 's47', 1, 2)), (FD, poll_check('fd_c', 'v129', 'v128', WSR, 's58', 1, 2))]
    if WDS > 0:
        inj.append((WDS, [Ins('@vm wds'), Ins('s_barrier')] + fdpost))
    if OPT.get('mk1'):
        inj += [(p, mark(k)) for k, p in ((10, 96), (11, 192), (12, 287))]
    if OPT.get('mk23') == 4:
        inj += [(26 * k + 1, mark(k + 1, True)) for k in range(12)]
    polls = [(FD - 40, FD - 30, [poll_load('v129', 'v128', WSR, 's58')]), (FP, FP + 8, [poll_load('v141', 'v140', WSR, 's57')])]
    sj = [(FA + 2, 200, l) for l in p1_load_x()]
    sj += [(FD + 2, 287, l) for l in untag([p3_wload(j) for j in range(WP)])]
    p1_main(c, inj, [polls, sj])
    fl3 = f'buffer_store_dword {vFV}, {vOOB}, {WSR}, s41 offen{SC}'
    first = 's_waitcnt vmcnt(0)\n' + fl3
    c.extend(poll_check('fw_c', 'v141', 'v140', WSR, 's57', 1, 4, first=first))
    G1, G2, GI = OPT.get('g1', 2), OPT.get('g2', 5), OPT.get('gi', 7)
    for g in range(G1):
        c.extend(sum(untag(p2_dma(g)), []))
    c.extend(p23_vectors())
    c('@vm hst3')
    c(fl3)
    c('s_branch L_ring')
    c('L_side:')
    c('@reset')
    srd(c, 12, A_Q, NBYTES_SD)
    srd(c, 16, B_WG, D * F * 2)
    srd(c, 20, B_WU, D * F * 2)
    srd(c, 8, WS, WS_USED)
    srd(c, 48, OUT, NBYTES_SD)
    srd(c, 52, DBG, 256)
    ids(c)
    c('s_mov_b32 s59, 0xffff0000')
    stamp_begin(c, ts)
    flag_regs(c, 'v6', 'v7')
    go_addr(c, 'v122')
    c(f's_cmp_ge_u32 {sSLOT}, 28')
    c('s_cbranch_scc1 L_side2')
    N1 = OPT.get('n1', 3)
    N2 = (40 - 8 * N1) // 4
    c(f'''
    s_sub_u32 s56, s2, 160
    s_sub_u32 s43, {sSLOT}, 20
    s_mov_b32 s7, {sXCD}
    s_mul_i32 s6, s7, {N1}
    ''')

    def mid1():
        side_w1(c, 's43', 's6', 's7', N1, 0, 1)
        c.extend(poll_check('go_a', 'v123', 'v122', DBGS, '0', 1, 4))
        wg_flag(c, 's56', '')
        c.extend(mark(1))
    W1AT = OPT.get('w1at', 2)
    p0_x(c, 's[12:15]', 's56', lambda k: side_w1_load(c, 's[16:19]', 's[20:23]', 's43', 's6', N1, 0, -1, None) if k == W1AT else None)
    c.add(poll_load('v123', 'v122', DBGS, '0'))
    c(f's_mul_i32 s56, s56, {FSP}')
    c(f's_add_u32 s56, s56, {FX_OFF}')
    if W1AT == 2:
        side_w1_load(c, 's[16:19]', 's[20:23]', 's43', 's6', N1, 0, OPT.get('w1pre', 1), mid1)
    else:
        mid1()
    side_w1(c, 's43', 's6', 's7', N1, 0, 2)
    c('s_branch L_w1_done')
    c('L_side2:')
    c('@reset')
    c('s_waitcnt lgkmcnt(0)')
    c(f'''
    s_sub_u32 s56, s2, 224
    s_lshl_b32 s45, s56, 2
    s_add_u32 s45, s45, {sWAVE}
    s_lshl_b32 s45, s45, 12
    s_add_u32 s45, s45, {FL_OFF}
    s_lshl_b32 s58, s56, 5
    s_cmp_eq_u32 {sWAVE}, 0
    s_cselect_b32 s58, s58, 0x70000000
    s_cmp_lt_u32 s56, 8
    s_cselect_b32 s45, s45, 0x70000000
    v_lshlrev_b32 v14, 4, v0
    v_mov_b32 v200, 0
    v_mov_b32 v201, 0
    v_mov_b32 v202, 0
    v_mov_b32 v203, 0
    ''')
    for k in range(4):
        c(f'buffer_store_dwordx4 v[200:203], v14, {WSR}, s45 offen offset:{1024 * k}{SC}', 'za')
    c(f'''
    s_and_b32 s43, {sXCD}, 1
    s_lshl_b32 s43, s43, 2
    s_add_u32 s43, s43, {sSLOT}
    s_sub_u32 s43, s43, 28
    s_lshr_b32 s7, {sXCD}, 1
    s_mul_i32 s6, s7, {N2}
    s_add_u32 s6, s6, {8 * N1}
    s_lshl_b32 s57, s7, 1
    s_add_u32 s57, s57, 8
    s_add_u32 s7, s7, 8
    ''')

    def mid2():
        side_w1(c, 's43', 's6', 's57', N2, 1, 1)
        c('@vm za')
        c('s_barrier')
        c(f'buffer_store_dword v7, v6, {DBGS}, s58 offen{SC}')
        c.extend(mark(1))
    side_w1_load(c, 's[16:19]', 's[20:23]', 's43', 's6', N2, 1, OPT.get('w2pre', 2), mid2)
    side_w1(c, 's43', 's6', 's57', N2, 1, 2)
    c('L_w1_done:')
    c('@reset')
    c.add(poll_load('v123', 'v122', DBGS, '0'))
    c(f'''
    s_lshl_b32 s56, s43, 4
    s_add_u32 s56, s56, s7
    s_mul_i32 s56, s56, {FSP}
    s_add_u32 s56, s56, {FW1_OFF}
    ''')
    p23_ids(c)
    p23_scalars(c)
    fw_addr(c, 'v8')
    f2_addr(c, 'v142')
    c(f'''
    v_lshlrev_b32 v1, 4, v0
    v_mul_u32_u24 v13, {FSP}, v0
    s_mov_b32 s47, {FX_OFF}
    ''')
    flag_regs(c, vOOB, vFV)
    c.extend(poll_check('go_b', 'v123', 'v122', DBGS, '0', 1, 4))
    wg_flag(c, 's56')
    c.extend(mark(2))
    c.extend(p23_vectors())
    fd_addr(c, 'v10')
    c.add(poll_load('v11', 'v10', WSR, 's58'))
    c.extend(poll_check('fd_s', 'v11', 'v10', WSR, 's58', 1, 8))
    for j in range(WP):
        c.extend(untag([p3_wload(j)])[0])
    c(f's_cmp_lg_u32 {sWAVE}, 0')
    c('s_cbranch_scc1 L_fw_s_ok')
    c.add(poll_load('v14', 'v13', WSR, 's47'))
    c.add(poll_load('v9', 'v8', WSR, 's57'))
    c.extend(poll_check('fx_s', 'v14', 'v13', WSR, 's47', 1, 8))
    c.extend(poll_check('fw_s', 'v9', 'v8', WSR, 's57', 1, 8))
    c('s_barrier')
    c.extend(mark(3))
    for g in range(GI):
        if g == G1:
            c('L_ring:')
            c('@reset')
        if g == 5:
            c('s_barrier')
        if g == G2:
            c.add(poll_load('v11', 'v142', WSR, 's14'))
        for l in p2_dma(g):
            l[-1].tag = f'sg{g}'
            c.extend(l)
    if G2 == GI:
        c.add(poll_load('v11', 'v142', WSR, 's14'))
    c.extend(poll_check('s2', 'v11', 'v142', WSR, 's14', 1, OPT.get('s2sleep', 2)))
    c('s_barrier')
    c.extend([] if OPT.get('mk1') else mark(7))
    p23_main(c, 's', G2, WP, GI)
    c('L_end:')
    c('@reset')
    stamp_end(c, ts, 0)
    if OPT.get('spin100'):
        c('''
        L_sp100:
        s_memrealtime s[22:23]
        s_waitcnt lgkmcnt(0)
        s_sub_u32 s22, s22, s60
        s_cmp_lt_u32 s22, 10000
        s_cbranch_scc1 L_sp100
        ''')
    c('L_exit:')
    c('s_endpgm')
    c.extend(SLOW)
    c('L_code_end:')
    prb = OPT.get('prb')
    if prb is not None:
        probe(c, (0, 0, 'min'), (0, prb % 16, 'min' if OPT.get('pmin') else 'max'), 10, [(0, 16), (0, 10), (10, 14), (14, 16)][prb // 16], OPT.get('raw'))
    st = {}
    body = text_of(finalize(c.ins, st))
    print(st, file=sys.stderr)
    out = HEADER
    if prb is not None:
        out += f'; @launch kernel={KN} grid=(256,1,1) block=(256,1,1) lds={LDS_TOTAL}\n'
        out += '; @launch kernel=probe_kernel grid=(1,1,1) block=(64,1,1) lds=0\n'
    else:
        out += f'; @launch grid=(256,1,1) block=(256,1,1) lds={LDS_TOTAL}\n'
    out += f'.amdgcn_target "amdgcn-amd-amdhsa--gfx950"\n.text\n.globl {KN}\n'
    out += body + '\n.section .rodata,"a"\n'
    out += '.p2align 6\n' + desc(KN, 512, 256) + '\n'
    if prb is not None:
        out += '.p2align 6\n' + desc('probe_kernel', 32, 32) + '\n'
    return out


if __name__ == '__main__':
    import argparse
    ap = argparse.ArgumentParser()
    ap.add_argument('-o', default='cdna_kernels/%s.s' % NAME)
    ap.add_argument('--ts', action='store_true')
    ap.add_argument('--opt', nargs='*', default=[])
    a = ap.parse_args()
    opts = {}
    for kv in a.opt:
        k, _, v = kv.partition('=')
        opts[k] = int(v) if v else 1
    open(a.o, 'w').write(build(a.ts, opts))
```

```python
import sys
from asmlib import *

S, D, F = 2048, 640, 1728
NBYTES_SD = S * D * 2
U_OFF = 0
X4_OFF = U_OFF + NBYTES_SD
H4_OFF = X4_OFF + NBYTES_SD
ST_OFF = H4_OFF + NBYTES_SD
W1_OFF = ST_OFF + 65536
WD_OFF = W1_OFF + 16 * 288 * 1024
HH_OFF = WD_OFF + 8 * 56 * 5 * 1024
FL_OFF = HH_OFF + 128 * 57344
FSP = 128
F1_OFF = FL_OFF
FX_OFF = F1_OFF + 640 * FSP
FW1_OFF = FX_OFF + 64 * FSP
FD_OFF = FW1_OFF + 128 * FSP
assert FD_OFF + 160 * FSP <= FL_OFF + 131072
F3_OFF = FL_OFF + 131072
F2_OFF = F3_OFF + 1024 * FSP
assert F2_OFF + 960 * FSP <= F3_OFF + 262144
TS_OFF = F3_OFF + 262144
WS_USED = TS_OFF + 262144

A_Q, A_K, A_V, A_SH, A_SSMK, A_SSMD, B_X, B_WG, B_WU, B_WD, OUT, DBG, WS = [8 * i for i in range(13)]

WSR = 's[8:11]'
sWAVE = 's33'
sXCD, sSLOT = 's4', 's5'
sSG, sIDX = 's6', 's7'
ONES = 0x3f803f80
OUTS, DBGS = 's[48:51]', 's[52:55]'
sP2W, sP2L, sP2T, sP3W = 's92', 's93', 's94', 's95'
sMT, sNI, sMT64, sDC = 's96', 's97', 's98', 's99'
SC = ' sc1'
SPIN = 30000
LDS_TOTAL = 163840

NB1 = 2
BLK_ORDER = [6, 0, 1, 2, 3, 4, 5]


OPT = {}
SLOW = []


def nwb():
    return OPT.get('nwb', 10)


def mark(k, p23=False):
    if not OPT.get('ts') or OPT.get('nomk') or (OPT.get('mk23') and not p23):
        return []
    return [Ins(f's_mem{"" if OPT.get("cyc") else "real"}time s[{60 + 2 * k}:{61 + 2 * k}]')]


def mark1(k):
    return mark(k) if OPT.get('mk1') else []


def w1_slot(bi, ks, m=0):
    if bi < 2:
        return 4 * ks + 2 * bi + m if ks < 20 else 80 + bi
    return 82 + 41 * (bi - 2) + 2 * ks + m


def w1_seq(b, ks, m=0):
    return w1_slot(BLK_ORDER.index(b), ks, m)


def srd(c, base, slot, nbytes):
    c(f's_load_dwordx2 s[{base}:{base + 1}], s[0:1], {slot}')
    c(f's_mov_b32 s{base + 2}, {nbytes}')
    c(f's_mov_b32 s{base + 3}, 0x20000')


def ids(c):
    c(f'v_lshrrev_b32 v1, 6, v0')
    c(f's_and_b32 {sXCD}, s2, 7')
    c(f'v_readfirstlane_b32 {sWAVE}, v1')
    c(f's_lshr_b32 {sSLOT}, s2, 3')
    c(f'v_and_b32 v0, 63, v0')


def conv_ids(c):
    c(f'''
    s_lshr_b32 {sSG}, {sXCD}, 2
    s_add_u32 {sSG}, {sSG}, 8
    s_and_b32 {sIDX}, {sXCD}, 3
    s_lshl_b32 {sIDX}, {sIDX}, 2
    s_add_u32 {sIDX}, {sIDX}, {sSLOT}
    s_sub_u32 {sIDX}, {sIDX}, 16
    s_add_u32 s34, {sXCD}, {OPT.get('rot', 7)}
    s_and_b32 s34, s34, 7
    s_cmp_lt_u32 {sSLOT}, 16
    s_cselect_b32 {sSG}, s34, {sSG}
    s_cselect_b32 {sIDX}, {sSLOT}, {sIDX}
    ''')


KR, VR, CF, PP, AC, VU, OG = 8, 30, 48, 56, 66, 74, 84


def p0_kv_load(c, KS, VS, SHS):
    c(f'''
    v_lshrrev_b32 v7, 4, v0
    v_and_b32 v6, 15, v0
    s_lshl_b32 s34, {sIDX}, 2
    s_add_u32 s34, s34, {sWAVE}
    s_mul_i32 s34, s34, {32 * 1280}
    s_lshl_b32 s35, {sSG}, 7
    s_add_u32 s34, s34, s35
    v_mul_u32_u24 v1, {8 * 1280}, v7
    v_lshl_add_u32 v1, v6, 3, v1
    v_add_u32 v1, s34, v1
    v_subrev_u32 v2, 3840, v1
    s_lshl_b32 s35, {sSG}, 9
    v_lshlrev_b32 v3, 5, v6
    s_movk_i32 s36, 5120
    ''')
    c(f'buffer_load_dwordx4 {vr(CF, 4)}, v3, {SHS}, s35 offen')
    c(f'buffer_load_dwordx4 {vr(CF + 4, 4)}, v3, {SHS}, s35 offen offset:16')
    for r in range(3):
        c(f'buffer_load_dwordx2 {vr(KR + 2 * r, 2)}, v2, {KS}, 0 offen offset:{1280 * r}')
    for r in range(8):
        c(f'buffer_load_dwordx2 {vr(KR + 6 + 2 * r, 2)}, v1, {KS}, {"s36" if r >= 4 else 0} offen offset:{1280 * (r & 3)}')
    for r in range(8):
        c(f'buffer_load_dwordx2 {vr(VR + 2 * r, 2)}, v1, {VS}, {"s36" if r >= 4 else 0} offen offset:{1280 * (r & 3)}')


def p0_kv(c0, late, st=SC):
    P = PP
    c = c0
    c(f'''
    s_lshl_b32 s35, {sWAVE}, 6
    v_mul_u32_u24 v4, 1040, v6
    v_lshl_add_u32 v4, v7, 4, v4
    v_add_u32 v4, s35, v4
    s_mul_i32 s35, {sWAVE}, {4 * 1040}
    v_lshlrev_b32 v3, 4, v0
    v_add_u32 v5, s35, v3
    s_lshl_b32 s34, {sSG}, 2
    s_add_u32 s34, s34, {sWAVE}
    s_lshl_b32 s34, s34, 16
    s_lshl_b32 s35, {sIDX}, 10
    s_add_u32 s34, s34, s35
    s_mov_b32 s40, 0x05040100
    s_mov_b32 s41, 0x07060302
    ''')
    if U_OFF:
        c(f's_add_u32 s34, s34, {U_OFF}')
    kr = lambda t, dw: KR + 2 * (t + 3) + dw
    c = Code()
    KF = OPT.get('kf', 1)
    A = lambda ch: 144 + 8 * ch if KF else AC
    for part in ((0, 1) if KF else (2,)):
        for ch in range(4):
            dw, hf = ch >> 1, ch & 1
            if part != 1:
                for t in range(-2, 8):
                    c(f'v_perm_b32 v{P + t + 2}, v{kr(t - 1, dw)}, v{kr(t, dw)}, s{40 + hf}')
                for t in range(8):
                    c(f'v_dot2_f32_bf16 v{A(ch) + t}, v{P + t + 2}, v{CF + 2 * ch}, 0')
                for t in range(8):
                    c(f'v_dot2_f32_bf16 v{A(ch) + t}, v{P + t}, v{CF + 2 * ch + 1}, v{A(ch) + t}')
            if part != 0:
                for t in range(8):
                    if hf:
                        c(f'v_and_b32 v{VU + t}, 0xffff0000, v{VR + 2 * t + dw}')
                    else:
                        c(f'v_lshlrev_b32 v{VU + t}, 16, v{VR + 2 * t + dw}')
                for t in range(0, 8, 2):
                    c(f'v_pk_mul_f32 {vr(A(ch) + t, 2)}, {vr(A(ch) + t, 2)}, {vr(VU + t, 2)}')
                for p in range(4):
                    c(f'v_cvt_pk_bf16_f32 v{OG + 4 * ch + p}, v{A(ch) + p}, v{A(ch) + p + 4}')
                c(f'ds_write_b128 v4, {vr(OG + 4 * ch, 4)} offset:{256 * ch}')
    k0 = OPT.get('lk0', 120)
    step = OPT.get('lks', (166 - k0) // max(1, len(late)))
    for k, i in enumerate(c.ins):
        c0.add(i)
        if k == 10:
            c0.extend(mark1(7))
        if k == 34:
            c0.extend(mark1(8))
        if k0 and k >= k0 and (k - k0) % step == 0 and late:
            c0.extend(late.pop(0))
    c = c0
    c0.extend(mark1(9))
    c('s_waitcnt lgkmcnt(0)')
    c('s_barrier')
    for i in range(4):
        c(f'ds_read_b128 {vr(OG + 4 * i, 4)}, v5 offset:{1040 * i}')
    for i in range(4):
        c(f'buffer_store_dwordx4 {vr(OG + 4 * i, 4)}, v3, {WSR}, s34 offen{st}', 'ust')
        if i < 3:
            c('s_add_u32 s34, s34, 16384')


def ln_finish(c, s1, s2, tmp):
    c(f'v_mul_f32 v{s1}, 0xbacccccd, v{s1}')
    c(f'v_mul_f32 v{s2}, 0x3acccccd, v{s2}')
    c(f'v_fma_f32 v{s2}, -v{s1}, v{s1}, v{s2}')
    c(f'v_max_f32 v{s2}, 0, v{s2}')
    c(f'v_add_f32 v{s2}, 0x3727c5ac, v{s2}')
    c(f'v_rsq_f32 v{tmp}, v{s2}')


def p0_x(c, XS, sT, hook, st=SC):
    XR, O, A = 16, 56, 100
    c(f'''
    v_lshrrev_b32 v13, 4, v0
    v_and_b32 v12, 15, v0
    s_lshl_b32 s38, {sT}, 2
    s_add_u32 s38, s38, {sWAVE}
    s_mul_i32 s34, s38, {8 * 1280}
    s_add_u32 s35, s34, 5120
    v_mul_u32_u24 v1, 1280, v13
    v_lshl_add_u32 v1, v12, 4, v1
    ''')
    for i in range(2):
        for m in range(5):
            c(f'buffer_load_dwordx4 {vr(XR + 20 * i + 4 * m, 4)}, v1, {XS}, s{34 + i} offen offset:{256 * m}')
    c(f'''
    s_mul_i32 s36, {sWAVE}, {8 * 1296}
    v_mul_u32_u24 v2, 1296, v13
    v_lshl_add_u32 v2, v12, 4, v2
    v_add_u32 v2, s36, v2
    s_mul_i32 s36, {sWAVE}, 320
    v_mul_u32_u24 v3, 1296, v12
    v_lshl_add_u32 v3, v13, 3, v3
    v_add_u32 v3, s36, v3
    v_lshlrev_b32 v4, 4, v0
    s_add_u32 s37, s34, {X4_OFF}
    s_lshl_b32 s38, s38, 10
    s_add_u32 s38, s38, {F3_OFF}
    s_and_b32 s36, {sWAVE}, 1
    s_lshl_b32 s36, s36, 7
    s_lshr_b32 s39, {sWAVE}, 1
    s_lshl_b32 s39, s39, 3
    s_add_u32 s36, s36, s39
    v_lshlrev_b32 v5, 4, v13
    v_add_u32 v5, s36, v5
    v_lshlrev_b32 v8, 2, v0
    s_lshl_b32 s36, {sT}, 8
    s_add_u32 s36, s36, {ST_OFF}
    s_cmp_eq_u32 {sWAVE}, 0
    s_cselect_b32 s36, s36, 0x70000000
    s_mov_b32 s40, {ONES}
    v_mov_b32 v96, 0
    v_mov_b32 v97, 0
    v_mov_b32 v98, 0
    v_mov_b32 v99, 0
    buffer_store_dwordx4 v[96:99], v4, {WSR}, s38 offen{st}
    ''')
    PU = OPT.get('pu', 12)
    n = (16 - PU) * 160
    if n:
        c(f's_add_u32 s38, s38, {(H4_OFF + PU * 163840 - F3_OFF) & 0xffffffff}')
        for k in range(4):
            c(f'v_mov_b32 v{112 + k}, -1')
    for k in range(0, n, 256):
        if n - k < 256:
            c(f's_cmp_lt_u32 {sT}, {(n - k) // 4}')
            c('s_cselect_b32 s38, s38, 0x70000000')
        c(f'buffer_store_dwordx4 v[112:115], v4, {WSR}, s38 offen{st}')
        c(f's_add_u32 s38, s38, {256 * 1024}')
    hook(0)
    for i in range(2):
        for m in range(5):
            c(f'ds_write_b128 v2, {vr(XR + 20 * i + 4 * m, 4)} offset:{1296 * 4 * i + 256 * m}')
    hook(1)
    c('s_waitcnt lgkmcnt(0)')
    c('s_barrier')
    c.extend(mark1(10))
    for i in range(10):
        c(f'ds_read_b64 {vr(O + 4 * i, 2)}, v3 offset:{32 * i}')
        c(f'ds_read_b64 {vr(O + 4 * i + 2, 2)}, v3 offset:{32 * i + 16 * 1296}')
    for i in range(10):
        if i and (i & 3) == 0:
            c('s_add_u32 s37, s37, 4096')
        c(f'buffer_store_dwordx4 {vr(O + 4 * i, 4)}, v4, {WSR}, s37 offen offset:{1024 * (i & 3)}{st}')
        for r in range(4 * i, 4 * i + 4):
            k = A + 2 * (r // 20)
            c(f'v_dot2_f32_bf16 v{k}, v{XR + r}, s40, {"0" if r % 20 == 0 else "v%d" % k}')
            c(f'v_dot2_f32_bf16 v{k + 1}, v{XR + r}, v{XR + r}, {"0" if r % 20 == 0 else "v%d" % (k + 1)}')
    for sh in (8, 4, 2, 1):
        for k in range(4):
            c(f'v_add_f32_dpp v{A + k}, v{A + k}, v{A + k} row_ror:{sh} row_mask:0xf bank_mask:0xf')
    for i in range(2):
        ln_finish(c, A + 2 * i, A + 2 * i + 1, A + 8 + 2 * i)
    for i in range(2):
        c(f'v_mul_f32 v{A + 9 + 2 * i}, v{A + 2 * i}, v{A + 8 + 2 * i}')
        c(f'ds_write_b64 v5, {vr(A + 8 + 2 * i, 2)} offset:{32 * 1296 + 64 * i}')
    c('s_waitcnt lgkmcnt(0)')
    c('s_barrier')
    c(f'ds_read_b32 v10, v8 offset:{32 * 1296}')
    c(f'buffer_store_dword v10, v8, {WSR}, s36 offen{st}')
    c.extend(mark1(11))


UBS = 10368
P1_LDS = 17664 + 4 * UBS + 4 * 2048
LB1 = LDS_TOTAL - P1_LDS
assert LB1 % 256 == 0
KY0 = LB1 + 256
UB0 = LB1 + 17664
EB0 = UB0 + 4 * UBS
KT = 100
cA, cACC, cB, cXQ, cSQ, cT = 16, 80, 176, 208, 224, 240
NBUF = 8


def p1_k_load(c, KKS, DS):
    T = KT
    c(f'''
    s_lshl_b32 s34, {sSG}, 4
    s_add_u32 s34, s34, {sIDX}
    s_lshl_b32 s35, s34, 2
    s_add_u32 s35, s35, {sWAVE}
    s_lshl_b32 s38, s35, 12
    s_lshl_b32 s39, s35, 1
    v_lshlrev_b32 v1, 4, v0
    v_mov_b32 v2, 0
    ''')
    o = [[Ins(f'buffer_load_dwordx4 {vr(T + 4 * i, 4)}, v1, {KKS}, s38 offen offset:{1024 * i}')] for i in range(4)]
    o[0].insert(0, Ins(f'buffer_load_ushort v{T + 16}, v2, {DS}, s39 offen'))
    return o


def p1_k(c):
    T = KT
    c(f'''
    s_lshl_b32 s34, {sSG}, 4
    s_add_u32 s34, s34, {sIDX}
    s_mul_i32 s37, {sWAVE}, 4352
    s_and_b32 s38, {sWAVE}, 1
    s_lshl_b32 s38, s38, 5
    s_add_u32 s37, s37, s38
    s_lshr_b32 s38, {sWAVE}, 1
    s_lshl_b32 s38, s38, 7
    s_add_u32 s37, s37, s38
    s_add_u32 s37, s37, {KY0}
    s_mul_i32 s38, {sWAVE}, {UBS}
    s_add_u32 s38, s38, {UB0}
    s_lshl_b32 s39, {sWAVE}, 11
    s_add_u32 s39, s39, {EB0}
    v_lshrrev_b32 v7, 4, v0
    v_and_b32 v6, 15, v0
    v_bfe_u32 v8, v0, 2, 2
    v_and_b32 v9, 3, v0
    v_lshlrev_b32 v3, 2, v0
    v_add_u32 v10, s38, v3
    v_mov_b32 v3, 0
    v_mov_b32 v4, 0
    v_mov_b32 v5, 0
    ds_write2st64_b32 v10, v2, v2 offset0:0 offset1:5
    ds_write2st64_b32 v10, v2, v2 offset0:10 offset1:15
    v_add_u32 v11, 5248, v10
    ds_write2st64_b32 v11, v2, v2 offset0:0 offset1:5
    ds_write2st64_b32 v11, v2, v2 offset0:10 offset1:15
    v_add_u32 v12, s39, v1
    ds_write_b128 v12, v[2:5]
    s_sub_u32 s42, s37, 32
    v_add_u32 v120, s42, v1
    ds_write_b128 v120, v[2:5]
    v_add_u32 v10, 128, v10
    v_add_u32 v11, 136, v11
    v_sub_u32 v121, v9, v8
    v_lshlrev_b32 v121, 3, v121
    v_lshl_add_u32 v121, v7, 6, v121
    v_add_u32 v121, s37, v121
    ''')
    c(f'''
    v_lshlrev_b32 v14, 1, v7
    v_sub_u32 v14, v6, v14
    v_lshlrev_b32 v14, 3, v14
    v_and_b32 v13, 1, v6
    v_mul_u32_u24 v13, 5256, v13
    v_sub_u32 v14, v14, v13
    s_add_u32 s42, s38, {5248 + 64}
    v_add_u32 v14, s42, v14
    v_add_u32 v13, 16, v0
    v_subrev_u32 v15, 47, v0
    v_cmp_gt_u32 vcc, 48, v0
    v_lshlrev_b32 v2, 5, v6
    v_lshl_add_u32 v2, v7, 3, v2
    v_cndmask_b32 v13, v15, v13, vcc
    v_add_u32 v15, 64, v13
    v_add_u32 v2, s37, v2
    v_writelane_b32 v13, 64, 63
    v_writelane_b32 v15, 0, 63
    v_lshlrev_b32 v13, 4, v13
    v_lshlrev_b32 v15, 4, v15
    v_add_u32 v13, s39, v13
    v_add_u32 v15, s39, v15
    v_mul_u32_u24 v3, 4352, v8
    v_and_b32 v4, 1, v8
    v_lshl_add_u32 v3, v4, 5, v3
    v_lshrrev_b32 v4, 1, v8
    v_lshl_add_u32 v3, v4, 7, v3
    v_lshl_add_u32 v3, v7, 6, v3
    v_lshl_add_u32 v3, v9, 3, v3
    s_lshl_b32 s42, {sWAVE}, 8
    s_add_u32 s42, s42, {KY0}
    v_add_u32 v3, s42, v3
    ''')
    c(f'''
    v_lshlrev_b32 v4, 4, v6
    v_mul_u32_u24 v5, 40960, v7
    v_add_u32 v5, v5, v4
    v_lshl_add_u32 v4, v7, 10, v4
    s_lshl_b32 s43, s34, 14
    s_lshl_b32 s42, {sWAVE}, 8
    s_add_u32 s43, s43, s42
    s_mul_i32 s44, {sWAVE}, 163840
    s_lshl_b32 s42, s34, 8
    s_add_u32 s44, s44, s42
    s_lshl_b32 s45, {sWAVE}, 10
    s_add_u32 s45, s45, {ST_OFF}
    ''')
    if U_OFF:
        c(f's_add_u32 s43, s43, {U_OFF}')


def p1_k_frag(c):
    T = KT
    c(f'''
    v_lshlrev_b32 v{T + 16}, 16, v{T + 16}
    v_lshlrev_b32 v{T + 17}, 16, v{T}
    v_add_f32 v{T + 16}, v{T + 16}, v{T + 17}
    v_cvt_pk_bf16_f32 v{T + 16}, v{T + 16}, v{T + 16}
    s_mov_b64 exec, 1
    v_bfi_b32 v{T}, s59, v{T}, v{T + 16}
    s_mov_b64 exec, -1
    ''')
    for i in range(4):
        c(f'ds_write_b128 v120, {vr(T + 4 * i, 4)} offset:{32 + 1024 * i}')
    for n in range(16):
        c(f'ds_read_b64_tr_b16 {vr(cA + 4 * n, 2)}, v121 offset:{256 * n + 32}')
        c(f'ds_read_b64_tr_b16 {vr(cA + 4 * n + 2, 2)}, v121 offset:{256 * n}')


def p1_load_u(c, ld=SC):
    T = cACC + 64
    for i in range(4):
        c(f'buffer_load_dwordx4 {vr(T + 4 * i, 4)}, v4, {WSR}, s43 offen{ld}')
        if i < 3:
            c('s_add_u32 s43, s43, 4096')


def p1_load_x(ld=SC):
    o = []
    for u in range(4):
        o.append([Ins(f's_add_u32 s43, s45, {4096 * u}'),
                  Ins(f'buffer_load_dwordx4 {vr(cSQ + 4 * u, 4)}, v1, {WSR}, s43 offen{ld}', f'sq{u}')])
        o.append([Ins(f's_add_u32 s43, s44, {X4_OFF + u * 655360}'),
                  Ins(f'buffer_load_dwordx4 {vr(cXQ + 4 * u, 4)}, v5, {WSR}, s43 offen{ld}', f'xq{u}')])
    return o


def p1_main(c, inject, jobs, lastpoll, st=SC):
    T = cACC + 64
    uw = []
    for i in range(4):
        for a in ('v10', 'v11'):
            uw.append(Ins(f'ds_write2st64_b32 {a}, v{T + 4 * i}, v{T + 4 * i + 1} offset0:{i} offset1:{5 + i}'))
            uw.append(Ins(f'ds_write2st64_b32 {a}, v{T + 4 * i + 2}, v{T + 4 * i + 3} offset0:{10 + i} offset1:{15 + i}'))
    c.extend(uw[:4])
    accb = {0: 80, 1: 96, 2: 112, 3: 80, 4: 96, 5: 112, 6: 144, 7: 80}
    acc = lambda t, cp: accb[t] + 4 * cp
    res = lambda cp, w: ar(16 * (w + 1) + 4 * cp + (128 if 4 * (w + 1) + cp >= nwb() else 0), 4)
    chain = lambda t, ws: [(t, cp, w) for cp in range(4) for w in ws]
    steps = []
    for t in range(4):
        steps += chain(t, range(-1, 2 * t - 1)) + chain(t, (2 * t - 1, 2 * t))
    for t, hi in ((4, 8), (6, 12)):
        joint = [x for w in range(7, hi, 2) for cp in range(4) for x in ((t, cp, w), (t, cp, w + 1), (t + 1, cp, w + 1), (t + 1, cp, w))]
        own = chain(t, range(-1, 7))
        steps += own + joint if t == 4 or OPT.get('j6', 0) else joint + own
        if t == 6 and OPT.get('v7', 1):
            steps += [(7, cp, w) for cp in (3, 2, 1, 0) for w in list(range(-1, 7)) + [13, 14]]
        else:
            steps += chain(t + 1, range(-1, 7)) + chain(t + 1, (hi + 1, hi + 2))
    mf = []
    first_use, last_of_tile, first_of_tile = {}, {}, {}
    started = set()
    strm, sidx = [], {}
    for t, cp, w in steps:
        if w < 7:
            first_use.setdefault(w, len(mf))
            breg = res(cp, w)
        else:
            if (t >> 1, cp, w) not in sidx:
                sidx[(t >> 1, cp, w)] = len(strm)
                strm.append([cp, w, len(mf), 0])
            strm[sidx[(t >> 1, cp, w)]][3] = len(mf)
            breg = vr(cB + 4 * (sidx[(t >> 1, cp, w)] % 8), 4)
        a = vr(acc(t, cp), 4)
        first_of_tile.setdefault(t, len(mf))
        last_of_tile[t] = len(mf)
        mf.append(Ins(f'v_mfma_f32_16x16x32_bf16 {a}, {vr(cA + 4 * (2 * t - w), 4)}, {breg}, {a if (t, cp) in started else "0"}'))
        started.add((t, cp))
    off = lambda cp, w: 64 * (w + 1) + 1280 * cp
    rd = lambda cp, w: Ins(f'ds_read_b128 {res(cp, w)}, v14 offset:{off(cp, w)}', f'b{w}')
    pre = {-1: [rd(cp, w) for cp in range(4) for w in (-1, 0)]}
    P = lambda p, l: pre.setdefault(p, []).extend(l)
    seq = []
    for w in range(1, 7):
        if w == 3:
            seq += [(w, i) for i in uw[4:8]]
        seq += [(w, rd(cp, w)) for cp in range(4)]
    p = -1
    for w, i in seq:
        p += 1 if w < 3 else 2
        assert p < first_use[w] - 6
        P(p, [i])
    for i in uw[8:]:
        p += OPT.get('uws', 4)
        P(p, [i])
    for w in range(1, 7, 2):
        P(first_use[w] - 1, [Ins(f'@lg b{w + 1}')])
    for k, (cp, w, f, l) in enumerate(strm):
        p = max(p + 2, strm[k - 8][3] if k >= 8 else 0, f - 28)
        assert p < f - 5, k
        P(p, [Ins(f'ds_read_b128 {vr(cB + 4 * (k % 8), 4)}, v14 offset:{off(cp, w)}', f's{k}')])
        if k % 2 == 1:
            P(strm[k - 1][2] - 1, [Ins(f'@lg s{k}')])
    for p, l in inject:
        P(p, l)
    bg = []

    def B(pos, text, tag=None):
        bg.append((pos, Ins(text, tag)))

    def tile_epi(t):
        p = last_of_tile[t] + 4
        Y = [acc(t, cp) for cp in range(4)]
        if t == 7 and OPT.get('v7', 1):
            B(p - 20, f'v_add_f32 v{Y[3] + 2}, v{Y[3] + 2}, v{Y[2] + 3}')
            B(0, f'v_add_f32 v{Y[3] + 1}, v{Y[3] + 1}, v{Y[2] + 2}')
            B(0, f'v_add_f32 v{Y[2] + 1}, v{Y[2] + 1}, v{Y[3]}')
            B(p - 11, f'v_add_f32 v{Y[3] + 1}, v{Y[3] + 1}, v{Y[1] + 3}')
            B(0, f'ds_write_b128 v15, {vr(Y[3], 4)}')
            B(0, f'ds_read_b128 {vr(cT, 4)}, v12 offset:1024')
            B(0, f'v_add_f32 v{Y[1] + 1}, v{Y[1] + 1}, v{Y[2]}')
            B(0, f'v_add_f32 v{Y[1] + 2}, v{Y[1] + 2}, v{Y[2] + 1}')
            B(p, f'v_add_f32 v{cT + 2}, v{cT + 2}, v{Y[1]}')
            B(p, f'v_add_f32 v{cT + 3}, v{cT + 3}, v{Y[1] + 1}')
            for k, x in enumerate((cT + 1, cT + 2, cT + 3, Y[1] + 2)):
                B(p, f'v_add_f32 v{Y[0] + k}, v{Y[0] + k}, v{x}')
            B(p, f'v_cvt_pk_bf16_f32 v{Y[0]}, v{Y[0]}, v{Y[0] + 1}')
            B(p, f'v_cvt_pk_bf16_f32 v{Y[0] + 1}, v{Y[0] + 2}, v{Y[0] + 3}')
            B(p, f'ds_write_b64 v2, {vr(Y[0], 2)} offset:{512 * t}', f'y{t}')
            return
        B(p, f'v_add_f32 v{Y[3] + 1}, v{Y[3] + 1}, v{Y[1] + 3}')
        B(p, f'v_add_f32 v{Y[3] + 2}, v{Y[3] + 2}, v{Y[2] + 3}')
        B(p, f'v_add_f32 v{Y[3] + 1}, v{Y[3] + 1}, v{Y[2] + 2}')
        B(p, f'ds_write_b128 {"v15" if t & 1 else "v13"}, {vr(Y[3], 4)}')
        B(p, f'ds_read_b128 {vr(cT, 4)}, v12 offset:{1024 * (t & 1)}')
        B(p, f'v_add_f32 v{Y[0] + 1}, v{Y[0] + 1}, v{Y[1]}')
        B(p, f'v_add_f32 v{Y[0] + 2}, v{Y[0] + 2}, v{Y[1] + 1}')
        B(p, f'v_add_f32 v{Y[0] + 3}, v{Y[0] + 3}, v{Y[1] + 2}')
        B(p, f'v_add_f32 v{Y[0] + 2}, v{Y[0] + 2}, v{Y[2]}')
        B(p, f'v_add_f32 v{Y[0] + 3}, v{Y[0] + 3}, v{Y[2] + 1}')
        B(p, f'v_add_f32 v{Y[0] + 3}, v{Y[0] + 3}, v{Y[3]}')
        B(-OPT.get('ed', 4), f'v_add_f32 v{Y[0]}, v{Y[0]}, v{cT + 1}')
        B(p, f'v_add_f32 v{Y[0] + 1}, v{Y[0] + 1}, v{cT + 2}')
        B(p, f'v_add_f32 v{Y[0] + 2}, v{Y[0] + 2}, v{cT + 3}')
        B(p, f'v_cvt_pk_bf16_f32 v{Y[0]}, v{Y[0]}, v{Y[0] + 1}')
        B(p, f'v_cvt_pk_bf16_f32 v{Y[0] + 1}, v{Y[0] + 2}, v{Y[0] + 3}')
        B(p, f'ds_write_b64 v2, {vr(Y[0], 2)} offset:{512 * t}', f'y{t}')

    Tm = cT + 8
    RR = {0: cT + 4, 1: 132, 2: cT + 4, 3: cT + 4}
    HH = {0: 160, 1: 144, 2: 160, 3: 96}

    def tail_r(u):
        B(0, f'ds_read_b64_tr_b16 {vr(RR[u], 2)}, v3 offset:{1024 * u}')
        B(0, f'ds_read_b64_tr_b16 {vr(RR[u] + 2, 2)}, v3 offset:{1024 * u + 32}')

    def tail_x(u, p):
        HX = HH[u]
        for k in range(4):
            x, rs, nm = cXQ + 4 * u + k, cSQ + 4 * u + (k >> 1) * 2, cSQ + 4 * u + (k >> 1) * 2 + 1
            B(p, f'v_lshlrev_b32 v{HX + 4 * k}, 16, v{x}')
            B(0, f'v_and_b32 v{HX + 4 * k + 1}, 0xffff0000, v{x}')
            B(0, f'v_fma_f32 v{HX + 4 * k + 2}, v{HX + 4 * k}, v{rs}, v{nm}')
            B(0, f'v_fma_f32 v{HX + 4 * k + 3}, v{HX + 4 * k + 1}, v{rs}, v{nm}')

    def tail_y(u):
        R, HX = RR[u], HH[u]
        B(0, f's_add_u32 s42, s44, {H4_OFF + u * 655360}')
        for k in range(4):
            B(0, f'v_lshlrev_b32 v{Tm}, 16, v{R + k}')
            B(0, f'v_and_b32 v{Tm + 1}, 0xffff0000, v{R + k}')
            if u == 3:
                B(0, f'v_pk_fma_f32 {vr(HX + 4 * k, 2)}, {vr(HX + 4 * k + 2, 2)}, {vr(Tm, 2)}, {vr(HX + 4 * k, 2)}')
            else:
                B(0, f'v_fmac_f32 v{HX + 4 * k}, v{HX + 4 * k + 2}, v{Tm}')
                B(0, f'v_fmac_f32 v{HX + 4 * k + 1}, v{HX + 4 * k + 3}, v{Tm + 1}')
            B(0, f'v_cvt_pk_bf16_f32 v{cXQ + 4 * u + k}, v{HX + 4 * k}, v{HX + 4 * k + 1}')
        B(0, f'buffer_store_dwordx4 {vr(cXQ + 4 * u, 4)}, v5, {WSR}, s42 offen{st}', f'hst{u}')

    def flag(k):
        if k:
            B(0, f's_add_u32 s46, s46, {160 * FSP}')
        B(0, f'buffer_store_dword v253, v252, {WSR}, s46 offen{st}', f'fl{k}')

    tpos = [17 * k for k in range(len(mf))]
    vm, pre2, where = pace(jobs, tpos, lambda p: OPT.get('sp1', 66) if p < 60 else OPT.get('sp2', 72),
                           avoid={p for p in pre if p > 60}, load={p: sum(i.cost for i in l) for p, l in pre.items()})
    for p, l in pre2.items():
        P(p, l)
    print('p1 prefetch ends at mfma', max(where.values()), file=sys.stderr)
    xq = {i.tag: where[id(i)] for _, _, l in sum(jobs, []) for i in l if i.tag and i.tag[1] == 'q'}
    LAG = OPT.get('xlag', 60)
    for t in range(4):
        tile_epi(t)
    tail_x(0, xq['xq0'] + LAG)
    B(0, '@lg y3')
    B(0, 's_barrier')
    tail_r(0)
    tail_r(1)
    tail_x(1, xq['xq1'] + LAG)
    tail_y(0)
    tail_y(1)
    tile_epi(4)
    tile_epi(5)
    tail_x(2, xq['xq2'] + LAG)
    B(OPT.get('b5', 215), '@vmlg hst1 y5')
    B(0, 's_barrier')
    tail_r(2)
    flag(0)
    tail_x(3, 0)
    tail_y(2)
    tile_epi(6)
    tile_epi(7)
    B(0, '@vmlg hst2 y7')
    B(0, 's_barrier')
    tail_r(3)
    for i in lastpoll:
        bg.append((0, i))
    flag(1)
    tail_y(3)
    for i in mark(6):
        bg.append((0, i))
    out = weave(mf, pre, bg, vm, {k: 4 for k in range(100, 280, OPT.get('x1', 8))})
    pos = {id(i): k for k, i in enumerate(out)}
    at = lambda t: max(j for j in range(len(mf)) if pos[id(mf[j])] < pos[id(next(x for x in out if x.tag == t))])
    for t, u in ((0, 3), (1, 4), (2, 5), (3, 7)):
        assert at(f'y{t}') < first_of_tile[u] - 1, t
    assert at('hst1') < first_of_tile[6] - 1 and pos[id(uw[-1])] < pos[id(next(x for x in out if x.tag == 'y3'))]
    print('p1:', ' '.join(f'{t}@{at(t)}' for t in ('y0', 'y3', 'y4', 'hst0', 'hst1', 'y5', 'fl0', 'hst2', 'y6')),
          'after last mfma', len(out) - pos[id(mf[-1])], file=sys.stderr)
    c.extend(out)


WJB = 49152


def side_w1_load(c, WGS, WUS, sNP, sK0, N, two, pre, mid):
    UR = 16 * N * 448 + 32
    R = f'n{two}'
    c(f'''
    v_mul_u32_u24 v116, 147, v0
    v_lshrrev_b32 v116, 11, v116
    v_mul_u32_u24 v117, 14, v116
    v_sub_u32 v117, v0, v117
    v_lshlrev_b32 v117, 4, v117
    v_and_b32 v118, 1, v116
    v_mul_u32_u24 v118, 216, v118
    v_lshrrev_b32 v116, 1, v116
    v_mul_u32_u24 v116, 3456, v116
    v_add3_u32 v116, v116, v117, v118
    s_lshl_b32 s46, {sK0}, 2
    s_add_u32 s46, s46, {sWAVE}
    s_mul_i32 s46, s46, {4 * 3456}
    s_mul_i32 s47, {sNP}, 432
    s_add_u32 s46, s46, s47
    s_mul_i32 s47, {sWAVE}, {4 * 448}
    s_add_u32 s47, s47, {WJB}
    s_mov_b32 exec_hi, 0x00ffffff
    ''')
    for ks in range(N):
        if ks == pre:
            c('s_mov_b64 exec, -1')
            mid()
            c('s_mov_b32 exec_hi, 0x00ffffff')
        if ks == 2 and not two and OPT.get('hs', 0):
            c(f'''
            s_mul_i32 s45, s58, {48 * 3456}
            s_sub_u32 s46, s46, s45
            s_lshr_b32 s45, {sWAVE}, 1
            s_cmp_eq_u32 s45, s58
            s_cselect_b32 s46, s46, 0x70000000
            ''')
        for j in range(2):
            c(f's_add_u32 s45, s46, {(16 * ks + 2 * j) * 3456}')
            for m, srd_ in enumerate((WGS, WUS)):
                c(f's_add_u32 m0, s47, {UR * m + 448 * (16 * ks + 2 * j)}')
                c(f'buffer_load_dwordx4 v116, {srd_}, s45 offen lds', f'{R}w1k{ks}')
    c('s_mov_b64 exec, -1')
    if pre == N:
        mid()
    c.extend(mark1(12))


def side_w1(c, sNP, sK0, sSL, N, two, part=3, st=SC):
    UR = 16 * N * 448 + 32
    R = f'n{two}'
    c0 = c
    if not part & 1:
        c = Code()
    c(f'''
    s_mul_i32 s47, {sWAVE}, {4 * 448}
    s_add_u32 s47, s47, {WJB}
    v_and_b32 v2, 7, v0
    v_mul_u32_u24 v2, 224, v2
    v_bfe_u32 v3, v0, 3, 1
    v_sub_u32 v8, 1, v3
    v_mul_u32_u24 v8, 0x3f80, v8
    v_mov_b32 v9, 0
    v_mul_u32_u24 v3, {UR}, v3
    v_add3_u32 v2, v2, v3, s47
    v_lshrrev_b32 v12, 5, v0
    v_bfe_u32 v13, v0, 2, 2
    v_lshl_add_u32 v3, v12, 3, v13
    v_mul_u32_u24 v3, 448, v3
    v_bfe_u32 v13, v0, 4, 1
    v_mul_u32_u24 v13, {UR}, v13
    v_add_u32 v3, v3, v13
    v_and_b32 v13, 3, v0
    v_lshl_add_u32 v3, v13, 3, v3
    v_and_b32 v11, 15, v0
    v_lshlrev_b32 v11, 4, v11
    v_lshl_add_u32 v11, v12, 8, v11
    v_and_b32 v13, 16, v0
    v_lshl_add_u32 v11, v13, 6, v11
    s_lshl_b32 s36, {sWAVE}, 5
    s_add_u32 s36, s36, {WJB}
    v_add_u32 v3, s36, v3
    v_lshlrev_b32 v4, 4, v0
    s_lshl_b32 s36, {sWAVE}, 9
    v_lshl_add_u32 v5, v0, 1, s36
    v_add_u32 v10, s36, v4
    s_mov_b32 s44, {ONES}
    s_mul_i32 s26, {sNP}, {2 * 288 * 1024}
    s_add_u32 s26, s26, {W1_OFF}
    ''')
    for r in range(4):
        tb = []
        for w in range(4):
            p = 4 * r + w
            o = 288 * (p // 7)
            tb.append((o + w1_seq(p % 7, 0), w1_seq(p % 7, 1) - w1_seq(p % 7, 0), o + w1_seq(p % 7, 20)) if p < 14 else (0x100000, 0, 0x100000))
        for k, x in enumerate((34, 38, 28)):
            c(f's_mov_b32 s{x + r}, {tb[0][k] << 10}')
        for w in range(1, 4):
            c(f's_cmp_eq_u32 {sWAVE}, {w}')
            for k, x in enumerate((34, 38, 28)):
                c(f's_cselect_b32 s{x + r}, {tb[w][k] << 10}, s{x + r}')
        c(f'''
        s_add_u32 s{34 + r}, s{34 + r}, s26
        s_add_u32 s{28 + r}, s{28 + r}, s26
        s_lshl_b32 s42, {sSL}, 6
        s_add_u32 s{28 + r}, s{28 + r}, s42
        ''')
    c = c0
    if not part & 2:
        return
    for ks in range(N):
        FR = 16 + 16 * (ks % 4)
        c(f'''
        @vm {R}w1k{ks}
        ds_write_b64 v2, v[8:9] offset:{448 * 16 * ks + 216}
        s_waitcnt lgkmcnt(0)
        s_barrier
        ''')
        c.extend(mark1(7) if ks == 0 else (mark1(8) if ks == N - 1 else []))
        for r in range(4):
            for h in range(2):
                c(f'ds_read_b64_tr_b16 {vr(FR + 4 * r + 2 * h, 2)}, v3 offset:{448 * (16 * ks + 4 * h) + 128 * r}')
        c(f's_add_u32 s24, {sK0}, {ks}')
        if ks == 2 and not two and OPT.get('hs', 0):
            c('''
            s_mul_i32 s25, s58, 3
            s_sub_u32 s24, s24, s25
            v_xor_b32 v12, s58, v12
            v_lshl_add_u32 v11, v12, 30, v11
            ''')
        c(f'''
        s_and_b32 s25, s24, 1
        s_lshl_b32 s25, s25, 9
        s_lshr_b32 s24, s24, 1
        ''')
        for r in range(4):
            c(f's_mul_i32 s42, s24, s{38 + r}')
            c(f's_add_u32 s42, s42, s25')
            c(f's_add_u32 s42, s42, s{34 + r}')
            c(f'buffer_store_dwordx4 {vr(FR + 4 * r, 4)}, v11, {WSR}, s42 offen{st}')
            for k in range(4):
                c(f'v_dot2_f32_bf16 v{100 + r}, v{FR + 4 * r + k}, s44, {"0" if ks + k == 0 else "v%d" % (100 + r)}')
    for r in range(4):
        c(f'v_mov_b32 v{104 + r}, v{100 + r}')
    for r in range(4):
        c(f'v_permlane32_swap_b32 v{100 + r}, v{104 + r}')
    c('s_mov_b32 vcc_lo, 0')
    c('s_mov_b32 vcc_hi, -1')
    for r in range(4):
        c(f'''
        v_add_f32 v{100 + r}, v{100 + r}, v{104 + r}
        v_cvt_pk_bf16_f32 v{104 + r}, v{100 + r}, v{100 + r}
        v_and_b32 v{104 + r}, 0xffff0000, v{104 + r}
        v_sub_f32 v{104 + r}, v{100 + r}, v{104 + r}
        v_cndmask_b32 v{100 + r}, v{100 + r}, v{104 + r}, vcc
        v_cvt_pk_bf16_f32 v{100 + r}, v{100 + r}, v{100 + r}
        ds_write_b16 v5, v{100 + r} offset:{128 * r}
        ''')
    c(f's_mov_b64 exec, {"0xff" if two else 15}')
    for r in range(4):
        c(f'ds_read_b128 {vr(104 + 4 * r, 4)}, v10 offset:{128 * r}')
    for r in range(4):
        c(f'buffer_store_dwordx4 {vr(104 + 4 * r, 4)}, v4, {WSR}, s{28 + r} offen{st}')
    c('s_mov_b64 exec, -1')
    c.extend(mark1(9))


WDA, WDF = 128, 176


def wd_setup(c):
    assert BLK_ORDER == [6, 0, 1, 2, 3, 4, 5]
    for i in range(5):
        c(f'''
        v_add_u32 v{WDA + 8}, {64 * i}, v0
        v_mul_u32_u24 v{WDA + 9}, 1639, v{WDA + 8}
        v_lshrrev_b32 v{WDA + 9}, 16, v{WDA + 9}
        v_mul_u32_u24 v{WDA + 9}, 640, v{WDA + 9}
        v_lshl_add_u32 v{WDA + i}, v{WDA + 8}, 4, v{WDA + 9}
        ''')
    c(f'''
    s_mul_i32 s100, {sWAVE}, 5120
    s_add_u32 s100, s100, 20480
    v_lshrrev_b32 v{WDA + 8}, 4, v0
    v_bfe_u32 v{WDA + 9}, v0, 2, 2
    v_mul_u32_u24 v{WDA + 5}, 160, v{WDA + 8}
    v_mul_u32_u24 v{WDA + 9}, 640, v{WDA + 9}
    v_add3_u32 v{WDA + 5}, v{WDA + 5}, v{WDA + 9}, s100
    v_and_b32 v{WDA + 9}, 3, v0
    v_lshl_add_u32 v{WDA + 6}, v{WDA + 9}, 3, v{WDA + 5}
    v_lshl_add_u32 v{WDA + 5}, v{WDA + 9}, 4, v{WDA + 5}
    v_mul_u32_u24 v{WDA + 7}, {56 * 5120}, v{WDA + 8}
    v_and_b32 v{WDA + 9}, 15, v0
    v_lshl_add_u32 v{WDA + 7}, v{WDA + 9}, 4, v{WDA + 7}
    s_lshl_b32 s16, s34, 2
    s_add_u32 s16, s16, {sWAVE}
    s_sub_u32 s16, s16, {4 * OPT.get('wg0', 0)}
    s_mul_i32 s17, s16, 2341
    s_lshr_b32 s17, s17, 16
    s_mul_i32 s18, s17, 28
    s_sub_u32 s18, s16, s18
    s_and_b32 s19, s18, 1
    s_lshr_b32 s18, s18, 1
    s_mul_i32 s101, s17, 108
    s_lshl_b32 s20, s18, 3
    s_add_u32 s101, s101, s20
    s_lshl_b32 s101, s101, 1
    s_add_u32 s101, s101, s19
    s_mul_i32 s101, s101, 640
    s_mul_i32 s56, s19, {4 * 56}
    s_lshr_b32 s20, s17, 2
    s_mul_i32 s20, s20, 14
    s_add_u32 s56, s56, s20
    s_bfe_u32 s20, s17, 0x10001
    s_add_u32 s56, s56, s20
    s_and_b32 s20, s18, 14
    s_add_u32 s20, s20, 2
    s_cmp_eq_u32 s20, 14
    s_cselect_b32 s20, 0, s20
    s_add_u32 s56, s56, s20
    s_mul_i32 s56, s56, 20
    s_and_b32 s20, s17, 1
    s_lshl_b32 s20, s20, 1
    s_add_u32 s56, s56, s20
    s_and_b32 s20, s18, 1
    s_add_u32 s56, s56, s20
    s_lshl_b32 s56, s56, 8
    s_add_u32 s56, s56, {WD_OFF}
    s_cmp_eq_u32 s18, 13
    s_cselect_b32 s58, 0, -1
    s_cmp_lt_u32 s16, 448
    s_cselect_b32 s101, s101, 0x70000000
    s_cselect_b32 s56, s56, 0x70000000
    ''')


def wd_loads(WDS):
    return [[Ins(f's_add_u32 m0, s100, {1024 * i}'),
             Ins(f'buffer_load_dwordx4 v{WDA + i}, {WDS}, s101 offen lds', 'wdl')] for i in range(5)]


def wd_reads():
    c = Code()
    c('@vm wdl')
    for b in range(5):
        for h in range(2):
            if b < 4:
                c(f'ds_read_b64_tr_b16 {vr(WDF + 4 * b + 2 * h, 2)}, v{WDA + 5} offset:{2560 * h + 64 * (b >> 1) + 8 * (b & 1)}')
            else:
                c(f'ds_read_b64_tr_b16 {vr(WDF + 4 * b + 2 * h, 2)}, v{WDA + 6} offset:{2560 * h + 128}')
    for b in range(5):
        c(f'v_and_b32 v{WDF + 4 * b + 2}, s58, v{WDF + 4 * b + 2}')
        c(f'v_and_b32 v{WDF + 4 * b + 3}, s58, v{WDF + 4 * b + 3}')
    return c.ins


def wd_stores(st=SC):
    c = Code()
    for b in range(5):
        if b == 4:
            c('s_add_u32 s56, s56, 4096')
        c(f'buffer_store_dwordx4 {vr(WDF + 4 * b, 4)}, v{WDA + 7}, {WSR}, s56 offen offset:{1024 * (b & 3)}{st}', 'wds')
    return c.ins


def poll_load(vval, vaddr, srd_, soff):
    return Ins(f'buffer_load_dword {vval}, {vaddr}, {srd_}, {soff} offen{SC}')


CHECKS = []


def poll_check(name, vval, vaddr, srd_, soff, need, sleep=None, first='', more=()):
    sleep = OPT.get('sl_' + name, sleep)
    comb = f'v_min3_u32 {vval}, {vval}, {more[0][0]}, {more[1][0]}' if more else ''
    if name not in ('go_a', 'go_b', 'fx2'):
        CHECKS.append(name)
    cc = Code()
    cc(f'''
    L_{name}_slow:
    @reset
    {f's_or_b32 s82, s82, {1 << (len(CHECKS) - 1)}' if OPT.get('cnt') == 2 and name in CHECKS else ''}
    s_mov_b32 s32, {SPIN}
    L_{name}_spin:
    buffer_load_dword {vval}, {vaddr}, {srd_}, {soff} offen{SC}
    ''')
    for v, a in more:
        cc(f'buffer_load_dword {v}, {a}, {srd_}, {soff} offen{SC}')
    cc(f'''
    s_waitcnt vmcnt(0)
    {comb}
    v_cmp_gt_u32 vcc, {need}, {vval}
    s_nop 0
    s_cbranch_vccz L_{name}_ok
    ''')
    if first:
        cc(f'''
        s_cmp_lg_u32 s32, {SPIN}
        s_cbranch_scc1 L_{name}_again
        {first}
        L_{name}_again:
        ''')
    cc(f'''
    {f's_or_b32 s82, s82, {1 << (len(CHECKS) + 15)}' if OPT.get('cnt') == 2 and name in CHECKS else ''}
    {('s_sleep %d' % sleep) if sleep else ''}
    s_sub_u32 s32, s32, 1
    s_cbranch_scc0 L_{name}_spin
    s_branch L_{name}_ok
    ''')
    SLOW.extend(cc.ins)
    return ([Ins(comb)] if more else []) + [Ins(f'v_cmp_gt_u32 vcc, {need}, {vval}'), Ins('s_nop 0'), Ins(f's_cbranch_vccnz L_{name}_slow'), Ins(f'L_{name}_ok:')]


def flag_regs(c, voob, vone):
    c(f'v_mov_b32 {voob}, 0x80000000')
    c(f'v_mov_b32 {vone}, 1')
    c(f'v_writelane_b32 {voob}, 0, 0')


RING = 9
gHF, gMF, gACC, gT = 8, 168, 172, 236
NHB = 33
vOOB, vFV, vPA, vPV = 'v252', 'v253', 'v254', 'v255'


def p23_ids(c):
    c(f'''
    s_lshr_b32 s34, {sSLOT}, 2
    s_lshl_b32 s34, s34, 2
    s_lshr_b32 s34, {[0x01234567, 0x76543210, 0x54301267, 0x35401267][OPT.get('map', 0)]}, s34
    s_and_b32 s34, s34, 7
    s_and_b32 s35, {sSLOT}, 3
    s_and_b32 s36, {sXCD}, 1
    s_lshr_b32 s37, {sXCD}, 1
    s_lshl_b32 {sMT}, s34, 1
    s_add_u32 {sMT}, {sMT}, s36
    s_lshl_b32 {sNI}, s37, 2
    s_add_u32 {sNI}, {sNI}, s35
    s_lshl_b32 {sMT64}, {sMT}, 1
    s_and_b32 s36, s37, 1
    s_add_u32 {sMT64}, {sMT64}, s36
    s_and_b32 {sDC}, {sXCD}, 4
    s_add_u32 {sDC}, {sDC}, s35
    s_mul_i32 {sP2W}, {sNI}, {288 * 1024}
    s_lshl_b32 {sP2L}, {sWAVE}, 12
    s_add_u32 {sP2W}, {sP2W}, {sP2L}
    s_add_u32 {sP2W}, {sP2W}, {W1_OFF}
    s_mul_i32 {sP3W}, {sDC}, 56
    s_mul_i32 s35, {sWAVE}, 14
    s_add_u32 {sP3W}, {sP3W}, s35
    s_mul_i32 {sP3W}, {sP3W}, 5120
    s_add_u32 {sP3W}, {sP3W}, {WD_OFF}
    ''')


def fa_addr(c, va, t1):
    c(f'''
    v_and_b32 {t1}, 3, v0
    v_and_b32 {va}, 12, v0
    v_lshl_add_u32 {va}, {va}, 2, {t1}
    v_mul_u32_u24 {va}, {FSP}, {va}
    s_mul_i32 s47, {sWAVE}, {4 * FSP}
    s_add_u32 s47, s47, {FX_OFF}
    ''')


def fw_addr(c, va):
    c(f'''
    v_min_u32 {va}, 11, v0
    v_mul_u32_u24 {va}, {FSP}, {va}
    s_lshr_b32 s57, {sNI}, 1
    s_mul_i32 s57, s57, {16 * FSP}
    s_add_u32 s57, s57, {FW1_OFF}
    ''')


def fd_addr(c, va):
    c(f'''
    v_min_u32 {va}, 27, v0
    v_mul_u32_u24 {va}, {FSP}, {va}
    s_mul_i32 s58, {sWAVE}, {28 * FSP}
    s_add_u32 s58, s58, {FD_OFF + OPT.get('wg0', 0) * FSP}
    ''')


def f2_addr(c, va):
    c(f'''
    s_lshl_b32 s39, {sWAVE}, 6
    v_add_u32 {va}, s39, v0
    v_min_u32 {va}, 159, {va}
    v_mul_u32_u24 {va}, {FSP}, {va}
    ''')


def p2_dma(g, base=sP2W, every=False):
    o = []
    for k in range(4):
        l = [Ins(f's_add_u32 m0, {sP2L}, {(g % RING) * 16384}')] if k == 0 or (every and g >= 12) else []
        if k == 0:
            l.append(Ins(f's_add_u32 {sP2T}, {base}, {g * 16384}'))
        l.append(Ins(f'buffer_load_dwordx4 v1, {WSR}, {sP2T} offen offset:{1024 * k}{SC} lds', f'g{g}'))
        o.append(l)
    return o


def wfrag(j):
    n = 64 - nwb()
    if j < n:
        return ar(4 * (nwb() + j), 4)
    if j < n + 2:
        return vr(244 + 4 * (j - n), 4)
    return ar(4 * (j - n - 2), 4)


def p3_wload(j, R=''):
    o = []
    if j < 60:
        if j and (j & 3) == 0:
            o.append(Ins(f's_add_u32 {sP3W}, {sP3W}, 4096'))
        o.append(Ins(f'buffer_load_dwordx4 {wfrag(j)}, v1, {WSR}, {sP3W} offen offset:{1024 * (j & 3)}{SC}', f'{R}wd{j}'))
    else:
        k = j - 60
        if k and (k & 3) == 0:
            o.append(Ins(f's_add_u32 {sWL}, {sWL}, 4096'))
        if (k & 3) == 0:
            o.append(Ins(f's_add_u32 m0, {sSTG}, {4096 * (k >> 2)}'))
        o.append(Ins(f'buffer_load_dwordx4 v1, {WSR}, {sWL} offen offset:{1024 * (k & 3)}{SC} lds', f'{R}wl'))
    return o


sH, sHHS, sF3, sF3P, sF3Q, sHR, sHB, sRES, sRES4, sOUT, sF2P, sSTG, sWL = 's16', 's17', 's18', 's19', 's20', 21, 's25', 's26', 's27', 's28', 's29', 's30', 's31'


def p23_scalars(c):
    t, u = 's12', 's13'
    c(f'''
    s_lshl_b32 {u}, {sMT}, 2
    s_add_u32 {u}, {u}, {sWAVE}
    s_mul_i32 {sH}, {u}, 40960
    s_add_u32 {sH}, {sH}, {H4_OFF}
    s_mul_i32 {sHHS}, {u}, {2 * 57344}
    s_lshr_b32 {t}, {sNI}, 2
    s_mul_i32 {t}, {t}, {56 * 256}
    s_add_u32 {sHHS}, {sHHS}, {t}
    s_and_b32 {t}, {sNI}, 3
    s_lshl_b32 {t}, {t}, 9
    s_add_u32 {sHHS}, {sHHS}, {t}
    s_add_u32 {sHHS}, {sHHS}, {HH_OFF}
    s_mul_i32 {sF3P}, {u}, {4 * FSP}
    s_add_u32 {sF3P}, {sF3P}, {F3_OFF}
    s_mul_i32 {sF3Q}, {sMT}, {16 * FSP}
    s_mul_i32 {sF3}, {sNI}, {FSP}
    s_add_u32 {sF3}, {sF3}, {sF3Q}
    s_add_u32 {sF3}, {sF3}, {F3_OFF}
    s_add_u32 {sF3Q}, {sF3Q}, {F3_OFF + 3 * 256 * FSP}
    s_cmp_eq_u32 {sWAVE}, 0
    s_cselect_b32 {sF3}, {sF3}, 0x70000000
    s_lshl_b32 {u}, {sMT64}, 2
    s_add_u32 {u}, {u}, {sWAVE}
    s_mul_i32 {sOUT}, {u}, {16 * 1280}
    s_mul_i32 {t}, {sDC}, 160
    s_add_u32 {sOUT}, {sOUT}, {t}
    s_mul_i32 {sHB}, {u}, 57344
    s_add_u32 {sHB}, {sHB}, {HH_OFF + 48 * 256}
    s_lshr_b32 {sRES}, {u}, 1
    s_mul_i32 {sRES}, {sRES}, 40960
    s_and_b32 {t}, {sWAVE}, 1
    s_lshl_b32 {t}, {t}, 3
    s_add_u32 {sRES}, {sRES}, {t}
    s_mul_i32 {t}, {sDC}, {20 * 256}
    s_add_u32 {sRES}, {sRES}, {t}
    s_add_u32 {sRES}, {sRES}, {H4_OFF}
    s_add_u32 {sRES4}, {sRES}, 4096
    s_sub_u32 {sF2P}, {sMT}, 10
    s_cmp_lt_u32 {sMT}, 12
    s_cselect_b32 {sF2P}, 1, {sF2P}
    s_cmp_lt_u32 {sMT}, 8
    s_cselect_b32 {sF2P}, 0, {sF2P}
    s_mul_i32 {sF2P}, {sF2P}, {160 * FSP}
    s_add_u32 {sF2P}, {sF2P}, {F2_OFF}
    s_cmp_lt_u32 {sMT}, {OPT.get('pu', 12)}
    s_cselect_b32 s14, {sF2P}, {F2_OFF}
    s_cselect_b32 s15, 1, 0
    s_mov_b32 s3, {sH}
    s_mul_i32 {sSTG}, {sWAVE}, 10240
    s_add_u32 {sWL}, {sP3W}, {60 * 1024}
    s_mul_i32 {u}, {sMT64}, {4 * 57344}
    s_mul_i32 {t}, {sWAVE}, {56 * 256}
    s_add_u32 {u}, {u}, {t}
    s_add_u32 {u}, {u}, {HH_OFF}
    ''')
    for r in range(4):
        c(f'''
        s_add_u32 {t}, {sWAVE}, {r + 1}
        s_and_b32 {t}, {t}, 3
        s_mul_i32 s{sHR + r}, {t}, 57344
        s_add_u32 s{sHR + r}, s{sHR + r}, {u}
        ''')
    c(f's_movk_i32 s13, {OPT.get("tries", 4)}')
    for o, r in (('nowd', [sP3W, sWL]), ('nog', [sP2W]), ('nohh', [f's{sHR + r}' for r in range(4)] + [sHB]), ('noh', [sH])):
        if OPT.get(o):
            for x in r:
                c(f's_mov_b32 {x}, 0x70000000')


def p23_vectors():
    c = Code()
    t = gT
    c(f'''
    v_add_u32 v4, 0x10000, v1
    v_add_u32 v5, 0x20000, v1
    v_bfe_u32 v2, v0, 4, 1
    v_mul_u32_u24 v2, 57344, v2
    v_lshrrev_b32 v{t}, 5, v0
    v_lshl_add_u32 v2, v{t}, 8, v2
    v_lshrrev_b32 v3, 2, v0
    v_lshlrev_b32 v3, 6, v3
    v_and_b32 v7, 3, v0
    v_lshl_add_u32 v3, v7, 3, v3
    v_and_b32 v7, 15, v0
    v_lshlrev_b32 v7, 4, v7
    v_add_u32 v2, v2, v7
    v_lshrrev_b32 v{t}, 4, v0
    v_lshl_add_u32 v6, v{t}, 9, v7
    v_lshl_add_u32 v7, v{t}, 8, v7
    v_and_b32 {vPA}, 3, v0
    v_mul_u32_u24 {vPA}, {FSP}, {vPA}
    ''')
    return c.ins


def p23_main(c, R, pre_groups, wpre, issued=None):
    ld = st = SC
    O = lambda k, d: OPT.get(R + k, OPT.get(k, d))
    HPRE = O('hpre', 13)
    nacc, NWB = 3, nwb()
    accof = lambda bi: gACC + 16 * (bi % nacc)
    LA = O('la', 6)
    units = [(bi, kp, m) for kp in range(10) for bi in range(2) for m in range(2)]
    blk = lambda bi: [(bi, kp, m) for kp in range(10) for m in range(2)] + [(bi, 10, 0)]
    units += blk(2)[:LA] + [(0, 10, 0), (1, 10, 0)] + blk(2)[LA:]
    for bi in range(3, 7):
        units += blk(bi)
    up = {x: 4 * k for k, x in enumerate(units)}
    slots = lambda x: [w1_slot(x[0], 2 * x[1] + j, x[2]) for j in range(2)] if x[1] < 10 else [w1_slot(x[0], 20)]
    gRES = 220
    home = {80: vr(gRES, 4), 81: vr(gRES + 4, 4)}
    runits = units[:40] + [(0, 10, 0), (1, 10, 0)] + [x for x in units[40:] if x[0] > 1]
    wbuf, rpos, lastuse, holder = dict(home), {}, {}, {}
    k, prev = 0, -2
    for x in runits:
        for s in slots(x):
            lastuse[s] = up[x] + 3
            want = prev + 2
            if s not in home:
                wbuf[s] = ar(4 * (k % NWB), 4)
                want = max(want if prev >= 0 else -2, lastuse[holder[k % NWB]] + 1 if k >= NWB else -2)
                holder[k % NWB] = s
                k += 1
            rpos[s] = prev = want
            assert want < up[x] - (5 if up[x] > 8 else 0), (x, want)
    rpos = {s: max(p, -1) for s, p in rpos.items()}
    mf, last_of_blk, first_of_blk, started = [], {}, {}, set()
    half = lambda q, j: vr(int(REG_RE.match(q).group(3)) + 2 * j, 2, q[0])
    for x in units:
        bi, kp, m = x
        first_of_blk.setdefault(bi, len(mf))
        for t, j in ((m, 0), (m, 1), (1 - m, 1), (1 - m, 0)):
            if kp < 10:
                a = vr(accof(bi) + 8 * m + 4 * t, 4)
                mf.append(Ins(f'v_mfma_f32_16x16x32_bf16 {a}, {wbuf[slots(x)[j]]}, {vr(gHF + 16 * kp + 8 * j + 4 * t, 4)}, {a if (bi, m, t) in started else "0"}'))
                started.add((bi, m, t))
            else:
                a = vr(accof(bi) + 8 * t + 4 * j, 4)
                mf.append(Ins(f'v_mfma_f32_16x16x16_bf16 {a}, {half(wbuf[slots(x)[0]], t)}, {vr(gMF + 2 * j, 2)}, {a}'))
        last_of_blk[bi] = len(mf) - 1
    N2 = len(mf)
    pre = {}
    P = lambda pos, i: pre.setdefault(pos, []).append(i)

    def hload(k):
        o = []
        if k and (k & 3) == 0:
            o.append(Ins(f's_add_u32 {sH}, {sH}, 4096'))
        o.append(Ins(f'buffer_load_dwordx4 {vr(gHF + 4 * k, 4)}, v6, {WSR}, {sH} offen offset:{hoff(k)}{ld}', f'{R}h{k}'))
        return o
    hoff = lambda k: 2048 * ((k >> 1) & 1) + 256 * (k & 1)

    def dma(g):
        ll = p2_dma(g)
        for l in ll:
            l[-1].tag = f'{R}g{g}'
        return ll
    grp = lambda g: range(16 * g, min(16 * g + 16, 287))
    first_rd = lambda g: min(rpos[s] for s in grp(g))
    bars = sorted({first_rd(min(pre_groups, 3)) - 1} | {first_rd(g) - 1 for g in (5, 7, 9, 12, 14, 16)})
    GPRE = issued or pre_groups
    gjobs = []
    for g in range(pre_groups, 18):
        e = -1 if g < RING else min(b for b in bars if b >= max(lastuse[s] for s in grp(g - RING))) + 2
        cert = max(b for b in bars if b <= first_rd(g))
        if g >= GPRE:
            assert e + 20 < cert, g
            for l in dma(g):
                gjobs.append((e, cert - 4, l))
        if not any(i.mn == '@vm' for i in pre.get(cert, [])):
            P(cert, Ins(f'@vm {R}g{max(g2 for g2 in range(g, 18) if max(b for b in bars if b <= first_rd(g2)) == cert)}'))
    for b in bars:
        P(b, Ins('s_barrier'))
    for x in runits:
        for s in slots(x):
            off = (s % (16 * RING)) * 1024
            if x[1] == 10:
                P(rpos[s] - 2, Ins(f'v_add_u32 v{gT + 6}, {off}, v3'))
                for m in range(2):
                    P(rpos[s], Ins(f'ds_read_b64_tr_b16 {half(wbuf[s], m)}, v{gT + 6} offset:{32 * m}', f'{R}w{s}'))
            else:
                P(rpos[s], Ins(f'ds_read_b128 {wbuf[s]}, {["v1", "v4", "v5"][off >> 16]} offset:{off & 0xffff}', f'{R}w{s}'))
    LG = O('lgn', 2)
    for k in range(0, len(units), LG):
        s = max((s for x in units[k:k + LG] for s in slots(x)), key=lambda s_: (rpos[s_], s_))
        P(max(4 * k - 2, -1), Ins(f'@lg {R}w{s}'))
    DB = 4
    sq = lambda j, k: gT + 2 * (j & 1) + k
    dpos = lambda j: (-1, 5)[j] if j < 2 else 16 * j - 19

    def dots(j):
        o = [f'v_mov_b32 v{sq(j, k)}, {"0" if j == 0 else "v%d" % sq(j - 1, k)}' for k in range(2)]
        return o + [f'v_dot2_f32_bf16 v{sq(j, (r >> 1) & 1)}, v{gHF + 16 * j + r}, v{gHF + 16 * j + r}, v{sq(j, (r >> 1) & 1)}' for r in range(16)]
    cc = Code()
    for j in range(10):
        p = dpos(j)
        P(p, Ins(f'@vm {R}h{4 * j + 3}'))
        P(p, Ins(f'L_hb{j}:'))
        for t in dots(j):
            P(p, Ins(t))
        P(p + 1 if j else p, Ins(f'v_cmp_u_f32 vcc, v{sq(j, 0)}, v{sq(j, 1)}'))
        for t in (['s_nop 0'] if j == 0 else []) + [f's_cbranch_vccnz L_hv{j}', f'L_hok{j}:']:
            P(p + 3 if j else p, Ins(t))
        cc(f'''
        L_hv{j}:
        s_cmp_lg_u32 s15, 0
        s_cbranch_scc1 L_hok{j}
        s_movk_i32 s14, {j}
        {'s_add_u32 s82, s14, 1' if OPT.get('cnt') == 1 else ''}
        s_sub_u32 s13, s13, 1
        s_cbranch_scc1 L_hwait
        s_add_u32 s12, s3, {4096 * j}
        ''')
        for k in range(4):
            cc(f'buffer_load_dwordx4 {vr(gHF + 16 * j + 4 * k, 4)}, v6, {WSR}, s12 offen offset:{hoff(k)}{ld}')
        cc('s_waitcnt vmcnt(0)')
        cc(f'L_hr{j}:')
        for t in dots(j):
            cc(t)
        cc(f'''
        v_cmp_u_f32 vcc, v{sq(j, 0)}, v{sq(j, 1)}
        s_nop 0
        s_cbranch_vccnz L_hv{j}
        s_branch L_hok{j}
        ''')
    T = gACC + 32
    cc(f'''
    L_hwait:
    @reset
    {'s_movk_i32 s82, 11' if OPT.get('cnt') == 1 else ''}
    v_mul_u32_u24 v{T}, {FSP}, v0
    v_add_u32 v{T + 1}, {64 * FSP}, v{T}
    v_add_u32 v{T + 2}, {96 * FSP}, v{T}
    s_branch L_hspin_slow
    L_hspin_ok:
    s_mov_b32 s15, 1
    ''')
    poll_check('hspin', f'v{T + 3}', f'v{T}', WSR, sF2P, 1, 2, more=((f'v{T + 4}', f'v{T + 1}'), (f'v{T + 5}', f'v{T + 2}')))
    for j in range(10):
        if j < 9:
            cc(f's_cmp_gt_u32 s14, {j}')
            cc(f's_cbranch_scc1 L_hskip{j}')
        for k in range(4):
            cc(f'buffer_load_dwordx4 {vr(gHF + 16 * j + 4 * k, 4)}, v6, {WSR}, s3 offen offset:{hoff(k)}{ld}')
        cc(f'L_hskip{j}:')
        cc('s_add_u32 s3, s3, 4096')
    cc('s_waitcnt vmcnt(0)')
    for j in range(9):
        cc(f's_cmp_eq_u32 s14, {j}')
        cc(f's_cbranch_scc1 L_hr{j}')
    cc('s_branch L_hr9')
    SLOW.extend(cc.ins)
    for j in range(10):
        for k in range(4):
            x = gHF + 16 * j + 8 * (k >> 1) + 2 + (k & 1)
            i = Ins(f'v_swap_b32 v{x}, v{x + 2}')
            if j == 1:
                pre.setdefault(9 + 2 * k, []).insert(0, i)
            else:
                P(16 * j - 13 + 4 * k if j else -1, i)
    quads = list(range(140, 172, 4)) + list(range(204, 236, 4))[:7] + [188, 192, 196, 200, 232]
    acc3 = lambda r, b: quads[5 * r + b]
    pairs = [(r, k) for k in (0, 2, 4) for r in range(4)] + [(r, k) for k in (6, 8) for r in range(3)]
    pairs += [[(0, 10), (3, 6), (1, 10), (3, 8), (2, 10), (3, 10)], [(0, 10), (3, 6), (1, 10), (2, 10), (3, 8), (3, 10)],
              [(0, 10), (1, 10), (2, 10), (3, 6), (3, 8), (3, 10)]][O('ord', 0)]
    pairs += [(4, k) for k in (0, 2, 4, 6)]
    seq3 = lorder = [(r, k + j) for r, k in pairs for j in range(2)]
    usepos = {x: N2 + 5 * (i & ~1) for i, x in enumerate(seq3)}
    if O('tl', 1):
        usepos[(4, 6)] = usepos[(4, 7)] = usepos[(4, 4)] + 2
    free_at = {i: up[(6, i >> 2, 1)] + 3 for i in range(NHB)}
    hbuf = {}
    CP1 = first_of_blk[6] + O('cp1', 5)
    CP2 = N2 + O('cp2', 65)
    CP3 = N2 + O('cp3', 130)
    CP4 = N2 + O('cp4', 196)
    hjobs, rjobs = [], []
    for b in range(5):
        if b < 4:
            i = Ins(f'buffer_load_dwordx2 {vr(gRES + 2 * b, 2)}, v6, {WSR}, {sRES} offen offset:{2048 * (b >> 1) + 256 * (b & 1)}{ld}')
        else:
            i = Ins(f'buffer_load_dwordx2 {vr(gRES + 2 * b, 2)}, v7, {WSR}, {sRES4} offen{ld}')
        rjobs.append((up[(1, 10, 0)] + 4, CP1 - 20, [i]))
    for x in lorder:
        r, ks = x
        b = min(free_at, key=lambda k_: (free_at[k_], k_))
        cp = CP4 if r == 4 else (CP3 if ks >= 10 else (CP2 if ks >= 6 else CP1))
        e = max(cp + 1, free_at[b])
        hbuf[x] = b
        free_at[b] = usepos[x] + 9
        l = []
        if r < 4:
            if ks and (ks & 3) == 0:
                l.append(Ins(f's_add_u32 s{sHR + r}, s{sHR + r}, 4096'))
            so, off = f's{sHR + r}', 1024 * (ks & 3)
        else:
            if ks and (ks & 1) == 0:
                l.append(Ins(f's_add_u32 {sHB}, {sHB}, {56 * 256}'))
            so, off = sHB, 1024 * (ks & 1)
        l.append(Ins(f'buffer_load_dwordx4 {vr(gHF + 4 * b, 4)}, v1, {WSR}, {so} offen offset:{off}{ld}', f'{R}hq{r}_{ks}'))
        hjobs.append((e, usepos[x] - 2, l))
        if seq3.index(x) % 2 == 0:
            P(usepos[x] - 1, Ins(f'@vm {R}hq%d_%d' % max(seq3[seq3.index(x):seq3.index(x) + 2], key=lorder.index)))
    done3, wlast = {}, {}
    TL = O('tl', 1)
    fin = {}
    for r, k in pairs:
        if TL and (r, k) == (4, 6):
            continue
        kk = [k, k + 1] + ([6, 7] if TL and (r, k) == (4, 4) else [])
        for b in range(5):
            a = vr(acc3(min(r, 3), b), 4)
            for n, ks in enumerate(kk if b & 1 == 0 else kk[::-1]):
                if r < 4:
                    wlast[5 * ks + b] = len(mf)
                mf.append(Ins(f'v_mfma_f32_16x16x32_bf16 {a}, {wfrag(5 * ks + b)}, {vr(gHF + 4 * hbuf[(r, ks)], 4)}, {"0" if k == 0 and n == 0 and r < 3 else a}'))
            fin[b] = len(mf) - 1
        done3[r] = len(mf) - 1
    P(CP3 + 2, Ins(f'v_and_b32 {vPA}, 15, v0'))
    P(CP3 + 3, Ins(f'v_mul_u32_u24 {vPA}, {FSP}, {vPA}'))
    pjobs = []
    for nm, cp, lead in (('cp1', CP1, O('l1', 48)), ('cp2', CP2, O('l2', 45)), ('cp3', CP3, O('l3', 45)), ('cp4', CP4, O('l4', 45))):
        so = sF3Q if nm == 'cp4' else sF3P
        pjobs.append((cp - lead, cp - lead + 10, [poll_load(vPV, vPA, WSR, so)]))
        for i in poll_check(R + nm, vPV, vPA, WSR, so, 0 if OPT.get('nocp') else 1, 2):
            P(cp, i)
        if nm in ('cp1', 'cp2'):
            P(cp + 1, Ins(f's_add_u32 {sF3P}, {sF3P}, {256 * FSP}'))
    POST = {2: first_rd(12) - 1, 4: N2 - O('po5', 47), 5: N2 + O('po6', 34), 6: N2 + O('po7', 82)}
    for bi, p in POST.items():
        if p in bars:
            pre[p].insert(0, Ins(f'@vm {R}hh{bi}'))
        else:
            P(p, Ins(f'@vm {R}hh{bi}'))
            if bi == 6:
                P(p, Ins(f'@vm {R}wl'))
            P(p, Ins('s_barrier'))
        pjobs.append((p + 1, p + 10, ([Ins(f's_add_u32 {sF3}, {sF3}, {256 * FSP}')] if bi > 2 else []) +
                      [Ins(f'buffer_store_dword {vFV}, {vOOB}, {WSR}, {sF3} offen{st}')]))
    pjobs.sort(key=lambda x: x[0])
    assert POST[2] + 6 < CP1 and POST[4] + 6 < CP2 and POST[5] + 6 < CP3 and POST[6] + 6 < CP4
    BARW = POST[6]
    wjobs = [(0 if j < 66 - NWB else N2, usepos[(0, j // 5)] - 1, p3_wload(j, R)) for j in range(wpre, 60)]
    ljobs = [(min(b for b in bars if b >= max(lastuse[s] for s in grp(11))) + 2, BARW - 40, p3_wload(j, R)) for j in range(60, 70)]
    h2jobs = [(0, dpos(ks >> 2) - 1, hload(ks)) for ks in range(HPRE, 40)]
    tpos, t = [], 0
    for k, m in enumerate(mf):
        tpos.append(t)
        t += 16.6
        if k in [dpos(j) for j in range(10)]:
            t += 12 + 16 * DB
    for r in range(3):
        p = max(done3[r] + 1, p if r else 0)
        for b in range(5):
            p += O('pws', 3)
            while p in pre:
                p += 1
            P(p, Ins(f'ds_write_b128 v{2 + r}, {vr(acc3(r, b), 4)} offset:{1024 * (5 * r + b)}', f'{R}pw{r}'))
    PRD = p + 3
    vm, pre2, where = pace([h2jobs, gjobs + ljobs, wjobs, hjobs, pjobs, rjobs], tpos,
                           lambda p: O('spa', 50) if p < 144 else (O('spb', 100) if p < O('xe', 340) else (O('spd', 72) if p < N2 else O('spc', 68))),
                           avoid={p for p, l in pre.items() if p >= 144 or (sum(i.cost for i in l) > O('av', 0) and p not in [dpos(j) for j in range(10)])},
                           load={p: sum(i.cost for i in l) for p, l in pre.items()})
    vm[-1] = sum((hload(ks) for ks in range(HPRE)), [])
    for p, l in pre2.items():
        for i in l:
            P(p, i)
    lead = sorted((int(tpos[d] - tpos[where[id(l[-1])]]), l[-1].tag) for _, d, l in h2jobs + wjobs + hjobs)
    print(R, 'smallest leads', lead[:5], 'last vm at', max(where.values()) - N2, file=sys.stderr)
    p = BARW + 1
    for j in range(40):
        p = max(p + 2, wlast[j])
        while p in vm or sum(i.cost for i in pre.get(p, [])) > 4:
            p += 1
        assert p < usepos[(4, j // 5)] - 8
        P(p, Ins(f'ds_read_b128 {wfrag(j)}, v1 offset:{1024 * j}'))
    mk = ((8, 0), (9, 160), (10, N2 - 1), (11, N2 + 140), (12, len(mf) - 1))
    if OPT.get('mk23') == 2:
        mk = [(k + 1, N2 - 1 + 25 * k) for k in range(12)]
    if OPT.get('mk23') == 4:
        mk = []
    if OPT.get('mk23') == 3:
        mk = [(k + 1, 53 * k) for k in range(12)]
    for k, p in ([] if OPT.get('mk1') else mk):
        for i in ([] if k == 11 and OPT.get('cnt') else mark(k, True)):
            P(p, i)
    bg = []
    B = lambda pos, t, tag=None: bg.append((pos, Ins(t, tag and R + tag)))
    p = 160
    NM, VA, RS, C1, T2 = gT + 1, gT, gT + 2, gT + 3, gT + 4
    SA, SB = sq(9, 0), sq(9, 1)
    B(130, f'v_permlane16_swap_b32 v{SA}, v{SB}')
    B(130, f'v_add_f32 v{VA}, v{SA}, v{SB}')
    B(130, f'v_add_f32 v{T2}, v{SA}, v{SB}')
    B(up[(0, 9, 0)] + 8, f'v_mov_b32 v{T2 + 1}, v{accof(0)}')
    B(0, f'v_mov_b32 v{NM}, v{accof(0) + 4}')
    B(0, f'v_permlane32_swap_b32 v{VA}, v{T2}')
    B(0, f'v_permlane16_swap_b32 v{T2 + 1}, v{NM}')
    B(0, f'v_add_f32 v{VA}, v{VA}, v{T2}')
    B(0, f'v_mov_b32 v{T2 + 1}, v{NM}')
    B(-1, f'v_permlane32_swap_b32 v{T2 + 1}, v{NM}')
    cc = Code()
    ln_finish(cc, NM, VA, RS)
    for i in cc.ins:
        bg.append((0, i))
    for k in range(4):
        B(0, f'v_cvt_pk_bf16_f32 v{gMF + k}, v{NM}, v{NM}')
    B(0, f'v_permlane16_swap_b32 v{gMF}, v{gMF + 2}')
    B(0, f'v_permlane16_swap_b32 v{gMF + 1}, v{gMF + 3}', 'mf')
    B(0, f'v_mul_f32 v{C1}, 0xbfb8aa3b, v{RS}')
    B(0, f'v_mul_f32 v{T2}, 0xbfb8aa3b, v{RS}')
    B(0, f'v_mul_f32 v{NM}, v{VA}, v{RS}')
    B(0, f'v_mul_f32 v{VA}, v{VA}, v{RS}')
    B(0, f'v_permlane16_swap_b32 v{C1}, v{T2}')
    B(-1, f'v_permlane16_swap_b32 v{VA}, v{NM}')
    c1 = lambda r: C1 + (r >> 2)
    sd = lambda r: VA + (r >> 2)
    epi_last = {}
    for bi in range(7):
        a = accof(bi)
        p = last_of_blk[bi] + 3
        if bi == 6:
            for b in range(5):
                q = acc3(3, b)
                B(0, f'v_lshlrev_b32 v{q}, 16, v{gRES + 2 * b}')
                B(0, f'v_and_b32 v{q + 1}, 0xffff0000, v{gRES + 2 * b}')
                B(0, f'v_lshlrev_b32 v{q + 2}, 16, v{gRES + 2 * b + 1}')
                B(0, f'v_and_b32 v{q + 3}, 0xffff0000, v{gRES + 2 * b + 1}', 'res')
        B(p, f'v_mul_f32 v{a}, v{c1(0)}, v{a}')
        for r in range(8):
            if r < 7:
                B(p, f'v_mul_f32 v{a + r + 1}, v{c1(r + 1)}, v{a + r + 1}')
            else:
                B(p, f'v_fma_f32 v{a}, v{a}, v{sd(0)}, v{sd(0)}')
            B(p, f'v_exp_f32 v{a + r}, v{a + r}')
        for r in range(8):
            if r < 7:
                B(p, f'v_fma_f32 v{a + r + 1}, v{a + r + 1}, v{sd(r + 1)}, v{sd(r + 1)}')
            else:
                B(p, f'v_mul_f32 v{a + 8}, v{a + 8}, v{a}')
            B(p, f'v_rcp_f32 v{a + r}, v{a + r}')
        for r in range(1, 8):
            B(p, f'v_mul_f32 v{a + 8 + r}, v{a + 8 + r}, v{a + r}')
        for r in (0, 2, 1, 3):
            B(p, f'v_cvt_pk_bf16_f32 v{a + r}, v{a + 8 + 2 * r}, v{a + 9 + 2 * r}')
        B(p, f'v_permlane16_swap_b32 v{a}, v{a + 2}')
        B(p, f'v_permlane16_swap_b32 v{a + 1}, v{a + 3}')
        B(p, f'buffer_store_dwordx4 {vr(a, 4)}, v2, {WSR}, {sHHS} offen offset:{2048 * (bi & 1)}{st}', f'hh{bi}')
        epi_last[bi] = bg[-1][1]
        if bi & 1:
            B(p, f's_add_u32 {sHHS}, {sHHS}, 4096')
    for r in range(4):
        B(0, f's_add_u32 s39, {sWAVE}, {r + 1}')
        B(0, f's_and_b32 s39, s39, 3')
        B(0, f's_mul_i32 s39, s39, {15 * 1024}')
        B(0, f's_add_u32 s39, s39, 65536')
        B(0, f'v_add_u32 v{2 + r}, s39, v1')
    OB = O('ob', 1)
    B(0, f'v_lshrrev_b32 v{gT}, 4, v0')
    B(0, f'v_and_b32 v6, 15, v0')
    B(0, f'v_mul_u32_u24 v6, {176 if OB else 1280}, v6')
    if OB:
        B(0, f's_add_u32 s39, {sP2L}, 131072')
        B(0, f'v_add_u32 v6, s39, v6')
        B(0, f'v_mul_u32_u24 v{gT + 1}, 205, v0')
        B(0, f'v_lshrrev_b32 v{gT + 1}, 11, v{gT + 1}')
        B(0, f'v_lshl_add_u32 v{gT + 2}, v{gT + 1}, 4, v1')
        B(0, f'v_add_u32 v{gT + 2}, s39, v{gT + 2}')
        B(0, f'v_mul_u32_u24 v{gT + 1}, 1120, v{gT + 1}')
        B(0, f'v_add_u32 v{gT + 1}, v{gT + 1}, v1')
        B(0, f's_add_u32 s34, {sOUT}, {6 * 1280}')
        B(0, f's_add_u32 s35, {sOUT}, {12 * 1280}')
    B(0, f'v_lshl_add_u32 v7, v{gT}, 3, v6')
    B(0, f'v_lshl_add_u32 v6, v{gT}, 4, v6', 'adr')
    B(PRD, f'@lg {R}pw2')
    B(0, 's_barrier')
    for b in range(5):
        for r in range(3):
            B(0, f'ds_read_b128 {vr(acc3(r, b), 4)}, v5 offset:{1024 * (5 * r + b)}', 'pr')
    OR = gACC
    OS = ['', ' sc1', ' nt', ' sc1 nt', ' sc0 sc1'][O('os', 0)]

    def psum(b):
        if b == O('npk', 3):
            B(len(mf), f'@lg {R}pr')
        for r in (1, 2):
            for k in range(4):
                if b < O('npk', 3):
                    B(PRD + 10, f'v_add_f32 v{acc3(0, b) + k}, v{acc3(0, b) + k}, v{acc3(r, b) + k}', 'sum')
                elif k & 1 == 0:
                    B(len(mf), f'v_pk_add_f32 {vr(acc3(0, b) + k, 2)}, {vr(acc3(0, b) + k, 2)}, {vr(acc3(r, b) + k, 2)}')

    def final(b):
        p = fin[b] + 4
        if b < min(3, O('npk', 3) - 1):
            for k in range(4):
                B(p, f'v_add_f32 v{acc3(0, b) + k}, v{acc3(0, b) + k}, v{acc3(3, b) + k}')
        else:
            p = len(mf)
            for k in (0, 2):
                B(p, f'v_pk_add_f32 {vr(acc3(0, b) + k, 2)}, {vr(acc3(0, b) + k, 2)}, {vr(acc3(3, b) + k, 2)}')
        for k in (0, 2):
            B(p, f'v_cvt_pk_bf16_f32 v{OR + 2 * b + k // 2}, v{acc3(0, b) + k}, v{acc3(0, b) + k + 1}')
        if b in (1, 3):
            B(p, f'ds_write_b128 v6, {vr(OR + 2 * b - 2, 4)} offset:{32 * (b - 1)}' if OB else
              f'buffer_store_dwordx4 {vr(OR + 2 * b - 2, 4)}, v6, {OUTS}, {sOUT} offen offset:{32 * (b - 1)}{OS}')
        if b == 4:
            B(p, f'ds_write_b64 v7, {vr(OR + 8, 2)} offset:128' if OB else f'buffer_store_dwordx2 {vr(OR + 8, 2)}, v7, {OUTS}, {sOUT} offen offset:128{OS}')
    for f, b in ((psum, 0), (psum, 1), (final, 0), (final, 1), (psum, 2), (final, 2), (psum, 3), (psum, 4), (final, 3), (final, 4)):
        f(b)
    if OB:
        p = len(mf)
        B(p, 's_mov_b32 exec_hi, 0x0fffffff')
        for i in range(3):
            B(p, f'ds_read_b128 {vr(acc3(1, i), 4)}, v{gT + 2} offset:{6 * 176 * i}')
        for i, so in enumerate((sOUT, 's34', 's35')):
            if i == 2:
                B(p, 's_mov_b32 exec_hi, 0xff')
            B(p, f'buffer_store_dwordx4 {vr(acc3(1, i), 4)}, v{gT + 1}, {OUTS}, {so} offen{OS}')
        B(p, 's_mov_b64 exec, -1')
    xtra = {k: O('xb', 8) for k in range(N2, N2 + 40)}
    xtra.update({k: 4 for k in range(140, N2) if k % O('xa', 32) == 0 or (k < O('xe', 340) and k % O('xa1', 2) == 0)})
    out = weave(mf, pre, bg, vm, xtra)
    pos = {id(i): k for k, i in enumerate(out)}
    tagged = lambda t: [i for _, i in bg if i.tag == R + t][-1]
    at = lambda t: max(j for j in range(len(mf)) if pos[id(mf[j])] < pos[id(tagged(t))])
    assert at('mf') < up[(0, 10, 0)] - 1, ('mean fragment not ready', at('mf'))
    for bi in range(nacc, 7):
        assert at(f'hh{bi - nacc}') < first_of_blk[bi] - 1, ('acc reuse', bi, at(f'hh{bi - nacc}'))
    assert at('hh5') < N2 + 12 and at('res') < N2 + 20, (at('hh5'), at('res'))
    assert at('adr') < done3[0] and BARW < done3[0]
    print(R, ' '.join(f'{t}@{at(t) - N2}' for t in ('hh0', 'hh1', 'hh2', 'hh3', 'hh4', 'hh5', 'res', 'hh6', 'sum')),
          'cp', CP1 - N2, CP2 - N2, CP3 - N2, CP4 - N2, 'prd', PRD - N2, 'after last mfma', len(out) - pos[id(mf[-1])], file=sys.stderr)
    c.extend(out)
```

```python
import sys
from asmlib import *
from phases import *
import phases

NAME = 'sequential_preLN__ssm_conv_h3__glu_gated_glu__prompt'
KN = NAME + '_kernel'
HEADER = open('cdna_kernels/%s.s.ref' % NAME).read().split('; Override launch')[0]


def stamp_begin(c, ts):
    if ts:
        for k in range(1, 13):
            c(f's_mov_b32 s{60 + 2 * k}, 0')
        c('s_memtime s[86:87]')


def stamp_end(c, ts, k):
    if ts:
        c(f'''
        s_waitcnt vmcnt(0) lgkmcnt(0)
        s_memrealtime s[90:91]
        s_memtime s[88:89]
        s_lshl_b32 s34, s2, 2
        s_add_u32 s34, s34, {sWAVE}
        s_lshl_b32 s34, s34, 6
        s_add_u32 s34, s34, {TS_OFF + k * 65536}
        s_waitcnt lgkmcnt(0)
        ''')
        for j in range(16):
            c(f'v_mov_b32 v{j}, s{60 + 2 * j}')
        c('v_mov_b32 v16, 0')
        c('s_mov_b64 exec, 1')
        for j in range(4):
            c(f'buffer_store_dwordx4 v[{4 * j}:{4 * j + 3}], v16, {WSR}, s34 offen offset:{16 * j}')


def desc(name, vgpr, accum):
    return f'''.amdhsa_kernel {name}
  .amdhsa_next_free_vgpr {vgpr}
  .amdhsa_next_free_sgpr 102
  .amdhsa_accum_offset {accum}
  .amdhsa_group_segment_fixed_size 0
  .amdhsa_kernarg_size 104
  .amdhsa_user_sgpr_count 2
  .amdhsa_user_sgpr_kernarg_segment_ptr 1
  .amdhsa_system_sgpr_workgroup_id_x 1
  .amdhsa_float_denorm_mode_32 3
.end_amdhsa_kernel'''


def go_addr(c, va):
    c(f'v_and_b32 {va}, 7, v0')
    c(f'v_lshlrev_b32 {va}, 5, {va}')


def wg_flag(c, soff, wait='s_waitcnt vmcnt(0)'):
    c(wait)
    c('s_barrier')
    c(f's_cmp_eq_u32 {sWAVE}, 0')
    c(f's_cselect_b32 s42, {soff}, 0x7f000000')
    c(f'buffer_store_dword v7, v6, {WSR}, s42 offen{SC}')


def probe(c, a, b, mult, rng=(0, 16), raw=False):
    c('.p2align 8')
    c('.type probe_kernel,@function')
    c('probe_kernel:')
    c('@reset')
    c('s_cmp_ge_u32 s2, 1')
    c('s_cbranch_scc1 L_probe_exit')
    srd(c, 8, WS, WS_USED)
    c('v_lshlrev_b32 v1, 6, v0')
    c('s_waitcnt lgkmcnt(0)')
    for k, (kn, wd, op) in enumerate([(0, 0, 'min'), a, b]):
        c(f's_mov_b32 s20, {TS_OFF + kn * 65536 + wd * 4}')
        for i in range(16):
            c(f'buffer_load_dword v{8 + i}, v1, {WSR}, s20 offen')
            c('s_add_u32 s20, s20, 4096')
        lo, hi = rng if k == 2 else (0, 16)
        if lo:
            c(f'v_mov_b32 v8, v{8 + lo}')
        for i in range(lo + 1, hi):
            c(f'v_{op}_u32 v8, v8, v{8 + i}')
        c(f'v_readlane_b32 s{30 + k}, v8, 0')
        for l in range(1, 64):
            c(f'v_readlane_b32 s21, v8, {l}')
            c(f's_{op}_u32 s{30 + k}, s{30 + k}, s21')
    c(f'''
    {'s_mul_i32 s32, s32, 100' if raw else 's_sub_u32 s32, s32, s31'}
    s_min_u32 s32, s32, 20000
    s_mul_i32 s32, s32, {mult}
    s_add_u32 s32, s32, 10000
    L_probe_spin:
    s_memrealtime s[22:23]
    s_waitcnt lgkmcnt(0)
    s_sub_u32 s22, s22, s30
    s_cmp_lt_u32 s22, s32
    s_cbranch_scc1 L_probe_spin
    L_probe_exit:
    s_endpgm
    ''')


def untag(ll):
    for l in ll:
        for i in l:
            i.tag = None
    return ll


def build(ts=False, opts={}):
    c = Code()
    OPT.clear()
    OPT.update(opts)
    OPT['ts'] = ts
    SLOW.clear()
    CHECKS.clear()
    SHORT[0] = OPT.get('short', 1)
    c('.p2align 8')
    c(f'.type {KN},@function')
    c(f'{KN}:')
    if ts:
        c('s_memrealtime s[60:61]')
    c('s_cmp_lt_u32 s2, 160')
    c('s_cbranch_scc1 L_conv')
    c('s_cmp_ge_u32 s2, 256')
    c('s_cbranch_scc1 L_exit')
    if OPT.get('codepf', 1):
        c(f'''
        s_cmp_lt_u32 s2, 240
        s_cbranch_scc1 L_side
        s_getpc_b64 s[34:35]
        L_pc:
        s_and_b32 s36, s2, 8
        s_lshl_b32 s36, s36, 12
        v_lshl_add_u32 v1, v0, 7, s36
        v_min_u32 v2, L_code_end-L_pc-4, v1
        v_mov_b32 v3, s35
        v_add_co_u32 v2, vcc, s34, v2
        v_addc_co_u32 v3, vcc, 0, v3, vcc
        global_load_dword v250, v[2:3], off
        ''')
    c('s_branch L_side')
    c('L_conv:')
    c('@reset')
    for base, slot in ((12, A_K), (16, A_V), (20, A_SH)):
        c(f's_load_dwordx2 s[{base}:{base + 1}], s[0:1], {slot}')
    c(f'''
    s_mov_b32 s14, {NBYTES_SD}
    s_mov_b32 s15, 0x20000
    s_mov_b64 s[18:19], s[14:15]
    s_movk_i32 s22, {D * 8}
    s_mov_b32 s23, s15
    ''')
    ids(c)
    conv_ids(c)
    p0_kv_load(c, 's[12:15]', 's[16:19]', 's[20:23]')
    srd(c, 24, A_SSMK, NBYTES_SD)
    srd(c, 28, A_SSMD, D * 2)
    srd(c, 8, WS, WS_USED)
    srd(c, 48, OUT, NBYTES_SD)
    srd(c, 52, DBG, 256)
    c('s_mov_b32 s59, 0xffff0000')
    stamp_begin(c, ts)
    c.extend(mark(1))
    p23_ids(c)
    late = p1_k_load(c, 's[24:27]', 's[28:31]')
    srd(c, 44, B_WD, D * F * 2)
    wd_setup(c)
    WDL = OPT.get('wdl', 0)
    if WDL:
        late += wd_loads('s[44:47]')
    else:
        c.extend(sum(wd_loads('s[44:47]'), []))
    for k in range(OPT.get('le', 0)):
        c.extend(late.pop(0))
    p0_kv(c, late)
    assert not late
    go_addr(c, 'v122')
    c.add(poll_load('v123', 'v122', DBGS, '0'))
    WDS = OPT.get('wds', 0)
    if WDS < 0:
        c.extend(wd_reads() + wd_stores())
    c.extend(mark(2))
    flag_regs(c, vOOB, vFV)
    c(f'''
    s_lshl_b32 s37, {sSG}, 2
    s_add_u32 s35, s37, {sWAVE}
    s_lshl_b32 s35, s35, 4
    s_add_u32 s35, s35, {sIDX}
    s_mul_i32 s35, s35, {FSP}
    s_add_u32 s35, s35, {F1_OFF}
    s_lshr_b32 s36, {sIDX}, 2
    s_add_u32 s36, s36, s37
    s_mul_i32 s36, s36, {16 * FSP}
    s_add_u32 s36, s36, {F1_OFF}
    ''')
    def setup():
        c(f'''
        v_and_b32 v8, 15, v0
        v_mul_u32_u24 v8, {FSP}, v8
        s_mul_i32 s46, s34, {FSP}
        s_add_u32 s46, s46, {F2_OFF}
        s_add_u32 s41, {sWAVE}, 2
        s_mul_i32 s41, s41, {160 * FSP}
        s_add_u32 s41, s41, s46
        s_sub_u32 s40, s46, {F2_OFF - FD_OFF}
        s_cmp_ge_u32 {sWAVE}, 1
        s_cselect_b32 s46, 0x70000000, s46
        s_cselect_b32 s40, 0x70000000, s40
        s_cselect_b32 s36, 0x70000000, s36
        ''')
        fa_addr(c, 'v138', 'v139')
        fw_addr(c, 'v140')
        f2_addr(c, 'v142')
    work = [lambda: c.extend(wd_reads() if WDS >= 0 else []), lambda: p23_scalars(c), lambda: p1_k(c), lambda: p1_k_frag(c), setup]
    NBF = OPT.get('nbf', 1)
    for f in work[:NBF]:
        f()
    c.extend(poll_check('go_c', 'v123', 'v122', DBGS, '0', 1))
    c('@vm ust')
    c(f'buffer_store_dword {vFV}, {vOOB}, {WSR}, s35 offen{SC}')
    c.extend(mark(3))
    if NBF == 0:
        work[0]()
    if WDS == 0:
        c.extend(wd_stores())
    for f in work[max(NBF, 1):]:
        f()
    if OPT.get('lw', 1):
        c('s_waitcnt lgkmcnt(0)')
    if OPT.get('vw', 0):
        c('s_waitcnt vmcnt(0)')
    c.add(poll_load('v9', 'v8', WSR, 's36'))
    c(f's_cmp_ge_u32 {sWAVE}, 1')
    c('s_cbranch_scc1 L_s1_ok')
    c.extend(poll_check('s1', 'v9', 'v8', WSR, 's36', 1, OPT.get('s1sleep', 0)))
    c('s_waitcnt vmcnt(0)')
    c('s_barrier')
    c.extend(mark(4))
    p1_load_u(c)
    FAP = OPT.get('fap', -1)
    if FAP < 0:
        c.add(poll_load('v139', 'v138', WSR, 's47'))
    fdpost = [Ins(f'buffer_store_dword {vFV}, {vOOB}, {WSR}, s40 offen{SC}')]
    c.extend(wd_stores() if WDS > 0 else fdpost)
    fd_addr(c, 'v128')
    FA, FD, FP, WP = OPT.get('fa', 28), OPT.get('fd', 125), OPT.get('fp', 280), OPT.get('wp', 32)
    inj = [(0, mark(5)), (FA, poll_check('fa', 'v139', 'v138', WSR, 's47', 1, 2)), (FD, poll_check('fd_c', 'v129', 'v128', WSR, 's58', 1, 2))]
    if WDS > 0:
        inj.append((WDS, [Ins('@vm wds'), Ins('s_barrier')] + fdpost))
    if OPT.get('mk1'):
        inj += [(p, mark(k)) for k, p in ((10, 96), (11, 192), (12, 287))]
    if OPT.get('mk23') == 4:
        inj += [(26 * k + 1, mark(k + 1, True)) for k in range(12)]
    polls = [(FAP, FAP + 8, [poll_load('v139', 'v138', WSR, 's47')])] if FAP >= 0 else []
    polls += [(FD - 40, FD - 30, [poll_load('v129', 'v128', WSR, 's58')])]
    if FP < 288:
        polls.append((FP, 287, [poll_load('v141', 'v140', WSR, 's57')]))
    sj = [(FA + 2, 200, l) for l in p1_load_x()]
    sj += [(FD + 2, 287, l) for l in untag([p3_wload(j) for j in range(WP)])]
    p1_main(c, inj, [polls, sj], [poll_load('v141', 'v140', WSR, 's57')] if FP >= 288 else [])
    fl3 = f'buffer_store_dword {vFV}, {vOOB}, {WSR}, s41 offen{SC}'
    c.extend(poll_check('fw_c', 'v141', 'v140', WSR, 's57', 1, 4, first=fl3))
    G1, G2, GI = OPT.get('g1', 2), OPT.get('g2', 5), OPT.get('gi', 7)
    if OPT.get('mkg'):
        c.extend(mark(1))
    GO2 = OPT.get('go2', 0)
    for g in range(G1):
        c.extend(sum(untag(p2_dma(g)), []))
    c.extend(p23_vectors())
    if OPT.get('mkg'):
        c.extend(mark(2))
    if not GO2:
        c('@vm hst3')
        c(fl3)
    if OPT.get('mkg'):
        c.extend(mark(3))
    c('s_branch L_ring')
    c('L_side:')
    c('@reset')
    srd(c, 12, A_Q, NBYTES_SD)
    srd(c, 16, B_WG, D * F * 2)
    srd(c, 20, B_WU, D * F * 2)
    srd(c, 8, WS, WS_USED)
    srd(c, 48, OUT, NBYTES_SD)
    srd(c, 52, DBG, 256)
    ids(c)
    c('s_mov_b32 s59, 0xffff0000')
    stamp_begin(c, ts)
    flag_regs(c, 'v6', 'v7')
    go_addr(c, 'v122')
    c(f's_cmp_ge_u32 {sSLOT}, 28')
    c('s_cbranch_scc1 L_side2')
    N1 = OPT.get('n1', 3)
    HS = OPT.get('hs', 0)
    N2 = 5 if HS else (40 - 8 * N1) // 4
    c(f'''
    s_sub_u32 s56, s2, 160
    s_sub_u32 s43, {sSLOT}, 20
    s_mov_b32 s7, {sXCD}
    s_mul_i32 s6, s7, {N1}
    ''')
    if HS:
        c('''
        s_and_b32 s58, s7, 1
        s_lshr_b32 s57, s7, 1
        s_sub_u32 s6, s6, s57
        ''')

    def mid1():
        side_w1(c, 's43', 's6', 's7', N1, 0, 1)
        c.extend(poll_check('go_a', 'v123', 'v122', DBGS, '0', 1, 4))
        wg_flag(c, 's56', '')
        c.extend(mark(1))
    W1AT = OPT.get('w1at', 2)
    p0_x(c, 's[12:15]', 's56', lambda k: side_w1_load(c, 's[16:19]', 's[20:23]', 's43', 's6', N1, 0, -1, None) if k == W1AT else None)
    c.add(poll_load('v123', 'v122', DBGS, '0'))
    c(f's_mul_i32 s56, s56, {FSP}')
    c(f's_add_u32 s56, s56, {FX_OFF}')
    if W1AT == 2:
        side_w1_load(c, 's[16:19]', 's[20:23]', 's43', 's6', N1, 0, OPT.get('w1pre', 1), mid1)
    else:
        mid1()
    side_w1(c, 's43', 's6', 's7', N1, 0, 2)
    c('s_branch L_w1_done')
    c('L_side2:')
    c('@reset')
    c('s_waitcnt lgkmcnt(0)')
    c(f'''
    s_sub_u32 s56, s2, 224
    s_lshl_b32 s45, s56, 2
    s_add_u32 s45, s45, {sWAVE}
    s_lshl_b32 s45, s45, 12
    s_add_u32 s45, s45, {FL_OFF}
    s_lshl_b32 s58, s56, 5
    s_cmp_eq_u32 {sWAVE}, 0
    s_cselect_b32 s58, s58, 0x70000000
    s_cmp_lt_u32 s56, 8
    s_cselect_b32 s45, s45, 0x70000000
    v_lshlrev_b32 v14, 4, v0
    v_mov_b32 v200, 0
    v_mov_b32 v201, 0
    v_mov_b32 v202, 0
    v_mov_b32 v203, 0
    ''')
    for k in range(4):
        c(f'buffer_store_dwordx4 v[200:203], v14, {WSR}, s45 offen offset:{1024 * k}{SC}', 'za')
    c(f'''
    s_and_b32 s43, {sXCD}, 1
    s_lshl_b32 s43, s43, 2
    s_add_u32 s43, s43, {sSLOT}
    s_sub_u32 s43, s43, 28
    s_lshr_b32 s7, {sXCD}, 1
    s_mul_i32 s6, s7, {N2}
    s_add_u32 s6, s6, {40 - 4 * N2}
    s_lshl_b32 s57, s7, 1
    s_add_u32 s57, s57, 8
    s_add_u32 s7, s7, 8
    ''')

    def mid2():
        side_w1(c, 's43', 's6', 's57', N2, 1, 1)
        c('@vm za')
        c('s_barrier')
        c(f'buffer_store_dword v7, v6, {DBGS}, s58 offen{SC}')
        c.extend(mark(1))
    side_w1_load(c, 's[16:19]', 's[20:23]', 's43', 's6', N2, 1, OPT.get('w2pre', 2), mid2)
    side_w1(c, 's43', 's6', 's57', N2, 1, 2)
    c('L_w1_done:')
    c('@reset')
    c.add(poll_load('v123', 'v122', DBGS, '0'))
    c(f'''
    s_lshl_b32 s56, s43, 4
    s_add_u32 s56, s56, s7
    s_mul_i32 s56, s56, {FSP}
    s_add_u32 s56, s56, {FW1_OFF}
    ''')
    p23_ids(c)
    p23_scalars(c)
    fw_addr(c, 'v8')
    f2_addr(c, 'v142')
    c(f'''
    v_lshlrev_b32 v1, 4, v0
    v_mul_u32_u24 v13, {FSP}, v0
    s_mov_b32 s47, {FX_OFF}
    ''')
    flag_regs(c, vOOB, vFV)
    c('s_mov_b32 s41, 0x70000000')
    c.extend(poll_check('go_b', 'v123', 'v122', DBGS, '0', 1, 4))
    wg_flag(c, 's56')
    c.extend(mark(2))
    c.extend(p23_vectors())
    fd_addr(c, 'v10')
    CAN = OPT.get('can', 1)
    if CAN:
        c(f'''
        s_cmp_lt_u32 {sSLOT}, 28
        s_cbranch_scc1 L_nocan
        s_cmp_lg_u32 {sWAVE}, 0
        s_cbranch_scc1 L_fx2_ok
        s_add_u32 s46, {sXCD}, {OPT.get('rot', 7)}
        s_and_b32 s46, s46, 7
        s_mul_i32 s46, s46, {16 * FSP}
        s_add_u32 s46, s46, {FD_OFF}
        v_and_b32 v15, {CAN - 1}, v0
        v_mul_u32_u24 v15, {FSP}, v15
        ''')
        c.add(poll_load('v11', 'v15', WSR, 's46'))
        c.extend(poll_check('can', 'v11', 'v15', WSR, 's46', 1, 8))
        c.add(poll_load('v14', 'v13', WSR, 's47'))
        c.extend(poll_check('fx2', 'v14', 'v13', WSR, 's47', 1, 8))
        c('s_barrier')
        c('L_nocan:')
    c(f's_cmp_eq_u32 {sWAVE}, 0')
    c('s_cselect_b32 s47, s47, 0x70000000')
    c.add(poll_load('v11', 'v10', WSR, 's58'))
    c.add(poll_load('v14', 'v13', WSR, 's47'))
    c.extend(poll_check('fd_s', 'v11', 'v10', WSR, 's58', 1, 8))
    for j in range(WP):
        c.extend(untag([p3_wload(j)])[0])
    c(f's_cmp_lg_u32 {sWAVE}, 0')
    c('s_cbranch_scc1 L_fw_s_ok')
    C2 = OPT.get('can2', 1)
    if not C2:
        c.add(poll_load('v9', 'v8', WSR, 's57'))
    c.extend(poll_check('fx_s', 'v14', 'v13', WSR, 's47', 1, 8))
    if C2:
        if C2 == 1:
            c(f's_cmp_lt_u32 {sSLOT}, 28')
            c('s_cbranch_scc1 L_can2_ok')
        c(f'''
        s_add_u32 s46, {sXCD}, {OPT.get('rot', 7)}
        s_and_b32 s46, s46, 7
        s_mul_i32 s46, s46, {16 * FSP}
        s_add_u32 s46, s46, {F2_OFF}
        v_mov_b32 v15, 0
        ''')
        c.add(poll_load('v11', 'v15', WSR, 's46'))
        c.extend(poll_check('can2', 'v11', 'v15', WSR, 's46', 1, 4))
        c.add(poll_load('v9', 'v8', WSR, 's57'))
    c.extend(poll_check('fw_s', 'v9', 'v8', WSR, 's57', 1, 8))
    c('s_barrier')
    c.extend(mark(3))
    for g in range(GI):
        if g == G1:
            c('L_ring:')
            c('@reset')
        if g == 5:
            c('s_barrier')
        if g == G2:
            c.add(poll_load('v11', 'v142', WSR, 's14'))
        for l in p2_dma(g):
            l[-1].tag = f'sg{g}'
            c.extend(l)
    if G2 == GI:
        c.add(poll_load('v11', 'v142', WSR, 's14'))
    if OPT.get('mkg'):
        c.extend(mark(4))
    c.extend(poll_check('s2', 'v11', 'v142', WSR, 's14', 1, OPT.get('s2sleep', 2), first=fl3 if GO2 else ''))
    if GO2:
        c(fl3)
    c('s_barrier')
    c.extend([] if OPT.get('mk1') else mark(7))
    p23_main(c, 's', G2, WP, GI)
    c('L_end:')
    c('@reset')
    stamp_end(c, ts, 0)
    if OPT.get('spin100'):
        c('''
        L_sp100:
        s_memrealtime s[22:23]
        s_waitcnt lgkmcnt(0)
        s_sub_u32 s22, s22, s60
        s_cmp_lt_u32 s22, 10000
        s_cbranch_scc1 L_sp100
        ''')
    c('L_exit:')
    c('s_endpgm')
    c.extend(SLOW)
    c('L_code_end:')
    prb = OPT.get('prb')
    if prb is not None:
        probe(c, (0, 0, 'min'), (0, prb % 16, 'min' if OPT.get('pmin') else 'max'), 10, [(0, 16), (0, 10), (10, 14), (14, 16)][prb // 16], OPT.get('raw'))
    st = {}
    body = text_of(finalize(c.ins, st))
    print(st, file=sys.stderr)
    out = HEADER
    if OPT.get('cnt') == 2:
        out += '; checks ' + ' '.join(CHECKS) + '\n'
    if prb is not None:
        out += f'; @launch kernel={KN} grid=(256,1,1) block=(256,1,1) lds={LDS_TOTAL}\n'
        out += '; @launch kernel=probe_kernel grid=(1,1,1) block=(64,1,1) lds=0\n'
    else:
        out += f'; @launch grid=(256,1,1) block=(256,1,1) lds={LDS_TOTAL}\n'
    out += f'.amdgcn_target "amdgcn-amd-amdhsa--gfx950"\n.text\n.globl {KN}\n'
    out += body + '\n.section .rodata,"a"\n'
    out += '.p2align 6\n' + desc(KN, 512, 256) + '\n'
    if prb is not None:
        out += '.p2align 6\n' + desc('probe_kernel', 32, 32) + '\n'
    return out


if __name__ == '__main__':
    import argparse
    ap = argparse.ArgumentParser()
    ap.add_argument('-o', default='cdna_kernels/%s.s' % NAME)
    ap.add_argument('--ts', action='store_true')
    ap.add_argument('--opt', nargs='*', default=[])
    a = ap.parse_args()
    opts = {}
    for kv in a.opt:
        k, _, v = kv.partition('=')
        opts[k] = int(v) if v else 1
    open(a.o, 'w').write(build(a.ts, opts))
```

```python
import sys
from asmlib import *

S, D, F = 2048, 640, 1728
NBYTES_SD = S * D * 2
U_OFF = 0
X4_OFF = U_OFF + NBYTES_SD
H4_OFF = X4_OFF + NBYTES_SD
ST_OFF = H4_OFF + NBYTES_SD
W1_OFF = ST_OFF + 65536
WD_OFF = W1_OFF + 16 * 288 * 1024
HH_OFF = WD_OFF + 8 * 56 * 5 * 1024
FL_OFF = HH_OFF + 128 * 57344
FSP = 128
F1_OFF = FL_OFF
FX_OFF = F1_OFF + 640 * FSP
FW1_OFF = FX_OFF + 64 * FSP
FD_OFF = FW1_OFF + 128 * FSP
assert FD_OFF + 160 * FSP <= FL_OFF + 131072
F3_OFF = FL_OFF + 131072
F2_OFF = F3_OFF + 1024 * FSP
assert F2_OFF + 960 * FSP <= F3_OFF + 262144
TS_OFF = F3_OFF + 262144
WS_USED = TS_OFF + 262144

A_Q, A_K, A_V, A_SH, A_SSMK, A_SSMD, B_X, B_WG, B_WU, B_WD, OUT, DBG, WS = [8 * i for i in range(13)]

WSR = 's[8:11]'
sWAVE = 's33'
sXCD, sSLOT = 's4', 's5'
sSG, sIDX = 's6', 's7'
ONES = 0x3f803f80
OUTS, DBGS = 's[48:51]', 's[52:55]'
sP2W, sP2L, sP2T, sP3W = 's92', 's93', 's94', 's95'
sMT, sNI, sMT64, sDC = 's96', 's97', 's98', 's99'
SC = ' sc1'
SPIN = 30000
LDS_TOTAL = 163840

NB1 = 2
BLK_ORDER = [6, 0, 1, 2, 3, 4, 5]


OPT = {}
SLOW = []


def nwb():
    return OPT.get('nwb', 10)


def mark(k, p23=False):
    if not OPT.get('ts') or OPT.get('nomk') or (OPT.get('mk23') and not p23):
        return []
    return [Ins(f's_mem{"" if OPT.get("cyc") else "real"}time s[{60 + 2 * k}:{61 + 2 * k}]')]


def mark1(k):
    return mark(k) if OPT.get('mk1') else []


def w1_slot(bi, ks, m=0):
    if bi < 2:
        return 4 * ks + 2 * bi + m if ks < 20 else 80 + bi
    return 82 + 41 * (bi - 2) + 2 * ks + m


def w1_seq(b, ks, m=0):
    return w1_slot(BLK_ORDER.index(b), ks, m)


def srd(c, base, slot, nbytes):
    c(f's_load_dwordx2 s[{base}:{base + 1}], s[0:1], {slot}')
    c(f's_mov_b32 s{base + 2}, {nbytes}')
    c(f's_mov_b32 s{base + 3}, 0x20000')


def ids(c):
    c(f'v_lshrrev_b32 v1, 6, v0')
    c(f's_and_b32 {sXCD}, s2, 7')
    c(f'v_readfirstlane_b32 {sWAVE}, v1')
    c(f's_lshr_b32 {sSLOT}, s2, 3')
    c(f'v_and_b32 v0, 63, v0')


def conv_ids(c):
    c(f'''
    s_lshr_b32 {sSG}, {sXCD}, 2
    s_add_u32 {sSG}, {sSG}, 8
    s_and_b32 {sIDX}, {sXCD}, 3
    s_lshl_b32 {sIDX}, {sIDX}, 2
    s_add_u32 {sIDX}, {sIDX}, {sSLOT}
    s_sub_u32 {sIDX}, {sIDX}, 16
    s_add_u32 s34, {sXCD}, {OPT.get('rot', 0)}
    s_and_b32 s34, s34, 7
    s_cmp_lt_u32 {sSLOT}, 16
    s_cselect_b32 {sSG}, s34, {sSG}
    s_cselect_b32 {sIDX}, {sSLOT}, {sIDX}
    ''')


KR, VR, CF, PP, AC, VU, OG = 8, 30, 48, 56, 66, 74, 84


def p0_kv_load(c, KS, VS, SHS):
    c(f'''
    v_lshrrev_b32 v7, 4, v0
    v_and_b32 v6, 15, v0
    s_lshl_b32 s34, {sIDX}, 2
    s_add_u32 s34, s34, {sWAVE}
    s_mul_i32 s34, s34, {32 * 1280}
    s_lshl_b32 s35, {sSG}, 7
    s_add_u32 s34, s34, s35
    v_mul_u32_u24 v1, {8 * 1280}, v7
    v_lshl_add_u32 v1, v6, 3, v1
    v_add_u32 v1, s34, v1
    v_subrev_u32 v2, 3840, v1
    s_lshl_b32 s35, {sSG}, 9
    v_lshlrev_b32 v3, 5, v6
    s_movk_i32 s36, 5120
    ''')
    if OPT.get('mks'):
        c('s_memrealtime s[96:97]')
        c('s_waitcnt lgkmcnt(0)')
        c('s_memrealtime s[98:99]')
    c(f'buffer_load_dwordx4 {vr(CF, 4)}, v3, {SHS}, s35 offen')
    c(f'buffer_load_dwordx4 {vr(CF + 4, 4)}, v3, {SHS}, s35 offen offset:16')
    for r in range(3):
        c(f'buffer_load_dwordx2 {vr(KR + 2 * r, 2)}, v2, {KS}, 0 offen offset:{1280 * r}')
    for r in range(8):
        c(f'buffer_load_dwordx2 {vr(KR + 6 + 2 * r, 2)}, v1, {KS}, {"s36" if r >= 4 else 0} offen offset:{1280 * (r & 3)}')
    for r in range(8):
        c(f'buffer_load_dwordx2 {vr(VR + 2 * r, 2)}, v1, {VS}, {"s36" if r >= 4 else 0} offen offset:{1280 * (r & 3)}')


def p0_kv(c0, late, st=SC):
    P = PP
    c = c0
    c(f'''
    s_lshl_b32 s35, {sWAVE}, 6
    v_mul_u32_u24 v4, 1040, v6
    v_lshl_add_u32 v4, v7, 4, v4
    v_add_u32 v4, s35, v4
    s_mul_i32 s35, {sWAVE}, {4 * 1040}
    v_lshlrev_b32 v3, 4, v0
    v_add_u32 v5, s35, v3
    s_lshl_b32 s34, {sSG}, 2
    s_add_u32 s34, s34, {sWAVE}
    s_lshl_b32 s34, s34, 16
    s_lshl_b32 s35, {sIDX}, 10
    s_add_u32 s34, s34, s35
    s_mov_b32 s40, 0x05040100
    s_mov_b32 s41, 0x07060302
    ''')
    if U_OFF:
        c(f's_add_u32 s34, s34, {U_OFF}')
    kr = lambda t, dw: KR + 2 * (t + 3) + dw
    c = Code()
    KF = OPT.get('kf', 1)
    A = lambda ch: 144 + 8 * ch if KF else AC
    for part in ((0, 1) if KF else (2,)):
        for ch in range(4):
            dw, hf = ch >> 1, ch & 1
            if part != 1:
                for t in range(-2, 8):
                    c(f'v_perm_b32 v{P + t + 2}, v{kr(t - 1, dw)}, v{kr(t, dw)}, s{40 + hf}')
                for t in range(8):
                    c(f'v_dot2_f32_bf16 v{A(ch) + t}, v{P + t + 2}, v{CF + 2 * ch}, 0')
                for t in range(8):
                    c(f'v_dot2_f32_bf16 v{A(ch) + t}, v{P + t}, v{CF + 2 * ch + 1}, v{A(ch) + t}')
            if part != 0:
                for t in range(8):
                    if hf:
                        c(f'v_and_b32 v{VU + t}, 0xffff0000, v{VR + 2 * t + dw}')
                    else:
                        c(f'v_lshlrev_b32 v{VU + t}, 16, v{VR + 2 * t + dw}')
                for t in range(0, 8, 2):
                    c(f'v_pk_mul_f32 {vr(A(ch) + t, 2)}, {vr(A(ch) + t, 2)}, {vr(VU + t, 2)}')
                for p in range(4):
                    c(f'v_cvt_pk_bf16_f32 v{OG + 4 * ch + p}, v{A(ch) + p}, v{A(ch) + p + 4}')
                c(f'ds_write_b128 v4, {vr(OG + 4 * ch, 4)} offset:{256 * ch}')
    k0 = OPT.get('lk0', 120)
    step = OPT.get('lks', (166 - k0) // max(1, len(late)))
    for k, i in enumerate(c.ins):
        c0.add(i)
        if k == 10:
            c0.extend(mark1(7))
        if k == 34:
            c0.extend(mark1(8))
        if k0 and k >= k0 and (k - k0) % step == 0 and late:
            c0.extend(late.pop(0))
    c = c0
    c0.extend(mark1(9))
    c('s_waitcnt lgkmcnt(0)')
    c('s_barrier')
    for i in range(4):
        c(f'ds_read_b128 {vr(OG + 4 * i, 4)}, v5 offset:{1040 * i}')
    for i in range(4):
        c(f'buffer_store_dwordx4 {vr(OG + 4 * i, 4)}, v3, {WSR}, s34 offen{st}', 'ust')
        if i < 3:
            c('s_add_u32 s34, s34, 16384')


def ln_finish(c, s1, s2, tmp):
    c(f'v_mul_f32 v{s1}, 0xbacccccd, v{s1}')
    c(f'v_mul_f32 v{s2}, 0x3acccccd, v{s2}')
    c(f'v_fma_f32 v{s2}, -v{s1}, v{s1}, v{s2}')
    c(f'v_max_f32 v{s2}, 0, v{s2}')
    c(f'v_add_f32 v{s2}, 0x3727c5ac, v{s2}')
    c(f'v_rsq_f32 v{tmp}, v{s2}')


def p0_x(c, XS, sT, hook, st=SC):
    XR, O, A = 16, 56, 100
    c(f'''
    v_lshrrev_b32 v13, 4, v0
    v_and_b32 v12, 15, v0
    s_lshl_b32 s38, {sT}, 2
    s_add_u32 s38, s38, {sWAVE}
    s_mul_i32 s34, s38, {8 * 1280}
    s_add_u32 s35, s34, 5120
    v_mul_u32_u24 v1, 1280, v13
    v_lshl_add_u32 v1, v12, 4, v1
    ''')
    for i in range(2):
        for m in range(5):
            c(f'buffer_load_dwordx4 {vr(XR + 20 * i + 4 * m, 4)}, v1, {XS}, s{34 + i} offen offset:{256 * m}')
    c(f'''
    s_mul_i32 s36, {sWAVE}, {8 * 1296}
    v_mul_u32_u24 v2, 1296, v13
    v_lshl_add_u32 v2, v12, 4, v2
    v_add_u32 v2, s36, v2
    s_mul_i32 s36, {sWAVE}, 320
    v_mul_u32_u24 v3, 1296, v12
    v_lshl_add_u32 v3, v13, 3, v3
    v_add_u32 v3, s36, v3
    v_lshlrev_b32 v4, 4, v0
    s_add_u32 s37, s34, {X4_OFF}
    s_lshl_b32 s38, s38, 10
    s_add_u32 s38, s38, {F3_OFF}
    s_and_b32 s36, {sWAVE}, 1
    s_lshl_b32 s36, s36, 7
    s_lshr_b32 s39, {sWAVE}, 1
    s_lshl_b32 s39, s39, 3
    s_add_u32 s36, s36, s39
    v_lshlrev_b32 v5, 4, v13
    v_add_u32 v5, s36, v5
    v_lshlrev_b32 v8, 2, v0
    s_lshl_b32 s36, {sT}, 8
    s_add_u32 s36, s36, {ST_OFF}
    s_cmp_eq_u32 {sWAVE}, 0
    s_cselect_b32 s36, s36, 0x70000000
    s_mov_b32 s40, {ONES}
    v_mov_b32 v96, 0
    v_mov_b32 v97, 0
    v_mov_b32 v98, 0
    v_mov_b32 v99, 0
    buffer_store_dwordx4 v[96:99], v4, {WSR}, s38 offen{st}
    ''')
    PU = OPT.get('pu', 12)
    n = (16 - PU) * 160
    if n:
        c(f's_add_u32 s38, s38, {(H4_OFF + PU * 163840 - F3_OFF) & 0xffffffff}')
        for k in range(4):
            c(f'v_mov_b32 v{112 + k}, -1')
    for k in range(0, n, 256):
        if n - k < 256:
            c(f's_cmp_lt_u32 {sT}, {(n - k) // 4}')
            c('s_cselect_b32 s38, s38, 0x70000000')
        c(f'buffer_store_dwordx4 v[112:115], v4, {WSR}, s38 offen{st}')
        c(f's_add_u32 s38, s38, {256 * 1024}')
    hook(0)
    for i in range(2):
        for m in range(5):
            c(f'ds_write_b128 v2, {vr(XR + 20 * i + 4 * m, 4)} offset:{1296 * 4 * i + 256 * m}')
    hook(1)
    c('s_waitcnt lgkmcnt(0)')
    c('s_barrier')
    c.extend(mark1(10))
    for i in range(10):
        c(f'ds_read_b64 {vr(O + 4 * i, 2)}, v3 offset:{32 * i}')
        c(f'ds_read_b64 {vr(O + 4 * i + 2, 2)}, v3 offset:{32 * i + 16 * 1296}')
    for i in range(10):
        if i and (i & 3) == 0:
            c('s_add_u32 s37, s37, 4096')
        c(f'buffer_store_dwordx4 {vr(O + 4 * i, 4)}, v4, {WSR}, s37 offen offset:{1024 * (i & 3)}{st}')
        for r in range(4 * i, 4 * i + 4):
            k = A + 2 * (r // 20)
            c(f'v_dot2_f32_bf16 v{k}, v{XR + r}, s40, {"0" if r % 20 == 0 else "v%d" % k}')
            c(f'v_dot2_f32_bf16 v{k + 1}, v{XR + r}, v{XR + r}, {"0" if r % 20 == 0 else "v%d" % (k + 1)}')
    for sh in (8, 4, 2, 1):
        for k in range(4):
            c(f'v_add_f32_dpp v{A + k}, v{A + k}, v{A + k} row_ror:{sh} row_mask:0xf bank_mask:0xf')
    for i in range(2):
        ln_finish(c, A + 2 * i, A + 2 * i + 1, A + 8 + 2 * i)
    for i in range(2):
        c(f'v_mul_f32 v{A + 9 + 2 * i}, v{A + 2 * i}, v{A + 8 + 2 * i}')
        c(f'ds_write_b64 v5, {vr(A + 8 + 2 * i, 2)} offset:{32 * 1296 + 64 * i}')
    c('s_waitcnt lgkmcnt(0)')
    c('s_barrier')
    c(f'ds_read_b32 v10, v8 offset:{32 * 1296}')
    c(f'buffer_store_dword v10, v8, {WSR}, s36 offen{st}')
    c.extend(mark1(11))


UBS = 10368
P1_LDS = 17664 + 4 * UBS + 4 * 2048
LB1 = LDS_TOTAL - P1_LDS
assert LB1 % 256 == 0
KY0 = LB1 + 256
UB0 = LB1 + 17664
EB0 = UB0 + 4 * UBS
KT = 100
cA, cACC, cB, cXQ, cSQ, cT = 16, 80, 176, 208, 224, 240
NBUF = 8


def p1_k_load(c, KKS, DS):
    T = KT
    c(f'''
    s_lshl_b32 s34, {sSG}, 4
    s_add_u32 s34, s34, {sIDX}
    s_lshl_b32 s35, s34, 2
    s_add_u32 s35, s35, {sWAVE}
    s_lshl_b32 s38, s35, 12
    s_lshl_b32 s39, s35, 1
    v_lshlrev_b32 v1, 4, v0
    v_mov_b32 v2, 0
    ''')
    o = [[Ins(f'buffer_load_dwordx4 {vr(T + 4 * i, 4)}, v1, {KKS}, s38 offen offset:{1024 * i}')] for i in range(4)]
    o[0].insert(0, Ins(f'buffer_load_ushort v{T + 16}, v2, {DS}, s39 offen'))
    return o


def p1_k(c):
    T = KT
    c(f'''
    s_lshl_b32 s34, {sSG}, 4
    s_add_u32 s34, s34, {sIDX}
    s_mul_i32 s37, {sWAVE}, 4352
    s_and_b32 s38, {sWAVE}, 1
    s_lshl_b32 s38, s38, 5
    s_add_u32 s37, s37, s38
    s_lshr_b32 s38, {sWAVE}, 1
    s_lshl_b32 s38, s38, 7
    s_add_u32 s37, s37, s38
    s_add_u32 s37, s37, {KY0}
    s_mul_i32 s38, {sWAVE}, {UBS}
    s_add_u32 s38, s38, {UB0}
    s_lshl_b32 s39, {sWAVE}, 11
    s_add_u32 s39, s39, {EB0}
    v_lshrrev_b32 v7, 4, v0
    v_and_b32 v6, 15, v0
    v_bfe_u32 v8, v0, 2, 2
    v_and_b32 v9, 3, v0
    v_lshlrev_b32 v3, 2, v0
    v_add_u32 v10, s38, v3
    v_mov_b32 v3, 0
    v_mov_b32 v4, 0
    v_mov_b32 v5, 0
    ds_write2st64_b32 v10, v2, v2 offset0:0 offset1:5
    ds_write2st64_b32 v10, v2, v2 offset0:10 offset1:15
    v_add_u32 v11, 5248, v10
    ds_write2st64_b32 v11, v2, v2 offset0:0 offset1:5
    ds_write2st64_b32 v11, v2, v2 offset0:10 offset1:15
    v_add_u32 v12, s39, v1
    ds_write_b128 v12, v[2:5]
    s_sub_u32 s42, s37, 32
    v_add_u32 v120, s42, v1
    ds_write_b128 v120, v[2:5]
    v_add_u32 v10, 128, v10
    v_add_u32 v11, 136, v11
    v_sub_u32 v121, v9, v8
    v_lshlrev_b32 v121, 3, v121
    v_lshl_add_u32 v121, v7, 6, v121
    v_add_u32 v121, s37, v121
    ''')
    c(f'''
    v_lshlrev_b32 v14, 1, v7
    v_sub_u32 v14, v6, v14
    v_lshlrev_b32 v14, 3, v14
    v_and_b32 v13, 1, v6
    v_mul_u32_u24 v13, 5256, v13
    v_sub_u32 v14, v14, v13
    s_add_u32 s42, s38, {5248 + 64}
    v_add_u32 v14, s42, v14
    v_add_u32 v13, 16, v0
    v_subrev_u32 v15, 47, v0
    v_cmp_gt_u32 vcc, 48, v0
    v_lshlrev_b32 v2, 5, v6
    v_lshl_add_u32 v2, v7, 3, v2
    v_cndmask_b32 v13, v15, v13, vcc
    v_add_u32 v15, 64, v13
    v_add_u32 v2, s37, v2
    v_writelane_b32 v13, 64, 63
    v_writelane_b32 v15, 0, 63
    v_lshlrev_b32 v13, 4, v13
    v_lshlrev_b32 v15, 4, v15
    v_add_u32 v13, s39, v13
    v_add_u32 v15, s39, v15
    v_mul_u32_u24 v3, 4352, v8
    v_and_b32 v4, 1, v8
    v_lshl_add_u32 v3, v4, 5, v3
    v_lshrrev_b32 v4, 1, v8
    v_lshl_add_u32 v3, v4, 7, v3
    v_lshl_add_u32 v3, v7, 6, v3
    v_lshl_add_u32 v3, v9, 3, v3
    s_lshl_b32 s42, {sWAVE}, 8
    s_add_u32 s42, s42, {KY0}
    v_add_u32 v3, s42, v3
    ''')
    c(f'''
    v_lshlrev_b32 v4, 4, v6
    v_mul_u32_u24 v5, 40960, v7
    v_add_u32 v5, v5, v4
    v_lshl_add_u32 v4, v7, 10, v4
    s_lshl_b32 s43, s34, 14
    s_lshl_b32 s42, {sWAVE}, 8
    s_add_u32 s43, s43, s42
    s_mul_i32 s44, {sWAVE}, 163840
    s_lshl_b32 s42, s34, 8
    s_add_u32 s44, s44, s42
    s_lshl_b32 s45, {sWAVE}, 10
    s_add_u32 s45, s45, {ST_OFF}
    ''')
    if U_OFF:
        c(f's_add_u32 s43, s43, {U_OFF}')


def p1_k_frag(c):
    T = KT
    c(f'''
    v_lshlrev_b32 v{T + 16}, 16, v{T + 16}
    v_lshlrev_b32 v{T + 17}, 16, v{T}
    v_add_f32 v{T + 16}, v{T + 16}, v{T + 17}
    v_cvt_pk_bf16_f32 v{T + 16}, v{T + 16}, v{T + 16}
    s_mov_b64 exec, 1
    v_bfi_b32 v{T}, s59, v{T}, v{T + 16}
    s_mov_b64 exec, -1
    ''')
    for i in range(4):
        c(f'ds_write_b128 v120, {vr(T + 4 * i, 4)} offset:{32 + 1024 * i}')
    for n in range(16):
        c(f'ds_read_b64_tr_b16 {vr(cA + 4 * n, 2)}, v121 offset:{256 * n + 32}')
        c(f'ds_read_b64_tr_b16 {vr(cA + 4 * n + 2, 2)}, v121 offset:{256 * n}')


def p1_load_u(c, ld=SC):
    T = cACC + 64
    for i in range(4):
        c(f'buffer_load_dwordx4 {vr(T + 4 * i, 4)}, v4, {WSR}, s43 offen{ld}')
        if i < 3:
            c('s_add_u32 s43, s43, 4096')


def p1_load_x(ld=SC):
    o = []
    for u in range(4):
        o.append([Ins(f's_add_u32 s43, s45, {4096 * u}'),
                  Ins(f'buffer_load_dwordx4 {vr(cSQ + 4 * u, 4)}, v1, {WSR}, s43 offen{ld}', f'sq{u}')])
        o.append([Ins(f's_add_u32 s43, s44, {X4_OFF + u * 655360}'),
                  Ins(f'buffer_load_dwordx4 {vr(cXQ + 4 * u, 4)}, v5, {WSR}, s43 offen{ld}', f'xq{u}')])
    return o


def p1_main(c, inject, jobs, lastpoll, st=SC):
    T = cACC + 64
    uw = []
    for i in range(4):
        for a in ('v10', 'v11'):
            uw.append(Ins(f'ds_write2st64_b32 {a}, v{T + 4 * i}, v{T + 4 * i + 1} offset0:{i} offset1:{5 + i}'))
            uw.append(Ins(f'ds_write2st64_b32 {a}, v{T + 4 * i + 2}, v{T + 4 * i + 3} offset0:{10 + i} offset1:{15 + i}'))
    c.extend(uw[:4])
    accb = {0: 80, 1: 96, 2: 112, 3: 80, 4: 96, 5: 112, 6: 144, 7: 80}
    acc = lambda t, cp: accb[t] + 4 * cp
    res = lambda cp, w: ar(16 * (w + 1) + 4 * cp + (128 if 4 * (w + 1) + cp >= nwb() else 0), 4)
    chain = lambda t, ws: [(t, cp, w) for cp in range(4) for w in ws]
    steps = []
    for t in range(4):
        steps += chain(t, range(-1, 2 * t - 1)) + chain(t, (2 * t - 1, 2 * t))
    for t, hi in ((4, 8), (6, 12)):
        joint = [x for w in range(7, hi, 2) for cp in range(4) for x in ((t, cp, w), (t, cp, w + 1), (t + 1, cp, w + 1), (t + 1, cp, w))]
        own = chain(t, range(-1, 7))
        steps += own + joint if t == 4 or OPT.get('j6', 0) else joint + own
        if t == 6 and OPT.get('v7', 1):
            steps += [(7, cp, w) for cp in (3, 2, 1, 0) for w in list(range(-1, 7)) + [13, 14]]
        else:
            steps += chain(t + 1, range(-1, 7)) + chain(t + 1, (hi + 1, hi + 2))
    mf = []
    first_use, last_of_tile, first_of_tile = {}, {}, {}
    started = set()
    strm, sidx = [], {}
    for t, cp, w in steps:
        if w < 7:
            first_use.setdefault(w, len(mf))
            breg = res(cp, w)
        else:
            if (t >> 1, cp, w) not in sidx:
                sidx[(t >> 1, cp, w)] = len(strm)
                strm.append([cp, w, len(mf), 0])
            strm[sidx[(t >> 1, cp, w)]][3] = len(mf)
            breg = vr(cB + 4 * (sidx[(t >> 1, cp, w)] % 8), 4)
        a = vr(acc(t, cp), 4)
        first_of_tile.setdefault(t, len(mf))
        last_of_tile[t] = len(mf)
        mf.append(Ins(f'v_mfma_f32_16x16x32_bf16 {a}, {vr(cA + 4 * (2 * t - w), 4)}, {breg}, {a if (t, cp) in started else "0"}'))
        started.add((t, cp))
    off = lambda cp, w: 64 * (w + 1) + 1280 * cp
    rd = lambda cp, w: Ins(f'ds_read_b128 {res(cp, w)}, v14 offset:{off(cp, w)}', f'b{w}')
    pre = {-1: [rd(cp, w) for cp in range(4) for w in (-1, 0)]}
    P = lambda p, l: pre.setdefault(p, []).extend(l)
    seq = []
    for w in range(1, 7):
        if w == 3:
            seq += [(w, i) for i in uw[4:8]]
        seq += [(w, rd(cp, w)) for cp in range(4)]
    p = -1
    for w, i in seq:
        p += 1 if w < 3 else 2
        assert p < first_use[w] - 6
        P(p, [i])
    for i in uw[8:]:
        p += OPT.get('uws', 4)
        P(p, [i])
    for w in range(1, 7, 2):
        P(first_use[w] - 1, [Ins(f'@lg b{w + 1}')])
    for k, (cp, w, f, l) in enumerate(strm):
        p = max(p + 2, strm[k - 8][3] if k >= 8 else 0, f - 28)
        assert p < f - 5, k
        P(p, [Ins(f'ds_read_b128 {vr(cB + 4 * (k % 8), 4)}, v14 offset:{off(cp, w)}', f's{k}')])
        if k % 2 == 1:
            P(strm[k - 1][2] - 1, [Ins(f'@lg s{k}')])
    for p, l in inject:
        P(p, l)
    bg = []

    def B(pos, text, tag=None):
        bg.append((pos, Ins(text, tag)))

    def tile_epi(t):
        p = last_of_tile[t] + 4
        Y = [acc(t, cp) for cp in range(4)]
        if t == 7 and OPT.get('v7', 1):
            B(p - 20, f'v_add_f32 v{Y[3] + 2}, v{Y[3] + 2}, v{Y[2] + 3}')
            B(0, f'v_add_f32 v{Y[3] + 1}, v{Y[3] + 1}, v{Y[2] + 2}')
            B(0, f'v_add_f32 v{Y[2] + 1}, v{Y[2] + 1}, v{Y[3]}')
            B(p - 11, f'v_add_f32 v{Y[3] + 1}, v{Y[3] + 1}, v{Y[1] + 3}')
            B(0, f'ds_write_b128 v15, {vr(Y[3], 4)}')
            B(0, f'ds_read_b128 {vr(cT, 4)}, v12 offset:1024')
            B(0, f'v_add_f32 v{Y[1] + 1}, v{Y[1] + 1}, v{Y[2]}')
            B(0, f'v_add_f32 v{Y[1] + 2}, v{Y[1] + 2}, v{Y[2] + 1}')
            B(p, f'v_add_f32 v{cT + 2}, v{cT + 2}, v{Y[1]}')
            B(p, f'v_add_f32 v{cT + 3}, v{cT + 3}, v{Y[1] + 1}')
            for k, x in enumerate((cT + 1, cT + 2, cT + 3, Y[1] + 2)):
                B(p, f'v_add_f32 v{Y[0] + k}, v{Y[0] + k}, v{x}')
            B(p, f'v_cvt_pk_bf16_f32 v{Y[0]}, v{Y[0]}, v{Y[0] + 1}')
            B(p, f'v_cvt_pk_bf16_f32 v{Y[0] + 1}, v{Y[0] + 2}, v{Y[0] + 3}')
            B(p, f'ds_write_b64 v2, {vr(Y[0], 2)} offset:{512 * t}', f'y{t}')
            return
        B(p, f'v_add_f32 v{Y[3] + 1}, v{Y[3] + 1}, v{Y[1] + 3}')
        B(p, f'v_add_f32 v{Y[3] + 2}, v{Y[3] + 2}, v{Y[2] + 3}')
        B(p, f'v_add_f32 v{Y[3] + 1}, v{Y[3] + 1}, v{Y[2] + 2}')
        B(p, f'ds_write_b128 {"v15" if t & 1 else "v13"}, {vr(Y[3], 4)}')
        B(p, f'ds_read_b128 {vr(cT, 4)}, v12 offset:{1024 * (t & 1)}')
        B(p, f'v_add_f32 v{Y[0] + 1}, v{Y[0] + 1}, v{Y[1]}')
        B(p, f'v_add_f32 v{Y[0] + 2}, v{Y[0] + 2}, v{Y[1] + 1}')
        B(p, f'v_add_f32 v{Y[0] + 3}, v{Y[0] + 3}, v{Y[1] + 2}')
        B(p, f'v_add_f32 v{Y[0] + 2}, v{Y[0] + 2}, v{Y[2]}')
        B(p, f'v_add_f32 v{Y[0] + 3}, v{Y[0] + 3}, v{Y[2] + 1}')
        B(p, f'v_add_f32 v{Y[0] + 3}, v{Y[0] + 3}, v{Y[3]}')
        B(-OPT.get('ed', 4), f'v_add_f32 v{Y[0]}, v{Y[0]}, v{cT + 1}')
        B(p, f'v_add_f32 v{Y[0] + 1}, v{Y[0] + 1}, v{cT + 2}')
        B(p, f'v_add_f32 v{Y[0] + 2}, v{Y[0] + 2}, v{cT + 3}')
        B(p, f'v_cvt_pk_bf16_f32 v{Y[0]}, v{Y[0]}, v{Y[0] + 1}')
        B(p, f'v_cvt_pk_bf16_f32 v{Y[0] + 1}, v{Y[0] + 2}, v{Y[0] + 3}')
        B(p, f'ds_write_b64 v2, {vr(Y[0], 2)} offset:{512 * t}', f'y{t}')

    Tm = cT + 8
    RR = {0: cT + 4, 1: 132, 2: cT + 4, 3: cT + 4}
    HH = {0: 160, 1: 144, 2: 160, 3: 96}

    def tail_r(u):
        B(0, f'ds_read_b64_tr_b16 {vr(RR[u], 2)}, v3 offset:{1024 * u}')
        B(0, f'ds_read_b64_tr_b16 {vr(RR[u] + 2, 2)}, v3 offset:{1024 * u + 32}')

    def tail_x(u, p):
        HX = HH[u]
        for k in range(4):
            x, rs, nm = cXQ + 4 * u + k, cSQ + 4 * u + (k >> 1) * 2, cSQ + 4 * u + (k >> 1) * 2 + 1
            B(p, f'v_lshlrev_b32 v{HX + 4 * k}, 16, v{x}')
            B(0, f'v_and_b32 v{HX + 4 * k + 1}, 0xffff0000, v{x}')
            B(0, f'v_fma_f32 v{HX + 4 * k + 2}, v{HX + 4 * k}, v{rs}, v{nm}')
            B(0, f'v_fma_f32 v{HX + 4 * k + 3}, v{HX + 4 * k + 1}, v{rs}, v{nm}')

    def tail_y(u):
        R, HX = RR[u], HH[u]
        B(0, f's_add_u32 s42, s44, {H4_OFF + u * 655360}')
        for k in range(4):
            B(0, f'v_lshlrev_b32 v{Tm}, 16, v{R + k}')
            B(0, f'v_and_b32 v{Tm + 1}, 0xffff0000, v{R + k}')
            if u == 3:
                B(0, f'v_pk_fma_f32 {vr(HX + 4 * k, 2)}, {vr(HX + 4 * k + 2, 2)}, {vr(Tm, 2)}, {vr(HX + 4 * k, 2)}')
            else:
                B(0, f'v_fmac_f32 v{HX + 4 * k}, v{HX + 4 * k + 2}, v{Tm}')
                B(0, f'v_fmac_f32 v{HX + 4 * k + 1}, v{HX + 4 * k + 3}, v{Tm + 1}')
            B(0, f'v_cvt_pk_bf16_f32 v{cXQ + 4 * u + k}, v{HX + 4 * k}, v{HX + 4 * k + 1}')
        B(0, f'buffer_store_dwordx4 {vr(cXQ + 4 * u, 4)}, v5, {WSR}, s42 offen{st}', f'hst{u}')

    def flag(k):
        if k:
            B(0, f's_add_u32 s46, s46, {160 * FSP}')
        B(0, f'buffer_store_dword v253, v252, {WSR}, s46 offen{st}', f'fl{k}')

    tpos = [17 * k for k in range(len(mf))]
    vm, pre2, where = pace(jobs, tpos, lambda p: OPT.get('sp1', 66) if p < 60 else OPT.get('sp2', 72),
                           avoid={p for p in pre if p > 60}, load={p: sum(i.cost for i in l) for p, l in pre.items()})
    for p, l in pre2.items():
        P(p, l)
    print('p1 prefetch ends at mfma', max(where.values()), file=sys.stderr)
    xq = {i.tag: where[id(i)] for _, _, l in sum(jobs, []) for i in l if i.tag and i.tag[1] == 'q'}
    LAG = OPT.get('xlag', 60)
    for t in range(4):
        tile_epi(t)
    tail_x(0, xq['xq0'] + LAG)
    B(0, '@lg y3')
    B(0, 's_barrier')
    tail_r(0)
    tail_r(1)
    tail_x(1, xq['xq1'] + LAG)
    tail_y(0)
    tail_y(1)
    tile_epi(4)
    tile_epi(5)
    tail_x(2, xq['xq2'] + LAG)
    B(OPT.get('b5', 215), '@vmlg hst1 y5')
    B(0, 's_barrier')
    tail_r(2)
    flag(0)
    tail_x(3, 0)
    tail_y(2)
    tile_epi(6)
    tile_epi(7)
    B(0, '@vmlg hst2 y7')
    B(0, 's_barrier')
    tail_r(3)
    for i in lastpoll:
        bg.append((0, i))
    flag(1)
    tail_y(3)
    for i in mark(6):
        bg.append((0, i))
    out = weave(mf, pre, bg, vm, {k: 4 for k in range(100, 280, OPT.get('x1', 8))})
    pos = {id(i): k for k, i in enumerate(out)}
    at = lambda t: max(j for j in range(len(mf)) if pos[id(mf[j])] < pos[id(next(x for x in out if x.tag == t))])
    for t, u in ((0, 3), (1, 4), (2, 5), (3, 7)):
        assert at(f'y{t}') < first_of_tile[u] - 1, t
    assert at('hst1') < first_of_tile[6] - 1 and pos[id(uw[-1])] < pos[id(next(x for x in out if x.tag == 'y3'))]
    print('p1:', ' '.join(f'{t}@{at(t)}' for t in ('y0', 'y3', 'y4', 'hst0', 'hst1', 'y5', 'fl0', 'hst2', 'y6')),
          'after last mfma', len(out) - pos[id(mf[-1])], file=sys.stderr)
    c.extend(out)


WJB = 49152


def side_w1_load(c, WGS, WUS, sNP, sK0, N, two, pre, mid):
    UR = 16 * N * 448 + 32
    R = f'n{two}'
    c(f'''
    v_mul_u32_u24 v116, 147, v0
    v_lshrrev_b32 v116, 11, v116
    v_mul_u32_u24 v117, 14, v116
    v_sub_u32 v117, v0, v117
    v_lshlrev_b32 v117, 4, v117
    v_and_b32 v118, 1, v116
    v_mul_u32_u24 v118, 216, v118
    v_lshrrev_b32 v116, 1, v116
    v_mul_u32_u24 v116, 3456, v116
    v_add3_u32 v116, v116, v117, v118
    s_lshl_b32 s46, {sK0}, 2
    s_add_u32 s46, s46, {sWAVE}
    s_mul_i32 s46, s46, {4 * 3456}
    s_mul_i32 s47, {sNP}, 432
    s_add_u32 s46, s46, s47
    s_mul_i32 s47, {sWAVE}, {4 * 448}
    s_add_u32 s47, s47, {WJB}
    s_mov_b32 exec_hi, 0x00ffffff
    ''')
    for ks in range(N):
        if ks == pre:
            c('s_mov_b64 exec, -1')
            mid()
            c('s_mov_b32 exec_hi, 0x00ffffff')
        if ks == 2 and not two and OPT.get('hs', 0):
            c(f'''
            s_mul_i32 s45, s58, {48 * 3456}
            s_sub_u32 s46, s46, s45
            s_lshr_b32 s45, {sWAVE}, 1
            s_cmp_eq_u32 s45, s58
            s_cselect_b32 s46, s46, 0x70000000
            ''')
        for j in range(2):
            c(f's_add_u32 s45, s46, {(16 * ks + 2 * j) * 3456}')
            for m, srd_ in enumerate((WGS, WUS)):
                c(f's_add_u32 m0, s47, {UR * m + 448 * (16 * ks + 2 * j)}')
                c(f'buffer_load_dwordx4 v116, {srd_}, s45 offen lds', f'{R}w1k{ks}')
    c('s_mov_b64 exec, -1')
    if pre == N:
        mid()
    c.extend(mark1(12))


def side_w1(c, sNP, sK0, sSL, N, two, part=3, st=SC):
    UR = 16 * N * 448 + 32
    R = f'n{two}'
    c0 = c
    if not part & 1:
        c = Code()
    c(f'''
    s_mul_i32 s47, {sWAVE}, {4 * 448}
    s_add_u32 s47, s47, {WJB}
    v_and_b32 v2, 7, v0
    v_mul_u32_u24 v2, 224, v2
    v_bfe_u32 v3, v0, 3, 1
    v_sub_u32 v8, 1, v3
    v_mul_u32_u24 v8, 0x3f80, v8
    v_mov_b32 v9, 0
    v_mul_u32_u24 v3, {UR}, v3
    v_add3_u32 v2, v2, v3, s47
    v_lshrrev_b32 v12, 5, v0
    v_bfe_u32 v13, v0, 2, 2
    v_lshl_add_u32 v3, v12, 3, v13
    v_mul_u32_u24 v3, 448, v3
    v_bfe_u32 v13, v0, 4, 1
    v_mul_u32_u24 v13, {UR}, v13
    v_add_u32 v3, v3, v13
    v_and_b32 v13, 3, v0
    v_lshl_add_u32 v3, v13, 3, v3
    v_and_b32 v11, 15, v0
    v_lshlrev_b32 v11, 4, v11
    v_lshl_add_u32 v11, v12, 8, v11
    v_and_b32 v13, 16, v0
    v_lshl_add_u32 v11, v13, 6, v11
    s_lshl_b32 s36, {sWAVE}, 5
    s_add_u32 s36, s36, {WJB}
    v_add_u32 v3, s36, v3
    v_lshlrev_b32 v4, 4, v0
    s_lshl_b32 s36, {sWAVE}, 9
    v_lshl_add_u32 v5, v0, 1, s36
    v_add_u32 v10, s36, v4
    s_mov_b32 s44, {ONES}
    s_mul_i32 s26, {sNP}, {2 * 288 * 1024}
    s_add_u32 s26, s26, {W1_OFF}
    ''')
    for r in range(4):
        tb = []
        for w in range(4):
            p = 4 * r + w
            o = 288 * (p // 7)
            tb.append((o + w1_seq(p % 7, 0), w1_seq(p % 7, 1) - w1_seq(p % 7, 0), o + w1_seq(p % 7, 20)) if p < 14 else (0x100000, 0, 0x100000))
        for k, x in enumerate((34, 38, 28)):
            c(f's_mov_b32 s{x + r}, {tb[0][k] << 10}')
        for w in range(1, 4):
            c(f's_cmp_eq_u32 {sWAVE}, {w}')
            for k, x in enumerate((34, 38, 28)):
                c(f's_cselect_b32 s{x + r}, {tb[w][k] << 10}, s{x + r}')
        c(f'''
        s_add_u32 s{34 + r}, s{34 + r}, s26
        s_add_u32 s{28 + r}, s{28 + r}, s26
        s_lshl_b32 s42, {sSL}, 6
        s_add_u32 s{28 + r}, s{28 + r}, s42
        ''')
    c = c0
    if not part & 2:
        return
    for ks in range(N):
        FR = 16 + 16 * (ks % 4)
        c(f'''
        @vm {R}w1k{ks}
        ds_write_b64 v2, v[8:9] offset:{448 * 16 * ks + 216}
        s_waitcnt lgkmcnt(0)
        s_barrier
        ''')
        c.extend(mark1(7) if ks == 0 else (mark1(8) if ks == N - 1 else []))
        for r in range(4):
            for h in range(2):
                c(f'ds_read_b64_tr_b16 {vr(FR + 4 * r + 2 * h, 2)}, v3 offset:{448 * (16 * ks + 4 * h) + 128 * r}')
        c(f's_add_u32 s24, {sK0}, {ks}')
        if ks == 2 and not two and OPT.get('hs', 0):
            c('''
            s_mul_i32 s25, s58, 3
            s_sub_u32 s24, s24, s25
            v_xor_b32 v12, s58, v12
            v_lshl_add_u32 v11, v12, 30, v11
            ''')
        c(f'''
        s_and_b32 s25, s24, 1
        s_lshl_b32 s25, s25, 9
        s_lshr_b32 s24, s24, 1
        ''')
        for r in range(4):
            c(f's_mul_i32 s42, s24, s{38 + r}')
            c(f's_add_u32 s42, s42, s25')
            c(f's_add_u32 s42, s42, s{34 + r}')
            c(f'buffer_store_dwordx4 {vr(FR + 4 * r, 4)}, v11, {WSR}, s42 offen{st}')
            for k in range(4):
                c(f'v_dot2_f32_bf16 v{100 + r}, v{FR + 4 * r + k}, s44, {"0" if ks + k == 0 else "v%d" % (100 + r)}')
    for r in range(4):
        c(f'v_mov_b32 v{104 + r}, v{100 + r}')
    for r in range(4):
        c(f'v_permlane32_swap_b32 v{100 + r}, v{104 + r}')
    c('s_mov_b32 vcc_lo, 0')
    c('s_mov_b32 vcc_hi, -1')
    for r in range(4):
        c(f'''
        v_add_f32 v{100 + r}, v{100 + r}, v{104 + r}
        v_cvt_pk_bf16_f32 v{104 + r}, v{100 + r}, v{100 + r}
        v_and_b32 v{104 + r}, 0xffff0000, v{104 + r}
        v_sub_f32 v{104 + r}, v{100 + r}, v{104 + r}
        v_cndmask_b32 v{100 + r}, v{100 + r}, v{104 + r}, vcc
        v_cvt_pk_bf16_f32 v{100 + r}, v{100 + r}, v{100 + r}
        ds_write_b16 v5, v{100 + r} offset:{128 * r}
        ''')
    c(f's_mov_b64 exec, {"0xff" if two else 15}')
    for r in range(4):
        c(f'ds_read_b128 {vr(104 + 4 * r, 4)}, v10 offset:{128 * r}')
    for r in range(4):
        c(f'buffer_store_dwordx4 {vr(104 + 4 * r, 4)}, v4, {WSR}, s{28 + r} offen{st}')
    c('s_mov_b64 exec, -1')
    c.extend(mark1(9))


WDA, WDF = 128, 176


def wd_setup(c):
    assert BLK_ORDER == [6, 0, 1, 2, 3, 4, 5]
    for i in range(5):
        c(f'''
        v_add_u32 v{WDA + 8}, {64 * i}, v0
        v_mul_u32_u24 v{WDA + 9}, 1639, v{WDA + 8}
        v_lshrrev_b32 v{WDA + 9}, 16, v{WDA + 9}
        v_mul_u32_u24 v{WDA + 9}, 640, v{WDA + 9}
        v_lshl_add_u32 v{WDA + i}, v{WDA + 8}, 4, v{WDA + 9}
        ''')
    c(f'''
    s_mul_i32 s100, {sWAVE}, 5120
    s_add_u32 s100, s100, 20480
    v_lshrrev_b32 v{WDA + 8}, 4, v0
    v_bfe_u32 v{WDA + 9}, v0, 2, 2
    v_mul_u32_u24 v{WDA + 5}, 160, v{WDA + 8}
    v_mul_u32_u24 v{WDA + 9}, 640, v{WDA + 9}
    v_add3_u32 v{WDA + 5}, v{WDA + 5}, v{WDA + 9}, s100
    v_and_b32 v{WDA + 9}, 3, v0
    v_lshl_add_u32 v{WDA + 6}, v{WDA + 9}, 3, v{WDA + 5}
    v_lshl_add_u32 v{WDA + 5}, v{WDA + 9}, 4, v{WDA + 5}
    v_mul_u32_u24 v{WDA + 7}, {56 * 5120}, v{WDA + 8}
    v_and_b32 v{WDA + 9}, 15, v0
    v_lshl_add_u32 v{WDA + 7}, v{WDA + 9}, 4, v{WDA + 7}
    s_lshl_b32 s16, s34, 2
    s_add_u32 s16, s16, {sWAVE}
    s_sub_u32 s16, s16, {4 * OPT.get('wg0', 0)}
    s_mul_i32 s17, s16, 2341
    s_lshr_b32 s17, s17, 16
    s_mul_i32 s18, s17, 28
    s_sub_u32 s18, s16, s18
    s_and_b32 s19, s18, 1
    s_lshr_b32 s18, s18, 1
    s_mul_i32 s101, s17, 108
    s_lshl_b32 s20, s18, 3
    s_add_u32 s101, s101, s20
    s_lshl_b32 s101, s101, 1
    s_add_u32 s101, s101, s19
    s_mul_i32 s101, s101, 640
    s_mul_i32 s56, s19, {4 * 56}
    s_lshr_b32 s20, s17, 2
    s_mul_i32 s20, s20, 14
    s_add_u32 s56, s56, s20
    s_bfe_u32 s20, s17, 0x10001
    s_add_u32 s56, s56, s20
    s_and_b32 s20, s18, 14
    s_add_u32 s20, s20, 2
    s_cmp_eq_u32 s20, 14
    s_cselect_b32 s20, 0, s20
    s_add_u32 s56, s56, s20
    s_mul_i32 s56, s56, 20
    s_and_b32 s20, s17, 1
    s_lshl_b32 s20, s20, 1
    s_add_u32 s56, s56, s20
    s_and_b32 s20, s18, 1
    s_add_u32 s56, s56, s20
    s_lshl_b32 s56, s56, 8
    s_add_u32 s56, s56, {WD_OFF}
    s_cmp_eq_u32 s18, 13
    s_cselect_b32 s58, 0, -1
    s_cmp_lt_u32 s16, 448
    s_cselect_b32 s101, s101, 0x70000000
    s_cselect_b32 s56, s56, 0x70000000
    ''')


def wd_loads(WDS):
    return [[Ins(f's_add_u32 m0, s100, {1024 * i}'),
             Ins(f'buffer_load_dwordx4 v{WDA + i}, {WDS}, s101 offen lds', 'wdl')] for i in range(5)]


def wd_reads():
    c = Code()
    c('@vm wdl')
    for b in range(5):
        for h in range(2):
            if b < 4:
                c(f'ds_read_b64_tr_b16 {vr(WDF + 4 * b + 2 * h, 2)}, v{WDA + 5} offset:{2560 * h + 64 * (b >> 1) + 8 * (b & 1)}')
            else:
                c(f'ds_read_b64_tr_b16 {vr(WDF + 4 * b + 2 * h, 2)}, v{WDA + 6} offset:{2560 * h + 128}')
    for b in range(5):
        c(f'v_and_b32 v{WDF + 4 * b + 2}, s58, v{WDF + 4 * b + 2}')
        c(f'v_and_b32 v{WDF + 4 * b + 3}, s58, v{WDF + 4 * b + 3}')
    return c.ins


def wd_stores(st=SC):
    c = Code()
    for b in range(5):
        if b == 4:
            c('s_add_u32 s56, s56, 4096')
        c(f'buffer_store_dwordx4 {vr(WDF + 4 * b, 4)}, v{WDA + 7}, {WSR}, s56 offen offset:{1024 * (b & 3)}{st}', 'wds')
    return c.ins


def poll_load(vval, vaddr, srd_, soff):
    return Ins(f'buffer_load_dword {vval}, {vaddr}, {srd_}, {soff} offen{SC}')


CHECKS = []


def poll_check(name, vval, vaddr, srd_, soff, need, sleep=None, first='', more=()):
    sleep = OPT.get('sl_' + name, sleep)
    comb = f'v_min3_u32 {vval}, {vval}, {more[0][0]}, {more[1][0]}' if more else ''
    if name not in ('go_a', 'go_b', 'fx2'):
        CHECKS.append(name)
    cc = Code()
    cc(f'''
    L_{name}_slow:
    @reset
    {f's_or_b32 s82, s82, {1 << (len(CHECKS) - 1)}' if OPT.get('cnt') == 2 and name in CHECKS else ''}
    s_mov_b32 s32, {SPIN}
    L_{name}_spin:
    buffer_load_dword {vval}, {vaddr}, {srd_}, {soff} offen{SC}
    ''')
    for v, a in more:
        cc(f'buffer_load_dword {v}, {a}, {srd_}, {soff} offen{SC}')
    cc(f'''
    s_waitcnt vmcnt(0)
    {comb}
    v_cmp_gt_u32 vcc, {need}, {vval}
    s_nop 0
    s_cbranch_vccz L_{name}_ok
    ''')
    if first:
        cc(f'''
        s_cmp_lg_u32 s32, {SPIN}
        s_cbranch_scc1 L_{name}_again
        {first}
        L_{name}_again:
        ''')
    cc(f'''
    {f's_or_b32 s82, s82, {1 << (len(CHECKS) + 15)}' if OPT.get('cnt') == 2 and name in CHECKS else ''}
    {('s_sleep %d' % sleep) if sleep else ''}
    s_sub_u32 s32, s32, 1
    s_cbranch_scc0 L_{name}_spin
    s_branch L_{name}_ok
    ''')
    SLOW.extend(cc.ins)
    return ([Ins(comb)] if more else []) + [Ins(f'v_cmp_gt_u32 vcc, {need}, {vval}'), Ins('s_nop 0'), Ins(f's_cbranch_vccnz L_{name}_slow'), Ins(f'L_{name}_ok:')]


def flag_regs(c, voob, vone):
    c(f'v_mov_b32 {voob}, 0x80000000')
    c(f'v_mov_b32 {vone}, 1')
    c(f'v_writelane_b32 {voob}, 0, 0')


RING = 9
gHF, gMF, gACC, gT = 8, 168, 172, 236
NHB = 33
vOOB, vFV, vPA, vPV = 'v252', 'v253', 'v254', 'v255'


def p23_ids(c):
    c(f'''
    s_lshr_b32 s34, {sSLOT}, 2
    s_lshl_b32 s34, s34, 2
    s_lshr_b32 s34, {[0x01234567, 0x76543210, 0x54301267, 0x35401267][OPT.get('map', 0)]}, s34
    s_and_b32 s34, s34, 7
    s_and_b32 s35, {sSLOT}, 3
    s_and_b32 s36, {sXCD}, 1
    s_lshr_b32 s37, {sXCD}, 1
    s_lshl_b32 {sMT}, s34, 1
    s_add_u32 {sMT}, {sMT}, s36
    s_lshl_b32 {sNI}, s37, 2
    s_add_u32 {sNI}, {sNI}, s35
    s_lshl_b32 {sMT64}, {sMT}, 1
    s_and_b32 s36, s37, 1
    s_add_u32 {sMT64}, {sMT64}, s36
    s_and_b32 {sDC}, {sXCD}, 4
    s_add_u32 {sDC}, {sDC}, s35
    s_mul_i32 {sP2W}, {sNI}, {288 * 1024}
    s_lshl_b32 {sP2L}, {sWAVE}, 12
    s_add_u32 {sP2W}, {sP2W}, {sP2L}
    s_add_u32 {sP2W}, {sP2W}, {W1_OFF}
    s_mul_i32 {sP3W}, {sDC}, 56
    s_mul_i32 s35, {sWAVE}, 14
    s_add_u32 {sP3W}, {sP3W}, s35
    s_mul_i32 {sP3W}, {sP3W}, 5120
    s_add_u32 {sP3W}, {sP3W}, {WD_OFF}
    ''')


def fa_addr(c, va, t1):
    c(f'''
    v_and_b32 {t1}, 3, v0
    v_and_b32 {va}, 12, v0
    v_lshl_add_u32 {va}, {va}, 2, {t1}
    v_mul_u32_u24 {va}, {FSP}, {va}
    s_mul_i32 s47, {sWAVE}, {4 * FSP}
    s_add_u32 s47, s47, {FX_OFF}
    ''')


def fw_addr(c, va):
    c(f'''
    v_min_u32 {va}, 11, v0
    v_mul_u32_u24 {va}, {FSP}, {va}
    s_lshr_b32 s57, {sNI}, 1
    s_mul_i32 s57, s57, {16 * FSP}
    s_add_u32 s57, s57, {FW1_OFF}
    ''')


def fd_addr(c, va):
    c(f'''
    v_min_u32 {va}, 27, v0
    v_mul_u32_u24 {va}, {FSP}, {va}
    s_mul_i32 s58, {sWAVE}, {28 * FSP}
    s_add_u32 s58, s58, {FD_OFF + OPT.get('wg0', 0) * FSP}
    ''')


def f2_addr(c, va):
    c(f'''
    s_lshl_b32 s39, {sWAVE}, 6
    v_add_u32 {va}, s39, v0
    v_min_u32 {va}, 159, {va}
    v_mul_u32_u24 {va}, {FSP}, {va}
    ''')


def p2_dma(g, base=sP2W, every=False):
    o = []
    for k in range(4):
        l = [Ins(f's_add_u32 m0, {sP2L}, {(g % RING) * 16384}')] if k == 0 or (every and g >= 12) else []
        if k == 0:
            l.append(Ins(f's_add_u32 {sP2T}, {base}, {g * 16384}'))
        l.append(Ins(f'buffer_load_dwordx4 v1, {WSR}, {sP2T} offen offset:{1024 * k}{SC} lds', f'g{g}'))
        o.append(l)
    return o


def wfrag(j):
    n = 64 - nwb()
    if j < n:
        return ar(4 * (nwb() + j), 4)
    if j < n + 2:
        return vr(244 + 4 * (j - n), 4)
    return ar(4 * (j - n - 2), 4)


def p3_wload(j, R=''):
    o = []
    if j < 60:
        if j and (j & 3) == 0:
            o.append(Ins(f's_add_u32 {sP3W}, {sP3W}, 4096'))
        o.append(Ins(f'buffer_load_dwordx4 {wfrag(j)}, v1, {WSR}, {sP3W} offen offset:{1024 * (j & 3)}{SC}', f'{R}wd{j}'))
    else:
        k = j - 60
        if k and (k & 3) == 0:
            o.append(Ins(f's_add_u32 {sWL}, {sWL}, 4096'))
        if (k & 3) == 0:
            o.append(Ins(f's_add_u32 m0, {sSTG}, {4096 * (k >> 2)}'))
        o.append(Ins(f'buffer_load_dwordx4 v1, {WSR}, {sWL} offen offset:{1024 * (k & 3)}{SC} lds', f'{R}wl'))
    return o


sH, sHHS, sF3, sF3P, sF3Q, sHR, sHB, sRES, sRES4, sOUT, sF2P, sSTG, sWL = 's16', 's17', 's18', 's19', 's20', 21, 's25', 's26', 's27', 's28', 's29', 's30', 's31'


def p23_scalars(c):
    t, u = 's12', 's13'
    c(f'''
    s_lshl_b32 {u}, {sMT}, 2
    s_add_u32 {u}, {u}, {sWAVE}
    s_mul_i32 {sH}, {u}, 40960
    s_add_u32 {sH}, {sH}, {H4_OFF}
    s_mul_i32 {sHHS}, {u}, {2 * 57344}
    s_lshr_b32 {t}, {sNI}, 2
    s_mul_i32 {t}, {t}, {56 * 256}
    s_add_u32 {sHHS}, {sHHS}, {t}
    s_and_b32 {t}, {sNI}, 3
    s_lshl_b32 {t}, {t}, 9
    s_add_u32 {sHHS}, {sHHS}, {t}
    s_add_u32 {sHHS}, {sHHS}, {HH_OFF}
    s_mul_i32 {sF3P}, {u}, {4 * FSP}
    s_add_u32 {sF3P}, {sF3P}, {F3_OFF}
    s_mul_i32 {sF3Q}, {sMT}, {16 * FSP}
    s_mul_i32 {sF3}, {sNI}, {FSP}
    s_add_u32 {sF3}, {sF3}, {sF3Q}
    s_add_u32 {sF3}, {sF3}, {F3_OFF}
    s_add_u32 {sF3Q}, {sF3Q}, {F3_OFF + 3 * 256 * FSP}
    s_cmp_eq_u32 {sWAVE}, 0
    s_cselect_b32 {sF3}, {sF3}, 0x70000000
    s_lshl_b32 {u}, {sMT64}, 2
    s_add_u32 {u}, {u}, {sWAVE}
    s_mul_i32 {sOUT}, {u}, {16 * 1280}
    s_mul_i32 {t}, {sDC}, 160
    s_add_u32 {sOUT}, {sOUT}, {t}
    s_mul_i32 {sHB}, {u}, 57344
    s_add_u32 {sHB}, {sHB}, {HH_OFF + 48 * 256}
    s_lshr_b32 {sRES}, {u}, 1
    s_mul_i32 {sRES}, {sRES}, 40960
    s_and_b32 {t}, {sWAVE}, 1
    s_lshl_b32 {t}, {t}, 3
    s_add_u32 {sRES}, {sRES}, {t}
    s_mul_i32 {t}, {sDC}, {20 * 256}
    s_add_u32 {sRES}, {sRES}, {t}
    s_add_u32 {sRES}, {sRES}, {H4_OFF}
    s_add_u32 {sRES4}, {sRES}, 4096
    s_sub_u32 {sF2P}, {sMT}, 10
    s_cmp_lt_u32 {sMT}, 12
    s_cselect_b32 {sF2P}, 1, {sF2P}
    s_cmp_lt_u32 {sMT}, 8
    s_cselect_b32 {sF2P}, 0, {sF2P}
    s_mul_i32 {sF2P}, {sF2P}, {160 * FSP}
    s_add_u32 {sF2P}, {sF2P}, {F2_OFF}
    s_cmp_lt_u32 {sMT}, {OPT.get('pu', 12)}
    s_cselect_b32 s14, {sF2P}, {F2_OFF}
    s_cselect_b32 s15, 1, 0
    s_mov_b32 s3, {sH}
    s_mul_i32 {sSTG}, {sWAVE}, 10240
    s_add_u32 {sWL}, {sP3W}, {60 * 1024}
    s_mul_i32 {u}, {sMT64}, {4 * 57344}
    s_mul_i32 {t}, {sWAVE}, {56 * 256}
    s_add_u32 {u}, {u}, {t}
    s_add_u32 {u}, {u}, {HH_OFF}
    ''')
    for r in range(4):
        c(f'''
        s_add_u32 {t}, {sWAVE}, {r + 1}
        s_and_b32 {t}, {t}, 3
        s_mul_i32 s{sHR + r}, {t}, 57344
        s_add_u32 s{sHR + r}, s{sHR + r}, {u}
        ''')
    c(f's_movk_i32 s13, {OPT.get("tries", 4)}')
    for o, r in (('nowd', [sP3W, sWL]), ('nog', [sP2W]), ('nohh', [f's{sHR + r}' for r in range(4)] + [sHB]), ('noh', [sH])):
        if OPT.get(o):
            for x in r:
                c(f's_mov_b32 {x}, 0x70000000')


def p23_vectors():
    c = Code()
    t = gT
    c(f'''
    v_add_u32 v4, 0x10000, v1
    v_add_u32 v5, 0x20000, v1
    v_bfe_u32 v2, v0, 4, 1
    v_mul_u32_u24 v2, 57344, v2
    v_lshrrev_b32 v{t}, 5, v0
    v_lshl_add_u32 v2, v{t}, 8, v2
    v_lshrrev_b32 v3, 2, v0
    v_lshlrev_b32 v3, 6, v3
    v_and_b32 v7, 3, v0
    v_lshl_add_u32 v3, v7, 3, v3
    v_and_b32 v7, 15, v0
    v_lshlrev_b32 v7, 4, v7
    v_add_u32 v2, v2, v7
    v_lshrrev_b32 v{t}, 4, v0
    v_lshl_add_u32 v6, v{t}, 9, v7
    v_lshl_add_u32 v7, v{t}, 8, v7
    v_and_b32 {vPA}, 3, v0
    v_mul_u32_u24 {vPA}, {FSP}, {vPA}
    ''')
    return c.ins


def p23_main(c, R, pre_groups, wpre, issued=None):
    ld = st = SC
    O = lambda k, d: OPT.get(R + k, OPT.get(k, d))
    HPRE = O('hpre', 13)
    nacc, NWB = 3, nwb()
    accof = lambda bi: gACC + 16 * (bi % nacc)
    LA = O('la', 6)
    units = [(bi, kp, m) for kp in range(10) for bi in range(2) for m in range(2)]
    blk = lambda bi: [(bi, kp, m) for kp in range(10) for m in range(2)] + [(bi, 10, 0)]
    units += blk(2)[:LA] + [(0, 10, 0), (1, 10, 0)] + blk(2)[LA:]
    for bi in range(3, 7):
        units += blk(bi)
    up = {x: 4 * k for k, x in enumerate(units)}
    slots = lambda x: [w1_slot(x[0], 2 * x[1] + j, x[2]) for j in range(2)] if x[1] < 10 else [w1_slot(x[0], 20)]
    gRES = 220
    home = {80: vr(gRES, 4), 81: vr(gRES + 4, 4)}
    runits = units[:40] + [(0, 10, 0), (1, 10, 0)] + [x for x in units[40:] if x[0] > 1]
    wbuf, rpos, lastuse, holder = dict(home), {}, {}, {}
    k, prev = 0, -2
    for x in runits:
        for s in slots(x):
            lastuse[s] = up[x] + 3
            want = prev + 2
            if s not in home:
                wbuf[s] = ar(4 * (k % NWB), 4)
                want = max(want if prev >= 0 else -2, lastuse[holder[k % NWB]] + 1 if k >= NWB else -2)
                holder[k % NWB] = s
                k += 1
            rpos[s] = prev = want
            assert want < up[x] - (5 if up[x] > 8 else 0), (x, want)
    rpos = {s: max(p, -1) for s, p in rpos.items()}
    mf, last_of_blk, first_of_blk, started = [], {}, {}, set()
    half = lambda q, j: vr(int(REG_RE.match(q).group(3)) + 2 * j, 2, q[0])
    for x in units:
        bi, kp, m = x
        first_of_blk.setdefault(bi, len(mf))
        for t, j in ((m, 0), (m, 1), (1 - m, 1), (1 - m, 0)):
            if kp < 10:
                a = vr(accof(bi) + 8 * m + 4 * t, 4)
                mf.append(Ins(f'v_mfma_f32_16x16x32_bf16 {a}, {wbuf[slots(x)[j]]}, {vr(gHF + 16 * kp + 8 * j + 4 * t, 4)}, {a if (bi, m, t) in started else "0"}'))
                started.add((bi, m, t))
            else:
                a = vr(accof(bi) + 8 * t + 4 * j, 4)
                mf.append(Ins(f'v_mfma_f32_16x16x16_bf16 {a}, {half(wbuf[slots(x)[0]], t)}, {vr(gMF + 2 * j, 2)}, {a}'))
        last_of_blk[bi] = len(mf) - 1
    N2 = len(mf)
    pre = {}
    P = lambda pos, i: pre.setdefault(pos, []).append(i)

    def hload(k):
        o = []
        if k and (k & 3) == 0:
            o.append(Ins(f's_add_u32 {sH}, {sH}, 4096'))
        o.append(Ins(f'buffer_load_dwordx4 {vr(gHF + 4 * k, 4)}, v6, {WSR}, {sH} offen offset:{hoff(k)}{ld}', f'{R}h{k}'))
        return o
    hoff = lambda k: 2048 * ((k >> 1) & 1) + 256 * (k & 1)

    def dma(g):
        ll = p2_dma(g)
        for l in ll:
            l[-1].tag = f'{R}g{g}'
        return ll
    grp = lambda g: range(16 * g, min(16 * g + 16, 287))
    first_rd = lambda g: min(rpos[s] for s in grp(g))
    bars = sorted({first_rd(min(pre_groups, 3)) - 1} | {first_rd(g) - 1 for g in (5, 7, 9, 12, 14, 16)})
    GPRE = issued or pre_groups
    gjobs = []
    for g in range(pre_groups, 18):
        e = -1 if g < RING else min(b for b in bars if b >= max(lastuse[s] for s in grp(g - RING))) + 2
        cert = max(b for b in bars if b <= first_rd(g))
        if g >= GPRE:
            assert e + 20 < cert, g
            for l in dma(g):
                gjobs.append((e, cert - 4, l))
        if not any(i.mn == '@vm' for i in pre.get(cert, [])):
            P(cert, Ins(f'@vm {R}g{max(g2 for g2 in range(g, 18) if max(b for b in bars if b <= first_rd(g2)) == cert)}'))
    for b in bars:
        P(b, Ins('s_barrier'))
    for x in runits:
        for s in slots(x):
            off = (s % (16 * RING)) * 1024
            if x[1] == 10:
                P(rpos[s] - 2, Ins(f'v_add_u32 v{gT + 6}, {off}, v3'))
                for m in range(2):
                    P(rpos[s], Ins(f'ds_read_b64_tr_b16 {half(wbuf[s], m)}, v{gT + 6} offset:{32 * m}', f'{R}w{s}'))
            else:
                P(rpos[s], Ins(f'ds_read_b128 {wbuf[s]}, {["v1", "v4", "v5"][off >> 16]} offset:{off & 0xffff}', f'{R}w{s}'))
    LG = O('lgn', 2)
    for k in range(0, len(units), LG):
        s = max((s for x in units[k:k + LG] for s in slots(x)), key=lambda s_: (rpos[s_], s_))
        P(max(4 * k - 2, -1), Ins(f'@lg {R}w{s}'))
    DB = 4
    sq = lambda j, k: gT + 2 * (j & 1) + k
    dpos = lambda j: (-1, 5)[j] if j < 2 else 16 * j - 19

    def dots(j):
        o = [f'v_mov_b32 v{sq(j, k)}, {"0" if j == 0 else "v%d" % sq(j - 1, k)}' for k in range(2)]
        return o + [f'v_dot2_f32_bf16 v{sq(j, (r >> 1) & 1)}, v{gHF + 16 * j + r}, v{gHF + 16 * j + r}, v{sq(j, (r >> 1) & 1)}' for r in range(16)]
    cc = Code()
    for j in range(10):
        p = dpos(j)
        P(p, Ins(f'@vm {R}h{4 * j + 3}'))
        P(p, Ins(f'L_hb{j}:'))
        for t in dots(j):
            P(p, Ins(t))
        P(p + 1 if j else p, Ins(f'v_cmp_u_f32 vcc, v{sq(j, 0)}, v{sq(j, 1)}'))
        for t in (['s_nop 0'] if j == 0 else []) + [f's_cbranch_vccnz L_hv{j}', f'L_hok{j}:']:
            P(p + 3 if j else p, Ins(t))
        cc(f'''
        L_hv{j}:
        s_cmp_lg_u32 s15, 0
        s_cbranch_scc1 L_hok{j}
        s_movk_i32 s14, {j}
        {'s_add_u32 s82, s14, 1' if OPT.get('cnt') == 1 else ''}
        s_sub_u32 s13, s13, 1
        s_cbranch_scc1 L_hwait
        s_add_u32 s12, s3, {4096 * j}
        ''')
        for k in range(4):
            cc(f'buffer_load_dwordx4 {vr(gHF + 16 * j + 4 * k, 4)}, v6, {WSR}, s12 offen offset:{hoff(k)}{ld}')
        cc('s_waitcnt vmcnt(0)')
        cc(f'L_hr{j}:')
        for t in dots(j):
            cc(t)
        cc(f'''
        v_cmp_u_f32 vcc, v{sq(j, 0)}, v{sq(j, 1)}
        s_nop 0
        s_cbranch_vccnz L_hv{j}
        s_branch L_hok{j}
        ''')
    T = gACC + 32
    cc(f'''
    L_hwait:
    @reset
    {'s_movk_i32 s82, 11' if OPT.get('cnt') == 1 else ''}
    v_mul_u32_u24 v{T}, {FSP}, v0
    v_add_u32 v{T + 1}, {64 * FSP}, v{T}
    v_add_u32 v{T + 2}, {96 * FSP}, v{T}
    s_branch L_hspin_slow
    L_hspin_ok:
    s_mov_b32 s15, 1
    ''')
    poll_check('hspin', f'v{T + 3}', f'v{T}', WSR, sF2P, 1, 2, more=((f'v{T + 4}', f'v{T + 1}'), (f'v{T + 5}', f'v{T + 2}')))
    for j in range(10):
        if j < 9:
            cc(f's_cmp_gt_u32 s14, {j}')
            cc(f's_cbranch_scc1 L_hskip{j}')
        for k in range(4):
            cc(f'buffer_load_dwordx4 {vr(gHF + 16 * j + 4 * k, 4)}, v6, {WSR}, s3 offen offset:{hoff(k)}{ld}')
        cc(f'L_hskip{j}:')
        cc('s_add_u32 s3, s3, 4096')
    cc('s_waitcnt vmcnt(0)')
    for j in range(9):
        cc(f's_cmp_eq_u32 s14, {j}')
        cc(f's_cbranch_scc1 L_hr{j}')
    cc('s_branch L_hr9')
    SLOW.extend(cc.ins)
    for j in range(10):
        for k in range(4):
            x = gHF + 16 * j + 8 * (k >> 1) + 2 + (k & 1)
            i = Ins(f'v_swap_b32 v{x}, v{x + 2}')
            if j == 1:
                pre.setdefault(9 + 2 * k, []).insert(0, i)
            else:
                P(16 * j - 13 + 4 * k if j else -1, i)
    quads = list(range(140, 172, 4)) + list(range(204, 236, 4))[:7] + [188, 192, 196, 200, 232]
    acc3 = lambda r, b: quads[5 * r + b]
    pairs = [(r, k) for k in (0, 2, 4) for r in range(4)] + [(r, k) for k in (6, 8) for r in range(3)]
    pairs += [[(0, 10), (3, 6), (1, 10), (3, 8), (2, 10), (3, 10)], [(0, 10), (3, 6), (1, 10), (2, 10), (3, 8), (3, 10)],
              [(0, 10), (1, 10), (2, 10), (3, 6), (3, 8), (3, 10)]][O('ord', 0)]
    pairs += [(4, k) for k in (0, 2, 4, 6)]
    seq3 = lorder = [(r, k + j) for r, k in pairs for j in range(2)]
    usepos = {x: N2 + 5 * (i & ~1) for i, x in enumerate(seq3)}
    if O('tl', 1):
        usepos[(4, 6)] = usepos[(4, 7)] = usepos[(4, 4)] + 2
    free_at = {i: up[(6, i >> 2, 1)] + 3 for i in range(NHB)}
    hbuf = {}
    CP1 = first_of_blk[6] + O('cp1', 5)
    CP2 = N2 + O('cp2', 65)
    CP3 = N2 + O('cp3', 130)
    CP4 = N2 + O('cp4', 196)
    hjobs, rjobs = [], []
    for b in range(5):
        if b < 4:
            i = Ins(f'buffer_load_dwordx2 {vr(gRES + 2 * b, 2)}, v6, {WSR}, {sRES} offen offset:{2048 * (b >> 1) + 256 * (b & 1)}{ld}')
        else:
            i = Ins(f'buffer_load_dwordx2 {vr(gRES + 2 * b, 2)}, v7, {WSR}, {sRES4} offen{ld}')
        rjobs.append((up[(1, 10, 0)] + 4, CP1 - 20, [i]))
    for x in lorder:
        r, ks = x
        b = min(free_at, key=lambda k_: (free_at[k_], k_))
        cp = CP4 if r == 4 else (CP3 if ks >= 10 else (CP2 if ks >= 6 else CP1))
        e = max(cp + 1, free_at[b])
        hbuf[x] = b
        free_at[b] = usepos[x] + 9
        l = []
        if r < 4:
            if ks and (ks & 3) == 0:
                l.append(Ins(f's_add_u32 s{sHR + r}, s{sHR + r}, 4096'))
            so, off = f's{sHR + r}', 1024 * (ks & 3)
        else:
            if ks and (ks & 1) == 0:
                l.append(Ins(f's_add_u32 {sHB}, {sHB}, {56 * 256}'))
            so, off = sHB, 1024 * (ks & 1)
        l.append(Ins(f'buffer_load_dwordx4 {vr(gHF + 4 * b, 4)}, v1, {WSR}, {so} offen offset:{off}{ld}', f'{R}hq{r}_{ks}'))
        hjobs.append((e, usepos[x] - 2, l))
        if seq3.index(x) % 2 == 0:
            P(usepos[x] - 1, Ins(f'@vm {R}hq%d_%d' % max(seq3[seq3.index(x):seq3.index(x) + 2], key=lorder.index)))
    done3, wlast = {}, {}
    TL = O('tl', 1)
    fin = {}
    for r, k in pairs:
        if TL and (r, k) == (4, 6):
            continue
        kk = [k, k + 1] + ([6, 7] if TL and (r, k) == (4, 4) else [])
        for b in range(5):
            a = vr(acc3(min(r, 3), b), 4)
            for n, ks in enumerate(kk if b & 1 == 0 else kk[::-1]):
                if r < 4:
                    wlast[5 * ks + b] = len(mf)
                mf.append(Ins(f'v_mfma_f32_16x16x32_bf16 {a}, {wfrag(5 * ks + b)}, {vr(gHF + 4 * hbuf[(r, ks)], 4)}, {"0" if k == 0 and n == 0 and r < 3 else a}'))
            fin[b] = len(mf) - 1
        done3[r] = len(mf) - 1
    P(CP3 + 2, Ins(f'v_and_b32 {vPA}, 15, v0'))
    P(CP3 + 3, Ins(f'v_mul_u32_u24 {vPA}, {FSP}, {vPA}'))
    pjobs = []
    for nm, cp, lead in (('cp1', CP1, O('l1', 48)), ('cp2', CP2, O('l2', 45)), ('cp3', CP3, O('l3', 45)), ('cp4', CP4, O('l4', 45))):
        so = sF3Q if nm == 'cp4' else sF3P
        pjobs.append((cp - lead, cp - lead + 10, [poll_load(vPV, vPA, WSR, so)]))
        for i in poll_check(R + nm, vPV, vPA, WSR, so, 0 if OPT.get('nocp') else 1, 2):
            P(cp, i)
        if nm in ('cp1', 'cp2'):
            P(cp + 1, Ins(f's_add_u32 {sF3P}, {sF3P}, {256 * FSP}'))
    POST = {2: first_rd(12) - 1, 4: N2 - O('po5', 47), 5: N2 + O('po6', 34), 6: N2 + O('po7', 82)}
    for bi, p in POST.items():
        if p in bars:
            pre[p].insert(0, Ins(f'@vm {R}hh{bi}'))
        else:
            P(p, Ins(f'@vm {R}hh{bi}'))
            if bi == 6:
                P(p, Ins(f'@vm {R}wl'))
            P(p, Ins('s_barrier'))
        pjobs.append((p + 1, p + 10, ([Ins(f's_add_u32 {sF3}, {sF3}, {256 * FSP}')] if bi > 2 else []) +
                      [Ins(f'buffer_store_dword {vFV}, {vOOB}, {WSR}, {sF3} offen{st}')]))
    pjobs.sort(key=lambda x: x[0])
    assert POST[2] + 6 < CP1 and POST[4] + 6 < CP2 and POST[5] + 6 < CP3 and POST[6] + 6 < CP4
    BARW = POST[6]
    wjobs = [(0 if j < 66 - NWB else N2, usepos[(0, j // 5)] - 1, p3_wload(j, R)) for j in range(wpre, 60)]
    ljobs = [(min(b for b in bars if b >= max(lastuse[s] for s in grp(11))) + 2, BARW - 40, p3_wload(j, R)) for j in range(60, 70)]
    h2jobs = [(0, dpos(ks >> 2) - 1, hload(ks)) for ks in range(HPRE, 40)]
    tpos, t = [], 0
    for k, m in enumerate(mf):
        tpos.append(t)
        t += 16.6
        if k in [dpos(j) for j in range(10)]:
            t += 12 + 16 * DB
    for r in range(3):
        p = max(done3[r] + 1, p if r else 0)
        for b in range(5):
            p += O('pws', 3)
            while p in pre:
                p += 1
            P(p, Ins(f'ds_write_b128 v{2 + r}, {vr(acc3(r, b), 4)} offset:{1024 * (5 * r + b)}', f'{R}pw{r}'))
    PRD = p + 3
    vm, pre2, where = pace([h2jobs, gjobs + ljobs, wjobs, hjobs, pjobs, rjobs], tpos,
                           lambda p: O('spa', 50) if p < 144 else (O('spb', 100) if p < O('xe', 340) else (O('spd', 72) if p < N2 else O('spc', 68))),
                           avoid={p for p, l in pre.items() if p >= 144 or (sum(i.cost for i in l) > O('av', 0) and p not in [dpos(j) for j in range(10)])},
                           load={p: sum(i.cost for i in l) for p, l in pre.items()})
    vm[-1] = sum((hload(ks) for ks in range(HPRE)), [])
    for p, l in pre2.items():
        for i in l:
            P(p, i)
    lead = sorted((int(tpos[d] - tpos[where[id(l[-1])]]), l[-1].tag) for _, d, l in h2jobs + wjobs + hjobs)
    print(R, 'smallest leads', lead[:5], 'last vm at', max(where.values()) - N2, file=sys.stderr)
    p = BARW + 1
    for j in range(40):
        p = max(p + 2, wlast[j])
        while p in vm or sum(i.cost for i in pre.get(p, [])) > 4:
            p += 1
        assert p < usepos[(4, j // 5)] - 8
        P(p, Ins(f'ds_read_b128 {wfrag(j)}, v1 offset:{1024 * j}'))
    mk = ((8, 0), (9, 160), (10, N2 - 1), (11, N2 + 140), (12, len(mf) - 1))
    if OPT.get('mk23') == 2:
        mk = [(k + 1, N2 - 1 + 25 * k) for k in range(12)]
    if OPT.get('mk23') == 4:
        mk = []
    if OPT.get('mk23') == 3:
        mk = [(k + 1, 53 * k) for k in range(12)]
    for k, p in ([] if OPT.get('mk1') else mk):
        for i in ([] if k == 11 and OPT.get('cnt') else mark(k, True)):
            P(p, i)
    bg = []
    B = lambda pos, t, tag=None: bg.append((pos, Ins(t, tag and R + tag)))
    p = 160
    NM, VA, RS, C1, T2 = gT + 1, gT, gT + 2, gT + 3, gT + 4
    SA, SB = sq(9, 0), sq(9, 1)
    B(130, f'v_permlane16_swap_b32 v{SA}, v{SB}')
    B(130, f'v_add_f32 v{VA}, v{SA}, v{SB}')
    B(130, f'v_add_f32 v{T2}, v{SA}, v{SB}')
    B(up[(0, 9, 0)] + 8, f'v_mov_b32 v{T2 + 1}, v{accof(0)}')
    B(0, f'v_mov_b32 v{NM}, v{accof(0) + 4}')
    B(0, f'v_permlane32_swap_b32 v{VA}, v{T2}')
    B(0, f'v_permlane16_swap_b32 v{T2 + 1}, v{NM}')
    B(0, f'v_add_f32 v{VA}, v{VA}, v{T2}')
    B(0, f'v_mov_b32 v{T2 + 1}, v{NM}')
    B(-1, f'v_permlane32_swap_b32 v{T2 + 1}, v{NM}')
    cc = Code()
    ln_finish(cc, NM, VA, RS)
    for i in cc.ins:
        bg.append((0, i))
    for k in range(4):
        B(0, f'v_cvt_pk_bf16_f32 v{gMF + k}, v{NM}, v{NM}')
    B(0, f'v_permlane16_swap_b32 v{gMF}, v{gMF + 2}')
    B(0, f'v_permlane16_swap_b32 v{gMF + 1}, v{gMF + 3}', 'mf')
    B(0, f'v_mul_f32 v{C1}, 0xbfb8aa3b, v{RS}')
    B(0, f'v_mul_f32 v{T2}, 0xbfb8aa3b, v{RS}')
    B(0, f'v_mul_f32 v{NM}, v{VA}, v{RS}')
    B(0, f'v_mul_f32 v{VA}, v{VA}, v{RS}')
    B(0, f'v_permlane16_swap_b32 v{C1}, v{T2}')
    B(-1, f'v_permlane16_swap_b32 v{VA}, v{NM}')
    c1 = lambda r: C1 + (r >> 2)
    sd = lambda r: VA + (r >> 2)
    epi_last = {}
    for bi in range(7):
        a = accof(bi)
        p = last_of_blk[bi] + 3
        if bi == 6:
            for b in range(5):
                q = acc3(3, b)
                B(0, f'v_lshlrev_b32 v{q}, 16, v{gRES + 2 * b}')
                B(0, f'v_and_b32 v{q + 1}, 0xffff0000, v{gRES + 2 * b}')
                B(0, f'v_lshlrev_b32 v{q + 2}, 16, v{gRES + 2 * b + 1}')
                B(0, f'v_and_b32 v{q + 3}, 0xffff0000, v{gRES + 2 * b + 1}', 'res')
        B(p, f'v_mul_f32 v{a}, v{c1(0)}, v{a}')
        for r in range(8):
            if r < 7:
                B(p, f'v_mul_f32 v{a + r + 1}, v{c1(r + 1)}, v{a + r + 1}')
            else:
                B(p, f'v_fma_f32 v{a}, v{a}, v{sd(0)}, v{sd(0)}')
            B(p, f'v_exp_f32 v{a + r}, v{a + r}')
        for r in range(8):
            if r < 7:
                B(p, f'v_fma_f32 v{a + r + 1}, v{a + r + 1}, v{sd(r + 1)}, v{sd(r + 1)}')
            else:
                B(p, f'v_mul_f32 v{a + 8}, v{a + 8}, v{a}')
            B(p, f'v_rcp_f32 v{a + r}, v{a + r}')
        for r in range(1, 8):
            B(p, f'v_mul_f32 v{a + 8 + r}, v{a + 8 + r}, v{a + r}')
        for r in (0, 2, 1, 3):
            B(p, f'v_cvt_pk_bf16_f32 v{a + r}, v{a + 8 + 2 * r}, v{a + 9 + 2 * r}')
        B(p, f'v_permlane16_swap_b32 v{a}, v{a + 2}')
        B(p, f'v_permlane16_swap_b32 v{a + 1}, v{a + 3}')
        B(p, f'buffer_store_dwordx4 {vr(a, 4)}, v2, {WSR}, {sHHS} offen offset:{2048 * (bi & 1)}{st}', f'hh{bi}')
        epi_last[bi] = bg[-1][1]
        if bi & 1:
            B(p, f's_add_u32 {sHHS}, {sHHS}, 4096')
    for r in range(4):
        B(0, f's_add_u32 s39, {sWAVE}, {r + 1}')
        B(0, f's_and_b32 s39, s39, 3')
        B(0, f's_mul_i32 s39, s39, {15 * 1024}')
        B(0, f's_add_u32 s39, s39, 65536')
        B(0, f'v_add_u32 v{2 + r}, s39, v1')
    OB = O('ob', 1)
    B(0, f'v_lshrrev_b32 v{gT}, 4, v0')
    B(0, f'v_and_b32 v6, 15, v0')
    B(0, f'v_mul_u32_u24 v6, {176 if OB else 1280}, v6')
    if OB:
        B(0, f's_add_u32 s39, {sP2L}, 131072')
        B(0, f'v_add_u32 v6, s39, v6')
        B(0, f'v_mul_u32_u24 v{gT + 1}, 205, v0')
        B(0, f'v_lshrrev_b32 v{gT + 1}, 11, v{gT + 1}')
        B(0, f'v_lshl_add_u32 v{gT + 2}, v{gT + 1}, 4, v1')
        B(0, f'v_add_u32 v{gT + 2}, s39, v{gT + 2}')
        B(0, f'v_mul_u32_u24 v{gT + 1}, 1120, v{gT + 1}')
        B(0, f'v_add_u32 v{gT + 1}, v{gT + 1}, v1')
        B(0, f's_add_u32 s34, {sOUT}, {6 * 1280}')
        B(0, f's_add_u32 s35, {sOUT}, {12 * 1280}')
    B(0, f'v_lshl_add_u32 v7, v{gT}, 3, v6')
    B(0, f'v_lshl_add_u32 v6, v{gT}, 4, v6', 'adr')
    B(PRD, f'@lg {R}pw2')
    B(0, 's_barrier')
    for b in range(5):
        for r in range(3):
            B(0, f'ds_read_b128 {vr(acc3(r, b), 4)}, v5 offset:{1024 * (5 * r + b)}', 'pr')
    OR = gACC
    OS = ['', ' sc1', ' nt', ' sc1 nt', ' sc0 sc1'][O('os', 0)]

    def psum(b):
        if b == O('npk', 3):
            B(len(mf), f'@lg {R}pr')
        for r in (1, 2):
            for k in range(4):
                if b < O('npk', 3):
                    B(PRD + 10, f'v_add_f32 v{acc3(0, b) + k}, v{acc3(0, b) + k}, v{acc3(r, b) + k}', 'sum')
                elif k & 1 == 0:
                    B(len(mf), f'v_pk_add_f32 {vr(acc3(0, b) + k, 2)}, {vr(acc3(0, b) + k, 2)}, {vr(acc3(r, b) + k, 2)}')

    def final(b):
        p = fin[b] + 4
        if b < O('nfk', 2):
            for k in range(4):
                B(p, f'v_add_f32 v{acc3(0, b) + k}, v{acc3(0, b) + k}, v{acc3(3, b) + k}')
        else:
            p = len(mf)
            for k in (0, 2):
                B(p, f'v_pk_add_f32 {vr(acc3(0, b) + k, 2)}, {vr(acc3(0, b) + k, 2)}, {vr(acc3(3, b) + k, 2)}')
        for k in (0, 2):
            B(p, f'v_cvt_pk_bf16_f32 v{OR + 2 * b + k // 2}, v{acc3(0, b) + k}, v{acc3(0, b) + k + 1}')
        if b in (1, 3):
            B(p, f'ds_write_b128 v6, {vr(OR + 2 * b - 2, 4)} offset:{32 * (b - 1)}' if OB else
              f'buffer_store_dwordx4 {vr(OR + 2 * b - 2, 4)}, v6, {OUTS}, {sOUT} offen offset:{32 * (b - 1)}{OS}')
        if b == 4:
            B(p, f'ds_write_b64 v7, {vr(OR + 8, 2)} offset:128' if OB else f'buffer_store_dwordx2 {vr(OR + 8, 2)}, v7, {OUTS}, {sOUT} offen offset:128{OS}')
    for x in ['p0 p1 f0 f1 p2 f2 p3 p4 f3 f4', 'p0 p1 p2 f0 f1 p3 f2 p4 f3 f4', 'p0 p1 p2 p3 f0 f1 f2 p4 f3 f4', 'p0 p1 p2 p3 p4 f0 f1 f2 f3 f4'][O('fo', 0)].split():
        (psum if x[0] == 'p' else final)(int(x[1]))
    if OB:
        p = len(mf)
        B(p, 's_mov_b32 exec_hi, 0x0fffffff')
        for i in range(3):
            B(p, f'ds_read_b128 {vr(acc3(1, i), 4)}, v{gT + 2} offset:{6 * 176 * i}')
        for i, so in enumerate((sOUT, 's34', 's35')):
            if i == 2:
                B(p, 's_mov_b32 exec_hi, 0xff')
            B(p, f'buffer_store_dwordx4 {vr(acc3(1, i), 4)}, v{gT + 1}, {OUTS}, {so} offen{OS}')
        B(p, 's_mov_b64 exec, -1')
    xtra = {k: O('xb', 8) for k in range(N2, N2 + 40)}
    xtra.update({k: 4 for k in range(140, N2) if k % O('xa', 32) == 0 or (k < O('xe', 340) and k % O('xa1', 2) == 0)})
    out = weave(mf, pre, bg, vm, xtra)
    pos = {id(i): k for k, i in enumerate(out)}
    tagged = lambda t: [i for _, i in bg if i.tag == R + t][-1]
    at = lambda t: max(j for j in range(len(mf)) if pos[id(mf[j])] < pos[id(tagged(t))])
    assert at('mf') < up[(0, 10, 0)] - 1, ('mean fragment not ready', at('mf'))
    for bi in range(nacc, 7):
        assert at(f'hh{bi - nacc}') < first_of_blk[bi] - 1, ('acc reuse', bi, at(f'hh{bi - nacc}'))
    assert at('hh5') < N2 + 12 and at('res') < N2 + 20, (at('hh5'), at('res'))
    assert at('adr') < done3[0] and BARW < done3[0]
    print(R, ' '.join(f'{t}@{at(t) - N2}' for t in ('hh0', 'hh1', 'hh2', 'hh3', 'hh4', 'hh5', 'res', 'hh6', 'sum')),
          'cp', CP1 - N2, CP2 - N2, CP3 - N2, CP4 - N2, 'prd', PRD - N2, 'after last mfma', len(out) - pos[id(mf[-1])], file=sys.stderr)
    c.extend(out)
```

```python
import sys
from asmlib import *
from phases import *
import phases

NAME = 'sequential_preLN__ssm_conv_h3__glu_gated_glu__prompt'
KN = NAME + '_kernel'
HEADER = open('cdna_kernels/%s.s.ref' % NAME).read().split('; Override launch')[0]


def stamp_begin(c, ts):
    if ts:
        for k in range(1, 13):
            c(f's_mov_b32 s{60 + 2 * k}, 0')
        c('s_memtime s[86:87]')


def stamp_end(c, ts, k):
    if ts:
        c(f'''
        s_waitcnt vmcnt(0) lgkmcnt(0)
        s_memrealtime s[90:91]
        s_memtime s[88:89]
        s_lshl_b32 s34, s2, 2
        s_add_u32 s34, s34, {sWAVE}
        s_lshl_b32 s34, s34, 6
        s_add_u32 s34, s34, {TS_OFF + k * 65536}
        s_waitcnt lgkmcnt(0)
        ''')
        for j in range(16):
            c(f'v_mov_b32 v{j}, s{60 + 2 * j}')
        c('v_mov_b32 v16, 0')
        c('s_mov_b64 exec, 1')
        for j in range(4):
            c(f'buffer_store_dwordx4 v[{4 * j}:{4 * j + 3}], v16, {WSR}, s34 offen offset:{16 * j}')


def desc(name, vgpr, accum):
    return f'''.amdhsa_kernel {name}
  .amdhsa_next_free_vgpr {vgpr}
  .amdhsa_next_free_sgpr 102
  .amdhsa_accum_offset {accum}
  .amdhsa_group_segment_fixed_size 0
  .amdhsa_kernarg_size 104
  .amdhsa_user_sgpr_count 2
  .amdhsa_user_sgpr_kernarg_segment_ptr 1
  .amdhsa_system_sgpr_workgroup_id_x 1
  .amdhsa_float_denorm_mode_32 3
.end_amdhsa_kernel'''


def go_addr(c, va):
    c(f'v_and_b32 {va}, 7, v0')
    c(f'v_lshlrev_b32 {va}, 5, {va}')


def wg_flag(c, soff, wait='s_waitcnt vmcnt(0)'):
    c(wait)
    c('s_barrier')
    c(f's_cmp_eq_u32 {sWAVE}, 0')
    c(f's_cselect_b32 s42, {soff}, 0x7f000000')
    c(f'buffer_store_dword v7, v6, {WSR}, s42 offen{SC}')


def probe(c, a, b, mult, rng=(0, 16), raw=False):
    c('.p2align 8')
    c('.type probe_kernel,@function')
    c('probe_kernel:')
    c('@reset')
    c('s_cmp_ge_u32 s2, 1')
    c('s_cbranch_scc1 L_probe_exit')
    srd(c, 8, WS, WS_USED)
    c('v_lshlrev_b32 v1, 6, v0')
    c('s_waitcnt lgkmcnt(0)')
    for k, (kn, wd, op) in enumerate([(0, 0, 'min'), a, b]):
        c(f's_mov_b32 s20, {TS_OFF + kn * 65536 + wd * 4}')
        for i in range(16):
            c(f'buffer_load_dword v{8 + i}, v1, {WSR}, s20 offen')
            c('s_add_u32 s20, s20, 4096')
        if k == 2 and OPT.get('bit') is not None:
            op = 'add'
            for i in range(16):
                c(f'v_bfe_u32 v{8 + i}, v{8 + i}, {OPT["bit"]}, 1')
        lo, hi = rng if k == 2 else (0, 16)
        if lo:
            c(f'v_mov_b32 v8, v{8 + lo}')
        for i in range(lo + 1, hi):
            c(f'v_{op}_u32 v8, v8, v{8 + i}')
        c(f'v_readlane_b32 s{30 + k}, v8, 0')
        for l in range(1, 64):
            c(f'v_readlane_b32 s21, v8, {l}')
            c(f's_{op}_u32 s{30 + k}, s{30 + k}, s21')
    c(f'''
    {'s_mul_i32 s32, s32, 10' if raw else 's_sub_u32 s32, s32, s31'}
    s_min_u32 s32, s32, 20000
    s_mul_i32 s32, s32, {mult}
    s_add_u32 s32, s32, 10000
    L_probe_spin:
    s_memrealtime s[22:23]
    s_waitcnt lgkmcnt(0)
    s_sub_u32 s22, s22, s30
    s_cmp_lt_u32 s22, s32
    s_cbranch_scc1 L_probe_spin
    L_probe_exit:
    s_endpgm
    ''')


def untag(ll):
    for l in ll:
        for i in l:
            i.tag = None
    return ll


def build(ts=False, opts={}):
    c = Code()
    OPT.clear()
    OPT.update(opts)
    OPT['ts'] = ts
    SLOW.clear()
    CHECKS.clear()
    SHORT[0] = OPT.get('short', 1)
    c('.p2align 8')
    c(f'.type {KN},@function')
    c(f'{KN}:')
    if ts:
        c('s_memrealtime s[60:61]')
    c('s_cmp_lt_u32 s2, 160')
    c('s_cbranch_scc1 L_conv')
    c('s_cmp_ge_u32 s2, 256')
    c('s_cbranch_scc1 L_exit')
    if OPT.get('codepf', 1):
        c(f'''
        s_cmp_lt_u32 s2, 240
        s_cbranch_scc1 L_side
        s_getpc_b64 s[34:35]
        L_pc:
        s_and_b32 s36, s2, 8
        s_lshl_b32 s36, s36, 12
        v_lshl_add_u32 v1, v0, 7, s36
        v_min_u32 v2, L_code_end-L_pc-4, v1
        v_mov_b32 v3, s35
        v_add_co_u32 v2, vcc, s34, v2
        v_addc_co_u32 v3, vcc, 0, v3, vcc
        global_load_dword v250, v[2:3], off
        ''')
    c('s_branch L_side')
    c('L_conv:')
    c('@reset')
    for base, slot in ((12, A_K), (16, A_V), (20, A_SH)):
        c(f's_load_dwordx2 s[{base}:{base + 1}], s[0:1], {slot}')
    c(f'''
    s_mov_b32 s14, {NBYTES_SD}
    s_mov_b32 s15, 0x20000
    s_mov_b64 s[18:19], s[14:15]
    s_movk_i32 s22, {D * 8}
    s_mov_b32 s23, s15
    ''')
    ids(c)
    conv_ids(c)
    p0_kv_load(c, 's[12:15]', 's[16:19]', 's[20:23]')
    srd(c, 24, A_SSMK, NBYTES_SD)
    srd(c, 28, A_SSMD, D * 2)
    srd(c, 8, WS, WS_USED)
    srd(c, 48, OUT, NBYTES_SD)
    srd(c, 52, DBG, 256)
    c('s_mov_b32 s59, 0xffff0000')
    stamp_begin(c, ts)
    if OPT.get('mks'):
        c('s_mov_b32 s80, s96')
        c('s_mov_b32 s82, s98')
    c.extend(mark(1))
    p23_ids(c)
    late = p1_k_load(c, 's[24:27]', 's[28:31]')
    srd(c, 44, B_WD, D * F * 2)
    wd_setup(c)
    WDL = OPT.get('wdl', 0)
    if WDL:
        late += wd_loads('s[44:47]')
    else:
        c.extend(sum(wd_loads('s[44:47]'), []))
    for k in range(OPT.get('le', 0)):
        c.extend(late.pop(0))
    p0_kv(c, late)
    assert not late
    go_addr(c, 'v122')
    c.add(poll_load('v123', 'v122', DBGS, '0'))
    WDS = OPT.get('wds', 0)
    if WDS < 0:
        c.extend(wd_reads() + wd_stores())
    c.extend(mark(2))
    flag_regs(c, vOOB, vFV)
    c(f'''
    s_lshl_b32 s37, {sSG}, 2
    s_add_u32 s35, s37, {sWAVE}
    s_lshl_b32 s35, s35, 4
    s_add_u32 s35, s35, {sIDX}
    s_mul_i32 s35, s35, {FSP}
    s_add_u32 s35, s35, {F1_OFF}
    s_lshr_b32 s36, {sIDX}, 2
    s_add_u32 s36, s36, s37
    s_mul_i32 s36, s36, {16 * FSP}
    s_add_u32 s36, s36, {F1_OFF}
    ''')
    def setup():
        c(f'''
        v_and_b32 v8, 15, v0
        v_mul_u32_u24 v8, {FSP}, v8
        s_mul_i32 s46, s34, {FSP}
        s_add_u32 s46, s46, {F2_OFF}
        s_add_u32 s41, {sWAVE}, 2
        s_mul_i32 s41, s41, {160 * FSP}
        s_add_u32 s41, s41, s46
        s_sub_u32 s40, s46, {F2_OFF - FD_OFF}
        s_cmp_ge_u32 {sWAVE}, 1
        s_cselect_b32 s46, 0x70000000, s46
        s_cselect_b32 s40, 0x70000000, s40
        s_cselect_b32 s36, 0x70000000, s36
        ''')
        fa_addr(c, 'v138', 'v139')
        fw_addr(c, 'v140')
        f2_addr(c, 'v142')
    work = [lambda: c.extend(wd_reads() if WDS >= 0 else []), lambda: p23_scalars(c), lambda: p1_k(c), lambda: p1_k_frag(c), setup]
    NBF = OPT.get('nbf', 1)
    for f in work[:NBF]:
        f()
    c.extend(poll_check('go_c', 'v123', 'v122', DBGS, '0', 1))
    c('@vm ust')
    c(f'buffer_store_dword {vFV}, {vOOB}, {WSR}, s35 offen{SC}')
    c.extend(mark(3))
    if NBF == 0:
        work[0]()
    if WDS == 0:
        c.extend(wd_stores())
    for f in work[max(NBF, 1):]:
        f()
    if OPT.get('lw', 1):
        c('s_waitcnt lgkmcnt(0)')
    if OPT.get('vw', 0):
        c('s_waitcnt vmcnt(0)')
    c.add(poll_load('v9', 'v8', WSR, 's36'))
    c(f's_cmp_ge_u32 {sWAVE}, 1')
    c('s_cbranch_scc1 L_s1_ok')
    c.extend(poll_check('s1', 'v9', 'v8', WSR, 's36', 1, OPT.get('s1sleep', 0)))
    c('s_waitcnt vmcnt(0)')
    c('s_barrier')
    c.extend(mark(4))
    p1_load_u(c)
    FAP = OPT.get('fap', -1)
    if FAP < 0:
        c.add(poll_load('v139', 'v138', WSR, 's47'))
    fdpost = [Ins(f'buffer_store_dword {vFV}, {vOOB}, {WSR}, s40 offen{SC}')]
    c.extend(wd_stores() if WDS > 0 else fdpost)
    fd_addr(c, 'v128')
    FA, FD, FP, WP = OPT.get('fa', 28), OPT.get('fd', 125), OPT.get('fp', 280), OPT.get('wp', 32)
    inj = [(0, mark(5)), (FA, poll_check('fa', 'v139', 'v138', WSR, 's47', 1, 2)), (FD, poll_check('fd_c', 'v129', 'v128', WSR, 's58', 1, 2))]
    if WDS > 0:
        inj.append((WDS, [Ins('@vm wds'), Ins('s_barrier')] + fdpost))
    if OPT.get('mk1') and not OPT.get('mks'):
        inj += [(p, mark(k)) for k, p in ((10, 96), (11, 192), (12, 287))]
    if OPT.get('mk23') == 4:
        inj += [(26 * k + 1, mark(k + 1, True)) for k in range(12)]
    polls = [(FAP, FAP + 8, [poll_load('v139', 'v138', WSR, 's47')])] if FAP >= 0 else []
    polls += [(FD - 40, FD - 30, [poll_load('v129', 'v128', WSR, 's58')])]
    if FP < 288:
        polls.append((FP, 287, [poll_load('v141', 'v140', WSR, 's57')]))
    sj = [(FA + 2, 200, l) for l in p1_load_x()]
    sj += [(FD + 2, 287, l) for l in untag([p3_wload(j) for j in range(WP)])]
    p1_main(c, inj, [polls, sj], [poll_load('v141', 'v140', WSR, 's57')] if FP >= 288 else [])
    fl3 = f'buffer_store_dword {vFV}, {vOOB}, {WSR}, s41 offen{SC}'
    c.extend(poll_check('fw_c', 'v141', 'v140', WSR, 's57', 1, 4, first=fl3))
    G1, G2, GI = OPT.get('g1', 2), OPT.get('g2', 5), OPT.get('gi', 7)
    if OPT.get('mkg'):
        c.extend(mark(1))
    GO2 = OPT.get('go2', 0)
    for g in range(G1):
        c.extend(sum(untag(p2_dma(g)), []))
    c.extend(p23_vectors())
    if OPT.get('mkg'):
        c.extend(mark(2))
    if not GO2:
        c('@vm hst3')
        c(fl3)
    if OPT.get('mkg'):
        c.extend(mark(3))
    c('s_branch L_ring')
    c('L_side:')
    c('@reset')
    srd(c, 12, A_Q, NBYTES_SD)
    srd(c, 16, B_WG, D * F * 2)
    srd(c, 20, B_WU, D * F * 2)
    srd(c, 8, WS, WS_USED)
    srd(c, 48, OUT, NBYTES_SD)
    srd(c, 52, DBG, 256)
    ids(c)
    c('s_mov_b32 s59, 0xffff0000')
    stamp_begin(c, ts)
    flag_regs(c, 'v6', 'v7')
    go_addr(c, 'v122')
    c(f's_cmp_ge_u32 {sSLOT}, 28')
    c('s_cbranch_scc1 L_side2')
    N1 = OPT.get('n1', 3)
    HS = OPT.get('hs', 0)
    N2 = 5 if HS else (40 - 8 * N1) // 4
    c(f'''
    s_sub_u32 s56, s2, 160
    s_sub_u32 s43, {sSLOT}, 20
    s_mov_b32 s7, {sXCD}
    s_mul_i32 s6, s7, {N1}
    ''')
    if HS:
        c('''
        s_and_b32 s58, s7, 1
        s_lshr_b32 s57, s7, 1
        s_sub_u32 s6, s6, s57
        ''')

    def mid1():
        side_w1(c, 's43', 's6', 's7', N1, 0, 1)
        c.extend(poll_check('go_a', 'v123', 'v122', DBGS, '0', 1, 4))
        wg_flag(c, 's56', '')
        c.extend(mark(1))
    W1AT = OPT.get('w1at', 2)
    p0_x(c, 's[12:15]', 's56', lambda k: side_w1_load(c, 's[16:19]', 's[20:23]', 's43', 's6', N1, 0, -1, None) if k == W1AT else None)
    c.add(poll_load('v123', 'v122', DBGS, '0'))
    c(f's_mul_i32 s56, s56, {FSP}')
    c(f's_add_u32 s56, s56, {FX_OFF}')
    if W1AT == 2:
        side_w1_load(c, 's[16:19]', 's[20:23]', 's43', 's6', N1, 0, OPT.get('w1pre', 1), mid1)
    else:
        mid1()
    side_w1(c, 's43', 's6', 's7', N1, 0, 2)
    c('s_branch L_w1_done')
    c('L_side2:')
    c('@reset')
    c('s_waitcnt lgkmcnt(0)')
    c(f'''
    s_sub_u32 s56, s2, 224
    s_lshl_b32 s45, s56, 2
    s_add_u32 s45, s45, {sWAVE}
    s_lshl_b32 s45, s45, 12
    s_add_u32 s45, s45, {FL_OFF}
    s_lshl_b32 s58, s56, 5
    s_cmp_eq_u32 {sWAVE}, 0
    s_cselect_b32 s58, s58, 0x70000000
    s_cmp_lt_u32 s56, 8
    s_cselect_b32 s45, s45, 0x70000000
    v_lshlrev_b32 v14, 4, v0
    v_mov_b32 v200, 0
    v_mov_b32 v201, 0
    v_mov_b32 v202, 0
    v_mov_b32 v203, 0
    ''')
    for k in range(4):
        c(f'buffer_store_dwordx4 v[200:203], v14, {WSR}, s45 offen offset:{1024 * k}{SC}', 'za')
    c(f'''
    s_and_b32 s43, {sXCD}, 1
    s_lshl_b32 s43, s43, 2
    s_add_u32 s43, s43, {sSLOT}
    s_sub_u32 s43, s43, 28
    s_lshr_b32 s7, {sXCD}, 1
    s_mul_i32 s6, s7, {N2}
    s_add_u32 s6, s6, {40 - 4 * N2}
    s_lshl_b32 s57, s7, 1
    s_add_u32 s57, s57, 8
    s_add_u32 s7, s7, 8
    ''')

    def mid2():
        side_w1(c, 's43', 's6', 's57', N2, 1, 1)
        c('@vm za')
        c('s_barrier')
        c(f'buffer_store_dword v7, v6, {DBGS}, s58 offen{SC}')
        c.extend(mark(1))
    side_w1_load(c, 's[16:19]', 's[20:23]', 's43', 's6', N2, 1, OPT.get('w2pre', 2), mid2)
    side_w1(c, 's43', 's6', 's57', N2, 1, 2)
    c('L_w1_done:')
    c('@reset')
    c.add(poll_load('v123', 'v122', DBGS, '0'))
    c(f'''
    s_lshl_b32 s56, s43, 4
    s_add_u32 s56, s56, s7
    s_mul_i32 s56, s56, {FSP}
    s_add_u32 s56, s56, {FW1_OFF}
    ''')
    p23_ids(c)
    p23_scalars(c)
    fw_addr(c, 'v8')
    f2_addr(c, 'v142')
    c(f'''
    v_lshlrev_b32 v1, 4, v0
    v_mul_u32_u24 v13, {FSP}, v0
    s_mov_b32 s47, {FX_OFF}
    ''')
    flag_regs(c, vOOB, vFV)
    c('s_mov_b32 s41, 0x70000000')
    c.extend(poll_check('go_b', 'v123', 'v122', DBGS, '0', 1, 4))
    wg_flag(c, 's56')
    c.extend(mark(2))
    c.extend(p23_vectors())
    fd_addr(c, 'v10')
    CAN = OPT.get('can', 1)
    if CAN:
        c(f'''
        s_cmp_lt_u32 {sSLOT}, 28
        s_cbranch_scc1 L_nocan
        s_cmp_lg_u32 {sWAVE}, 0
        s_cbranch_scc1 L_fx2_ok
        s_add_u32 s46, {sXCD}, {OPT.get('rot', 0)}
        s_and_b32 s46, s46, 7
        s_mul_i32 s46, s46, {16 * FSP}
        s_add_u32 s46, s46, {FD_OFF}
        v_and_b32 v15, {CAN - 1}, v0
        v_mul_u32_u24 v15, {FSP}, v15
        ''')
        c.add(poll_load('v11', 'v15', WSR, 's46'))
        c.extend(poll_check('can', 'v11', 'v15', WSR, 's46', 1, 8))
        c.add(poll_load('v14', 'v13', WSR, 's47'))
        c.extend(poll_check('fx2', 'v14', 'v13', WSR, 's47', 1, 8))
        c('s_barrier')
        c('L_nocan:')
    c(f's_cmp_eq_u32 {sWAVE}, 0')
    c('s_cselect_b32 s47, s47, 0x70000000')
    c.add(poll_load('v11', 'v10', WSR, 's58'))
    c.add(poll_load('v14', 'v13', WSR, 's47'))
    c.extend(poll_check('fd_s', 'v11', 'v10', WSR, 's58', 1, 8))
    for j in range(WP):
        c.extend(untag([p3_wload(j)])[0])
    c(f's_cmp_lg_u32 {sWAVE}, 0')
    c('s_cbranch_scc1 L_fw_s_ok')
    C2 = OPT.get('can2', 1)
    if not C2:
        c.add(poll_load('v9', 'v8', WSR, 's57'))
    c.extend(poll_check('fx_s', 'v14', 'v13', WSR, 's47', 1, 8))
    if C2:
        if C2 == 1:
            c(f's_cmp_lt_u32 {sSLOT}, 28')
            c('s_cbranch_scc1 L_can2_ok')
        c(f'''
        s_add_u32 s46, {sXCD}, {OPT.get('rot', 0)}
        s_and_b32 s46, s46, 7
        s_mul_i32 s46, s46, {16 * FSP}
        s_add_u32 s46, s46, {F2_OFF}
        v_mov_b32 v15, 0
        ''')
        c.add(poll_load('v11', 'v15', WSR, 's46'))
        c.extend(poll_check('can2', 'v11', 'v15', WSR, 's46', 1, 4))
        c.add(poll_load('v9', 'v8', WSR, 's57'))
    c.extend(poll_check('fw_s', 'v9', 'v8', WSR, 's57', 1, 8))
    c('s_barrier')
    c.extend(mark(3))
    for g in range(GI):
        if g == G1:
            c('L_ring:')
            c('@reset')
        if g == 5:
            c('s_barrier')
        if g == G2:
            c.add(poll_load('v11', 'v142', WSR, 's14'))
        for l in p2_dma(g):
            l[-1].tag = f'sg{g}'
            c.extend(l)
    if G2 == GI:
        c.add(poll_load('v11', 'v142', WSR, 's14'))
    if OPT.get('mkg'):
        c.extend(mark(4))
    c.extend(poll_check('s2', 'v11', 'v142', WSR, 's14', 1, OPT.get('s2sleep', 2), first=fl3 if GO2 else ''))
    if GO2:
        c(fl3)
    c('s_barrier')
    c.extend([] if OPT.get('mk1') else mark(7))
    p23_main(c, 's', G2, WP, GI)
    c('L_end:')
    c('@reset')
    stamp_end(c, ts, 0)
    if OPT.get('spin100'):
        c('''
        L_sp100:
        s_memrealtime s[22:23]
        s_waitcnt lgkmcnt(0)
        s_sub_u32 s22, s22, s60
        s_cmp_lt_u32 s22, 10000
        s_cbranch_scc1 L_sp100
        ''')
    c('L_exit:')
    c('s_endpgm')
    c.extend(SLOW)
    c('L_code_end:')
    prb = OPT.get('prb')
    if prb is not None:
        probe(c, (0, 0, 'min'), (0, prb % 16, 'min' if OPT.get('pmin') else 'max'), 10, [(0, 16), (0, 10), (10, 14), (14, 16)][prb // 16], OPT.get('raw'))
    st = {}
    body = text_of(finalize(c.ins, st))
    print(st, file=sys.stderr)
    out = HEADER
    if OPT.get('cnt') == 2:
        out += '; checks ' + ' '.join(CHECKS) + '\n'
    if prb is not None:
        out += f'; @launch kernel={KN} grid=(256,1,1) block=(256,1,1) lds={LDS_TOTAL}\n'
        out += '; @launch kernel=probe_kernel grid=(1,1,1) block=(64,1,1) lds=0\n'
    else:
        out += f'; @launch grid=(256,1,1) block=(256,1,1) lds={LDS_TOTAL}\n'
    out += f'.amdgcn_target "amdgcn-amd-amdhsa--gfx950"\n.text\n.globl {KN}\n'
    out += body + '\n.section .rodata,"a"\n'
    out += '.p2align 6\n' + desc(KN, 512, 256) + '\n'
    if prb is not None:
        out += '.p2align 6\n' + desc('probe_kernel', 32, 32) + '\n'
    return out


if __name__ == '__main__':
    import argparse
    ap = argparse.ArgumentParser()
    ap.add_argument('-o', default='cdna_kernels/%s.s' % NAME)
    ap.add_argument('--ts', action='store_true')
    ap.add_argument('--opt', nargs='*', default=[])
    a = ap.parse_args()
    opts = {}
    for kv in a.opt:
        k, _, v = kv.partition('=')
        opts[k] = int(v) if v else 1
    open(a.o, 'w').write(build(a.ts, opts))
```

```python
import sys
from asmlib import *
from phases import *
import phases

NAME = 'sequential_preLN__ssm_conv_h3__glu_gated_glu__prompt'
KN = NAME + '_kernel'
HEADER = open('cdna_kernels/%s.s.ref' % NAME).read().split('; Override launch')[0]


def stamp_begin(c, ts):
    if ts:
        for k in range(1, 13):
            c(f's_mov_b32 s{60 + 2 * k}, 0')
        c('s_memtime s[86:87]')


def stamp_end(c, ts, k):
    if ts:
        c(f'''
        s_waitcnt vmcnt(0) lgkmcnt(0)
        s_memrealtime s[90:91]
        s_memtime s[88:89]
        s_lshl_b32 s34, s2, 2
        s_add_u32 s34, s34, {sWAVE}
        s_lshl_b32 s34, s34, 6
        s_add_u32 s34, s34, {TS_OFF + k * 65536}
        s_waitcnt lgkmcnt(0)
        ''')
        for j in range(16):
            c(f'v_mov_b32 v{j}, s{60 + 2 * j}')
        c('v_mov_b32 v16, 0')
        c('s_mov_b64 exec, 1')
        for j in range(4):
            c(f'buffer_store_dwordx4 v[{4 * j}:{4 * j + 3}], v16, {WSR}, s34 offen offset:{16 * j}')


def desc(name, vgpr, accum):
    return f'''.amdhsa_kernel {name}
  .amdhsa_next_free_vgpr {vgpr}
  .amdhsa_next_free_sgpr 102
  .amdhsa_accum_offset {accum}
  .amdhsa_group_segment_fixed_size 0
  .amdhsa_kernarg_size 104
  .amdhsa_user_sgpr_count 2
  .amdhsa_user_sgpr_kernarg_segment_ptr 1
  .amdhsa_system_sgpr_workgroup_id_x 1
  .amdhsa_float_denorm_mode_32 3
.end_amdhsa_kernel'''


def go_addr(c, va):
    c(f'v_and_b32 {va}, 7, v0')
    c(f'v_lshlrev_b32 {va}, 5, {va}')


def wg_flag(c, soff, wait='s_waitcnt vmcnt(0)'):
    c(wait)
    c('s_barrier')
    c(f's_cmp_eq_u32 {sWAVE}, 0')
    c(f's_cselect_b32 s42, {soff}, 0x7f000000')
    c(f'buffer_store_dword v7, v6, {WSR}, s42 offen{SC}')


def probe(c, a, b, mult, rng=(0, 16), raw=False):
    c('.p2align 8')
    c('.type probe_kernel,@function')
    c('probe_kernel:')
    c('@reset')
    c('s_cmp_ge_u32 s2, 1')
    c('s_cbranch_scc1 L_probe_exit')
    srd(c, 8, WS, WS_USED)
    c('v_lshlrev_b32 v1, 6, v0')
    c('s_waitcnt lgkmcnt(0)')
    for k, (kn, wd, op) in enumerate([(0, 0, 'min'), a, b]):
        c(f's_mov_b32 s20, {TS_OFF + kn * 65536 + wd * 4}')
        for i in range(16):
            c(f'buffer_load_dword v{8 + i}, v1, {WSR}, s20 offen')
            c('s_add_u32 s20, s20, 4096')
        if k == 2 and OPT.get('bit') is not None:
            op = 'add'
            for i in range(16):
                c(f'v_bfe_u32 v{8 + i}, v{8 + i}, {OPT["bit"]}, 1')
        lo, hi = rng if k == 2 else (0, 16)
        if lo:
            c(f'v_mov_b32 v8, v{8 + lo}')
        for i in range(lo + 1, hi):
            c(f'v_{op}_u32 v8, v8, v{8 + i}')
        lanes = [l for l in range(64) if k < 2 or OPT.get('px') is None or (l >> 2) & 7 == OPT['px']]
        c(f'v_readlane_b32 s{30 + k}, v8, {lanes[0]}')
        for l in lanes[1:]:
            c(f'v_readlane_b32 s21, v8, {l}')
            c(f's_{op}_u32 s{30 + k}, s{30 + k}, s21')
    c(f'''
    {'s_mul_i32 s32, s32, 10' if raw else 's_sub_u32 s32, s32, s31'}
    s_min_u32 s32, s32, 20000
    s_mul_i32 s32, s32, {mult}
    s_add_u32 s32, s32, 10000
    L_probe_spin:
    s_memrealtime s[22:23]
    s_waitcnt lgkmcnt(0)
    s_sub_u32 s22, s22, s30
    s_cmp_lt_u32 s22, s32
    s_cbranch_scc1 L_probe_spin
    L_probe_exit:
    s_endpgm
    ''')


def untag(ll):
    for l in ll:
        for i in l:
            i.tag = None
    return ll


def build(ts=False, opts={}):
    c = Code()
    OPT.clear()
    OPT.update(opts)
    OPT['ts'] = ts
    SLOW.clear()
    CHECKS.clear()
    SHORT[0] = OPT.get('short', 1)
    c('.p2align 8')
    c(f'.type {KN},@function')
    c(f'{KN}:')
    if ts:
        c('s_memrealtime s[60:61]')
    c('s_cmp_lt_u32 s2, 160')
    c('s_cbranch_scc1 L_conv')
    c('s_cmp_ge_u32 s2, 256')
    c('s_cbranch_scc1 L_exit')
    if OPT.get('codepf', 1):
        c(f'''
        s_cmp_lt_u32 s2, 240
        s_cbranch_scc1 L_side
        s_getpc_b64 s[34:35]
        L_pc:
        s_and_b32 s36, s2, 8
        s_lshl_b32 s36, s36, 12
        v_lshl_add_u32 v1, v0, 7, s36
        v_min_u32 v2, L_code_end-L_pc-4, v1
        v_mov_b32 v3, s35
        v_add_co_u32 v2, vcc, s34, v2
        v_addc_co_u32 v3, vcc, 0, v3, vcc
        global_load_dword v250, v[2:3], off
        ''')
    c('s_branch L_side')
    c('L_conv:')
    c('@reset')
    for base, slot in ((12, A_K), (16, A_V), (20, A_SH)):
        c(f's_load_dwordx2 s[{base}:{base + 1}], s[0:1], {slot}')
    c(f'''
    s_mov_b32 s14, {NBYTES_SD}
    s_mov_b32 s15, 0x20000
    s_mov_b64 s[18:19], s[14:15]
    s_movk_i32 s22, {D * 8}
    s_mov_b32 s23, s15
    ''')
    ids(c)
    conv_ids(c)
    p0_kv_load(c, 's[12:15]', 's[16:19]', 's[20:23]')
    srd(c, 24, A_SSMK, NBYTES_SD)
    srd(c, 28, A_SSMD, D * 2)
    srd(c, 8, WS, WS_USED)
    srd(c, 48, OUT, NBYTES_SD)
    srd(c, 52, DBG, 256)
    c('s_mov_b32 s59, 0xffff0000')
    stamp_begin(c, ts)
    if OPT.get('mks'):
        c('s_mov_b32 s80, s96')
        c('s_mov_b32 s82, s98')
    c.extend(mark(1))
    p23_ids(c)
    late = p1_k_load(c, 's[24:27]', 's[28:31]')
    srd(c, 44, B_WD, D * F * 2)
    wd_setup(c)
    WDL = OPT.get('wdl', 0)
    if WDL:
        late += wd_loads('s[44:47]')
    else:
        c.extend(sum(wd_loads('s[44:47]'), []))
    for k in range(OPT.get('le', 0)):
        c.extend(late.pop(0))
    p0_kv(c, late)
    assert not late
    go_addr(c, 'v122')
    c.add(poll_load('v123', 'v122', DBGS, '0'))
    WDS = OPT.get('wds', 0)
    if WDS < 0:
        c.extend(wd_reads() + wd_stores())
    c.extend(mark(2))
    flag_regs(c, vOOB, vFV)
    c(f'''
    s_lshl_b32 s37, {sSG}, 2
    s_add_u32 s35, s37, {sWAVE}
    s_lshl_b32 s35, s35, 4
    s_add_u32 s35, s35, {sIDX}
    s_mul_i32 s35, s35, {FSP}
    s_add_u32 s35, s35, {F1_OFF}
    s_lshr_b32 s36, {sIDX}, 2
    s_add_u32 s36, s36, s37
    s_mul_i32 s36, s36, {16 * FSP}
    s_add_u32 s36, s36, {F1_OFF}
    ''')
    def setup():
        c(f'''
        v_and_b32 v8, 15, v0
        v_mul_u32_u24 v8, {FSP}, v8
        s_mul_i32 s46, s34, {FSP}
        s_add_u32 s46, s46, {F2_OFF}
        s_add_u32 s41, {sWAVE}, 2
        s_mul_i32 s41, s41, {160 * FSP}
        s_add_u32 s41, s41, s46
        s_sub_u32 s40, s46, {F2_OFF - FD_OFF}
        s_cmp_ge_u32 {sWAVE}, 1
        s_cselect_b32 s46, 0x70000000, s46
        s_cselect_b32 s40, 0x70000000, s40
        s_cselect_b32 s36, 0x70000000, s36
        ''')
        fa_addr(c, 'v138', 'v139')
        fw_addr(c, 'v140')
        f2_addr(c, 'v142')
    work = [lambda: c.extend(wd_reads() if WDS >= 0 else []), lambda: p23_scalars(c), lambda: p1_k(c), lambda: p1_k_frag(c), setup]
    NBF = OPT.get('nbf', 1)
    for f in work[:NBF]:
        f()
    c.extend(poll_check('go_c', 'v123', 'v122', DBGS, '0', 1))
    c('@vm ust')
    c(f'buffer_store_dword {vFV}, {vOOB}, {WSR}, s35 offen{SC}')
    c.extend(mark(3))
    if NBF == 0:
        work[0]()
    if WDS == 0:
        c.extend(wd_stores())
    for f in work[max(NBF, 1):]:
        f()
    if OPT.get('lw', 1):
        c('s_waitcnt lgkmcnt(0)')
    if OPT.get('vw', 0):
        c('s_waitcnt vmcnt(0)')
    c.add(poll_load('v9', 'v8', WSR, 's36'))
    c(f's_cmp_ge_u32 {sWAVE}, 1')
    c('s_cbranch_scc1 L_s1_ok')
    c.extend(poll_check('s1', 'v9', 'v8', WSR, 's36', 1, OPT.get('s1sleep', 0)))
    c('s_waitcnt vmcnt(0)')
    c('s_barrier')
    c.extend(mark(4))
    p1_load_u(c)
    FAP = OPT.get('fap', -1)
    if FAP < 0:
        c.add(poll_load('v139', 'v138', WSR, 's47'))
    fdpost = [Ins(f'buffer_store_dword {vFV}, {vOOB}, {WSR}, s40 offen{SC}')]
    c.extend(wd_stores() if WDS > 0 else fdpost)
    fd_addr(c, 'v128')
    FA, FD, FP, WP = OPT.get('fa', 28), OPT.get('fd', 125), OPT.get('fp', 280), OPT.get('wp', 32)
    inj = [(0, mark(5)), (FA, poll_check('fa', 'v139', 'v138', WSR, 's47', 1, 2)), (FD, poll_check('fd_c', 'v129', 'v128', WSR, 's58', 1, 2))]
    if WDS > 0:
        inj.append((WDS, [Ins('@vm wds'), Ins('s_barrier')] + fdpost))
    if OPT.get('mk1') and not OPT.get('mks'):
        inj += [(p, mark(k)) for k, p in ((10, 96), (11, 192), (12, 287))]
    if OPT.get('mk23') == 4:
        inj += [(26 * k + 1, mark(k + 1, True)) for k in range(12)]
    polls = [(FAP, FAP + 8, [poll_load('v139', 'v138', WSR, 's47')])] if FAP >= 0 else []
    polls += [(FD - 40, FD - 30, [poll_load('v129', 'v128', WSR, 's58')])]
    if FP < 288:
        polls.append((FP, 287, [poll_load('v141', 'v140', WSR, 's57')]))
    sj = [(FA + 2, 200, l) for l in p1_load_x()]
    sj += [(FD + 2, 287, l) for l in untag([p3_wload(j) for j in range(WP)])]
    p1_main(c, inj, [polls, sj], [poll_load('v141', 'v140', WSR, 's57')] if FP >= 288 else [])
    fl3 = f'buffer_store_dword {vFV}, {vOOB}, {WSR}, s41 offen{SC}'
    c.extend(poll_check('fw_c', 'v141', 'v140', WSR, 's57', 1, 4, first=fl3))
    G1, G2, GI = OPT.get('g1', 2), OPT.get('g2', 5), OPT.get('gi', 7)
    if OPT.get('mkg'):
        c.extend(mark(1))
    GO2 = OPT.get('go2', 0)
    for g in range(G1):
        c.extend(sum(untag(p2_dma(g)), []))
    c.extend(p23_vectors())
    if OPT.get('mkg'):
        c.extend(mark(2))
    if not GO2:
        c('@vm hst3')
        c(fl3)
    if OPT.get('mkg'):
        c.extend(mark(3))
    c('s_branch L_ring')
    c('L_side:')
    c('@reset')
    srd(c, 12, A_Q, NBYTES_SD)
    srd(c, 16, B_WG, D * F * 2)
    srd(c, 20, B_WU, D * F * 2)
    srd(c, 8, WS, WS_USED)
    srd(c, 48, OUT, NBYTES_SD)
    srd(c, 52, DBG, 256)
    ids(c)
    c('s_mov_b32 s59, 0xffff0000')
    stamp_begin(c, ts)
    flag_regs(c, 'v6', 'v7')
    go_addr(c, 'v122')
    c(f's_cmp_ge_u32 {sSLOT}, 28')
    c('s_cbranch_scc1 L_side2')
    N1 = OPT.get('n1', 3)
    HS = OPT.get('hs', 0)
    N2 = 5 if HS else (40 - 8 * N1) // 4
    c(f'''
    s_sub_u32 s56, s2, 160
    s_sub_u32 s43, {sSLOT}, 20
    s_mov_b32 s7, {sXCD}
    s_mul_i32 s6, s7, {N1}
    ''')
    if HS:
        c('''
        s_and_b32 s58, s7, 1
        s_lshr_b32 s57, s7, 1
        s_sub_u32 s6, s6, s57
        ''')

    def mid1():
        side_w1(c, 's43', 's6', 's7', N1, 0, 1)
        c.extend(poll_check('go_a', 'v123', 'v122', DBGS, '0', 1, 4))
        wg_flag(c, 's56', '')
        c.extend(mark(1))
    W1AT = OPT.get('w1at', 2)
    p0_x(c, 's[12:15]', 's56', lambda k: side_w1_load(c, 's[16:19]', 's[20:23]', 's43', 's6', N1, 0, -1, None) if k == W1AT else None)
    c.add(poll_load('v123', 'v122', DBGS, '0'))
    c(f's_mul_i32 s56, s56, {FSP}')
    c(f's_add_u32 s56, s56, {FX_OFF}')
    if W1AT == 2:
        side_w1_load(c, 's[16:19]', 's[20:23]', 's43', 's6', N1, 0, OPT.get('w1pre', 1), mid1)
    else:
        mid1()
    side_w1(c, 's43', 's6', 's7', N1, 0, 2)
    c('s_branch L_w1_done')
    c('L_side2:')
    c('@reset')
    c('s_waitcnt lgkmcnt(0)')
    c(f'''
    s_sub_u32 s56, s2, 224
    s_lshl_b32 s45, s56, 2
    s_add_u32 s45, s45, {sWAVE}
    s_lshl_b32 s45, s45, 12
    s_add_u32 s45, s45, {FL_OFF}
    s_lshl_b32 s58, s56, 5
    s_cmp_eq_u32 {sWAVE}, 0
    s_cselect_b32 s58, s58, 0x70000000
    s_cmp_lt_u32 s56, 8
    s_cselect_b32 s45, s45, 0x70000000
    v_lshlrev_b32 v14, 4, v0
    v_mov_b32 v200, 0
    v_mov_b32 v201, 0
    v_mov_b32 v202, 0
    v_mov_b32 v203, 0
    ''')
    for k in range(4):
        c(f'buffer_store_dwordx4 v[200:203], v14, {WSR}, s45 offen offset:{1024 * k}{SC}', 'za')
    c(f'''
    s_and_b32 s43, {sXCD}, 1
    s_lshl_b32 s43, s43, 2
    s_add_u32 s43, s43, {sSLOT}
    s_sub_u32 s43, s43, 28
    s_lshr_b32 s7, {sXCD}, 1
    s_mul_i32 s6, s7, {N2}
    s_add_u32 s6, s6, {40 - 4 * N2}
    s_lshl_b32 s57, s7, 1
    s_add_u32 s57, s57, 8
    s_add_u32 s7, s7, 8
    ''')

    def mid2():
        side_w1(c, 's43', 's6', 's57', N2, 1, 1)
        c('@vm za')
        c('s_barrier')
        c(f'buffer_store_dword v7, v6, {DBGS}, s58 offen{SC}')
        c.extend(mark(1))
    side_w1_load(c, 's[16:19]', 's[20:23]', 's43', 's6', N2, 1, OPT.get('w2pre', 2), mid2)
    side_w1(c, 's43', 's6', 's57', N2, 1, 2)
    c('L_w1_done:')
    c('@reset')
    c.add(poll_load('v123', 'v122', DBGS, '0'))
    c(f'''
    s_lshl_b32 s56, s43, 4
    s_add_u32 s56, s56, s7
    s_mul_i32 s56, s56, {FSP}
    s_add_u32 s56, s56, {FW1_OFF}
    ''')
    p23_ids(c)
    p23_scalars(c)
    fw_addr(c, 'v8')
    f2_addr(c, 'v142')
    c(f'''
    v_lshlrev_b32 v1, 4, v0
    v_mul_u32_u24 v13, {FSP}, v0
    s_mov_b32 s47, {FX_OFF}
    ''')
    flag_regs(c, vOOB, vFV)
    c('s_mov_b32 s41, 0x70000000')
    c.extend(poll_check('go_b', 'v123', 'v122', DBGS, '0', 1, 4))
    wg_flag(c, 's56')
    c.extend(mark(2))
    c.extend(p23_vectors())
    fd_addr(c, 'v10')
    CAN = OPT.get('can', 1)
    if CAN:
        c(f'''
        s_cmp_lt_u32 {sSLOT}, 28
        s_cbranch_scc1 L_nocan
        s_cmp_lg_u32 {sWAVE}, 0
        s_cbranch_scc1 L_fx2_ok
        s_add_u32 s46, {sXCD}, {OPT.get('rot', 0)}
        s_and_b32 s46, s46, 7
        s_mul_i32 s46, s46, {16 * FSP}
        s_add_u32 s46, s46, {FD_OFF}
        v_and_b32 v15, {CAN - 1}, v0
        v_mul_u32_u24 v15, {FSP}, v15
        ''')
        c.add(poll_load('v11', 'v15', WSR, 's46'))
        c.extend(poll_check('can', 'v11', 'v15', WSR, 's46', 1, 8))
        c.add(poll_load('v14', 'v13', WSR, 's47'))
        c.extend(poll_check('fx2', 'v14', 'v13', WSR, 's47', 1, 8))
        c('s_barrier')
        c('L_nocan:')
    c(f's_cmp_eq_u32 {sWAVE}, 0')
    c('s_cselect_b32 s47, s47, 0x70000000')
    c.add(poll_load('v11', 'v10', WSR, 's58'))
    c.add(poll_load('v14', 'v13', WSR, 's47'))
    c.extend(poll_check('fd_s', 'v11', 'v10', WSR, 's58', 1, 8))
    for j in range(WP):
        c.extend(untag([p3_wload(j)])[0])
    c(f's_cmp_lg_u32 {sWAVE}, 0')
    c('s_cbranch_scc1 L_fw_s_ok')
    C2 = OPT.get('can2', 1)
    if not C2:
        c.add(poll_load('v9', 'v8', WSR, 's57'))
    c.extend(poll_check('fx_s', 'v14', 'v13', WSR, 's47', 1, 8))
    if C2:
        if C2 == 1:
            c(f's_cmp_lt_u32 {sSLOT}, 28')
            c('s_cbranch_scc1 L_can2_ok')
        c(f'''
        s_add_u32 s46, {sXCD}, {OPT.get('rot', 0)}
        s_and_b32 s46, s46, 7
        s_mul_i32 s46, s46, {16 * FSP}
        s_add_u32 s46, s46, {F2_OFF}
        v_mov_b32 v15, 0
        ''')
        c.add(poll_load('v11', 'v15', WSR, 's46'))
        c.extend(poll_check('can2', 'v11', 'v15', WSR, 's46', 1, 4))
        c.add(poll_load('v9', 'v8', WSR, 's57'))
    c.extend(poll_check('fw_s', 'v9', 'v8', WSR, 's57', 1, 8))
    c('s_barrier')
    c.extend(mark(3))
    for g in range(GI):
        if g == G1:
            c('L_ring:')
            c('@reset')
        if g == 5:
            c('s_barrier')
        if g == G2:
            c.add(poll_load('v11', 'v142', WSR, 's14'))
        for l in p2_dma(g):
            l[-1].tag = f'sg{g}'
            c.extend(l)
    if G2 == GI:
        c.add(poll_load('v11', 'v142', WSR, 's14'))
    if OPT.get('mkg'):
        c.extend(mark(4))
    c.extend(poll_check('s2', 'v11', 'v142', WSR, 's14', 1, OPT.get('s2sleep', 2), first=fl3 if GO2 else ''))
    if GO2:
        c(fl3)
    c('s_barrier')
    c.extend([] if OPT.get('mk1') else mark(7))
    p23_main(c, 's', G2, WP, GI)
    c('L_end:')
    c('@reset')
    stamp_end(c, ts, 0)
    if OPT.get('spin100'):
        c('''
        L_sp100:
        s_memrealtime s[22:23]
        s_waitcnt lgkmcnt(0)
        s_sub_u32 s22, s22, s60
        s_cmp_lt_u32 s22, 10000
        s_cbranch_scc1 L_sp100
        ''')
    c('L_exit:')
    c('s_endpgm')
    c.extend(SLOW)
    c('L_code_end:')
    prb = OPT.get('prb')
    if prb is not None:
        probe(c, (0, 0, 'min'), (0, prb % 16, 'min' if OPT.get('pmin') else 'max'), OPT.get('mult', 10), [(0, 16), (0, 10), (10, 14), (14, 16)][prb // 16], OPT.get('raw'))
    st = {}
    body = text_of(finalize(c.ins, st))
    print(st, file=sys.stderr)
    out = HEADER
    if OPT.get('cnt') == 2:
        out += '; checks ' + ' '.join(CHECKS) + '\n'
    if prb is not None:
        out += f'; @launch kernel={KN} grid=(256,1,1) block=(256,1,1) lds={LDS_TOTAL}\n'
        out += '; @launch kernel=probe_kernel grid=(1,1,1) block=(64,1,1) lds=0\n'
    else:
        out += f'; @launch grid=(256,1,1) block=(256,1,1) lds={LDS_TOTAL}\n'
    out += f'.amdgcn_target "amdgcn-amd-amdhsa--gfx950"\n.text\n.globl {KN}\n'
    out += body + '\n.section .rodata,"a"\n'
    out += '.p2align 6\n' + desc(KN, 512, 256) + '\n'
    if prb is not None:
        out += '.p2align 6\n' + desc('probe_kernel', 32, 32) + '\n'
    return out


if __name__ == '__main__':
    import argparse
    ap = argparse.ArgumentParser()
    ap.add_argument('-o', default='cdna_kernels/%s.s' % NAME)
    ap.add_argument('--ts', action='store_true')
    ap.add_argument('--opt', nargs='*', default=[])
    a = ap.parse_args()
    opts = {}
    for kv in a.opt:
        k, _, v = kv.partition('=')
        opts[k] = int(v) if v else 1
    open(a.o, 'w').write(build(a.ts, opts))
```

```python
import sys
from asmlib import *

S, D, F = 2048, 640, 1728
NBYTES_SD = S * D * 2
U_OFF = 0
X4_OFF = U_OFF + NBYTES_SD
H4_OFF = X4_OFF + NBYTES_SD
ST_OFF = H4_OFF + NBYTES_SD
W1_OFF = ST_OFF + 65536
WD_OFF = W1_OFF + 16 * 288 * 1024
HH_OFF = WD_OFF + 8 * 56 * 5 * 1024
FL_OFF = HH_OFF + 128 * 57344
FSP = 128
F1_OFF = FL_OFF
FX_OFF = F1_OFF + 640 * FSP
FW1_OFF = FX_OFF + 64 * FSP
FD_OFF = FW1_OFF + 128 * FSP
FZ_OFF = FD_OFF + 160 * FSP
assert FZ_OFF + 32 * FSP <= FL_OFF + 131072
F3_OFF = FL_OFF + 131072
F2_OFF = F3_OFF + 1024 * FSP
assert F2_OFF + 960 * FSP <= F3_OFF + 262144
TS_OFF = F3_OFF + 262144
WS_USED = TS_OFF + 262144

A_Q, A_K, A_V, A_SH, A_SSMK, A_SSMD, B_X, B_WG, B_WU, B_WD, OUT, DBG, WS = [8 * i for i in range(13)]

WSR = 's[8:11]'
sWAVE = 's33'
sXCD, sSLOT = 's4', 's5'
sSG, sIDX = 's6', 's7'
ONES = 0x3f803f80
OUTS, DBGS = 's[48:51]', 's[52:55]'
sP2W, sP2L, sP2T, sP3W = 's92', 's93', 's94', 's95'
sMT, sNI, sMT64, sDC = 's96', 's97', 's98', 's99'
SC = ' sc1'
SPIN = 30000
LDS_TOTAL = 163840

NB1 = 2
BLK_ORDER = [6, 0, 1, 2, 3, 4, 5]


OPT = {}
SLOW = []


def nwb():
    return OPT.get('nwb', 10)


def mark(k, p23=False):
    if not OPT.get('ts') or OPT.get('nomk') or (OPT.get('mk23') and not p23):
        return []
    return [Ins(f's_mem{"" if OPT.get("cyc") else "real"}time s[{60 + 2 * k}:{61 + 2 * k}]')]


def mark1(k):
    return mark(k) if OPT.get('mk1') else []


def w1_slot(bi, ks, m=0):
    if bi < 2:
        return 4 * ks + 2 * bi + m if ks < 20 else 80 + bi
    return 82 + 41 * (bi - 2) + 2 * ks + m


def w1_seq(b, ks, m=0):
    return w1_slot(BLK_ORDER.index(b), ks, m)


def srd(c, base, slot, nbytes):
    c(f's_load_dwordx2 s[{base}:{base + 1}], s[0:1], {slot}')
    c(f's_mov_b32 s{base + 2}, {nbytes}')
    c(f's_mov_b32 s{base + 3}, 0x20000')


def ids(c):
    c(f'v_lshrrev_b32 v1, 6, v0')
    c(f's_and_b32 {sXCD}, s2, 7')
    c(f'v_readfirstlane_b32 {sWAVE}, v1')
    c(f's_lshr_b32 {sSLOT}, s2, 3')
    c(f'v_and_b32 v0, 63, v0')


def conv_ids(c):
    c(f'''
    s_lshr_b32 {sSG}, {sXCD}, 2
    s_add_u32 {sSG}, {sSG}, 8
    s_and_b32 {sIDX}, {sXCD}, 3
    s_lshl_b32 {sIDX}, {sIDX}, 2
    s_add_u32 {sIDX}, {sIDX}, {sSLOT}
    s_sub_u32 {sIDX}, {sIDX}, 16
    s_add_u32 s34, {sXCD}, {OPT.get('rot', 7)}
    s_and_b32 s34, s34, 7
    s_cmp_lt_u32 {sSLOT}, 16
    s_cselect_b32 {sSG}, s34, {sSG}
    s_cselect_b32 {sIDX}, {sSLOT}, {sIDX}
    ''')


KR, VR, CF, PP, AC, VU, OG = 8, 30, 48, 56, 66, 74, 84


def p0_kv_load(c, KS, VS, SHS):
    c(f'''
    v_lshrrev_b32 v7, 4, v0
    v_and_b32 v6, 15, v0
    s_lshl_b32 s34, {sIDX}, 2
    s_add_u32 s34, s34, {sWAVE}
    s_mul_i32 s34, s34, {32 * 1280}
    s_lshl_b32 s35, {sSG}, 7
    s_add_u32 s34, s34, s35
    v_mul_u32_u24 v1, {8 * 1280}, v7
    v_lshl_add_u32 v1, v6, 3, v1
    v_add_u32 v1, s34, v1
    v_subrev_u32 v2, 3840, v1
    s_lshl_b32 s35, {sSG}, 9
    v_lshlrev_b32 v3, 5, v6
    s_movk_i32 s36, 5120
    ''')
    if OPT.get('mks'):
        c('s_memrealtime s[96:97]')
        c('s_waitcnt lgkmcnt(0)')
        c('s_memrealtime s[98:99]')
    c(f'buffer_load_dwordx4 {vr(CF, 4)}, v3, {SHS}, s35 offen')
    c(f'buffer_load_dwordx4 {vr(CF + 4, 4)}, v3, {SHS}, s35 offen offset:16')
    for r in range(3):
        c(f'buffer_load_dwordx2 {vr(KR + 2 * r, 2)}, v2, {KS}, 0 offen offset:{1280 * r}')
    for r in range(8):
        c(f'buffer_load_dwordx2 {vr(KR + 6 + 2 * r, 2)}, v1, {KS}, {"s36" if r >= 4 else 0} offen offset:{1280 * (r & 3)}')
    for r in range(8):
        c(f'buffer_load_dwordx2 {vr(VR + 2 * r, 2)}, v1, {VS}, {"s36" if r >= 4 else 0} offen offset:{1280 * (r & 3)}')


def p0_kv(c0, late, st=SC):
    P = PP
    c = c0
    c(f'''
    s_lshl_b32 s35, {sWAVE}, 6
    v_mul_u32_u24 v4, 1040, v6
    v_lshl_add_u32 v4, v7, 4, v4
    v_add_u32 v4, s35, v4
    s_mul_i32 s35, {sWAVE}, {4 * 1040}
    v_lshlrev_b32 v3, 4, v0
    v_add_u32 v5, s35, v3
    s_lshl_b32 s34, {sSG}, 2
    s_add_u32 s34, s34, {sWAVE}
    s_lshl_b32 s34, s34, 16
    s_lshl_b32 s35, {sIDX}, 10
    s_add_u32 s34, s34, s35
    s_mov_b32 s40, 0x05040100
    s_mov_b32 s41, 0x07060302
    ''')
    if U_OFF:
        c(f's_add_u32 s34, s34, {U_OFF}')
    kr = lambda t, dw: KR + 2 * (t + 3) + dw
    c = Code()
    KF = OPT.get('kf', 1)
    A = lambda ch: 144 + 8 * ch if KF else AC
    for part in ((0, 1) if KF else (2,)):
        for ch in range(4):
            dw, hf = ch >> 1, ch & 1
            if part != 1:
                for t in range(-2, 8):
                    c(f'v_perm_b32 v{P + t + 2}, v{kr(t - 1, dw)}, v{kr(t, dw)}, s{40 + hf}')
                for t in range(8):
                    c(f'v_dot2_f32_bf16 v{A(ch) + t}, v{P + t + 2}, v{CF + 2 * ch}, 0')
                for t in range(8):
                    c(f'v_dot2_f32_bf16 v{A(ch) + t}, v{P + t}, v{CF + 2 * ch + 1}, v{A(ch) + t}')
            if part != 0:
                for t in range(8):
                    if hf:
                        c(f'v_and_b32 v{VU + t}, 0xffff0000, v{VR + 2 * t + dw}')
                    else:
                        c(f'v_lshlrev_b32 v{VU + t}, 16, v{VR + 2 * t + dw}')
                for t in range(0, 8, 2):
                    c(f'v_pk_mul_f32 {vr(A(ch) + t, 2)}, {vr(A(ch) + t, 2)}, {vr(VU + t, 2)}')
                for p in range(4):
                    c(f'v_cvt_pk_bf16_f32 v{OG + 4 * ch + p}, v{A(ch) + p}, v{A(ch) + p + 4}')
                c(f'ds_write_b128 v4, {vr(OG + 4 * ch, 4)} offset:{256 * ch}')
    k0 = OPT.get('lk0', 120)
    step = OPT.get('lks', (166 - k0) // max(1, len(late)))
    for k, i in enumerate(c.ins):
        c0.add(i)
        if k == 10:
            c0.extend(mark1(7))
        if k == 34:
            c0.extend(mark1(8))
        if k0 and k >= k0 and (k - k0) % step == 0 and late:
            c0.extend(late.pop(0))
    c = c0
    c0.extend(mark1(9))
    c('s_waitcnt lgkmcnt(0)')
    c('s_barrier')
    for i in range(4):
        c(f'ds_read_b128 {vr(OG + 4 * i, 4)}, v5 offset:{1040 * i}')
    for i in range(4):
        c(f'buffer_store_dwordx4 {vr(OG + 4 * i, 4)}, v3, {WSR}, s34 offen{st}', 'ust')
        if i < 3:
            c('s_add_u32 s34, s34, 16384')


def ln_finish(c, s1, s2, tmp):
    c(f'v_mul_f32 v{s1}, 0xbacccccd, v{s1}')
    c(f'v_mul_f32 v{s2}, 0x3acccccd, v{s2}')
    c(f'v_fma_f32 v{s2}, -v{s1}, v{s1}, v{s2}')
    c(f'v_max_f32 v{s2}, 0, v{s2}')
    c(f'v_add_f32 v{s2}, 0x3727c5ac, v{s2}')
    c(f'v_rsq_f32 v{tmp}, v{s2}')


def p0_x(c, XS, sT, hook, st=SC):
    XR, O, A = 16, 56, 100
    c(f'''
    v_lshrrev_b32 v13, 4, v0
    v_and_b32 v12, 15, v0
    s_lshl_b32 s38, {sT}, 2
    s_add_u32 s38, s38, {sWAVE}
    s_mul_i32 s34, s38, {8 * 1280}
    s_add_u32 s35, s34, 5120
    v_mul_u32_u24 v1, 1280, v13
    v_lshl_add_u32 v1, v12, 4, v1
    v_lshlrev_b32 v4, 4, v0
    ''')

    def clear():
        c(f'''
        s_lshl_b32 s38, s38, 10
        s_add_u32 s38, s38, {F3_OFF}
        v_mov_b32 v96, 0
        v_mov_b32 v97, 0
        v_mov_b32 v98, 0
        v_mov_b32 v99, 0
        ''')
        if not OPT.get('pz', 0):
            c(f'buffer_store_dwordx4 v[96:99], v4, {WSR}, s38 offen{st}')
        PU = OPT.get('pu', 12)
        n = 0 if OPT.get('pz', 0) else (16 - PU) * 160
        if n:
            c(f's_add_u32 s38, s38, {(H4_OFF + PU * 163840 - F3_OFF) & 0xffffffff}')
            for k in range(4):
                c(f'v_mov_b32 v{112 + k}, -1')
        for k in range(0, n, 256):
            if n - k < 256:
                c(f's_cmp_lt_u32 {sT}, {(n - k) // 4}')
                c('s_cselect_b32 s38, s38, 0x70000000')
            c(f'buffer_store_dwordx4 v[112:115], v4, {WSR}, s38 offen{st}')
            c(f's_add_u32 s38, s38, {256 * 1024}')
    ZE = OPT.get('ze', 0)
    if ZE == 1:
        clear()
    for i in range(2):
        for m in range(5):
            c(f'buffer_load_dwordx4 {vr(XR + 20 * i + 4 * m, 4)}, v1, {XS}, s{34 + i} offen offset:{256 * m}')
    c(f'''
    s_mul_i32 s36, {sWAVE}, {8 * 1296}
    v_mul_u32_u24 v2, 1296, v13
    v_lshl_add_u32 v2, v12, 4, v2
    v_add_u32 v2, s36, v2
    s_mul_i32 s36, {sWAVE}, 320
    v_mul_u32_u24 v3, 1296, v12
    v_lshl_add_u32 v3, v13, 3, v3
    v_add_u32 v3, s36, v3
    s_add_u32 s37, s34, {X4_OFF}
    s_and_b32 s36, {sWAVE}, 1
    s_lshl_b32 s36, s36, 7
    s_lshr_b32 s39, {sWAVE}, 1
    s_lshl_b32 s39, s39, 3
    s_add_u32 s36, s36, s39
    v_lshlrev_b32 v5, 4, v13
    v_add_u32 v5, s36, v5
    v_lshlrev_b32 v8, 2, v0
    s_lshl_b32 s36, {sT}, 8
    s_add_u32 s36, s36, {ST_OFF}
    s_cmp_eq_u32 {sWAVE}, 0
    s_cselect_b32 s36, s36, 0x70000000
    s_mov_b32 s40, {ONES}
    ''')
    if ZE == 0:
        clear()
    hook(0)
    for i in range(2):
        for m in range(5):
            c(f'ds_write_b128 v2, {vr(XR + 20 * i + 4 * m, 4)} offset:{1296 * 4 * i + 256 * m}')
    hook(1)
    c('s_waitcnt lgkmcnt(0)')
    c('s_barrier')
    c.extend(mark1(10))
    for i in range(10):
        c(f'ds_read_b64 {vr(O + 4 * i, 2)}, v3 offset:{32 * i}')
        c(f'ds_read_b64 {vr(O + 4 * i + 2, 2)}, v3 offset:{32 * i + 16 * 1296}')
    for i in range(10):
        if i and (i & 3) == 0:
            c('s_add_u32 s37, s37, 4096')
        c(f'buffer_store_dwordx4 {vr(O + 4 * i, 4)}, v4, {WSR}, s37 offen offset:{1024 * (i & 3)}{st}')
        for r in range(4 * i, 4 * i + 4):
            k = A + 2 * (r // 20)
            c(f'v_dot2_f32_bf16 v{k}, v{XR + r}, s40, {"0" if r % 20 == 0 else "v%d" % k}')
            c(f'v_dot2_f32_bf16 v{k + 1}, v{XR + r}, v{XR + r}, {"0" if r % 20 == 0 else "v%d" % (k + 1)}')
    if ZE == 2:
        clear()
    for sh in (8, 4, 2, 1):
        for k in range(4):
            c(f'v_add_f32_dpp v{A + k}, v{A + k}, v{A + k} row_ror:{sh} row_mask:0xf bank_mask:0xf')
    for i in range(2):
        ln_finish(c, A + 2 * i, A + 2 * i + 1, A + 8 + 2 * i)
    for i in range(2):
        c(f'v_mul_f32 v{A + 9 + 2 * i}, v{A + 2 * i}, v{A + 8 + 2 * i}')
        c(f'ds_write_b64 v5, {vr(A + 8 + 2 * i, 2)} offset:{32 * 1296 + 64 * i}')
    c('s_waitcnt lgkmcnt(0)')
    c('s_barrier')
    c(f'ds_read_b32 v10, v8 offset:{32 * 1296}')
    c(f'buffer_store_dword v10, v8, {WSR}, s36 offen{st}')
    c.extend(mark1(11))


UBS = 10368
P1_LDS = 17664 + 4 * UBS + 4 * 2048
LB1 = LDS_TOTAL - P1_LDS
assert LB1 % 256 == 0
KY0 = LB1 + 256
UB0 = LB1 + 17664
EB0 = UB0 + 4 * UBS
KT = 100
cA, cACC, cB, cXQ, cSQ, cT = 16, 80, 176, 208, 224, 240
NBUF = 8


def p1_k_load(c, KKS, DS):
    T = KT
    c(f'''
    s_lshl_b32 s34, {sSG}, 4
    s_add_u32 s34, s34, {sIDX}
    s_lshl_b32 s35, s34, 2
    s_add_u32 s35, s35, {sWAVE}
    s_lshl_b32 s38, s35, 12
    s_lshl_b32 s39, s35, 1
    v_lshlrev_b32 v1, 4, v0
    v_mov_b32 v2, 0
    ''')
    o = [[Ins(f'buffer_load_dwordx4 {vr(T + 4 * i, 4)}, v1, {KKS}, s38 offen offset:{1024 * i}')] for i in range(4)]
    o[0].insert(0, Ins(f'buffer_load_ushort v{T + 16}, v2, {DS}, s39 offen'))
    return o


def p1_k(c):
    T = KT
    c(f'''
    s_lshl_b32 s34, {sSG}, 4
    s_add_u32 s34, s34, {sIDX}
    s_mul_i32 s37, {sWAVE}, 4352
    s_and_b32 s38, {sWAVE}, 1
    s_lshl_b32 s38, s38, 5
    s_add_u32 s37, s37, s38
    s_lshr_b32 s38, {sWAVE}, 1
    s_lshl_b32 s38, s38, 7
    s_add_u32 s37, s37, s38
    s_add_u32 s37, s37, {KY0}
    s_mul_i32 s38, {sWAVE}, {UBS}
    s_add_u32 s38, s38, {UB0}
    s_lshl_b32 s39, {sWAVE}, 11
    s_add_u32 s39, s39, {EB0}
    v_lshrrev_b32 v7, 4, v0
    v_and_b32 v6, 15, v0
    v_bfe_u32 v8, v0, 2, 2
    v_and_b32 v9, 3, v0
    v_lshlrev_b32 v3, 2, v0
    v_add_u32 v10, s38, v3
    v_mov_b32 v3, 0
    v_mov_b32 v4, 0
    v_mov_b32 v5, 0
    ds_write2st64_b32 v10, v2, v2 offset0:0 offset1:5
    ds_write2st64_b32 v10, v2, v2 offset0:10 offset1:15
    v_add_u32 v11, 5248, v10
    ds_write2st64_b32 v11, v2, v2 offset0:0 offset1:5
    ds_write2st64_b32 v11, v2, v2 offset0:10 offset1:15
    v_add_u32 v12, s39, v1
    ds_write_b128 v12, v[2:5]
    s_sub_u32 s42, s37, 32
    v_add_u32 v120, s42, v1
    ds_write_b128 v120, v[2:5]
    v_add_u32 v10, 128, v10
    v_add_u32 v11, 136, v11
    v_sub_u32 v121, v9, v8
    v_lshlrev_b32 v121, 3, v121
    v_lshl_add_u32 v121, v7, 6, v121
    v_add_u32 v121, s37, v121
    ''')
    c(f'''
    v_lshlrev_b32 v14, 1, v7
    v_sub_u32 v14, v6, v14
    v_lshlrev_b32 v14, 3, v14
    v_and_b32 v13, 1, v6
    v_mul_u32_u24 v13, 5256, v13
    v_sub_u32 v14, v14, v13
    s_add_u32 s42, s38, {5248 + 64}
    v_add_u32 v14, s42, v14
    v_add_u32 v13, 16, v0
    v_subrev_u32 v15, 47, v0
    v_cmp_gt_u32 vcc, 48, v0
    v_lshlrev_b32 v2, 5, v6
    v_lshl_add_u32 v2, v7, 3, v2
    v_cndmask_b32 v13, v15, v13, vcc
    v_add_u32 v15, 64, v13
    v_add_u32 v2, s37, v2
    v_writelane_b32 v13, 64, 63
    v_writelane_b32 v15, 0, 63
    v_lshlrev_b32 v13, 4, v13
    v_lshlrev_b32 v15, 4, v15
    v_add_u32 v13, s39, v13
    v_add_u32 v15, s39, v15
    v_mul_u32_u24 v3, 4352, v8
    v_and_b32 v4, 1, v8
    v_lshl_add_u32 v3, v4, 5, v3
    v_lshrrev_b32 v4, 1, v8
    v_lshl_add_u32 v3, v4, 7, v3
    v_lshl_add_u32 v3, v7, 6, v3
    v_lshl_add_u32 v3, v9, 3, v3
    s_lshl_b32 s42, {sWAVE}, 8
    s_add_u32 s42, s42, {KY0}
    v_add_u32 v3, s42, v3
    ''')
    c(f'''
    v_lshlrev_b32 v4, 4, v6
    v_mul_u32_u24 v5, 40960, v7
    v_add_u32 v5, v5, v4
    v_lshl_add_u32 v4, v7, 10, v4
    s_lshl_b32 s43, s34, 14
    s_lshl_b32 s42, {sWAVE}, 8
    s_add_u32 s43, s43, s42
    s_mul_i32 s44, {sWAVE}, 163840
    s_lshl_b32 s42, s34, 8
    s_add_u32 s44, s44, s42
    s_lshl_b32 s45, {sWAVE}, 10
    s_add_u32 s45, s45, {ST_OFF}
    ''')
    if U_OFF:
        c(f's_add_u32 s43, s43, {U_OFF}')


def p1_k_frag(c):
    T = KT
    c(f'''
    v_lshlrev_b32 v{T + 16}, 16, v{T + 16}
    v_lshlrev_b32 v{T + 17}, 16, v{T}
    v_add_f32 v{T + 16}, v{T + 16}, v{T + 17}
    v_cvt_pk_bf16_f32 v{T + 16}, v{T + 16}, v{T + 16}
    s_mov_b64 exec, 1
    v_bfi_b32 v{T}, s59, v{T}, v{T + 16}
    s_mov_b64 exec, -1
    ''')
    for i in range(4):
        c(f'ds_write_b128 v120, {vr(T + 4 * i, 4)} offset:{32 + 1024 * i}')
    for n in range(16):
        c(f'ds_read_b64_tr_b16 {vr(cA + 4 * n, 2)}, v121 offset:{256 * n + 32}')
        c(f'ds_read_b64_tr_b16 {vr(cA + 4 * n + 2, 2)}, v121 offset:{256 * n}')


def p1_load_u(c, ld=SC):
    T = cACC + 64
    for i in range(4):
        c(f'buffer_load_dwordx4 {vr(T + 4 * i, 4)}, v4, {WSR}, s43 offen{ld}')
        if i < 3:
            c('s_add_u32 s43, s43, 4096')


def p1_load_x(ld=SC):
    o = []
    for u in range(4):
        o.append([Ins(f's_add_u32 s43, s45, {4096 * u}'),
                  Ins(f'buffer_load_dwordx4 {vr(cSQ + 4 * u, 4)}, v1, {WSR}, s43 offen{ld}', f'sq{u}')])
        o.append([Ins(f's_add_u32 s43, s44, {X4_OFF + u * 655360}'),
                  Ins(f'buffer_load_dwordx4 {vr(cXQ + 4 * u, 4)}, v5, {WSR}, s43 offen{ld}', f'xq{u}')])
    return o


def p1_main(c, inject, jobs, lastpoll, st=SC):
    T = cACC + 64
    uw = []
    for i in range(4):
        for a in ('v10', 'v11'):
            uw.append(Ins(f'ds_write2st64_b32 {a}, v{T + 4 * i}, v{T + 4 * i + 1} offset0:{i} offset1:{5 + i}'))
            uw.append(Ins(f'ds_write2st64_b32 {a}, v{T + 4 * i + 2}, v{T + 4 * i + 3} offset0:{10 + i} offset1:{15 + i}'))
    c.extend(uw[:4])
    accb = {0: 80, 1: 96, 2: 112, 3: 80, 4: 96, 5: 112, 6: 144, 7: 80}
    acc = lambda t, cp: accb[t] + 4 * cp
    res = lambda cp, w: ar(16 * (w + 1) + 4 * cp + (128 if 4 * (w + 1) + cp >= nwb() else 0), 4)
    chain = lambda t, ws: [(t, cp, w) for cp in range(4) for w in ws]
    steps = []
    for t in range(4):
        steps += chain(t, range(-1, 2 * t - 1)) + chain(t, (2 * t - 1, 2 * t))
    for t, hi in ((4, 8), (6, 12)):
        joint = [x for w in range(7, hi, 2) for cp in range(4) for x in ((t, cp, w), (t, cp, w + 1), (t + 1, cp, w + 1), (t + 1, cp, w))]
        own = chain(t, range(-1, 7))
        steps += own + joint if t == 4 or OPT.get('j6', 0) else joint + own
        if t == 6 and OPT.get('v7', 1):
            steps += [(7, cp, w) for cp in (3, 2, 1, 0) for w in list(range(-1, 7)) + [13, 14]]
        else:
            steps += chain(t + 1, range(-1, 7)) + chain(t + 1, (hi + 1, hi + 2))
    mf = []
    first_use, last_of_tile, first_of_tile = {}, {}, {}
    started = set()
    strm, sidx = [], {}
    for t, cp, w in steps:
        if w < 7:
            first_use.setdefault(w, len(mf))
            breg = res(cp, w)
        else:
            if (t >> 1, cp, w) not in sidx:
                sidx[(t >> 1, cp, w)] = len(strm)
                strm.append([cp, w, len(mf), 0])
            strm[sidx[(t >> 1, cp, w)]][3] = len(mf)
            breg = vr(cB + 4 * (sidx[(t >> 1, cp, w)] % 8), 4)
        a = vr(acc(t, cp), 4)
        first_of_tile.setdefault(t, len(mf))
        last_of_tile[t] = len(mf)
        mf.append(Ins(f'v_mfma_f32_16x16x32_bf16 {a}, {vr(cA + 4 * (2 * t - w), 4)}, {breg}, {a if (t, cp) in started else "0"}'))
        started.add((t, cp))
    off = lambda cp, w: 64 * (w + 1) + 1280 * cp
    rd = lambda cp, w: Ins(f'ds_read_b128 {res(cp, w)}, v14 offset:{off(cp, w)}', f'b{w}')
    pre = {-1: [rd(cp, w) for cp in range(4) for w in (-1, 0)]}
    P = lambda p, l: pre.setdefault(p, []).extend(l)
    seq = []
    for w in range(1, 7):
        if w == 3:
            seq += [(w, i) for i in uw[4:8]]
        seq += [(w, rd(cp, w)) for cp in range(4)]
    p = -1
    for w, i in seq:
        p += 1 if w < 3 else 2
        assert p < first_use[w] - 6
        P(p, [i])
    for i in uw[8:]:
        p += OPT.get('uws', 4)
        P(p, [i])
    for w in range(1, 7, 2):
        P(first_use[w] - 1, [Ins(f'@lg b{w + 1}')])
    for k, (cp, w, f, l) in enumerate(strm):
        p = max(p + 2, strm[k - 8][3] if k >= 8 else 0, f - 28)
        assert p < f - 5, k
        P(p, [Ins(f'ds_read_b128 {vr(cB + 4 * (k % 8), 4)}, v14 offset:{off(cp, w)}', f's{k}')])
        if k % 2 == 1:
            P(strm[k - 1][2] - 1, [Ins(f'@lg s{k}')])
    for p, l in inject:
        P(p, l)
    bg = []

    def B(pos, text, tag=None):
        bg.append((pos, Ins(text, tag)))

    def tile_epi(t):
        p = last_of_tile[t] + 4
        Y = [acc(t, cp) for cp in range(4)]
        if t == 7 and OPT.get('v7', 1):
            B(p - 20, f'v_add_f32 v{Y[3] + 2}, v{Y[3] + 2}, v{Y[2] + 3}')
            B(0, f'v_add_f32 v{Y[3] + 1}, v{Y[3] + 1}, v{Y[2] + 2}')
            B(0, f'v_add_f32 v{Y[2] + 1}, v{Y[2] + 1}, v{Y[3]}')
            B(p - 11, f'v_add_f32 v{Y[3] + 1}, v{Y[3] + 1}, v{Y[1] + 3}')
            B(0, f'ds_write_b128 v15, {vr(Y[3], 4)}')
            B(0, f'ds_read_b128 {vr(cT, 4)}, v12 offset:1024')
            B(0, f'v_add_f32 v{Y[1] + 1}, v{Y[1] + 1}, v{Y[2]}')
            B(0, f'v_add_f32 v{Y[1] + 2}, v{Y[1] + 2}, v{Y[2] + 1}')
            B(p, f'v_add_f32 v{cT + 2}, v{cT + 2}, v{Y[1]}')
            B(p, f'v_add_f32 v{cT + 3}, v{cT + 3}, v{Y[1] + 1}')
            for k, x in enumerate((cT + 1, cT + 2, cT + 3, Y[1] + 2)):
                B(p, f'v_add_f32 v{Y[0] + k}, v{Y[0] + k}, v{x}')
            B(p, f'v_cvt_pk_bf16_f32 v{Y[0]}, v{Y[0]}, v{Y[0] + 1}')
            B(p, f'v_cvt_pk_bf16_f32 v{Y[0] + 1}, v{Y[0] + 2}, v{Y[0] + 3}')
            B(p, f'ds_write_b64 v2, {vr(Y[0], 2)} offset:{512 * t}', f'y{t}')
            return
        B(p, f'v_add_f32 v{Y[3] + 1}, v{Y[3] + 1}, v{Y[1] + 3}')
        B(p, f'v_add_f32 v{Y[3] + 2}, v{Y[3] + 2}, v{Y[2] + 3}')
        B(p, f'v_add_f32 v{Y[3] + 1}, v{Y[3] + 1}, v{Y[2] + 2}')
        B(p, f'ds_write_b128 {"v15" if t & 1 else "v13"}, {vr(Y[3], 4)}')
        B(p, f'ds_read_b128 {vr(cT, 4)}, v12 offset:{1024 * (t & 1)}')
        B(p, f'v_add_f32 v{Y[0] + 1}, v{Y[0] + 1}, v{Y[1]}')
        B(p, f'v_add_f32 v{Y[0] + 2}, v{Y[0] + 2}, v{Y[1] + 1}')
        B(p, f'v_add_f32 v{Y[0] + 3}, v{Y[0] + 3}, v{Y[1] + 2}')
        B(p, f'v_add_f32 v{Y[0] + 2}, v{Y[0] + 2}, v{Y[2]}')
        B(p, f'v_add_f32 v{Y[0] + 3}, v{Y[0] + 3}, v{Y[2] + 1}')
        B(p, f'v_add_f32 v{Y[0] + 3}, v{Y[0] + 3}, v{Y[3]}')
        B(-OPT.get('ed', 4), f'v_add_f32 v{Y[0]}, v{Y[0]}, v{cT + 1}')
        B(p, f'v_add_f32 v{Y[0] + 1}, v{Y[0] + 1}, v{cT + 2}')
        B(p, f'v_add_f32 v{Y[0] + 2}, v{Y[0] + 2}, v{cT + 3}')
        B(p, f'v_cvt_pk_bf16_f32 v{Y[0]}, v{Y[0]}, v{Y[0] + 1}')
        B(p, f'v_cvt_pk_bf16_f32 v{Y[0] + 1}, v{Y[0] + 2}, v{Y[0] + 3}')
        B(p, f'ds_write_b64 v2, {vr(Y[0], 2)} offset:{512 * t}', f'y{t}')

    Tm = cT + 8
    RR = {0: cT + 4, 1: 132, 2: cT + 4, 3: cT + 4}
    HH = {0: 160, 1: 144, 2: 160, 3: 96}

    def tail_r(u):
        B(0, f'ds_read_b64_tr_b16 {vr(RR[u], 2)}, v3 offset:{1024 * u}')
        B(0, f'ds_read_b64_tr_b16 {vr(RR[u] + 2, 2)}, v3 offset:{1024 * u + 32}')

    def tail_x(u, p):
        HX = HH[u]
        for k in range(4):
            x, rs, nm = cXQ + 4 * u + k, cSQ + 4 * u + (k >> 1) * 2, cSQ + 4 * u + (k >> 1) * 2 + 1
            B(p, f'v_lshlrev_b32 v{HX + 4 * k}, 16, v{x}')
            B(0, f'v_and_b32 v{HX + 4 * k + 1}, 0xffff0000, v{x}')
            B(0, f'v_fma_f32 v{HX + 4 * k + 2}, v{HX + 4 * k}, v{rs}, v{nm}')
            B(0, f'v_fma_f32 v{HX + 4 * k + 3}, v{HX + 4 * k + 1}, v{rs}, v{nm}')

    def tail_y(u):
        R, HX = RR[u], HH[u]
        B(0, f's_add_u32 s42, s44, {H4_OFF + u * 655360}')
        for k in range(4):
            B(0, f'v_lshlrev_b32 v{Tm}, 16, v{R + k}')
            B(0, f'v_and_b32 v{Tm + 1}, 0xffff0000, v{R + k}')
            if u == 3:
                B(0, f'v_pk_fma_f32 {vr(HX + 4 * k, 2)}, {vr(HX + 4 * k + 2, 2)}, {vr(Tm, 2)}, {vr(HX + 4 * k, 2)}')
            else:
                B(0, f'v_fmac_f32 v{HX + 4 * k}, v{HX + 4 * k + 2}, v{Tm}')
                B(0, f'v_fmac_f32 v{HX + 4 * k + 1}, v{HX + 4 * k + 3}, v{Tm + 1}')
            B(0, f'v_cvt_pk_bf16_f32 v{cXQ + 4 * u + k}, v{HX + 4 * k}, v{HX + 4 * k + 1}')
        B(0, f'buffer_store_dwordx4 {vr(cXQ + 4 * u, 4)}, v5, {WSR}, s42 offen{st}', f'hst{u}')

    def flag(k):
        if k:
            B(0, f's_add_u32 s46, s46, {160 * FSP}')
        B(0, f'buffer_store_dword v253, v252, {WSR}, s46 offen{st}', f'fl{k}')

    tpos = [17 * k for k in range(len(mf))]
    vm, pre2, where = pace(jobs, tpos, lambda p: OPT.get('sp1', 66) if p < 60 else OPT.get('sp2', 68),
                           avoid={p for p in pre if p > 60}, load={p: sum(i.cost for i in l) for p, l in pre.items()})
    for p, l in pre2.items():
        P(p, l)
    print('p1 prefetch ends at mfma', max(where.values()), file=sys.stderr)
    xq = {i.tag: where[id(i)] for _, _, l in sum(jobs, []) for i in l if i.tag and i.tag[1] == 'q'}
    LAG = OPT.get('xlag', 60)
    for t in range(4):
        tile_epi(t)
    tail_x(0, xq['xq0'] + LAG)
    B(0, '@lg y3')
    B(0, 's_barrier')
    tail_r(0)
    tail_r(1)
    tail_x(1, xq['xq1'] + LAG)
    tail_y(0)
    tail_y(1)
    tile_epi(4)
    XE = OPT.get('xe1', 0)
    if XE:
        tail_x(2, xq['xq2'] + LAG)
    if XE == 2:
        tail_x(3, 0)
    tile_epi(5)
    if XE < 2:
        tail_x(3 if XE else 2, xq['xq2'] + LAG)
    B(OPT.get('b5', 215) if XE < 2 else -6, '@vmlg hst1 y5')
    B(0, 's_barrier')
    tail_r(2)
    flag(0)
    B6 = OPT.get('b6', 0)
    if B6:
        n = len(bg)
        tail_y(2)
        bg[n] = (-6, bg[n][1])
        if not XE:
            tail_x(3, 0)
        tile_epi(6)
        B(B6, '@vm hst2')
        B(0, 's_barrier')
        flag(1)
        tile_epi(7)
        B(0, '@lg y7')
    else:
        n = len(bg)
        if not XE:
            tail_x(3, 0)
        tail_y(2)
        if XE:
            bg[n] = (-6, bg[n][1])
        tile_epi(6)
        tile_epi(7)
        B(0, '@vmlg hst2 y7')
    B(0, 's_barrier')
    tail_r(3)
    for i in lastpoll:
        bg.append((0, i))
    if not B6:
        flag(1)
    tail_y(3)
    for i in mark(6):
        bg.append((0, i))
    out = weave(mf, pre, bg, vm, {k: 4 for k in range(100, 280, OPT.get('x1', 8))})
    pos = {id(i): k for k, i in enumerate(out)}
    at = lambda t: max(j for j in range(len(mf)) if pos[id(mf[j])] < pos[id(next(x for x in out if x.tag == t))])
    for t, u in ((0, 3), (1, 4), (2, 5), (3, 7)):
        assert at(f'y{t}') < first_of_tile[u] - 1, t
    assert at('hst1') < first_of_tile[6] - 1 and pos[id(uw[-1])] < pos[id(next(x for x in out if x.tag == 'y3'))]
    assert at('fl0') > OPT.get('fd', 160) + 1 and at('hst2') > OPT.get('fd', 160) + 1
    print('p1:', ' '.join(f'{t}@{at(t)}' for t in ('y0', 'y3', 'y4', 'hst0', 'hst1', 'y5', 'fl0', 'hst2', 'y6', 'fl1')),
          'after last mfma', len(out) - pos[id(mf[-1])], file=sys.stderr)
    c.extend(out)


WJB = 49152


def side_w1_load(c, WGS, WUS, sNP, sK0, N, two, pre, mid):
    UR = 16 * N * 448 + 32
    R = f'n{two}'
    c(f'''
    v_mul_u32_u24 v116, 147, v0
    v_lshrrev_b32 v116, 11, v116
    v_mul_u32_u24 v117, 14, v116
    v_sub_u32 v117, v0, v117
    v_lshlrev_b32 v117, 4, v117
    v_and_b32 v118, 1, v116
    v_mul_u32_u24 v118, 216, v118
    v_lshrrev_b32 v116, 1, v116
    v_mul_u32_u24 v116, 3456, v116
    v_add3_u32 v116, v116, v117, v118
    s_lshl_b32 s46, {sK0}, 2
    s_add_u32 s46, s46, {sWAVE}
    s_mul_i32 s46, s46, {4 * 3456}
    s_mul_i32 s47, {sNP}, 432
    s_add_u32 s46, s46, s47
    s_mul_i32 s47, {sWAVE}, {4 * 448}
    s_add_u32 s47, s47, {WJB}
    s_mov_b32 exec_hi, 0x00ffffff
    ''')
    for ks in range(N):
        if ks == pre:
            c('s_mov_b64 exec, -1')
            mid()
            c('s_mov_b32 exec_hi, 0x00ffffff')
        if ks == 2 and not two and OPT.get('hs', 1):
            c(f'''
            s_mul_i32 s45, s58, {48 * 3456}
            s_sub_u32 s46, s46, s45
            s_lshr_b32 s45, {sWAVE}, 1
            s_cmp_eq_u32 s45, s58
            s_cselect_b32 s46, s46, 0x70000000
            ''')
        for j in range(2):
            c(f's_add_u32 s45, s46, {(16 * ks + 2 * j) * 3456}')
            for m, srd_ in enumerate((WGS, WUS)):
                c(f's_add_u32 m0, s47, {UR * m + 448 * (16 * ks + 2 * j)}')
                c(f'buffer_load_dwordx4 v116, {srd_}, s45 offen lds', f'{R}w1k{ks}')
    c('s_mov_b64 exec, -1')
    if pre == N:
        mid()
    c.extend(mark1(12))


def side_w1(c, sNP, sK0, sSL, N, two, part=3, st=SC):
    UR = 16 * N * 448 + 32
    R = f'n{two}'
    c0 = c
    if not part & 1:
        c = Code()
    c(f'''
    s_mul_i32 s47, {sWAVE}, {4 * 448}
    s_add_u32 s47, s47, {WJB}
    v_and_b32 v2, 7, v0
    v_mul_u32_u24 v2, 224, v2
    v_bfe_u32 v3, v0, 3, 1
    v_sub_u32 v8, 1, v3
    v_mul_u32_u24 v8, 0x3f80, v8
    v_mov_b32 v9, 0
    v_mul_u32_u24 v3, {UR}, v3
    v_add3_u32 v2, v2, v3, s47
    v_lshrrev_b32 v12, 5, v0
    v_bfe_u32 v13, v0, 2, 2
    v_lshl_add_u32 v3, v12, 3, v13
    v_mul_u32_u24 v3, 448, v3
    v_bfe_u32 v13, v0, 4, 1
    v_mul_u32_u24 v13, {UR}, v13
    v_add_u32 v3, v3, v13
    v_and_b32 v13, 3, v0
    v_lshl_add_u32 v3, v13, 3, v3
    v_and_b32 v11, 15, v0
    v_lshlrev_b32 v11, 4, v11
    v_lshl_add_u32 v11, v12, 8, v11
    v_and_b32 v13, 16, v0
    v_lshl_add_u32 v11, v13, 6, v11
    s_lshl_b32 s36, {sWAVE}, 5
    s_add_u32 s36, s36, {WJB}
    v_add_u32 v3, s36, v3
    v_lshlrev_b32 v4, 4, v0
    s_lshl_b32 s36, {sWAVE}, 9
    v_lshl_add_u32 v5, v0, 1, s36
    v_add_u32 v10, s36, v4
    s_mov_b32 s44, {ONES}
    s_mul_i32 s26, {sNP}, {2 * 288 * 1024}
    s_add_u32 s26, s26, {W1_OFF}
    ''')
    for r in range(4):
        tb = []
        for w in range(4):
            p = 4 * r + w
            o = 288 * (p // 7)
            tb.append((o + w1_seq(p % 7, 0), w1_seq(p % 7, 1) - w1_seq(p % 7, 0), o + w1_seq(p % 7, 20)) if p < 14 else (0x100000, 0, 0x100000))
        for k, x in enumerate((34, 38, 28)):
            c(f's_mov_b32 s{x + r}, {tb[0][k] << 10}')
        for w in range(1, 4):
            c(f's_cmp_eq_u32 {sWAVE}, {w}')
            for k, x in enumerate((34, 38, 28)):
                c(f's_cselect_b32 s{x + r}, {tb[w][k] << 10}, s{x + r}')
        c(f'''
        s_add_u32 s{34 + r}, s{34 + r}, s26
        s_add_u32 s{28 + r}, s{28 + r}, s26
        s_lshl_b32 s42, {sSL}, 6
        s_add_u32 s{28 + r}, s{28 + r}, s42
        ''')
    c = c0
    if not part & 2:
        return
    for ks in range(N):
        FR = 16 + 16 * (ks % 4)
        c(f'''
        @vm {R}w1k{ks}
        ds_write_b64 v2, v[8:9] offset:{448 * 16 * ks + 216}
        s_waitcnt lgkmcnt(0)
        s_barrier
        ''')
        c.extend(mark1(7) if ks == 0 else (mark1(8) if ks == N - 1 else []))
        for r in range(4):
            for h in range(2):
                c(f'ds_read_b64_tr_b16 {vr(FR + 4 * r + 2 * h, 2)}, v3 offset:{448 * (16 * ks + 4 * h) + 128 * r}')
        c(f's_add_u32 s24, {sK0}, {ks}')
        if ks == 2 and not two and OPT.get('hs', 1):
            c('''
            s_mul_i32 s25, s58, 3
            s_sub_u32 s24, s24, s25
            v_xor_b32 v12, s58, v12
            v_lshl_add_u32 v11, v12, 30, v11
            ''')
        c(f'''
        s_and_b32 s25, s24, 1
        s_lshl_b32 s25, s25, 9
        s_lshr_b32 s24, s24, 1
        ''')
        for r in range(4):
            c(f's_mul_i32 s42, s24, s{38 + r}')
            c(f's_add_u32 s42, s42, s25')
            c(f's_add_u32 s42, s42, s{34 + r}')
            c(f'buffer_store_dwordx4 {vr(FR + 4 * r, 4)}, v11, {WSR}, s42 offen{st}')
            for k in range(4):
                c(f'v_dot2_f32_bf16 v{100 + r}, v{FR + 4 * r + k}, s44, {"0" if ks + k == 0 else "v%d" % (100 + r)}')
    for r in range(4):
        c(f'v_mov_b32 v{104 + r}, v{100 + r}')
    for r in range(4):
        c(f'v_permlane32_swap_b32 v{100 + r}, v{104 + r}')
    c('s_mov_b32 vcc_lo, 0')
    c('s_mov_b32 vcc_hi, -1')
    for r in range(4):
        c(f'''
        v_add_f32 v{100 + r}, v{100 + r}, v{104 + r}
        v_cvt_pk_bf16_f32 v{104 + r}, v{100 + r}, v{100 + r}
        v_and_b32 v{104 + r}, 0xffff0000, v{104 + r}
        v_sub_f32 v{104 + r}, v{100 + r}, v{104 + r}
        v_cndmask_b32 v{100 + r}, v{100 + r}, v{104 + r}, vcc
        v_cvt_pk_bf16_f32 v{100 + r}, v{100 + r}, v{100 + r}
        ds_write_b16 v5, v{100 + r} offset:{128 * r}
        ''')
    c(f's_mov_b64 exec, {"0xff" if two else 15}')
    for r in range(4):
        c(f'ds_read_b128 {vr(104 + 4 * r, 4)}, v10 offset:{128 * r}')
    for r in range(4):
        c(f'buffer_store_dwordx4 {vr(104 + 4 * r, 4)}, v4, {WSR}, s{28 + r} offen{st}')
    c('s_mov_b64 exec, -1')
    c.extend(mark1(9))


WDA, WDF = 128, 176


def wd_setup(c):
    assert BLK_ORDER == [6, 0, 1, 2, 3, 4, 5]
    for i in range(5):
        c(f'''
        v_add_u32 v{WDA + 8}, {64 * i}, v0
        v_mul_u32_u24 v{WDA + 9}, 1639, v{WDA + 8}
        v_lshrrev_b32 v{WDA + 9}, 16, v{WDA + 9}
        v_mul_u32_u24 v{WDA + 9}, 640, v{WDA + 9}
        v_lshl_add_u32 v{WDA + i}, v{WDA + 8}, 4, v{WDA + 9}
        ''')
    c(f'''
    s_mul_i32 s100, {sWAVE}, 5120
    s_add_u32 s100, s100, 20480
    v_lshrrev_b32 v{WDA + 8}, 4, v0
    v_bfe_u32 v{WDA + 9}, v0, 2, 2
    v_mul_u32_u24 v{WDA + 5}, 160, v{WDA + 8}
    v_mul_u32_u24 v{WDA + 9}, 640, v{WDA + 9}
    v_add3_u32 v{WDA + 5}, v{WDA + 5}, v{WDA + 9}, s100
    v_and_b32 v{WDA + 9}, 3, v0
    v_lshl_add_u32 v{WDA + 6}, v{WDA + 9}, 3, v{WDA + 5}
    v_lshl_add_u32 v{WDA + 5}, v{WDA + 9}, 4, v{WDA + 5}
    v_mul_u32_u24 v{WDA + 7}, {56 * 5120}, v{WDA + 8}
    v_and_b32 v{WDA + 9}, 15, v0
    v_lshl_add_u32 v{WDA + 7}, v{WDA + 9}, 4, v{WDA + 7}
    s_lshl_b32 s16, s34, 2
    s_add_u32 s16, s16, {sWAVE}
    s_sub_u32 s16, s16, {4 * OPT.get('wg0', 0)}
    s_mul_i32 s17, s16, 2341
    s_lshr_b32 s17, s17, 16
    s_mul_i32 s18, s17, 28
    s_sub_u32 s18, s16, s18
    s_and_b32 s19, s18, 1
    s_lshr_b32 s18, s18, 1
    s_mul_i32 s101, s17, 108
    s_lshl_b32 s20, s18, 3
    s_add_u32 s101, s101, s20
    s_lshl_b32 s101, s101, 1
    s_add_u32 s101, s101, s19
    s_mul_i32 s101, s101, 640
    s_mul_i32 s56, s19, {4 * 56}
    s_lshr_b32 s20, s17, 2
    s_mul_i32 s20, s20, 14
    s_add_u32 s56, s56, s20
    s_bfe_u32 s20, s17, 0x10001
    s_add_u32 s56, s56, s20
    s_and_b32 s20, s18, 14
    s_add_u32 s20, s20, 2
    s_cmp_eq_u32 s20, 14
    s_cselect_b32 s20, 0, s20
    s_add_u32 s56, s56, s20
    s_mul_i32 s56, s56, 20
    s_and_b32 s20, s17, 1
    s_lshl_b32 s20, s20, 1
    s_add_u32 s56, s56, s20
    s_and_b32 s20, s18, 1
    s_add_u32 s56, s56, s20
    s_lshl_b32 s56, s56, 8
    s_add_u32 s56, s56, {WD_OFF}
    s_cmp_eq_u32 s18, 13
    s_cselect_b32 s58, 0, -1
    s_cmp_lt_u32 s16, 448
    s_cselect_b32 s101, s101, 0x70000000
    s_cselect_b32 s56, s56, 0x70000000
    ''')


def wd_loads(WDS):
    return [[Ins(f's_add_u32 m0, s100, {1024 * i}'),
             Ins(f'buffer_load_dwordx4 v{WDA + i}, {WDS}, s101 offen lds', 'wdl')] for i in range(5)]


def wd_reads():
    c = Code()
    c('@vm wdl')
    for b in range(5):
        for h in range(2):
            if b < 4:
                c(f'ds_read_b64_tr_b16 {vr(WDF + 4 * b + 2 * h, 2)}, v{WDA + 5} offset:{2560 * h + 64 * (b >> 1) + 8 * (b & 1)}')
            else:
                c(f'ds_read_b64_tr_b16 {vr(WDF + 4 * b + 2 * h, 2)}, v{WDA + 6} offset:{2560 * h + 128}')
    for b in range(5):
        c(f'v_and_b32 v{WDF + 4 * b + 2}, s58, v{WDF + 4 * b + 2}')
        c(f'v_and_b32 v{WDF + 4 * b + 3}, s58, v{WDF + 4 * b + 3}')
    return c.ins


def wd_stores(st=SC):
    c = Code()
    for b in range(5):
        if b == 4:
            c('s_add_u32 s56, s56, 4096')
        c(f'buffer_store_dwordx4 {vr(WDF + 4 * b, 4)}, v{WDA + 7}, {WSR}, s56 offen offset:{1024 * (b & 3)}{st}', 'wds')
    return c.ins


def poll_load(vval, vaddr, srd_, soff):
    return Ins(f'buffer_load_dword {vval}, {vaddr}, {srd_}, {soff} offen{SC}')


CHECKS = []


def poll_check(name, vval, vaddr, srd_, soff, need, sleep=None, first='', more=()):
    sleep = OPT.get('sl_' + name, sleep)
    if sleep:
        sleep = min(sleep, OPT.get('slmax', 0))
    comb = f'v_min3_u32 {vval}, {vval}, {more[0][0]}, {more[1][0]}' if more else ''
    if name not in ('go_a', 'go_b', 'fx2'):
        CHECKS.append(name)
    cc = Code()
    cc(f'''
    L_{name}_slow:
    @reset
    {f's_or_b32 s82, s82, {1 << (len(CHECKS) - 1)}' if OPT.get('cnt') == 2 and name in CHECKS else ''}
    s_mov_b32 s32, {SPIN}
    L_{name}_spin:
    buffer_load_dword {vval}, {vaddr}, {srd_}, {soff} offen{SC}
    ''')
    for v, a in more:
        cc(f'buffer_load_dword {v}, {a}, {srd_}, {soff} offen{SC}')
    cc(f'''
    s_waitcnt vmcnt(0)
    {comb}
    v_cmp_gt_u32 vcc, {need}, {vval}
    s_nop 0
    s_cbranch_vccz L_{name}_ok
    ''')
    if first:
        cc(f'''
        s_cmp_lg_u32 s32, {SPIN}
        s_cbranch_scc1 L_{name}_again
        {first}
        L_{name}_again:
        ''')
    cc(f'''
    {f's_or_b32 s82, s82, {1 << (len(CHECKS) + 15)}' if OPT.get('cnt') == 2 and name in CHECKS else ''}
    {('s_sleep %d' % sleep) if sleep else ''}
    s_sub_u32 s32, s32, 1
    s_cbranch_scc0 L_{name}_spin
    s_branch L_{name}_ok
    ''')
    SLOW.extend(cc.ins)
    return ([Ins(comb)] if more else []) + [Ins(f'v_cmp_gt_u32 vcc, {need}, {vval}'), Ins('s_nop 0'), Ins(f's_cbranch_vccnz L_{name}_slow'), Ins(f'L_{name}_ok:')]


def flag_regs(c, voob, vone):
    c(f'v_mov_b32 {voob}, 0x80000000')
    c(f'v_mov_b32 {vone}, 1')
    c(f'v_writelane_b32 {voob}, 0, 0')


RING = 9
gHF, gMF, gACC, gT = 8, 168, 172, 236
NHB = 33
vOOB, vFV, vPA, vPV = 'v252', 'v253', 'v254', 'v255'


def p23_ids(c):
    c(f'''
    s_lshr_b32 s34, {sSLOT}, 2
    s_lshl_b32 s34, s34, 2
    s_lshr_b32 s34, {[0x01234567, 0x76543210, 0x54301267, 0x35401267][OPT.get('map', 0)]}, s34
    s_and_b32 s34, s34, 7
    s_and_b32 s35, {sSLOT}, 3
    s_and_b32 s36, {sXCD}, 1
    s_lshr_b32 s37, {sXCD}, 1
    s_lshl_b32 {sMT}, s34, 1
    s_add_u32 {sMT}, {sMT}, s36
    s_lshl_b32 {sNI}, s37, 2
    s_add_u32 {sNI}, {sNI}, s35
    s_lshl_b32 {sMT64}, {sMT}, 1
    s_and_b32 s36, s37, 1
    s_add_u32 {sMT64}, {sMT64}, s36
    s_and_b32 {sDC}, {sXCD}, 4
    s_add_u32 {sDC}, {sDC}, s35
    s_mul_i32 {sP2W}, {sNI}, {288 * 1024}
    s_lshl_b32 {sP2L}, {sWAVE}, 12
    s_add_u32 {sP2W}, {sP2W}, {sP2L}
    s_add_u32 {sP2W}, {sP2W}, {W1_OFF}
    s_mul_i32 {sP3W}, {sDC}, 56
    s_mul_i32 s35, {sWAVE}, 14
    s_add_u32 {sP3W}, {sP3W}, s35
    s_mul_i32 {sP3W}, {sP3W}, 5120
    s_add_u32 {sP3W}, {sP3W}, {WD_OFF}
    ''')


def fa_addr(c, va, t1):
    c(f'''
    v_and_b32 {t1}, 3, v0
    v_and_b32 {va}, 12, v0
    v_lshl_add_u32 {va}, {va}, 2, {t1}
    v_mul_u32_u24 {va}, {FSP}, {va}
    s_mul_i32 s47, {sWAVE}, {4 * FSP}
    s_add_u32 s47, s47, {FX_OFF}
    ''')


def fw_addr(c, va):
    c(f'''
    v_min_u32 {va}, 11, v0
    v_mul_u32_u24 {va}, {FSP}, {va}
    s_lshr_b32 s57, {sNI}, 1
    s_mul_i32 s57, s57, {16 * FSP}
    s_add_u32 s57, s57, {FW1_OFF}
    ''')


def fd_addr(c, va, t):
    c(f'''
    s_mul_i32 s58, {sWAVE}, 28
    s_add_u32 s58, s58, {OPT.get('wg0', 0)}
    v_min_u32 {va}, 27, v0
    v_add_u32 {va}, s58, {va}
    ''')
    if OPT.get('pz', 0) and t:
        c(f'''
        v_add_u32 {t}, 128, v0
        v_cmp_gt_u32 vcc, 32, v0
        v_cndmask_b32 {va}, {t}, {va}, vcc
        ''')
    c(f'v_mul_u32_u24 {va}, {FSP}, {va}')
    c(f's_mov_b32 s58, {FD_OFF}')


def clear_b(c, st=SC):
    PU = OPT.get('pu', 12)
    n = (16 - PU) * 160 // 128
    c(f'''
    s_sub_u32 s46, s2, 224
    s_lshl_b32 s44, s46, 2
    s_add_u32 s44, s44, {sWAVE}
    s_mul_i32 s45, s44, {n * 1024}
    s_add_u32 s45, s45, {H4_OFF + PU * 163840}
    s_lshl_b32 s44, s44, 11
    s_add_u32 s44, s44, {F3_OFF}
    s_mul_i32 s46, s46, {FSP}
    s_add_u32 s46, s46, {FZ_OFF}
    s_cmp_eq_u32 {sWAVE}, 0
    s_cselect_b32 s46, s46, 0x70000000
    ''')
    for k in range(4):
        c(f'v_mov_b32 v{16 + k}, -1')
    for k in range(2):
        c(f'buffer_store_dwordx4 v[200:203], v1, {WSR}, s44 offen offset:{1024 * k}{st}')
    for k in range(n):
        if k and (k & 3) == 0:
            c('s_add_u32 s45, s45, 4096')
        c(f'buffer_store_dwordx4 v[16:19], v1, {WSR}, s45 offen offset:{1024 * (k & 3)}{st}')
    c('s_waitcnt vmcnt(0)')
    c('s_barrier')
    c(f'buffer_store_dword {vFV}, {vOOB}, {WSR}, s46 offen{st}')


def f2_addr(c, va):
    c(f'''
    s_lshl_b32 s39, {sWAVE}, 6
    v_add_u32 {va}, s39, v0
    v_min_u32 {va}, 159, {va}
    v_mul_u32_u24 {va}, {FSP}, {va}
    ''')


def p2_dma(g, base=sP2W, every=False):
    o = []
    for k in range(4):
        l = [Ins(f's_add_u32 m0, {sP2L}, {(g % RING) * 16384}')] if k == 0 or (every and g >= 12) else []
        if k == 0:
            l.append(Ins(f's_add_u32 {sP2T}, {base}, {g * 16384}'))
        l.append(Ins(f'buffer_load_dwordx4 v1, {WSR}, {sP2T} offen offset:{1024 * k}{SC} lds', f'g{g}'))
        o.append(l)
    return o


def wfrag(j):
    n = 64 - nwb()
    if j < n:
        return ar(4 * (nwb() + j), 4)
    if j < n + 2:
        return vr(244 + 4 * (j - n), 4)
    return ar(4 * (j - n - 2), 4)


def p3_wload(j, R=''):
    o = []
    if j < 60:
        if j and (j & 3) == 0:
            o.append(Ins(f's_add_u32 {sP3W}, {sP3W}, 4096'))
        o.append(Ins(f'buffer_load_dwordx4 {wfrag(j)}, v1, {WSR}, {sP3W} offen offset:{1024 * (j & 3)}{SC}', f'{R}wd{j}'))
    else:
        k = j - 60
        if k and (k & 3) == 0:
            o.append(Ins(f's_add_u32 {sWL}, {sWL}, 4096'))
        if (k & 3) == 0:
            o.append(Ins(f's_add_u32 m0, {sSTG}, {4096 * (k >> 2)}'))
        o.append(Ins(f'buffer_load_dwordx4 v1, {WSR}, {sWL} offen offset:{1024 * (k & 3)}{SC} lds', f'{R}wl'))
    return o


sH, sHHS, sF3, sF3P, sF3Q, sHR, sHB, sRES, sRES4, sOUT, sF2P, sSTG, sWL = 's16', 's17', 's18', 's19', 's20', 21, 's25', 's26', 's27', 's28', 's29', 's30', 's31'


def p23_scalars(c):
    t, u = 's12', 's13'
    c(f'''
    s_lshl_b32 {u}, {sMT}, 2
    s_add_u32 {u}, {u}, {sWAVE}
    s_mul_i32 {sH}, {u}, 40960
    s_add_u32 {sH}, {sH}, {H4_OFF}
    s_mul_i32 {sHHS}, {u}, {2 * 57344}
    s_lshr_b32 {t}, {sNI}, 2
    s_mul_i32 {t}, {t}, {56 * 256}
    s_add_u32 {sHHS}, {sHHS}, {t}
    s_and_b32 {t}, {sNI}, 3
    s_lshl_b32 {t}, {t}, 9
    s_add_u32 {sHHS}, {sHHS}, {t}
    s_add_u32 {sHHS}, {sHHS}, {HH_OFF}
    s_mul_i32 {sF3P}, {u}, {4 * FSP}
    s_add_u32 {sF3P}, {sF3P}, {F3_OFF}
    s_mul_i32 {sF3Q}, {sMT}, {16 * FSP}
    s_mul_i32 {sF3}, {sNI}, {FSP}
    s_add_u32 {sF3}, {sF3}, {sF3Q}
    s_add_u32 {sF3}, {sF3}, {F3_OFF}
    s_add_u32 {sF3Q}, {sF3Q}, {F3_OFF + 3 * 256 * FSP}
    s_cmp_eq_u32 {sWAVE}, 0
    s_cselect_b32 {sF3}, {sF3}, 0x70000000
    s_lshl_b32 {u}, {sMT64}, 2
    s_add_u32 {u}, {u}, {sWAVE}
    s_mul_i32 {sOUT}, {u}, {16 * 1280}
    s_mul_i32 {t}, {sDC}, 160
    s_add_u32 {sOUT}, {sOUT}, {t}
    s_mul_i32 {sHB}, {u}, 57344
    s_add_u32 {sHB}, {sHB}, {HH_OFF + 48 * 256}
    s_lshr_b32 {sRES}, {u}, 1
    s_mul_i32 {sRES}, {sRES}, 40960
    s_and_b32 {t}, {sWAVE}, 1
    s_lshl_b32 {t}, {t}, 3
    s_add_u32 {sRES}, {sRES}, {t}
    s_mul_i32 {t}, {sDC}, {20 * 256}
    s_add_u32 {sRES}, {sRES}, {t}
    s_add_u32 {sRES}, {sRES}, {H4_OFF}
    s_add_u32 {sRES4}, {sRES}, 4096
    s_sub_u32 {sF2P}, {sMT}, 10
    s_cmp_lt_u32 {sMT}, 12
    s_cselect_b32 {sF2P}, 1, {sF2P}
    s_cmp_lt_u32 {sMT}, 8
    s_cselect_b32 {sF2P}, 0, {sF2P}
    s_mul_i32 {sF2P}, {sF2P}, {160 * FSP}
    s_add_u32 {sF2P}, {sF2P}, {F2_OFF}
    s_cmp_lt_u32 {sMT}, {OPT.get('pu', 12)}
    s_cselect_b32 s14, {sF2P}, {F2_OFF}
    s_cselect_b32 s15, 1, 0
    s_mov_b32 s3, {sH}
    s_mul_i32 {sSTG}, {sWAVE}, 10240
    s_add_u32 {sWL}, {sP3W}, {60 * 1024}
    s_mul_i32 {u}, {sMT64}, {4 * 57344}
    s_mul_i32 {t}, {sWAVE}, {56 * 256}
    s_add_u32 {u}, {u}, {t}
    s_add_u32 {u}, {u}, {HH_OFF}
    ''')
    for r in range(4):
        c(f'''
        s_add_u32 {t}, {sWAVE}, {r + 1}
        s_and_b32 {t}, {t}, 3
        s_mul_i32 s{sHR + r}, {t}, 57344
        s_add_u32 s{sHR + r}, s{sHR + r}, {u}
        ''')
    c(f's_movk_i32 s13, {OPT.get("tries", 4)}')
    for o, r in (('nowd', [sP3W, sWL]), ('nog', [sP2W]), ('nohh', [f's{sHR + r}' for r in range(4)] + [sHB]), ('noh', [sH])):
        if OPT.get(o):
            for x in r:
                c(f's_mov_b32 {x}, 0x70000000')


def p23_vectors():
    c = Code()
    t = gT
    c(f'''
    v_add_u32 v4, 0x10000, v1
    v_add_u32 v5, 0x20000, v1
    v_bfe_u32 v2, v0, 4, 1
    v_mul_u32_u24 v2, 57344, v2
    v_lshrrev_b32 v{t}, 5, v0
    v_lshl_add_u32 v2, v{t}, 8, v2
    v_lshrrev_b32 v3, 2, v0
    v_lshlrev_b32 v3, 6, v3
    v_and_b32 v7, 3, v0
    v_lshl_add_u32 v3, v7, 3, v3
    v_and_b32 v7, 15, v0
    v_lshlrev_b32 v7, 4, v7
    v_add_u32 v2, v2, v7
    v_lshrrev_b32 v{t}, 4, v0
    v_lshl_add_u32 v6, v{t}, 9, v7
    v_lshl_add_u32 v7, v{t}, 8, v7
    v_and_b32 {vPA}, 3, v0
    v_mul_u32_u24 {vPA}, {FSP}, {vPA}
    ''')
    return c.ins


def p23_main(c, R, pre_groups, wpre, issued=None):
    ld = st = SC
    O = lambda k, d: OPT.get(R + k, OPT.get(k, d))
    HPRE = O('hpre', 14)
    nacc, NWB = 3, nwb()
    accof = lambda bi: gACC + 16 * (bi % nacc)
    LA = O('la', 6)
    units = [(bi, kp, m) for kp in range(10) for bi in range(2) for m in range(2)]
    blk = lambda bi: [(bi, kp, m) for kp in range(10) for m in range(2)] + [(bi, 10, 0)]
    units += blk(2)[:LA] + [(0, 10, 0), (1, 10, 0)] + blk(2)[LA:]
    for bi in range(3, 7):
        units += blk(bi)
    up = {x: 4 * k for k, x in enumerate(units)}
    slots = lambda x: [w1_slot(x[0], 2 * x[1] + j, x[2]) for j in range(2)] if x[1] < 10 else [w1_slot(x[0], 20)]
    gRES = 220
    home = {80: vr(gRES, 4), 81: vr(gRES + 4, 4)}
    runits = units[:40] + [(0, 10, 0), (1, 10, 0)] + [x for x in units[40:] if x[0] > 1]
    wbuf, rpos, lastuse, holder = dict(home), {}, {}, {}
    k, prev = 0, -2
    for x in runits:
        for s in slots(x):
            lastuse[s] = up[x] + 3
            want = prev + 2
            if s not in home:
                wbuf[s] = ar(4 * (k % NWB), 4)
                want = max(want if prev >= 0 else -2, lastuse[holder[k % NWB]] + 1 if k >= NWB else -2)
                holder[k % NWB] = s
                k += 1
            rpos[s] = prev = want
            assert want < up[x] - (5 if up[x] > 8 else 0), (x, want)
    rpos = {s: max(p, -1) for s, p in rpos.items()}
    mf, last_of_blk, first_of_blk, started = [], {}, {}, set()
    half = lambda q, j: vr(int(REG_RE.match(q).group(3)) + 2 * j, 2, q[0])
    for x in units:
        bi, kp, m = x
        first_of_blk.setdefault(bi, len(mf))
        for t, j in ((m, 0), (m, 1), (1 - m, 1), (1 - m, 0)):
            if kp < 10:
                a = vr(accof(bi) + 8 * m + 4 * t, 4)
                mf.append(Ins(f'v_mfma_f32_16x16x32_bf16 {a}, {wbuf[slots(x)[j]]}, {vr(gHF + 16 * kp + 8 * j + 4 * t, 4)}, {a if (bi, m, t) in started else "0"}'))
                started.add((bi, m, t))
            else:
                a = vr(accof(bi) + 8 * t + 4 * j, 4)
                mf.append(Ins(f'v_mfma_f32_16x16x16_bf16 {a}, {half(wbuf[slots(x)[0]], t)}, {vr(gMF + 2 * j, 2)}, {a}'))
        last_of_blk[bi] = len(mf) - 1
    N2 = len(mf)
    pre = {}
    P = lambda pos, i: pre.setdefault(pos, []).append(i)

    def hload(k):
        o = []
        if k and (k & 3) == 0:
            o.append(Ins(f's_add_u32 {sH}, {sH}, 4096'))
        o.append(Ins(f'buffer_load_dwordx4 {vr(gHF + 4 * k, 4)}, v6, {WSR}, {sH} offen offset:{hoff(k)}{ld}', f'{R}h{k}'))
        return o
    hoff = lambda k: 2048 * ((k >> 1) & 1) + 256 * (k & 1)

    def dma(g):
        ll = p2_dma(g)
        for l in ll:
            l[-1].tag = f'{R}g{g}'
        return ll
    grp = lambda g: range(16 * g, min(16 * g + 16, 287))
    first_rd = lambda g: min(rpos[s] for s in grp(g))
    bars = sorted({first_rd(min(pre_groups, 3)) - 1} | {first_rd(g) - 1 for g in (5, 7, 9, 12, 14, 16)})
    GPRE = issued or pre_groups
    gjobs = []
    for g in range(pre_groups, 18):
        e = -1 if g < RING else min(b for b in bars if b >= max(lastuse[s] for s in grp(g - RING))) + 2
        cert = max(b for b in bars if b <= first_rd(g))
        if g >= GPRE:
            assert e + 20 < cert, g
            for l in dma(g):
                gjobs.append((e, cert - 4, l))
        if not any(i.mn == '@vm' for i in pre.get(cert, [])):
            P(cert, Ins(f'@vm {R}g{max(g2 for g2 in range(g, 18) if max(b for b in bars if b <= first_rd(g2)) == cert)}'))
    for b in bars:
        P(b, Ins('s_barrier'))
    for x in runits:
        for s in slots(x):
            off = (s % (16 * RING)) * 1024
            if x[1] == 10:
                P(rpos[s] - 2, Ins(f'v_add_u32 v{gT + 6}, {off}, v3'))
                for m in range(2):
                    P(rpos[s], Ins(f'ds_read_b64_tr_b16 {half(wbuf[s], m)}, v{gT + 6} offset:{32 * m}', f'{R}w{s}'))
            else:
                P(rpos[s], Ins(f'ds_read_b128 {wbuf[s]}, {["v1", "v4", "v5"][off >> 16]} offset:{off & 0xffff}', f'{R}w{s}'))
    LG = O('lgn', 2)
    for k in range(0, len(units), LG):
        s = max((s for x in units[k:k + LG] for s in slots(x)), key=lambda s_: (rpos[s_], s_))
        P(max(4 * k - 2, -1), Ins(f'@lg {R}w{s}'))
    DB = 4
    sq = lambda j, k: gT + 2 * (j & 1) + k
    dpos = lambda j: (-1, 5)[j] if j < 2 else 16 * j - 19

    def dots(j):
        o = [f'v_mov_b32 v{sq(j, k)}, {"0" if j == 0 else "v%d" % sq(j - 1, k)}' for k in range(2)]
        return o + [f'v_dot2_f32_bf16 v{sq(j, (r >> 1) & 1)}, v{gHF + 16 * j + r}, v{gHF + 16 * j + r}, v{sq(j, (r >> 1) & 1)}' for r in range(16)]
    cc = Code()
    for j in range(10):
        p = dpos(j)
        P(p, Ins(f'@vm {R}h{4 * j + 3}'))
        P(p, Ins(f'L_hb{j}:'))
        for t in dots(j):
            P(p, Ins(t))
        P(p + 1 if j else p, Ins(f'v_cmp_u_f32 vcc, v{sq(j, 0)}, v{sq(j, 1)}'))
        for t in (['s_nop 0'] if j == 0 else []) + [f's_cbranch_vccnz L_hv{j}', f'L_hok{j}:']:
            P(p + 3 if j else p, Ins(t))
        cc(f'''
        L_hv{j}:
        s_cmp_lg_u32 s15, 0
        s_cbranch_scc1 L_hok{j}
        s_movk_i32 s14, {j}
        {'s_add_u32 s82, s14, 1' if OPT.get('cnt') == 1 else ''}
        s_sub_u32 s13, s13, 1
        s_cbranch_scc1 L_hwait
        s_add_u32 s12, s3, {4096 * j}
        ''')
        for k in range(4):
            cc(f'buffer_load_dwordx4 {vr(gHF + 16 * j + 4 * k, 4)}, v6, {WSR}, s12 offen offset:{hoff(k)}{ld}')
        cc('s_waitcnt vmcnt(0)')
        cc(f'L_hr{j}:')
        for t in dots(j):
            cc(t)
        cc(f'''
        v_cmp_u_f32 vcc, v{sq(j, 0)}, v{sq(j, 1)}
        s_nop 0
        s_cbranch_vccnz L_hv{j}
        s_branch L_hok{j}
        ''')
    T = gACC + 32
    cc(f'''
    L_hwait:
    @reset
    {'s_movk_i32 s82, 11' if OPT.get('cnt') == 1 else ''}
    v_mul_u32_u24 v{T}, {FSP}, v0
    v_add_u32 v{T + 1}, {64 * FSP}, v{T}
    v_add_u32 v{T + 2}, {96 * FSP}, v{T}
    s_branch L_hspin_slow
    L_hspin_ok:
    s_mov_b32 s15, 1
    ''')
    poll_check('hspin', f'v{T + 3}', f'v{T}', WSR, sF2P, 1, 2, more=((f'v{T + 4}', f'v{T + 1}'), (f'v{T + 5}', f'v{T + 2}')))
    for j in range(10):
        if j < 9:
            cc(f's_cmp_gt_u32 s14, {j}')
            cc(f's_cbranch_scc1 L_hskip{j}')
        for k in range(4):
            cc(f'buffer_load_dwordx4 {vr(gHF + 16 * j + 4 * k, 4)}, v6, {WSR}, s3 offen offset:{hoff(k)}{ld}')
        cc(f'L_hskip{j}:')
        cc('s_add_u32 s3, s3, 4096')
    cc('s_waitcnt vmcnt(0)')
    for j in range(9):
        cc(f's_cmp_eq_u32 s14, {j}')
        cc(f's_cbranch_scc1 L_hr{j}')
    cc('s_branch L_hr9')
    SLOW.extend(cc.ins)
    for j in range(10):
        for k in range(4):
            x = gHF + 16 * j + 8 * (k >> 1) + 2 + (k & 1)
            i = Ins(f'v_swap_b32 v{x}, v{x + 2}')
            if j == 1:
                pre.setdefault(9 + 2 * k, []).insert(0, i)
            else:
                P(16 * j - 13 + 4 * k if j else -1, i)
    quads = list(range(140, 172, 4)) + list(range(204, 236, 4))[:7] + [188, 192, 196, 200, 232]
    acc3 = lambda r, b: quads[5 * r + b]
    pairs = [(r, k) for k in (0, 2, 4) for r in range(4)] + [(r, k) for k in (6, 8) for r in range(3)]
    pairs += [[(0, 10), (3, 6), (1, 10), (3, 8), (2, 10), (3, 10)], [(0, 10), (3, 6), (1, 10), (2, 10), (3, 8), (3, 10)],
              [(0, 10), (1, 10), (2, 10), (3, 6), (3, 8), (3, 10)]][O('ord', 2)]
    pairs += [(4, k) for k in (0, 2, 4, 6)]
    seq3 = lorder = [(r, k + j) for r, k in pairs for j in range(2)]
    usepos = {x: N2 + 5 * (i & ~1) for i, x in enumerate(seq3)}
    if O('tl', 1):
        usepos[(4, 6)] = usepos[(4, 7)] = usepos[(4, 4)] + 2
    free_at = {i: up[(6, i >> 2, 1)] + 3 for i in range(NHB)}
    hbuf = {}
    CP1 = first_of_blk[6] + O('cp1', 5)
    CP2 = N2 + O('cp2', 65)
    CP3 = N2 + O('cp3', 136)
    CP4 = N2 + O('cp4', 202)
    hjobs, rjobs = [], []
    assert any(dpos(9) + 3 < b < up[(1, 10, 0)] for b in bars)
    for b in range(5):
        if b < 4:
            i = Ins(f'buffer_load_dwordx2 {vr(gRES + 2 * b, 2)}, v6, {WSR}, {sRES} offen offset:{2048 * (b >> 1) + 256 * (b & 1)}{ld}')
        else:
            i = Ins(f'buffer_load_dwordx2 {vr(gRES + 2 * b, 2)}, v7, {WSR}, {sRES4} offen{ld}')
        rjobs.append((up[(1, 10, 0)] + 4, CP1 - 20, [i]))
    for x in lorder:
        r, ks = x
        b = min(free_at, key=lambda k_: (free_at[k_], k_))
        cp = CP4 if r == 4 else (CP3 if ks >= 10 else (CP2 if ks >= 6 else CP1))
        e = max(cp + 1, free_at[b])
        hbuf[x] = b
        free_at[b] = usepos[x] + 9
        l = []
        if r < 4:
            if ks and (ks & 3) == 0:
                l.append(Ins(f's_add_u32 s{sHR + r}, s{sHR + r}, 4096'))
            so, off = f's{sHR + r}', 1024 * (ks & 3)
        else:
            if ks and (ks & 1) == 0:
                l.append(Ins(f's_add_u32 {sHB}, {sHB}, {56 * 256}'))
            so, off = sHB, 1024 * (ks & 1)
        l.append(Ins(f'buffer_load_dwordx4 {vr(gHF + 4 * b, 4)}, v1, {WSR}, {so} offen offset:{off}{ld}', f'{R}hq{r}_{ks}'))
        hjobs.append((e, usepos[x] - 2, l))
        if seq3.index(x) % 2 == 0:
            P(usepos[x] - 1, Ins(f'@vm {R}hq%d_%d' % max(seq3[seq3.index(x):seq3.index(x) + 2], key=lorder.index)))
    done3, wlast = {}, {}
    TL = O('tl', 1)
    fin = {}
    for r, k in pairs:
        if TL and (r, k) == (4, 6):
            continue
        kk = [k, k + 1] + ([6, 7] if TL and (r, k) == (4, 4) else [])
        for b in range(5):
            a = vr(acc3(min(r, 3), b), 4)
            for n, ks in enumerate(kk if b & 1 == 0 else kk[::-1]):
                if r < 4:
                    wlast[5 * ks + b] = len(mf)
                mf.append(Ins(f'v_mfma_f32_16x16x32_bf16 {a}, {wfrag(5 * ks + b)}, {vr(gHF + 4 * hbuf[(r, ks)], 4)}, {"0" if k == 0 and n == 0 and r < 3 else a}'))
            fin[b] = len(mf) - 1
        done3[r] = len(mf) - 1
    P(CP3 + 2, Ins(f'v_and_b32 {vPA}, 15, v0'))
    P(CP3 + 3, Ins(f'v_mul_u32_u24 {vPA}, {FSP}, {vPA}'))
    pjobs = []
    for nm, cp, lead in (('cp1', CP1, O('l1', 48)), ('cp2', CP2, O('l2', 45)), ('cp3', CP3, O('l3', 45)), ('cp4', CP4, O('l4', 45))):
        so = sF3Q if nm == 'cp4' else sF3P
        pjobs.append((cp - lead, cp - lead + 10, [poll_load(vPV, vPA, WSR, so)]))
        for i in poll_check(R + nm, vPV, vPA, WSR, so, 0 if OPT.get('nocp') else 1, 2):
            P(cp, i)
        if nm in ('cp1', 'cp2'):
            P(cp + 1, Ins(f's_add_u32 {sF3P}, {sF3P}, {256 * FSP}'))
    POST = {2: first_rd(12) - 1, 4: N2 - O('po5', 47), 5: N2 + O('po6', 34), 6: N2 + O('po7', 86)}
    for bi, p in POST.items():
        if p in bars:
            pre[p].insert(0, Ins(f'@vm {R}hh{bi}'))
        else:
            P(p, Ins(f'@vm {R}hh{bi}'))
            if bi == 6:
                P(p, Ins(f'@vm {R}wl'))
            P(p, Ins('s_barrier'))
        pjobs.append((p + 1, p + 10, ([Ins(f's_add_u32 {sF3}, {sF3}, {256 * FSP}')] if bi > 2 else []) +
                      [Ins(f'buffer_store_dword {vFV}, {vOOB}, {WSR}, {sF3} offen{st}')]))
    pjobs.sort(key=lambda x: x[0])
    assert POST[2] + 6 < CP1 and POST[4] + 6 < CP2 and POST[5] + 6 < CP3 and POST[6] + 6 < CP4
    BARW = POST[6]
    wjobs = [(0 if j < 66 - NWB else N2, usepos[(0, j // 5)] - 1, p3_wload(j, R)) for j in range(wpre, 60)]
    ljobs = [(min(b for b in bars if b >= max(lastuse[s] for s in grp(11))) + 2, BARW - 40, p3_wload(j, R)) for j in range(60, 70)]
    h2jobs = [(0, dpos(ks >> 2) - 1, hload(ks)) for ks in range(HPRE, 40)]
    tpos, t = [], 0
    for k, m in enumerate(mf):
        tpos.append(t)
        t += 16.6
        if k in [dpos(j) for j in range(10)]:
            t += 12 + 16 * DB
    for r in range(3):
        p = max(done3[r] + 1, p if r else 0)
        for b in range(5):
            p += O('pws', 3)
            while p in pre:
                p += 1
            P(p, Ins(f'ds_write_b128 v{2 + r}, {vr(acc3(r, b), 4)} offset:{1024 * (5 * r + b)}', f'{R}pw{r}'))
    PRD = p + 3
    vm, pre2, where = pace([h2jobs, gjobs + ljobs, wjobs, hjobs, pjobs, rjobs], tpos,
                           lambda p: O('spa', 50) if p < 144 else (O('spb', 80) if p < O('xe', 340) else (O('spd', 66) if p < N2 else O('spc', 72))),
                           avoid={p for p, l in pre.items() if p >= 144 or (sum(i.cost for i in l) > O('av', 0) and p not in [dpos(j) for j in range(10)])},
                           load={p: sum(i.cost for i in l) for p, l in pre.items()})
    vm[-1] = sum((hload(ks) for ks in range(HPRE)), [])
    for p, l in pre2.items():
        for i in l:
            P(p, i)
    lead = sorted((int(tpos[d] - tpos[where[id(l[-1])]]), l[-1].tag) for _, d, l in h2jobs + wjobs + hjobs)
    print(R, 'smallest leads', lead[:5], 'last vm at', max(where.values()) - N2, file=sys.stderr)
    p = BARW + 1
    for j in range(40):
        p = max(p + 2, wlast[j])
        while p in vm or sum(i.cost for i in pre.get(p, [])) > 4:
            p += 1
        assert p < usepos[(4, j // 5)] - 8
        P(p, Ins(f'ds_read_b128 {wfrag(j)}, v1 offset:{1024 * j}'))
    mk = ((8, 0), (9, 160), (10, N2 - 1), (11, N2 + 140), (12, len(mf) - 1))
    if OPT.get('mk23') == 2:
        mk = [(k + 1, N2 - 1 + 25 * k) for k in range(12)]
    if OPT.get('mk23') == 4:
        mk = []
    if OPT.get('mk23') == 3:
        mk = [(k + 1, 53 * k) for k in range(12)]
    for k, p in ([] if OPT.get('mk1') else mk):
        for i in ([] if k == 11 and OPT.get('cnt') else mark(k, True)):
            P(p, i)
    bg = []
    B = lambda pos, t, tag=None: bg.append((pos, Ins(t, tag and R + tag)))
    p = 160
    NM, VA, RS, C1, T2 = gT + 1, gT, gT + 2, gT + 3, gT + 4
    SA, SB = sq(9, 0), sq(9, 1)
    B(130, f'v_permlane16_swap_b32 v{SA}, v{SB}')
    B(130, f'v_add_f32 v{VA}, v{SA}, v{SB}')
    B(130, f'v_add_f32 v{T2}, v{SA}, v{SB}')
    B(up[(0, 9, 0)] + 8, f'v_mov_b32 v{T2 + 1}, v{accof(0)}')
    B(0, f'v_mov_b32 v{NM}, v{accof(0) + 4}')
    B(0, f'v_permlane32_swap_b32 v{VA}, v{T2}')
    B(0, f'v_permlane16_swap_b32 v{T2 + 1}, v{NM}')
    B(0, f'v_add_f32 v{VA}, v{VA}, v{T2}')
    B(0, f'v_mov_b32 v{T2 + 1}, v{NM}')
    B(-1, f'v_permlane32_swap_b32 v{T2 + 1}, v{NM}')
    cc = Code()
    ln_finish(cc, NM, VA, RS)
    for i in cc.ins:
        bg.append((0, i))
    for k in range(4):
        B(0, f'v_cvt_pk_bf16_f32 v{gMF + k}, v{NM}, v{NM}')
    B(0, f'v_permlane16_swap_b32 v{gMF}, v{gMF + 2}')
    B(0, f'v_permlane16_swap_b32 v{gMF + 1}, v{gMF + 3}', 'mf')
    B(0, f'v_mul_f32 v{C1}, 0xbfb8aa3b, v{RS}')
    B(0, f'v_mul_f32 v{T2}, 0xbfb8aa3b, v{RS}')
    B(0, f'v_mul_f32 v{NM}, v{VA}, v{RS}')
    B(0, f'v_mul_f32 v{VA}, v{VA}, v{RS}')
    B(0, f'v_permlane16_swap_b32 v{C1}, v{T2}')
    B(-1, f'v_permlane16_swap_b32 v{VA}, v{NM}')
    c1 = lambda r: C1 + (r >> 2)
    sd = lambda r: VA + (r >> 2)
    epi_last = {}
    for bi in range(7):
        a = accof(bi)
        p = last_of_blk[bi] + 3
        if bi == 6:
            for b in range(5):
                q = acc3(3, b)
                B(0, f'v_lshlrev_b32 v{q}, 16, v{gRES + 2 * b}')
                B(0, f'v_and_b32 v{q + 1}, 0xffff0000, v{gRES + 2 * b}')
                B(0, f'v_lshlrev_b32 v{q + 2}, 16, v{gRES + 2 * b + 1}')
                B(0, f'v_and_b32 v{q + 3}, 0xffff0000, v{gRES + 2 * b + 1}', 'res')
        B(p, f'v_mul_f32 v{a}, v{c1(0)}, v{a}')
        for r in range(8):
            if r < 7:
                B(p, f'v_mul_f32 v{a + r + 1}, v{c1(r + 1)}, v{a + r + 1}')
            else:
                B(p, f'v_fma_f32 v{a}, v{a}, v{sd(0)}, v{sd(0)}')
            B(p, f'v_exp_f32 v{a + r}, v{a + r}')
        for r in range(8):
            if r < 7:
                B(p, f'v_fma_f32 v{a + r + 1}, v{a + r + 1}, v{sd(r + 1)}, v{sd(r + 1)}')
            else:
                B(p, f'v_mul_f32 v{a + 8}, v{a + 8}, v{a}')
            B(p, f'v_rcp_f32 v{a + r}, v{a + r}')
        for r in range(1, 8):
            B(p, f'v_mul_f32 v{a + 8 + r}, v{a + 8 + r}, v{a + r}')
        for r in (0, 2, 1, 3):
            B(p, f'v_cvt_pk_bf16_f32 v{a + r}, v{a + 8 + 2 * r}, v{a + 9 + 2 * r}')
        B(p, f'v_permlane16_swap_b32 v{a}, v{a + 2}')
        B(p, f'v_permlane16_swap_b32 v{a + 1}, v{a + 3}')
        B(p, f'buffer_store_dwordx4 {vr(a, 4)}, v2, {WSR}, {sHHS} offen offset:{2048 * (bi & 1)}{st}', f'hh{bi}')
        epi_last[bi] = bg[-1][1]
        if bi & 1:
            B(p, f's_add_u32 {sHHS}, {sHHS}, 4096')
    for r in range(4):
        B(0, f's_add_u32 s39, {sWAVE}, {r + 1}')
        B(0, f's_and_b32 s39, s39, 3')
        B(0, f's_mul_i32 s39, s39, {15 * 1024}')
        B(0, f's_add_u32 s39, s39, 65536')
        B(0, f'v_add_u32 v{2 + r}, s39, v1')
    OB = O('ob', 1)
    B(0, f'v_lshrrev_b32 v{gT}, 4, v0')
    B(0, f'v_and_b32 v6, 15, v0')
    B(0, f'v_mul_u32_u24 v6, {176 if OB else 1280}, v6')
    if OB:
        B(0, f's_add_u32 s39, {sP2L}, 131072')
        B(0, f'v_add_u32 v6, s39, v6')
        B(0, f'v_mul_u32_u24 v{gT + 1}, 205, v0')
        B(0, f'v_lshrrev_b32 v{gT + 1}, 11, v{gT + 1}')
        B(0, f'v_lshl_add_u32 v{gT + 2}, v{gT + 1}, 4, v1')
        B(0, f'v_add_u32 v{gT + 2}, s39, v{gT + 2}')
        B(0, f'v_mul_u32_u24 v{gT + 1}, 1120, v{gT + 1}')
        B(0, f'v_add_u32 v{gT + 1}, v{gT + 1}, v1')
        B(0, f's_add_u32 s34, {sOUT}, {6 * 1280}')
        B(0, f's_add_u32 s35, {sOUT}, {12 * 1280}')
    B(0, f'v_lshl_add_u32 v7, v{gT}, 3, v6')
    B(0, f'v_lshl_add_u32 v6, v{gT}, 4, v6', 'adr')
    B(PRD, f'@lg {R}pw2')
    B(0, 's_barrier')
    for b in range(5):
        for r in range(3):
            B(0, f'ds_read_b128 {vr(acc3(r, b), 4)}, v5 offset:{1024 * (5 * r + b)}', 'pr')
    OR = gACC
    OS = ['', ' sc1', ' nt', ' sc1 nt', ' sc0 sc1'][O('os', 0)]

    def psum(b):
        if b == O('npk', 4):
            B(len(mf), f'@lg {R}pr')
        for r in (1, 2):
            for k in range(4):
                if b < O('npk', 4):
                    B(PRD + 10, f'v_add_f32 v{acc3(0, b) + k}, v{acc3(0, b) + k}, v{acc3(r, b) + k}', 'sum')
                elif k & 1 == 0:
                    B(len(mf), f'v_pk_add_f32 {vr(acc3(0, b) + k, 2)}, {vr(acc3(0, b) + k, 2)}, {vr(acc3(r, b) + k, 2)}')

    def final(b):
        p = fin[b] + 4
        if b < O('nfk', 2):
            for k in range(4):
                B(p, f'v_add_f32 v{acc3(0, b) + k}, v{acc3(0, b) + k}, v{acc3(3, b) + k}')
        else:
            p = len(mf)
            for k in (0, 2):
                B(p, f'v_pk_add_f32 {vr(acc3(0, b) + k, 2)}, {vr(acc3(0, b) + k, 2)}, {vr(acc3(3, b) + k, 2)}')
        for k in (0, 2):
            B(p, f'v_cvt_pk_bf16_f32 v{OR + 2 * b + k // 2}, v{acc3(0, b) + k}, v{acc3(0, b) + k + 1}')
        if b in (1, 3):
            B(p, f'ds_write_b128 v6, {vr(OR + 2 * b - 2, 4)} offset:{32 * (b - 1)}' if OB else
              f'buffer_store_dwordx4 {vr(OR + 2 * b - 2, 4)}, v6, {OUTS}, {sOUT} offen offset:{32 * (b - 1)}{OS}')
        if b == 4:
            B(p, f'ds_write_b64 v7, {vr(OR + 8, 2)} offset:128' if OB else f'buffer_store_dwordx2 {vr(OR + 8, 2)}, v7, {OUTS}, {sOUT} offen offset:128{OS}')
    for x in ['p0 p1 f0 f1 p2 f2 p3 p4 f3 f4', 'p0 p1 p2 f0 f1 p3 f2 p4 f3 f4', 'p0 p1 p2 p3 f0 f1 f2 p4 f3 f4', 'p0 p1 p2 p3 p4 f0 f1 f2 f3 f4'][O('fo', 1)].split():
        (psum if x[0] == 'p' else final)(int(x[1]))
    if OB:
        p = len(mf)
        B(p, 's_mov_b32 exec_hi, 0x0fffffff')
        for i in range(3):
            B(p, f'ds_read_b128 {vr(acc3(1, i), 4)}, v{gT + 2} offset:{6 * 176 * i}')
        for i, so in enumerate((sOUT, 's34', 's35')):
            if i == 2:
                B(p, 's_mov_b32 exec_hi, 0xff')
            B(p, f'buffer_store_dwordx4 {vr(acc3(1, i), 4)}, v{gT + 1}, {OUTS}, {so} offen{OS}')
        B(p, 's_mov_b64 exec, -1')
    xtra = {k: O('xb', 8) for k in range(N2, N2 + 40)}
    xtra.update({k: 4 for k in range(140, N2) if k % O('xa', 32) == 0 or (k < O('xe', 340) and k % O('xa1', 2) == 0)})
    out = weave(mf, pre, bg, vm, xtra)
    pos = {id(i): k for k, i in enumerate(out)}
    tagged = lambda t: [i for _, i in bg if i.tag == R + t][-1]
    at = lambda t: max(j for j in range(len(mf)) if pos[id(mf[j])] < pos[id(tagged(t))])
    assert at('mf') < up[(0, 10, 0)] - 1, ('mean fragment not ready', at('mf'))
    for bi in range(nacc, 7):
        assert at(f'hh{bi - nacc}') < first_of_blk[bi] - 1, ('acc reuse', bi, at(f'hh{bi - nacc}'))
    assert at('hh5') < N2 + 12 and at('res') < N2 + 20, (at('hh5'), at('res'))
    assert at('adr') < done3[0] and BARW < done3[0]
    print(R, ' '.join(f'{t}@{at(t) - N2}' for t in ('hh0', 'hh1', 'hh2', 'hh3', 'hh4', 'hh5', 'res', 'hh6', 'sum')),
          'cp', CP1 - N2, CP2 - N2, CP3 - N2, CP4 - N2, 'prd', PRD - N2, 'after last mfma', len(out) - pos[id(mf[-1])], file=sys.stderr)
    c.extend(out)
```

```python
import sys
from asmlib import *
from phases import *
import phases

NAME = 'sequential_preLN__ssm_conv_h3__glu_gated_glu__prompt'
KN = NAME + '_kernel'
HEADER = open('cdna_kernels/%s.s.ref' % NAME).read().split('; Override launch')[0]


DOC = """;
;
"""


def stamp_begin(c, ts):
    if ts:
        for k in range(1, 13):
            c(f's_mov_b32 s{60 + 2 * k}, 0')
        c('s_memtime s[86:87]')


def stamp_end(c, ts, k):
    if ts:
        c(f'''
        s_waitcnt vmcnt(0) lgkmcnt(0)
        s_memrealtime s[90:91]
        s_memtime s[88:89]
        s_lshl_b32 s34, s2, 2
        s_add_u32 s34, s34, {sWAVE}
        s_lshl_b32 s34, s34, 6
        s_add_u32 s34, s34, {TS_OFF + k * 65536}
        s_waitcnt lgkmcnt(0)
        ''')
        for j in range(16):
            c(f'v_mov_b32 v{j}, s{60 + 2 * j}')
        c('v_mov_b32 v16, 0')
        c('s_mov_b64 exec, 1')
        for j in range(4):
            c(f'buffer_store_dwordx4 v[{4 * j}:{4 * j + 3}], v16, {WSR}, s34 offen offset:{16 * j}')


def desc(name, vgpr, accum):
    return f'''.amdhsa_kernel {name}
  .amdhsa_next_free_vgpr {vgpr}
  .amdhsa_next_free_sgpr 102
  .amdhsa_accum_offset {accum}
  .amdhsa_group_segment_fixed_size 0
  .amdhsa_kernarg_size 104
  .amdhsa_user_sgpr_count 2
  .amdhsa_user_sgpr_kernarg_segment_ptr 1
  .amdhsa_system_sgpr_workgroup_id_x 1
  .amdhsa_float_denorm_mode_32 3
.end_amdhsa_kernel'''


def go_addr(c, va):
    c(f'v_and_b32 {va}, 7, v0')
    c(f'v_lshlrev_b32 {va}, 5, {va}')


def wg_flag(c, soff, wait='s_waitcnt vmcnt(0)'):
    c(wait)
    c('s_barrier')
    c(f's_cmp_eq_u32 {sWAVE}, 0')
    c(f's_cselect_b32 s42, {soff}, 0x7f000000')
    c(f'buffer_store_dword v7, v6, {WSR}, s42 offen{SC}')


def probe(c, a, b, mult, rng=(0, 16), raw=False):
    c('.p2align 8')
    c('.type probe_kernel,@function')
    c('probe_kernel:')
    c('@reset')
    c('s_cmp_ge_u32 s2, 1')
    c('s_cbranch_scc1 L_probe_exit')
    srd(c, 8, WS, WS_USED)
    c('v_lshlrev_b32 v1, 6, v0')
    c('s_waitcnt lgkmcnt(0)')
    for k, (kn, wd, op) in enumerate([(0, 0, 'min'), a, b]):
        c(f's_mov_b32 s20, {TS_OFF + kn * 65536 + wd * 4}')
        for i in range(16):
            c(f'buffer_load_dword v{8 + i}, v1, {WSR}, s20 offen')
            c('s_add_u32 s20, s20, 4096')
        if k == 2 and OPT.get('bit') is not None:
            op = 'add'
            for i in range(16):
                c(f'v_bfe_u32 v{8 + i}, v{8 + i}, {OPT["bit"]}, 1')
        lo, hi = rng if k == 2 else (0, 16)
        if lo:
            c(f'v_mov_b32 v8, v{8 + lo}')
        for i in range(lo + 1, hi):
            c(f'v_{op}_u32 v8, v8, v{8 + i}')
        lanes = [l for l in range(64) if k < 2 or OPT.get('px') is None or (l >> 2) & 7 == OPT['px']]
        c(f'v_readlane_b32 s{30 + k}, v8, {lanes[0]}')
        for l in lanes[1:]:
            c(f'v_readlane_b32 s21, v8, {l}')
            c(f's_{op}_u32 s{30 + k}, s{30 + k}, s21')
    c(f'''
    {'s_mul_i32 s32, s32, 10' if raw else 's_sub_u32 s32, s32, s31'}
    s_min_u32 s32, s32, 20000
    s_mul_i32 s32, s32, {mult}
    s_add_u32 s32, s32, 10000
    L_probe_spin:
    s_memrealtime s[22:23]
    s_waitcnt lgkmcnt(0)
    s_sub_u32 s22, s22, s30
    s_cmp_lt_u32 s22, s32
    s_cbranch_scc1 L_probe_spin
    L_probe_exit:
    s_endpgm
    ''')


def untag(ll):
    for l in ll:
        for i in l:
            i.tag = None
    return ll


def build(ts=False, opts={}):
    c = Code()
    OPT.clear()
    OPT.update(opts)
    OPT['ts'] = ts
    SLOW.clear()
    CHECKS.clear()
    SHORT[0] = OPT.get('short', 1)
    c('.p2align 8')
    c(f'.type {KN},@function')
    c(f'{KN}:')
    if ts:
        c('s_memrealtime s[60:61]')
    c('s_cmp_lt_u32 s2, 160')
    c('s_cbranch_scc1 L_conv')
    c('s_cmp_ge_u32 s2, 256')
    c('s_cbranch_scc1 L_exit')
    if OPT.get('codepf', 1):
        c(f'''
        s_cmp_lt_u32 s2, 240
        s_cbranch_scc1 L_side
        s_getpc_b64 s[34:35]
        L_pc:
        s_and_b32 s36, s2, 8
        s_lshl_b32 s36, s36, 12
        v_lshl_add_u32 v1, v0, 7, s36
        v_min_u32 v2, L_code_end-L_pc-4, v1
        v_mov_b32 v3, s35
        v_add_co_u32 v2, vcc, s34, v2
        v_addc_co_u32 v3, vcc, 0, v3, vcc
        global_load_dword v250, v[2:3], off
        ''')
    c('s_branch L_side')
    c('L_conv:')
    c('@reset')
    for base, slot in ((12, A_K), (16, A_V), (20, A_SH)):
        c(f's_load_dwordx2 s[{base}:{base + 1}], s[0:1], {slot}')
    c(f'''
    s_mov_b32 s14, {NBYTES_SD}
    s_mov_b32 s15, 0x20000
    s_mov_b64 s[18:19], s[14:15]
    s_movk_i32 s22, {D * 8}
    s_mov_b32 s23, s15
    ''')
    ids(c)
    conv_ids(c)
    p0_kv_load(c, 's[12:15]', 's[16:19]', 's[20:23]')
    srd(c, 24, A_SSMK, NBYTES_SD)
    srd(c, 28, A_SSMD, D * 2)
    srd(c, 8, WS, WS_USED)
    srd(c, 48, OUT, NBYTES_SD)
    srd(c, 52, DBG, 256)
    c('s_mov_b32 s59, 0xffff0000')
    stamp_begin(c, ts)
    if OPT.get('mks'):
        c('s_mov_b32 s80, s96')
        c('s_mov_b32 s82, s98')
    c.extend(mark(1))
    p23_ids(c)
    late = p1_k_load(c, 's[24:27]', 's[28:31]')
    srd(c, 44, B_WD, D * F * 2)
    wd_setup(c)
    WDL = OPT.get('wdl', 0)
    if WDL:
        late += wd_loads('s[44:47]')
    else:
        c.extend(sum(wd_loads('s[44:47]'), []))
    for k in range(OPT.get('le', 0)):
        c.extend(late.pop(0))
    p0_kv(c, late)
    go_addr(c, 'v122')
    c.add(poll_load('v123', 'v122', DBGS, '0'))
    c.extend(sum(late, []))
    WDS = OPT.get('wds', 0)
    if WDS < 0:
        c.extend(wd_reads() + wd_stores())
    c.extend(mark(2))
    flag_regs(c, vOOB, vFV)
    c(f'''
    s_lshl_b32 s37, {sSG}, 2
    s_add_u32 s35, s37, {sWAVE}
    s_lshl_b32 s35, s35, 4
    s_add_u32 s35, s35, {sIDX}
    s_mul_i32 s35, s35, {FSP}
    s_add_u32 s35, s35, {F1_OFF}
    s_lshr_b32 s36, {sIDX}, 2
    s_add_u32 s36, s36, s37
    s_mul_i32 s36, s36, {16 * FSP}
    s_add_u32 s36, s36, {F1_OFF}
    ''')
    def setup():
        c(f'''
        v_and_b32 v8, 15, v0
        v_mul_u32_u24 v8, {FSP}, v8
        s_mul_i32 s46, s34, {FSP}
        s_add_u32 s46, s46, {F2_OFF}
        s_add_u32 s41, {sWAVE}, 2
        s_mul_i32 s41, s41, {160 * FSP}
        s_add_u32 s41, s41, s46
        s_sub_u32 s40, s46, {F2_OFF - FD_OFF}
        s_cmp_ge_u32 {sWAVE}, 1
        s_cselect_b32 s46, 0x70000000, s46
        s_cselect_b32 s40, 0x70000000, s40
        s_cselect_b32 s36, 0x70000000, s36
        ''')
        fa_addr(c, 'v138', 'v139')
        fw_addr(c, 'v140')
        f2_addr(c, 'v142')
    work = [lambda: c.extend(wd_reads() if WDS >= 0 else []), lambda: p23_scalars(c), lambda: p1_k(c), lambda: p1_k_frag(c), setup]
    if OPT.get('kl2'):
        work[3:] = work[:2:-1]
    NBF = OPT.get('nbf', 0)
    for f in work[:NBF]:
        f()
    c.extend(poll_check('go_c', 'v123', 'v122', DBGS, '0', 1))
    c('@vm ust')
    c(f'buffer_store_dword {vFV}, {vOOB}, {WSR}, s35 offen{SC}')
    c.extend(mark(3))
    if NBF == 0:
        work[0]()
    if WDS == 0:
        c.extend(wd_stores())
    for f in work[max(NBF, 1):]:
        f()
    if OPT.get('lw', 1):
        c('s_waitcnt lgkmcnt(0)')
    if OPT.get('vw', 0):
        c('s_waitcnt vmcnt(0)')
    c.add(poll_load('v9', 'v8', WSR, 's36'))
    c(f's_cmp_ge_u32 {sWAVE}, 1')
    c('s_cbranch_scc1 L_s1_ok')
    c.extend(poll_check('s1', 'v9', 'v8', WSR, 's36', 1, OPT.get('s1sleep', 0)))
    c('s_waitcnt vmcnt(0)')
    c('s_barrier')
    c.extend(mark(4))
    p1_load_u(c)
    FAP = OPT.get('fap', -1)
    if FAP < 0:
        c.add(poll_load('v139', 'v138', WSR, 's47'))
    fdpost = [Ins(f'buffer_store_dword {vFV}, {vOOB}, {WSR}, s40 offen{SC}')]
    c.extend(wd_stores() if WDS > 0 else fdpost)
    fd_addr(c, 'v128', 'v129')
    FA, FD, FP, WP = OPT.get('fa', 28), OPT.get('fd', 160), OPT.get('fp', 280), OPT.get('wp', 24)
    inj = [(0, mark(5)), (FA, poll_check('fa', 'v139', 'v138', WSR, 's47', 1, 2)), (FD, poll_check('fd_c', 'v129', 'v128', WSR, 's58', 1, 2))]
    if WDS > 0:
        inj.append((WDS, [Ins('@vm wds'), Ins('s_barrier')] + fdpost))
    if OPT.get('mk1') and not OPT.get('mks'):
        inj += [(p, mark(k)) for k, p in ((10, 96), (11, 192), (12, 287))]
    if OPT.get('mk23') == 4:
        inj += [(26 * k + 1, mark(k + 1, True)) for k in range(12)]
    polls = [(FAP, FAP + 8, [poll_load('v139', 'v138', WSR, 's47')])] if FAP >= 0 else []
    polls += [(FD - 40, FD - 30, [poll_load('v129', 'v128', WSR, 's58')])]
    if FP < 288:
        polls.append((FP, 287, [poll_load('v141', 'v140', WSR, 's57')]))
    sj = [(FA + 2, 200, l) for l in p1_load_x()]
    sj += [(FD + 2, 287, l) for l in untag([p3_wload(j) for j in range(WP)])]
    p1_main(c, inj, [polls, sj], [poll_load('v141', 'v140', WSR, 's57')] if FP >= 288 else [])
    fl3 = f'buffer_store_dword {vFV}, {vOOB}, {WSR}, s41 offen{SC}'
    c.extend(poll_check('fw_c', 'v141', 'v140', WSR, 's57', 1, 4, first=fl3))
    G1, G2, GI = OPT.get('g1', 2), OPT.get('g2', 5), OPT.get('gi', 6)
    if OPT.get('mkg'):
        c.extend(mark(1))
    GO2 = OPT.get('go2', 1)
    for g in range(G1):
        c.extend(sum(untag(p2_dma(g)), []))
    c.extend(p23_vectors())
    if OPT.get('mkg'):
        c.extend(mark(2))
    if not GO2:
        c('@vm hst3')
        c(fl3)
    if OPT.get('mkg'):
        c.extend(mark(3))
    c('s_branch L_ring')
    c('L_side:')
    c('@reset')
    srd(c, 12, A_Q, NBYTES_SD)
    srd(c, 16, B_WG, D * F * 2)
    srd(c, 20, B_WU, D * F * 2)
    srd(c, 8, WS, WS_USED)
    srd(c, 48, OUT, NBYTES_SD)
    srd(c, 52, DBG, 256)
    ids(c)
    c('s_mov_b32 s59, 0xffff0000')
    stamp_begin(c, ts)
    flag_regs(c, 'v6', 'v7')
    go_addr(c, 'v122')
    c(f's_cmp_ge_u32 {sSLOT}, 28')
    c('s_cbranch_scc1 L_side2')
    N1 = OPT.get('n1', 3)
    HS = OPT.get('hs', 1)
    N2 = 5 if HS else (40 - 8 * N1) // 4
    c(f'''
    s_sub_u32 s56, s2, 160
    s_sub_u32 s43, {sSLOT}, 20
    s_mov_b32 s7, {sXCD}
    s_mul_i32 s6, s7, {N1}
    ''')
    if HS:
        c('''
        s_and_b32 s58, s7, 1
        s_lshr_b32 s57, s7, 1
        s_sub_u32 s6, s6, s57
        ''')

    def mid1():
        side_w1(c, 's43', 's6', 's7', N1, 0, 1)
        c.extend(poll_check('go_a', 'v123', 'v122', DBGS, '0', 1, 4))
        wg_flag(c, 's56', '')
        c.extend(mark(1))
    W1AT = OPT.get('w1at', 2)
    p0_x(c, 's[12:15]', 's56', lambda k: side_w1_load(c, 's[16:19]', 's[20:23]', 's43', 's6', N1, 0, -1, None) if k == W1AT else None)
    c.add(poll_load('v123', 'v122', DBGS, '0'))
    c(f's_mul_i32 s56, s56, {FSP}')
    c(f's_add_u32 s56, s56, {FX_OFF}')
    if W1AT == 2:
        side_w1_load(c, 's[16:19]', 's[20:23]', 's43', 's6', N1, 0, OPT.get('w1pre', 1), mid1)
    else:
        mid1()
    side_w1(c, 's43', 's6', 's7', N1, 0, 2)
    c('s_branch L_w1_done')
    c('L_side2:')
    c('@reset')
    c('s_waitcnt lgkmcnt(0)')
    c(f'''
    s_sub_u32 s56, s2, 224
    s_lshl_b32 s45, s56, 2
    s_add_u32 s45, s45, {sWAVE}
    s_lshl_b32 s45, s45, 12
    s_add_u32 s45, s45, {FL_OFF}
    s_lshl_b32 s58, s56, 5
    s_cmp_eq_u32 {sWAVE}, 0
    s_cselect_b32 s58, s58, 0x70000000
    s_cmp_lt_u32 s56, 8
    s_cselect_b32 s45, s45, 0x70000000
    v_lshlrev_b32 v14, 4, v0
    v_mov_b32 v200, 0
    v_mov_b32 v201, 0
    v_mov_b32 v202, 0
    v_mov_b32 v203, 0
    ''')
    for k in range(4):
        c(f'buffer_store_dwordx4 v[200:203], v14, {WSR}, s45 offen offset:{1024 * k}{SC}', 'za')
    c(f'''
    s_and_b32 s43, {sXCD}, 1
    s_lshl_b32 s43, s43, 2
    s_add_u32 s43, s43, {sSLOT}
    s_sub_u32 s43, s43, 28
    s_lshr_b32 s7, {sXCD}, 1
    s_mul_i32 s6, s7, {N2}
    s_add_u32 s6, s6, {40 - 4 * N2}
    s_lshl_b32 s57, s7, 1
    s_add_u32 s57, s57, 8
    s_add_u32 s7, s7, 8
    ''')

    def mid2():
        side_w1(c, 's43', 's6', 's57', N2, 1, 1)
        c('@vm za')
        c('s_barrier')
        c(f'buffer_store_dword v7, v6, {DBGS}, s58 offen{SC}')
        c.extend(mark(1))
    side_w1_load(c, 's[16:19]', 's[20:23]', 's43', 's6', N2, 1, OPT.get('w2pre', 2), mid2)
    side_w1(c, 's43', 's6', 's57', N2, 1, 2)
    c('L_w1_done:')
    c('@reset')
    c.add(poll_load('v123', 'v122', DBGS, '0'))
    c(f'''
    s_lshl_b32 s56, s43, 4
    s_add_u32 s56, s56, s7
    s_mul_i32 s56, s56, {FSP}
    s_add_u32 s56, s56, {FW1_OFF}
    ''')
    p23_ids(c)
    p23_scalars(c)
    fw_addr(c, 'v8')
    f2_addr(c, 'v142')
    c(f'''
    v_lshlrev_b32 v1, 4, v0
    v_mul_u32_u24 v13, {FSP}, v0
    s_mov_b32 s47, {FX_OFF}
    ''')
    flag_regs(c, vOOB, vFV)
    c('s_mov_b32 s41, 0x70000000')
    c.extend(poll_check('go_b', 'v123', 'v122', DBGS, '0', 1, 4))
    wg_flag(c, 's56')
    c.extend(mark(2))
    c.extend(p23_vectors())
    fd_addr(c, 'v10', None)
    PZ = OPT.get('pz', 0)
    if PZ:
        c(f's_cmp_lt_u32 {sSLOT}, 28')
        c('s_cbranch_scc1 L_noclr')
        clear_b(c)
        if PZ == 2:
            c('s_waitcnt vmcnt(0)')
        c('L_noclr:')
    CAN = OPT.get('can', 0 if PZ else 1)
    if CAN:
        c(f'''
        s_cmp_lt_u32 {sSLOT}, 28
        s_cbranch_scc1 L_nocan
        s_cmp_lg_u32 {sWAVE}, 0
        s_cbranch_scc1 L_fx2_ok
        s_add_u32 s46, {sXCD}, {OPT.get('rot', 7)}
        s_and_b32 s46, s46, 7
        s_mul_i32 s46, s46, {16 * FSP}
        s_add_u32 s46, s46, {FD_OFF}
        v_and_b32 v15, {CAN - 1}, v0
        v_mul_u32_u24 v15, {FSP}, v15
        ''')
        c.add(poll_load('v11', 'v15', WSR, 's46'))
        c.extend(poll_check('can', 'v11', 'v15', WSR, 's46', 1, 8))
        c.add(poll_load('v14', 'v13', WSR, 's47'))
        c.extend(poll_check('fx2', 'v14', 'v13', WSR, 's47', 1, 8))
        c('s_barrier')
        c('L_nocan:')
    c(f's_cmp_eq_u32 {sWAVE}, 0')
    c('s_cselect_b32 s47, s47, 0x70000000')
    c.add(poll_load('v11', 'v10', WSR, 's58'))
    if not PZ:
        c.add(poll_load('v14', 'v13', WSR, 's47'))
    c.extend(poll_check('fd_s', 'v11', 'v10', WSR, 's58', 1, 8))
    for j in range(WP):
        c.extend(untag([p3_wload(j)])[0])
    c(f's_cmp_lg_u32 {sWAVE}, 0')
    c('s_cbranch_scc1 L_fw_s_ok')
    C2 = OPT.get('can2', 1)
    if not C2:
        c.add(poll_load('v9', 'v8', WSR, 's57'))
    if PZ:
        c(f'v_and_b32 v13, {32 * FSP - 1}, v13')
        c(f's_mov_b32 s47, {FZ_OFF}')
        c.add(poll_load('v14', 'v13', WSR, 's47'))
    c.extend(poll_check('fx_s', 'v14', 'v13', WSR, 's47', 1, 8))
    if C2:
        if C2 == 1:
            c(f's_cmp_lt_u32 {sSLOT}, 28')
            c('s_cbranch_scc1 L_can2_ok')
        c(f'''
        s_add_u32 s46, {sXCD}, {OPT.get('rot', 7)}
        s_and_b32 s46, s46, 7
        s_mul_i32 s46, s46, {16 * FSP}
        s_add_u32 s46, s46, {F2_OFF}
        v_mov_b32 v15, 0
        ''')
        c.add(poll_load('v11', 'v15', WSR, 's46'))
        c.extend(poll_check('can2', 'v11', 'v15', WSR, 's46', 1, 4))
        c.add(poll_load('v9', 'v8', WSR, 's57'))
    c.extend(poll_check('fw_s', 'v9', 'v8', WSR, 's57', 1, 8))
    c('s_barrier')
    c.extend(mark(3))
    for g in range(GI):
        if g == G1:
            c('L_ring:')
            c('@reset')
        if g == 5:
            c('s_barrier')
        if g == G2:
            c.add(poll_load('v11', 'v142', WSR, 's14'))
        for l in p2_dma(g):
            l[-1].tag = f'sg{g}'
            c.extend(l)
    if G2 == GI:
        c.add(poll_load('v11', 'v142', WSR, 's14'))
    if OPT.get('mkg'):
        c.extend(mark(4))
    c.extend(poll_check('s2', 'v11', 'v142', WSR, 's14', 1, OPT.get('s2sleep', 2), first=fl3 if GO2 else ''))
    if GO2:
        c(fl3)
    c('s_barrier')
    c.extend([] if OPT.get('mk1') else mark(7))
    p23_main(c, 's', G2, WP, GI)
    c('L_end:')
    c('@reset')
    stamp_end(c, ts, 0)
    if OPT.get('spin100'):
        c('''
        L_sp100:
        s_memrealtime s[22:23]
        s_waitcnt lgkmcnt(0)
        s_sub_u32 s22, s22, s60
        s_cmp_lt_u32 s22, 10000
        s_cbranch_scc1 L_sp100
        ''')
    c('L_exit:')
    c('s_endpgm')
    c.extend(SLOW)
    c('L_code_end:')
    prb = OPT.get('prb')
    if prb is not None:
        probe(c, (0, 0, 'min'), (0, prb % 16, 'min' if OPT.get('pmin') else 'max'), OPT.get('mult', 10), [(0, 16), (0, 10), (10, 14), (14, 16)][prb // 16], OPT.get('raw'))
    st = {}
    body = text_of(finalize(c.ins, st))
    print(st, file=sys.stderr)
    out = HEADER + DOC
    if OPT.get('cnt') == 2:
        out += '; checks ' + ' '.join(CHECKS) + '\n'
    if prb is not None:
        out += f'; @launch kernel={KN} grid=(256,1,1) block=(256,1,1) lds={LDS_TOTAL}\n'
        out += '; @launch kernel=probe_kernel grid=(1,1,1) block=(64,1,1) lds=0\n'
    else:
        out += f'; @launch grid=(256,1,1) block=(256,1,1) lds={LDS_TOTAL}\n'
    out += f'.amdgcn_target "amdgcn-amd-amdhsa--gfx950"\n.text\n.globl {KN}\n'
    out += body + '\n.section .rodata,"a"\n'
    out += '.p2align 6\n' + desc(KN, 512, 256) + '\n'
    if prb is not None:
        out += '.p2align 6\n' + desc('probe_kernel', 32, 32) + '\n'
    return out


if __name__ == '__main__':
    import argparse
    ap = argparse.ArgumentParser()
    ap.add_argument('-o', default='cdna_kernels/%s.s' % NAME)
    ap.add_argument('--ts', action='store_true')
    ap.add_argument('--opt', nargs='*', default=[])
    a = ap.parse_args()
    opts = {}
    for kv in a.opt:
        k, _, v = kv.partition('=')
        opts[k] = int(v) if v else 1
    open(a.o, 'w').write(build(a.ts, opts))
```

```python
import sys
from asmlib import *

S, D, F = 2048, 640, 1728
NBYTES_SD = S * D * 2
U_OFF = 0
X4_OFF = U_OFF + NBYTES_SD
H4_OFF = X4_OFF + NBYTES_SD
ST_OFF = H4_OFF + NBYTES_SD
W1_OFF = ST_OFF + 65536
WD_OFF = W1_OFF + 16 * 288 * 1024
HH_OFF = WD_OFF + 8 * 56 * 5 * 1024
FL_OFF = HH_OFF + 128 * 57344
FSP = 128
F1_OFF = FL_OFF
FX_OFF = F1_OFF + 640 * FSP
FW1_OFF = FX_OFF + 64 * FSP
FD_OFF = FW1_OFF + 128 * FSP
FZ_OFF = FD_OFF + 160 * FSP
assert FZ_OFF + 32 * FSP <= FL_OFF + 131072
F3_OFF = FL_OFF + 131072
F2_OFF = F3_OFF + 1024 * FSP
assert F2_OFF + 960 * FSP <= F3_OFF + 262144
TS_OFF = F3_OFF + 262144
WS_USED = TS_OFF + 262144

A_Q, A_K, A_V, A_SH, A_SSMK, A_SSMD, B_X, B_WG, B_WU, B_WD, OUT, DBG, WS = [8 * i for i in range(13)]

WSR = 's[8:11]'
sWAVE = 's33'
sXCD, sSLOT = 's4', 's5'
sSG, sIDX = 's6', 's7'
ONES = 0x3f803f80
OUTS, DBGS = 's[48:51]', 's[52:55]'
sP2W, sP2L, sP2T, sP3W = 's92', 's93', 's94', 's95'
sMT, sNI, sMT64, sDC = 's96', 's97', 's98', 's99'
SC = ' sc1'
SPIN = 100000
LDS_TOTAL = 163840

NB1 = 2
BLK_ORDER = [6, 0, 1, 2, 3, 4, 5]


OPT = {}
SLOW = []


def nwb():
    return OPT.get('nwb', 10)


def mark(k, p23=False):
    if not OPT.get('ts') or OPT.get('nomk') or (OPT.get('mk23') and not p23):
        return []
    return [Ins(f's_mem{"" if OPT.get("cyc") else "real"}time s[{60 + 2 * k}:{61 + 2 * k}]')]


def mark1(k):
    return mark(k) if OPT.get('mk1') else []


def w1_slot(bi, ks, m=0):
    if bi < 2:
        return 4 * ks + 2 * bi + m if ks < 20 else 80 + bi
    return 82 + 41 * (bi - 2) + 2 * ks + m


def w1_seq(b, ks, m=0):
    return w1_slot(BLK_ORDER.index(b), ks, m)


def srd(c, base, slot, nbytes):
    c(f's_load_dwordx2 s[{base}:{base + 1}], s[0:1], {slot}')
    c(f's_mov_b32 s{base + 2}, {nbytes}')
    c(f's_mov_b32 s{base + 3}, 0x20000')


def ids(c):
    c(f'v_lshrrev_b32 v1, 6, v0')
    c(f's_and_b32 {sXCD}, s2, 7')
    c(f'v_readfirstlane_b32 {sWAVE}, v1')
    c(f's_lshr_b32 {sSLOT}, s2, 3')
    c(f'v_and_b32 v0, 63, v0')
    if OPT.get('jit'):
        c(f'''
        s_lshl_b32 s70, s2, 2
        s_add_u32 s70, s70, {sWAVE}
        s_add_u32 s70, s70, {OPT['jit'] * 7919}
        s_mul_i32 s70, s70, 0x9e3779b1
        s_lshr_b32 s71, s70, 15
        s_xor_b32 s70, s70, s71
        s_mul_i32 s70, s70, 0x85ebca6b
        s_lshr_b32 s71, s70, 13
        s_xor_b32 s70, s70, s71
        s_mul_i32 s71, s70, 0xc2b2ae35
        s_lshr_b32 s72, s71, 16
        s_xor_b32 s71, s71, s72
        s_and_b32 s70, s70, s71
        ''')


def conv_ids(c):
    c(f'''
    s_lshr_b32 {sSG}, {sXCD}, 2
    s_add_u32 {sSG}, {sSG}, 8
    s_and_b32 {sIDX}, {sXCD}, 3
    s_lshl_b32 {sIDX}, {sIDX}, 2
    s_add_u32 {sIDX}, {sIDX}, {sSLOT}
    s_sub_u32 {sIDX}, {sIDX}, 16
    s_add_u32 s34, {sXCD}, {OPT.get('rot', 7)}
    s_and_b32 s34, s34, 7
    s_cmp_lt_u32 {sSLOT}, 16
    s_cselect_b32 {sSG}, s34, {sSG}
    s_cselect_b32 {sIDX}, {sSLOT}, {sIDX}
    ''')


KR, VR, CF, PP, AC, VU, OG = 8, 30, 48, 56, 66, 74, 84


def p0_kv_load(c, KS, VS, SHS):
    c(f'''
    v_lshrrev_b32 v7, 4, v0
    v_and_b32 v6, 15, v0
    s_lshl_b32 s34, {sIDX}, 2
    s_add_u32 s34, s34, {sWAVE}
    s_mul_i32 s34, s34, {32 * 1280}
    s_lshl_b32 s35, {sSG}, 7
    s_add_u32 s34, s34, s35
    v_mul_u32_u24 v1, {8 * 1280}, v7
    v_lshl_add_u32 v1, v6, 3, v1
    v_add_u32 v1, s34, v1
    v_subrev_u32 v2, 3840, v1
    s_lshl_b32 s35, {sSG}, 9
    v_lshlrev_b32 v3, 5, v6
    s_movk_i32 s36, 5120
    ''')
    if OPT.get('mks'):
        c('s_memrealtime s[96:97]')
        c('s_waitcnt lgkmcnt(0)')
        c('s_memrealtime s[98:99]')
    c(f'buffer_load_dwordx4 {vr(CF, 4)}, v3, {SHS}, s35 offen')
    c(f'buffer_load_dwordx4 {vr(CF + 4, 4)}, v3, {SHS}, s35 offen offset:16')
    for r in range(3):
        c(f'buffer_load_dwordx2 {vr(KR + 2 * r, 2)}, v2, {KS}, 0 offen offset:{1280 * r}')
    for r in range(8):
        c(f'buffer_load_dwordx2 {vr(KR + 6 + 2 * r, 2)}, v1, {KS}, {"s36" if r >= 4 else 0} offen offset:{1280 * (r & 3)}')
    for r in range(8):
        c(f'buffer_load_dwordx2 {vr(VR + 2 * r, 2)}, v1, {VS}, {"s36" if r >= 4 else 0} offen offset:{1280 * (r & 3)}')


def p0_kv(c0, late, st=SC):
    P = PP
    c = c0
    c(f'''
    s_lshl_b32 s35, {sWAVE}, 6
    v_mul_u32_u24 v4, 1040, v6
    v_lshl_add_u32 v4, v7, 4, v4
    v_add_u32 v4, s35, v4
    s_mul_i32 s35, {sWAVE}, {4 * 1040}
    v_lshlrev_b32 v3, 4, v0
    v_add_u32 v5, s35, v3
    s_lshl_b32 s34, {sSG}, 2
    s_add_u32 s34, s34, {sWAVE}
    s_lshl_b32 s34, s34, 16
    s_lshl_b32 s35, {sIDX}, 10
    s_add_u32 s34, s34, s35
    s_mov_b32 s40, 0x05040100
    s_mov_b32 s41, 0x07060302
    ''')
    if U_OFF:
        c(f's_add_u32 s34, s34, {U_OFF}')
    kr = lambda t, dw: KR + 2 * (t + 3) + dw
    c = Code()
    KF = OPT.get('kf', 1)
    A = lambda ch: 144 + 8 * ch if KF else AC
    for part in ((0, 1) if KF else (2,)):
        for ch in range(4):
            dw, hf = ch >> 1, ch & 1
            if part != 1:
                for t in range(-2, 8):
                    c(f'v_perm_b32 v{P + t + 2}, v{kr(t - 1, dw)}, v{kr(t, dw)}, s{40 + hf}')
                for t in range(8):
                    c(f'v_dot2_f32_bf16 v{A(ch) + t}, v{P + t + 2}, v{CF + 2 * ch}, 0')
                for t in range(8):
                    c(f'v_dot2_f32_bf16 v{A(ch) + t}, v{P + t}, v{CF + 2 * ch + 1}, v{A(ch) + t}')
            if part != 0:
                for t in range(8):
                    if hf:
                        c(f'v_and_b32 v{VU + t}, 0xffff0000, v{VR + 2 * t + dw}')
                    else:
                        c(f'v_lshlrev_b32 v{VU + t}, 16, v{VR + 2 * t + dw}')
                for t in range(0, 8, 2):
                    c(f'v_pk_mul_f32 {vr(A(ch) + t, 2)}, {vr(A(ch) + t, 2)}, {vr(VU + t, 2)}')
                for p in range(4):
                    c(f'v_cvt_pk_bf16_f32 v{OG + 4 * ch + p}, v{A(ch) + p}, v{A(ch) + p + 4}')
                c(f'ds_write_b128 v4, {vr(OG + 4 * ch, 4)} offset:{256 * ch}')
    k0 = OPT.get('lk0', 120)
    step = OPT.get('lks', (166 - k0) // max(1, len(late)))
    for k, i in enumerate(c.ins):
        c0.add(i)
        if k == 10:
            c0.extend(mark1(7))
        if k == 34:
            c0.extend(mark1(8))
        if k0 and k >= k0 and (k - k0) % step == 0 and late:
            c0.extend(late.pop(0))
    c = c0
    c0.extend(mark1(9))
    c('s_waitcnt lgkmcnt(0)')
    c('s_barrier')
    for i in range(4):
        c(f'ds_read_b128 {vr(OG + 4 * i, 4)}, v5 offset:{1040 * i}')
    for i in range(4):
        c(f'buffer_store_dwordx4 {vr(OG + 4 * i, 4)}, v3, {WSR}, s34 offen{st}', 'ust')
        if i < 3:
            c('s_add_u32 s34, s34, 16384')


def ln_finish(c, s1, s2, tmp):
    c(f'v_mul_f32 v{s1}, 0xbacccccd, v{s1}')
    c(f'v_mul_f32 v{s2}, 0x3acccccd, v{s2}')
    c(f'v_fma_f32 v{s2}, -v{s1}, v{s1}, v{s2}')
    c(f'v_max_f32 v{s2}, 0, v{s2}')
    c(f'v_add_f32 v{s2}, 0x3727c5ac, v{s2}')
    c(f'v_rsq_f32 v{tmp}, v{s2}')


def p0_x(c, XS, sT, hook, st=SC):
    XR, O, A = 16, 56, 100
    c(f'''
    v_lshrrev_b32 v13, 4, v0
    v_and_b32 v12, 15, v0
    s_lshl_b32 s38, {sT}, 2
    s_add_u32 s38, s38, {sWAVE}
    s_mul_i32 s34, s38, {8 * 1280}
    s_add_u32 s35, s34, 5120
    v_mul_u32_u24 v1, 1280, v13
    v_lshl_add_u32 v1, v12, 4, v1
    v_lshlrev_b32 v4, 4, v0
    ''')

    def clear():
        c(f'''
        s_lshl_b32 s38, s38, 10
        s_add_u32 s38, s38, {F3_OFF}
        v_mov_b32 v96, 0
        v_mov_b32 v97, 0
        v_mov_b32 v98, 0
        v_mov_b32 v99, 0
        ''')
        if not OPT.get('pz', 0):
            c(f'buffer_store_dwordx4 v[96:99], v4, {WSR}, s38 offen{st}')
        PU = OPT.get('pu', 12)
        n = 0 if OPT.get('pz', 0) else (16 - PU) * 160
        if n:
            c(f's_add_u32 s38, s38, {(H4_OFF + PU * 163840 - F3_OFF) & 0xffffffff}')
            for k in range(4):
                c(f'v_mov_b32 v{112 + k}, -1')
        for k in range(0, n, 256):
            if n - k < 256:
                c(f's_cmp_lt_u32 {sT}, {(n - k) // 4}')
                c('s_cselect_b32 s38, s38, 0x70000000')
            c(f'buffer_store_dwordx4 v[112:115], v4, {WSR}, s38 offen{st}')
            c(f's_add_u32 s38, s38, {256 * 1024}')
    ZE = OPT.get('ze', 0)
    if ZE == 1:
        clear()
    for i in range(2):
        for m in range(5):
            c(f'buffer_load_dwordx4 {vr(XR + 20 * i + 4 * m, 4)}, v1, {XS}, s{34 + i} offen offset:{256 * m}')
    c(f'''
    s_mul_i32 s36, {sWAVE}, {8 * 1296}
    v_mul_u32_u24 v2, 1296, v13
    v_lshl_add_u32 v2, v12, 4, v2
    v_add_u32 v2, s36, v2
    s_mul_i32 s36, {sWAVE}, 320
    v_mul_u32_u24 v3, 1296, v12
    v_lshl_add_u32 v3, v13, 3, v3
    v_add_u32 v3, s36, v3
    s_add_u32 s37, s34, {X4_OFF}
    s_and_b32 s36, {sWAVE}, 1
    s_lshl_b32 s36, s36, 7
    s_lshr_b32 s39, {sWAVE}, 1
    s_lshl_b32 s39, s39, 3
    s_add_u32 s36, s36, s39
    v_lshlrev_b32 v5, 4, v13
    v_add_u32 v5, s36, v5
    v_lshlrev_b32 v8, 2, v0
    s_lshl_b32 s36, {sT}, 8
    s_add_u32 s36, s36, {ST_OFF}
    s_cmp_eq_u32 {sWAVE}, 0
    s_cselect_b32 s36, s36, 0x70000000
    s_mov_b32 s40, {ONES}
    ''')
    if ZE == 0:
        clear()
    hook(0)
    for i in range(2):
        for m in range(5):
            c(f'ds_write_b128 v2, {vr(XR + 20 * i + 4 * m, 4)} offset:{1296 * 4 * i + 256 * m}')
    hook(1)
    c('s_waitcnt lgkmcnt(0)')
    c('s_barrier')
    c.extend(mark1(10))
    for i in range(10):
        c(f'ds_read_b64 {vr(O + 4 * i, 2)}, v3 offset:{32 * i}')
        c(f'ds_read_b64 {vr(O + 4 * i + 2, 2)}, v3 offset:{32 * i + 16 * 1296}')
    for i in range(10):
        if i and (i & 3) == 0:
            c('s_add_u32 s37, s37, 4096')
        c(f'buffer_store_dwordx4 {vr(O + 4 * i, 4)}, v4, {WSR}, s37 offen offset:{1024 * (i & 3)}{st}')
        for r in range(4 * i, 4 * i + 4):
            k = A + 2 * (r // 20)
            c(f'v_dot2_f32_bf16 v{k}, v{XR + r}, s40, {"0" if r % 20 == 0 else "v%d" % k}')
            c(f'v_dot2_f32_bf16 v{k + 1}, v{XR + r}, v{XR + r}, {"0" if r % 20 == 0 else "v%d" % (k + 1)}')
    if ZE == 2:
        clear()
    for sh in (8, 4, 2, 1):
        for k in range(4):
            c(f'v_add_f32_dpp v{A + k}, v{A + k}, v{A + k} row_ror:{sh} row_mask:0xf bank_mask:0xf')
    for i in range(2):
        ln_finish(c, A + 2 * i, A + 2 * i + 1, A + 8 + 2 * i)
    for i in range(2):
        c(f'v_mul_f32 v{A + 9 + 2 * i}, v{A + 2 * i}, v{A + 8 + 2 * i}')
        c(f'ds_write_b64 v5, {vr(A + 8 + 2 * i, 2)} offset:{32 * 1296 + 64 * i}')
    c('s_waitcnt lgkmcnt(0)')
    c('s_barrier')
    c(f'ds_read_b32 v10, v8 offset:{32 * 1296}')
    c(f'buffer_store_dword v10, v8, {WSR}, s36 offen{st}')
    c.extend(mark1(11))


UBS = 10368
P1_LDS = 17664 + 4 * UBS + 4 * 2048
LB1 = LDS_TOTAL - P1_LDS
assert LB1 % 256 == 0
KY0 = LB1 + 256
UB0 = LB1 + 17664
EB0 = UB0 + 4 * UBS
KT = 100
cA, cACC, cB, cXQ, cSQ, cT = 16, 80, 176, 208, 224, 240
NBUF = 8


def p1_k_load(c, KKS, DS):
    T = KT
    c(f'''
    s_lshl_b32 s34, {sSG}, 4
    s_add_u32 s34, s34, {sIDX}
    s_lshl_b32 s35, s34, 2
    s_add_u32 s35, s35, {sWAVE}
    s_lshl_b32 s38, s35, 12
    s_lshl_b32 s39, s35, 1
    v_lshlrev_b32 v1, 4, v0
    v_mov_b32 v2, 0
    ''')
    o = [[Ins(f'buffer_load_dwordx4 {vr(T + 4 * i, 4)}, v1, {KKS}, s38 offen offset:{1024 * i}')] for i in range(4)]
    o[0].insert(0, Ins(f'buffer_load_ushort v{T + 16}, v2, {DS}, s39 offen'))
    return o


def p1_k(c):
    T = KT
    c(f'''
    s_lshl_b32 s34, {sSG}, 4
    s_add_u32 s34, s34, {sIDX}
    s_mul_i32 s37, {sWAVE}, 4352
    s_and_b32 s38, {sWAVE}, 1
    s_lshl_b32 s38, s38, 5
    s_add_u32 s37, s37, s38
    s_lshr_b32 s38, {sWAVE}, 1
    s_lshl_b32 s38, s38, 7
    s_add_u32 s37, s37, s38
    s_add_u32 s37, s37, {KY0}
    s_mul_i32 s38, {sWAVE}, {UBS}
    s_add_u32 s38, s38, {UB0}
    s_lshl_b32 s39, {sWAVE}, 11
    s_add_u32 s39, s39, {EB0}
    v_lshrrev_b32 v7, 4, v0
    v_and_b32 v6, 15, v0
    v_bfe_u32 v8, v0, 2, 2
    v_and_b32 v9, 3, v0
    v_lshlrev_b32 v3, 2, v0
    v_add_u32 v10, s38, v3
    v_mov_b32 v3, 0
    v_mov_b32 v4, 0
    v_mov_b32 v5, 0
    ds_write2st64_b32 v10, v2, v2 offset0:0 offset1:5
    ds_write2st64_b32 v10, v2, v2 offset0:10 offset1:15
    v_add_u32 v11, 5248, v10
    ds_write2st64_b32 v11, v2, v2 offset0:0 offset1:5
    ds_write2st64_b32 v11, v2, v2 offset0:10 offset1:15
    v_add_u32 v12, s39, v1
    ds_write_b128 v12, v[2:5]
    s_sub_u32 s42, s37, 32
    v_add_u32 v120, s42, v1
    ds_write_b128 v120, v[2:5]
    v_add_u32 v10, 128, v10
    v_add_u32 v11, 136, v11
    v_sub_u32 v121, v9, v8
    v_lshlrev_b32 v121, 3, v121
    v_lshl_add_u32 v121, v7, 6, v121
    v_add_u32 v121, s37, v121
    ''')
    c(f'''
    v_lshlrev_b32 v14, 1, v7
    v_sub_u32 v14, v6, v14
    v_lshlrev_b32 v14, 3, v14
    v_and_b32 v13, 1, v6
    v_mul_u32_u24 v13, 5256, v13
    v_sub_u32 v14, v14, v13
    s_add_u32 s42, s38, {5248 + 64}
    v_add_u32 v14, s42, v14
    v_add_u32 v13, 16, v0
    v_subrev_u32 v15, 47, v0
    v_cmp_gt_u32 vcc, 48, v0
    v_lshlrev_b32 v2, 5, v6
    v_lshl_add_u32 v2, v7, 3, v2
    v_cndmask_b32 v13, v15, v13, vcc
    v_add_u32 v15, 64, v13
    v_add_u32 v2, s37, v2
    v_writelane_b32 v13, 64, 63
    v_writelane_b32 v15, 0, 63
    v_lshlrev_b32 v13, 4, v13
    v_lshlrev_b32 v15, 4, v15
    v_add_u32 v13, s39, v13
    v_add_u32 v15, s39, v15
    v_mul_u32_u24 v3, 4352, v8
    v_and_b32 v4, 1, v8
    v_lshl_add_u32 v3, v4, 5, v3
    v_lshrrev_b32 v4, 1, v8
    v_lshl_add_u32 v3, v4, 7, v3
    v_lshl_add_u32 v3, v7, 6, v3
    v_lshl_add_u32 v3, v9, 3, v3
    s_lshl_b32 s42, {sWAVE}, 8
    s_add_u32 s42, s42, {KY0}
    v_add_u32 v3, s42, v3
    ''')
    c(f'''
    v_lshlrev_b32 v4, 4, v6
    v_mul_u32_u24 v5, 40960, v7
    v_add_u32 v5, v5, v4
    v_lshl_add_u32 v4, v7, 10, v4
    s_lshl_b32 s43, s34, 14
    s_lshl_b32 s42, {sWAVE}, 8
    s_add_u32 s43, s43, s42
    s_mul_i32 s44, {sWAVE}, 163840
    s_lshl_b32 s42, s34, 8
    s_add_u32 s44, s44, s42
    s_lshl_b32 s45, {sWAVE}, 10
    s_add_u32 s45, s45, {ST_OFF}
    ''')
    if U_OFF:
        c(f's_add_u32 s43, s43, {U_OFF}')


def p1_k_frag(c):
    T = KT
    c(f'''
    v_lshlrev_b32 v{T + 16}, 16, v{T + 16}
    v_lshlrev_b32 v{T + 17}, 16, v{T}
    v_add_f32 v{T + 16}, v{T + 16}, v{T + 17}
    v_cvt_pk_bf16_f32 v{T + 16}, v{T + 16}, v{T + 16}
    s_mov_b64 exec, 1
    v_bfi_b32 v{T}, s59, v{T}, v{T + 16}
    s_mov_b64 exec, -1
    ''')
    for i in range(4):
        c(f'ds_write_b128 v120, {vr(T + 4 * i, 4)} offset:{32 + 1024 * i}')
    for n in range(16):
        c(f'ds_read_b64_tr_b16 {vr(cA + 4 * n, 2)}, v121 offset:{256 * n + 32}')
        c(f'ds_read_b64_tr_b16 {vr(cA + 4 * n + 2, 2)}, v121 offset:{256 * n}')


def p1_load_u(c, ld=SC):
    T = cACC + 64
    for i in range(4):
        c(f'buffer_load_dwordx4 {vr(T + 4 * i, 4)}, v4, {WSR}, s43 offen{ld}')
        if i < 3:
            c('s_add_u32 s43, s43, 4096')


def p1_load_x(ld=SC):
    o = []
    for u in range(4):
        o.append([Ins(f's_add_u32 s43, s45, {4096 * u}'),
                  Ins(f'buffer_load_dwordx4 {vr(cSQ + 4 * u, 4)}, v1, {WSR}, s43 offen{ld}', f'sq{u}')])
        o.append([Ins(f's_add_u32 s43, s44, {X4_OFF + u * 655360}'),
                  Ins(f'buffer_load_dwordx4 {vr(cXQ + 4 * u, 4)}, v5, {WSR}, s43 offen{ld}', f'xq{u}')])
    return o


def p1_main(c, inject, jobs, lastpoll, st=SC):
    T = cACC + 64
    uw = []
    for i in range(4):
        for a in ('v10', 'v11'):
            uw.append(Ins(f'ds_write2st64_b32 {a}, v{T + 4 * i}, v{T + 4 * i + 1} offset0:{i} offset1:{5 + i}'))
            uw.append(Ins(f'ds_write2st64_b32 {a}, v{T + 4 * i + 2}, v{T + 4 * i + 3} offset0:{10 + i} offset1:{15 + i}'))
    c.extend(uw[:4])
    accb = {0: 80, 1: 96, 2: 112, 3: 80, 4: 96, 5: 112, 6: 144, 7: 80}
    acc = lambda t, cp: accb[t] + 4 * cp
    res = lambda cp, w: ar(16 * (w + 1) + 4 * cp + (128 if 4 * (w + 1) + cp >= nwb() else 0), 4)
    chain = lambda t, ws: [(t, cp, w) for cp in range(4) for w in ws]
    steps = []
    for t in range(4):
        steps += chain(t, range(-1, 2 * t - 1)) + chain(t, (2 * t - 1, 2 * t))
    for t, hi in ((4, 8), (6, 12)):
        joint = [x for w in range(7, hi, 2) for cp in range(4) for x in ((t, cp, w), (t, cp, w + 1), (t + 1, cp, w + 1), (t + 1, cp, w))]
        own = chain(t, range(-1, 7))
        steps += own + joint if t == 4 or OPT.get('j6', 0) else joint + own
        if t == 6 and OPT.get('v7', 1):
            steps += [(7, cp, w) for cp in (3, 2, 1, 0) for w in list(range(-1, 7)) + [13, 14]]
        else:
            steps += chain(t + 1, range(-1, 7)) + chain(t + 1, (hi + 1, hi + 2))
    mf = []
    first_use, last_of_tile, first_of_tile = {}, {}, {}
    started = set()
    strm, sidx = [], {}
    for t, cp, w in steps:
        if w < 7:
            first_use.setdefault(w, len(mf))
            breg = res(cp, w)
        else:
            if (t >> 1, cp, w) not in sidx:
                sidx[(t >> 1, cp, w)] = len(strm)
                strm.append([cp, w, len(mf), 0])
            strm[sidx[(t >> 1, cp, w)]][3] = len(mf)
            breg = vr(cB + 4 * (sidx[(t >> 1, cp, w)] % 8), 4)
        a = vr(acc(t, cp), 4)
        first_of_tile.setdefault(t, len(mf))
        last_of_tile[t] = len(mf)
        mf.append(Ins(f'v_mfma_f32_16x16x32_bf16 {a}, {vr(cA + 4 * (2 * t - w), 4)}, {breg}, {a if (t, cp) in started else "0"}'))
        started.add((t, cp))
    off = lambda cp, w: 64 * (w + 1) + 1280 * cp
    rd = lambda cp, w: Ins(f'ds_read_b128 {res(cp, w)}, v14 offset:{off(cp, w)}', f'b{w}')
    pre = {-1: [rd(cp, w) for cp in range(4) for w in (-1, 0)]}
    P = lambda p, l: pre.setdefault(p, []).extend(l)
    seq = []
    for w in range(1, 7):
        if w == 3:
            seq += [(w, i) for i in uw[4:8]]
        seq += [(w, rd(cp, w)) for cp in range(4)]
    p = -1
    for w, i in seq:
        p += 1 if w < 3 else 2
        assert p < first_use[w] - 6
        P(p, [i])
    for i in uw[8:]:
        p += OPT.get('uws', 4)
        P(p, [i])
    for w in range(1, 7, 2):
        P(first_use[w] - 1, [Ins(f'@lg b{w + 1}')])
    for k, (cp, w, f, l) in enumerate(strm):
        p = max(p + 2, strm[k - 8][3] if k >= 8 else 0, f - 28)
        assert p < f - 5, k
        P(p, [Ins(f'ds_read_b128 {vr(cB + 4 * (k % 8), 4)}, v14 offset:{off(cp, w)}', f's{k}')])
        if k % 2 == 1:
            P(strm[k - 1][2] - 1, [Ins(f'@lg s{k}')])
    for p, l in inject:
        P(p, l)
    bg = []

    def B(pos, text, tag=None):
        bg.append((pos, Ins(text, tag)))

    def tile_epi(t):
        p = last_of_tile[t] + 4
        Y = [acc(t, cp) for cp in range(4)]
        if t == 7 and OPT.get('v7', 1):
            B(p - 20, f'v_add_f32 v{Y[3] + 2}, v{Y[3] + 2}, v{Y[2] + 3}')
            B(0, f'v_add_f32 v{Y[3] + 1}, v{Y[3] + 1}, v{Y[2] + 2}')
            B(0, f'v_add_f32 v{Y[2] + 1}, v{Y[2] + 1}, v{Y[3]}')
            B(p - 11, f'v_add_f32 v{Y[3] + 1}, v{Y[3] + 1}, v{Y[1] + 3}')
            B(0, f'ds_write_b128 v15, {vr(Y[3], 4)}')
            B(0, f'ds_read_b128 {vr(cT, 4)}, v12 offset:1024')
            B(0, f'v_add_f32 v{Y[1] + 1}, v{Y[1] + 1}, v{Y[2]}')
            B(0, f'v_add_f32 v{Y[1] + 2}, v{Y[1] + 2}, v{Y[2] + 1}')
            B(p, f'v_add_f32 v{cT + 2}, v{cT + 2}, v{Y[1]}')
            B(p, f'v_add_f32 v{cT + 3}, v{cT + 3}, v{Y[1] + 1}')
            for k, x in enumerate((cT + 1, cT + 2, cT + 3, Y[1] + 2)):
                B(p, f'v_add_f32 v{Y[0] + k}, v{Y[0] + k}, v{x}')
            B(p, f'v_cvt_pk_bf16_f32 v{Y[0]}, v{Y[0]}, v{Y[0] + 1}')
            B(p, f'v_cvt_pk_bf16_f32 v{Y[0] + 1}, v{Y[0] + 2}, v{Y[0] + 3}')
            B(p, f'ds_write_b64 v2, {vr(Y[0], 2)} offset:{512 * t}', f'y{t}')
            return
        B(p, f'v_add_f32 v{Y[3] + 1}, v{Y[3] + 1}, v{Y[1] + 3}')
        B(p, f'v_add_f32 v{Y[3] + 2}, v{Y[3] + 2}, v{Y[2] + 3}')
        B(p, f'v_add_f32 v{Y[3] + 1}, v{Y[3] + 1}, v{Y[2] + 2}')
        B(p, f'ds_write_b128 {"v15" if t & 1 else "v13"}, {vr(Y[3], 4)}')
        B(p, f'ds_read_b128 {vr(cT, 4)}, v12 offset:{1024 * (t & 1)}')
        B(p, f'v_add_f32 v{Y[0] + 1}, v{Y[0] + 1}, v{Y[1]}')
        B(p, f'v_add_f32 v{Y[0] + 2}, v{Y[0] + 2}, v{Y[1] + 1}')
        B(p, f'v_add_f32 v{Y[0] + 3}, v{Y[0] + 3}, v{Y[1] + 2}')
        B(p, f'v_add_f32 v{Y[0] + 2}, v{Y[0] + 2}, v{Y[2]}')
        B(p, f'v_add_f32 v{Y[0] + 3}, v{Y[0] + 3}, v{Y[2] + 1}')
        B(p, f'v_add_f32 v{Y[0] + 3}, v{Y[0] + 3}, v{Y[3]}')
        B(-OPT.get('ed', 4), f'v_add_f32 v{Y[0]}, v{Y[0]}, v{cT + 1}')
        B(p, f'v_add_f32 v{Y[0] + 1}, v{Y[0] + 1}, v{cT + 2}')
        B(p, f'v_add_f32 v{Y[0] + 2}, v{Y[0] + 2}, v{cT + 3}')
        B(p, f'v_cvt_pk_bf16_f32 v{Y[0]}, v{Y[0]}, v{Y[0] + 1}')
        B(p, f'v_cvt_pk_bf16_f32 v{Y[0] + 1}, v{Y[0] + 2}, v{Y[0] + 3}')
        B(p, f'ds_write_b64 v2, {vr(Y[0], 2)} offset:{512 * t}', f'y{t}')

    Tm = cT + 8
    RR = {0: cT + 4, 1: 132, 2: cT + 4, 3: cT + 4}
    HH = {0: 160, 1: 144, 2: 160, 3: 96}

    def tail_r(u):
        B(0, f'ds_read_b64_tr_b16 {vr(RR[u], 2)}, v3 offset:{1024 * u}')
        B(0, f'ds_read_b64_tr_b16 {vr(RR[u] + 2, 2)}, v3 offset:{1024 * u + 32}')

    def tail_x(u, p):
        HX = HH[u]
        for k in range(4):
            x, rs, nm = cXQ + 4 * u + k, cSQ + 4 * u + (k >> 1) * 2, cSQ + 4 * u + (k >> 1) * 2 + 1
            B(p, f'v_lshlrev_b32 v{HX + 4 * k}, 16, v{x}')
            B(0, f'v_and_b32 v{HX + 4 * k + 1}, 0xffff0000, v{x}')
            B(0, f'v_fma_f32 v{HX + 4 * k + 2}, v{HX + 4 * k}, v{rs}, v{nm}')
            B(0, f'v_fma_f32 v{HX + 4 * k + 3}, v{HX + 4 * k + 1}, v{rs}, v{nm}')

    def tail_y(u):
        R, HX = RR[u], HH[u]
        B(0, f's_add_u32 s42, s44, {H4_OFF + u * 655360}')
        for k in range(4):
            B(0, f'v_lshlrev_b32 v{Tm}, 16, v{R + k}')
            B(0, f'v_and_b32 v{Tm + 1}, 0xffff0000, v{R + k}')
            if u == 3:
                B(0, f'v_pk_fma_f32 {vr(HX + 4 * k, 2)}, {vr(HX + 4 * k + 2, 2)}, {vr(Tm, 2)}, {vr(HX + 4 * k, 2)}')
            else:
                B(0, f'v_fmac_f32 v{HX + 4 * k}, v{HX + 4 * k + 2}, v{Tm}')
                B(0, f'v_fmac_f32 v{HX + 4 * k + 1}, v{HX + 4 * k + 3}, v{Tm + 1}')
            B(0, f'v_cvt_pk_bf16_f32 v{cXQ + 4 * u + k}, v{HX + 4 * k}, v{HX + 4 * k + 1}')
        if u == 3 and OPT.get('dly'):
            for t in ('s_mul_i32 s43, s34, 37', 's_and_b32 s43, s43, 63', 's_cmp_gt_u32 s43, 2', 's_cbranch_scc1 L_dly') + (f's_sleep {OPT["dly"]}',) * 2 + ('L_dly:',):
                B(0, t)
        B(0, f'buffer_store_dwordx4 {vr(cXQ + 4 * u, 4)}, v5, {WSR}, s42 offen{st}', f'hst{u}')

    def flag(k):
        if k:
            B(0, f's_add_u32 s46, s46, {160 * FSP}')
        B(0, f'buffer_store_dword v253, v252, {WSR}, s46 offen{st}', f'fl{k}')

    tpos = [17 * k for k in range(len(mf))]
    vm, pre2, where = pace(jobs, tpos, lambda p: OPT.get('sp1', 66) if p < 60 else OPT.get('sp2', 68),
                           avoid={p for p in pre if p > 60}, load={p: sum(i.cost for i in l) for p, l in pre.items()})
    for p, l in pre2.items():
        P(p, l)
    print('p1 prefetch ends at mfma', max(where.values()), file=sys.stderr)
    xq = {i.tag: where[id(i)] for _, _, l in sum(jobs, []) for i in l if i.tag and i.tag[1] == 'q'}
    LAG = OPT.get('xlag', 60)
    for t in range(4):
        tile_epi(t)
    tail_x(0, xq['xq0'] + LAG)
    B(0, '@lg y3')
    B(0, 's_barrier')
    tail_r(0)
    tail_r(1)
    tail_x(1, xq['xq1'] + LAG)
    tail_y(0)
    tail_y(1)
    tile_epi(4)
    XE = OPT.get('xe1', 0)
    if XE:
        tail_x(2, xq['xq2'] + LAG)
    if XE == 2:
        tail_x(3, 0)
    tile_epi(5)
    if XE < 2:
        tail_x(3 if XE else 2, xq['xq2'] + LAG)
    B(OPT.get('b5', 215) if XE < 2 else -6, '@vmlg hst1 y5')
    B(0, 's_barrier')
    tail_r(2)
    flag(0)
    B6 = OPT.get('b6', 0)
    if B6:
        n = len(bg)
        tail_y(2)
        bg[n] = (-6, bg[n][1])
        if not XE:
            tail_x(3, 0)
        tile_epi(6)
        B(B6, '@vm hst2')
        B(0, 's_barrier')
        flag(1)
        tile_epi(7)
        B(0, '@lg y7')
    else:
        n = len(bg)
        if not XE:
            tail_x(3, 0)
        tail_y(2)
        if XE:
            bg[n] = (-6, bg[n][1])
        tile_epi(6)
        tile_epi(7)
        B(0, '@vmlg hst2 y7')
    B(0, 's_barrier')
    tail_r(3)
    for i in lastpoll:
        bg.append((0, i))
    if not B6:
        flag(1)
    tail_y(3)
    for i in mark(6):
        bg.append((0, i))
    out = weave(mf, pre, bg, vm, {k: 4 for k in range(100, 280, OPT.get('x1', 8))})
    pos = {id(i): k for k, i in enumerate(out)}
    at = lambda t: max(j for j in range(len(mf)) if pos[id(mf[j])] < pos[id(next(x for x in out if x.tag == t))])
    for t, u in ((0, 3), (1, 4), (2, 5), (3, 7)):
        assert at(f'y{t}') < first_of_tile[u] - 1, t
    assert at('hst1') < first_of_tile[6] - 1 and pos[id(uw[-1])] < pos[id(next(x for x in out if x.tag == 'y3'))]
    assert at('fl0') > OPT.get('fd', 160) + 1 and at('hst2') > OPT.get('fd', 160) + 1
    print('p1:', ' '.join(f'{t}@{at(t)}' for t in ('y0', 'y3', 'y4', 'hst0', 'hst1', 'y5', 'fl0', 'hst2', 'y6', 'fl1')),
          'after last mfma', len(out) - pos[id(mf[-1])], file=sys.stderr)
    c.extend(out)


WJB = 49152


def side_w1_load(c, WGS, WUS, sNP, sK0, N, two, pre, mid):
    UR = 16 * N * 448 + 32
    R = f'n{two}'
    c(f'''
    v_mul_u32_u24 v116, 147, v0
    v_lshrrev_b32 v116, 11, v116
    v_mul_u32_u24 v117, 14, v116
    v_sub_u32 v117, v0, v117
    v_lshlrev_b32 v117, 4, v117
    v_and_b32 v118, 1, v116
    v_mul_u32_u24 v118, 216, v118
    v_lshrrev_b32 v116, 1, v116
    v_mul_u32_u24 v116, 3456, v116
    v_add3_u32 v116, v116, v117, v118
    s_lshl_b32 s46, {sK0}, 2
    s_add_u32 s46, s46, {sWAVE}
    s_mul_i32 s46, s46, {4 * 3456}
    s_mul_i32 s47, {sNP}, 432
    s_add_u32 s46, s46, s47
    s_mul_i32 s47, {sWAVE}, {4 * 448}
    s_add_u32 s47, s47, {WJB}
    s_mov_b32 exec_hi, 0x00ffffff
    ''')
    for ks in range(N):
        if ks == pre:
            c('s_mov_b64 exec, -1')
            mid()
            c('s_mov_b32 exec_hi, 0x00ffffff')
        if ks == 2 and not two and OPT.get('hs', 1):
            c(f'''
            s_mul_i32 s45, s58, {48 * 3456}
            s_sub_u32 s46, s46, s45
            s_lshr_b32 s45, {sWAVE}, 1
            s_cmp_eq_u32 s45, s58
            s_cselect_b32 s46, s46, 0x70000000
            ''')
        for j in range(2):
            c(f's_add_u32 s45, s46, {(16 * ks + 2 * j) * 3456}')
            for m, srd_ in enumerate((WGS, WUS)):
                c(f's_add_u32 m0, s47, {UR * m + 448 * (16 * ks + 2 * j)}')
                c(f'buffer_load_dwordx4 v116, {srd_}, s45 offen lds', f'{R}w1k{ks}')
    c('s_mov_b64 exec, -1')
    if pre == N:
        mid()
    c.extend(mark1(12))


def side_w1(c, sNP, sK0, sSL, N, two, part=3, st=SC):
    UR = 16 * N * 448 + 32
    R = f'n{two}'
    c0 = c
    if not part & 1:
        c = Code()
    c(f'''
    s_mul_i32 s47, {sWAVE}, {4 * 448}
    s_add_u32 s47, s47, {WJB}
    v_and_b32 v2, 7, v0
    v_mul_u32_u24 v2, 224, v2
    v_bfe_u32 v3, v0, 3, 1
    v_sub_u32 v8, 1, v3
    v_mul_u32_u24 v8, 0x3f80, v8
    v_mov_b32 v9, 0
    v_mul_u32_u24 v3, {UR}, v3
    v_add3_u32 v2, v2, v3, s47
    v_lshrrev_b32 v12, 5, v0
    v_bfe_u32 v13, v0, 2, 2
    v_lshl_add_u32 v3, v12, 3, v13
    v_mul_u32_u24 v3, 448, v3
    v_bfe_u32 v13, v0, 4, 1
    v_mul_u32_u24 v13, {UR}, v13
    v_add_u32 v3, v3, v13
    v_and_b32 v13, 3, v0
    v_lshl_add_u32 v3, v13, 3, v3
    v_and_b32 v11, 15, v0
    v_lshlrev_b32 v11, 4, v11
    v_lshl_add_u32 v11, v12, 8, v11
    v_and_b32 v13, 16, v0
    v_lshl_add_u32 v11, v13, 6, v11
    s_lshl_b32 s36, {sWAVE}, 5
    s_add_u32 s36, s36, {WJB}
    v_add_u32 v3, s36, v3
    v_lshlrev_b32 v4, 4, v0
    s_lshl_b32 s36, {sWAVE}, 9
    v_lshl_add_u32 v5, v0, 1, s36
    v_add_u32 v10, s36, v4
    s_mov_b32 s44, {ONES}
    s_mul_i32 s26, {sNP}, {2 * 288 * 1024}
    s_add_u32 s26, s26, {W1_OFF}
    ''')
    for r in range(4):
        tb = []
        for w in range(4):
            p = 4 * r + w
            o = 288 * (p // 7)
            tb.append((o + w1_seq(p % 7, 0), w1_seq(p % 7, 1) - w1_seq(p % 7, 0), o + w1_seq(p % 7, 20)) if p < 14 else (0x100000, 0, 0x100000))
        for k, x in enumerate((34, 38, 28)):
            c(f's_mov_b32 s{x + r}, {tb[0][k] << 10}')
        for w in range(1, 4):
            c(f's_cmp_eq_u32 {sWAVE}, {w}')
            for k, x in enumerate((34, 38, 28)):
                c(f's_cselect_b32 s{x + r}, {tb[w][k] << 10}, s{x + r}')
        c(f'''
        s_add_u32 s{34 + r}, s{34 + r}, s26
        s_add_u32 s{28 + r}, s{28 + r}, s26
        s_lshl_b32 s42, {sSL}, 6
        s_add_u32 s{28 + r}, s{28 + r}, s42
        ''')
    c = c0
    if not part & 2:
        return
    for ks in range(N):
        FR = 16 + 16 * (ks % 4)
        c(f'''
        @vm {R}w1k{ks}
        ds_write_b64 v2, v[8:9] offset:{448 * 16 * ks + 216}
        s_waitcnt lgkmcnt(0)
        s_barrier
        ''')
        c.extend(mark1(7) if ks == 0 else (mark1(8) if ks == N - 1 else []))
        for r in range(4):
            for h in range(2):
                c(f'ds_read_b64_tr_b16 {vr(FR + 4 * r + 2 * h, 2)}, v3 offset:{448 * (16 * ks + 4 * h) + 128 * r}')
        c(f's_add_u32 s24, {sK0}, {ks}')
        if ks == 2 and not two and OPT.get('hs', 1):
            c('''
            s_mul_i32 s25, s58, 3
            s_sub_u32 s24, s24, s25
            v_xor_b32 v12, s58, v12
            v_lshl_add_u32 v11, v12, 30, v11
            ''')
        c(f'''
        s_and_b32 s25, s24, 1
        s_lshl_b32 s25, s25, 9
        s_lshr_b32 s24, s24, 1
        ''')
        for r in range(4):
            c(f's_mul_i32 s42, s24, s{38 + r}')
            c(f's_add_u32 s42, s42, s25')
            c(f's_add_u32 s42, s42, s{34 + r}')
            c(f'buffer_store_dwordx4 {vr(FR + 4 * r, 4)}, v11, {WSR}, s42 offen{st}')
            for k in range(4):
                c(f'v_dot2_f32_bf16 v{100 + r}, v{FR + 4 * r + k}, s44, {"0" if ks + k == 0 else "v%d" % (100 + r)}')
    for r in range(4):
        c(f'v_mov_b32 v{104 + r}, v{100 + r}')
    for r in range(4):
        c(f'v_permlane32_swap_b32 v{100 + r}, v{104 + r}')
    c('s_mov_b32 vcc_lo, 0')
    c('s_mov_b32 vcc_hi, -1')
    for r in range(4):
        c(f'''
        v_add_f32 v{100 + r}, v{100 + r}, v{104 + r}
        v_cvt_pk_bf16_f32 v{104 + r}, v{100 + r}, v{100 + r}
        v_and_b32 v{104 + r}, 0xffff0000, v{104 + r}
        v_sub_f32 v{104 + r}, v{100 + r}, v{104 + r}
        v_cndmask_b32 v{100 + r}, v{100 + r}, v{104 + r}, vcc
        v_cvt_pk_bf16_f32 v{100 + r}, v{100 + r}, v{100 + r}
        ds_write_b16 v5, v{100 + r} offset:{128 * r}
        ''')
    c(f's_mov_b64 exec, {"0xff" if two else 15}')
    for r in range(4):
        c(f'ds_read_b128 {vr(104 + 4 * r, 4)}, v10 offset:{128 * r}')
    for r in range(4):
        c(f'buffer_store_dwordx4 {vr(104 + 4 * r, 4)}, v4, {WSR}, s{28 + r} offen{st}')
    c('s_mov_b64 exec, -1')
    c.extend(mark1(9))


WDA, WDF = 128, 176


def wd_setup(c):
    assert BLK_ORDER == [6, 0, 1, 2, 3, 4, 5]
    for i in range(5):
        c(f'''
        v_add_u32 v{WDA + 8}, {64 * i}, v0
        v_mul_u32_u24 v{WDA + 9}, 1639, v{WDA + 8}
        v_lshrrev_b32 v{WDA + 9}, 16, v{WDA + 9}
        v_mul_u32_u24 v{WDA + 9}, 640, v{WDA + 9}
        v_lshl_add_u32 v{WDA + i}, v{WDA + 8}, 4, v{WDA + 9}
        ''')
    c(f'''
    s_mul_i32 s100, {sWAVE}, 5120
    s_add_u32 s100, s100, 20480
    v_lshrrev_b32 v{WDA + 8}, 4, v0
    v_bfe_u32 v{WDA + 9}, v0, 2, 2
    v_mul_u32_u24 v{WDA + 5}, 160, v{WDA + 8}
    v_mul_u32_u24 v{WDA + 9}, 640, v{WDA + 9}
    v_add3_u32 v{WDA + 5}, v{WDA + 5}, v{WDA + 9}, s100
    v_and_b32 v{WDA + 9}, 3, v0
    v_lshl_add_u32 v{WDA + 6}, v{WDA + 9}, 3, v{WDA + 5}
    v_lshl_add_u32 v{WDA + 5}, v{WDA + 9}, 4, v{WDA + 5}
    v_mul_u32_u24 v{WDA + 7}, {56 * 5120}, v{WDA + 8}
    v_and_b32 v{WDA + 9}, 15, v0
    v_lshl_add_u32 v{WDA + 7}, v{WDA + 9}, 4, v{WDA + 7}
    s_lshl_b32 s16, s34, 2
    s_add_u32 s16, s16, {sWAVE}
    s_sub_u32 s16, s16, {4 * OPT.get('wg0', 0)}
    s_mul_i32 s17, s16, 2341
    s_lshr_b32 s17, s17, 16
    s_mul_i32 s18, s17, 28
    s_sub_u32 s18, s16, s18
    s_and_b32 s19, s18, 1
    s_lshr_b32 s18, s18, 1
    s_mul_i32 s101, s17, 108
    s_lshl_b32 s20, s18, 3
    s_add_u32 s101, s101, s20
    s_lshl_b32 s101, s101, 1
    s_add_u32 s101, s101, s19
    s_mul_i32 s101, s101, 640
    s_mul_i32 s56, s19, {4 * 56}
    s_lshr_b32 s20, s17, 2
    s_mul_i32 s20, s20, 14
    s_add_u32 s56, s56, s20
    s_bfe_u32 s20, s17, 0x10001
    s_add_u32 s56, s56, s20
    s_and_b32 s20, s18, 14
    s_add_u32 s20, s20, 2
    s_cmp_eq_u32 s20, 14
    s_cselect_b32 s20, 0, s20
    s_add_u32 s56, s56, s20
    s_mul_i32 s56, s56, 20
    s_and_b32 s20, s17, 1
    s_lshl_b32 s20, s20, 1
    s_add_u32 s56, s56, s20
    s_and_b32 s20, s18, 1
    s_add_u32 s56, s56, s20
    s_lshl_b32 s56, s56, 8
    s_add_u32 s56, s56, {WD_OFF}
    s_cmp_eq_u32 s18, 13
    s_cselect_b32 s58, 0, -1
    s_cmp_lt_u32 s16, 448
    s_cselect_b32 s101, s101, 0x70000000
    s_cselect_b32 s56, s56, 0x70000000
    ''')


def wd_loads(WDS):
    return [[Ins(f's_add_u32 m0, s100, {1024 * i}'),
             Ins(f'buffer_load_dwordx4 v{WDA + i}, {WDS}, s101 offen lds', 'wdl')] for i in range(5)]


def wd_reads():
    c = Code()
    c('@vm wdl')
    for b in range(5):
        for h in range(2):
            if b < 4:
                c(f'ds_read_b64_tr_b16 {vr(WDF + 4 * b + 2 * h, 2)}, v{WDA + 5} offset:{2560 * h + 64 * (b >> 1) + 8 * (b & 1)}')
            else:
                c(f'ds_read_b64_tr_b16 {vr(WDF + 4 * b + 2 * h, 2)}, v{WDA + 6} offset:{2560 * h + 128}')
    for b in range(5):
        c(f'v_and_b32 v{WDF + 4 * b + 2}, s58, v{WDF + 4 * b + 2}')
        c(f'v_and_b32 v{WDF + 4 * b + 3}, s58, v{WDF + 4 * b + 3}')
    return c.ins


def wd_stores(st=SC):
    c = Code()
    for b in range(5):
        if b == 4:
            c('s_add_u32 s56, s56, 4096')
        c(f'buffer_store_dwordx4 {vr(WDF + 4 * b, 4)}, v{WDA + 7}, {WSR}, s56 offen offset:{1024 * (b & 3)}{st}', 'wds')
    return c.ins


def poll_load(vval, vaddr, srd_, soff):
    return Ins(f'buffer_load_dword {vval}, {vaddr}, {srd_}, {soff} offen{SC}')


CHECKS = []


def poll_check(name, vval, vaddr, srd_, soff, need, sleep=None, first='', more=()):
    sleep = OPT.get('sl_' + name, sleep)
    if sleep:
        sleep = min(sleep, OPT.get('slmax', 0))
    comb = f'v_min3_u32 {vval}, {vval}, {more[0][0]}, {more[1][0]}' if more else ''
    if name not in ('go_a', 'go_b', 'fx2'):
        CHECKS.append(name)
    cc = Code()
    cc(f'''
    L_{name}_slow:
    @reset
    {f's_or_b32 s82, s82, {1 << (len(CHECKS) - 1)}' if OPT.get('cnt') == 2 and name in CHECKS else ''}
    s_mov_b32 s32, {SPIN}
    L_{name}_spin:
    buffer_load_dword {vval}, {vaddr}, {srd_}, {soff} offen{SC}
    ''')
    for v, a in more:
        cc(f'buffer_load_dword {v}, {a}, {srd_}, {soff} offen{SC}')
    cc(f'''
    s_waitcnt vmcnt(0)
    {comb}
    v_cmp_gt_u32 vcc, {need}, {vval}
    s_nop 0
    s_cbranch_vccz L_{name}_ok
    ''')
    if first:
        cc(f'''
        s_cmp_lg_u32 s32, {SPIN}
        s_cbranch_scc1 L_{name}_again
        {first}
        L_{name}_again:
        ''')
    cc(f'''
    {f's_or_b32 s82, s82, {1 << (len(CHECKS) + 15)}' if OPT.get('cnt') == 2 and name in CHECKS else ''}
    {('s_sleep %d' % sleep) if sleep else ''}
    s_sub_u32 s32, s32, 1
    s_cbranch_scc0 L_{name}_spin
    s_branch L_{name}_ok
    ''')
    SLOW.extend(cc.ins)
    return ([Ins(comb)] if more else []) + [Ins(f'v_cmp_gt_u32 vcc, {need}, {vval}'), Ins('s_nop 0'), Ins(f's_cbranch_vccnz L_{name}_slow'), Ins(f'L_{name}_ok:')]


def flag_regs(c, voob, vone):
    c(f'v_mov_b32 {voob}, 0x80000000')
    c(f'v_mov_b32 {vone}, 1')
    c(f'v_writelane_b32 {voob}, 0, 0')


RING = 9
gHF, gMF, gACC, gT = 8, 168, 172, 236
NHB = 33
vOOB, vFV, vPA, vPV = 'v252', 'v253', 'v254', 'v255'


def p23_ids(c):
    c(f'''
    s_lshr_b32 s34, {sSLOT}, 2
    s_lshl_b32 s34, s34, 2
    s_lshr_b32 s34, {[0x01234567, 0x76543210, 0x54301267, 0x35401267][OPT.get('map', 0)]}, s34
    s_and_b32 s34, s34, 7
    s_and_b32 s35, {sSLOT}, 3
    s_and_b32 s36, {sXCD}, 1
    s_lshr_b32 s37, {sXCD}, 1
    s_lshl_b32 {sMT}, s34, 1
    s_add_u32 {sMT}, {sMT}, s36
    s_lshl_b32 {sNI}, s37, 2
    s_add_u32 {sNI}, {sNI}, s35
    s_lshl_b32 {sMT64}, {sMT}, 1
    s_and_b32 s36, s37, 1
    s_add_u32 {sMT64}, {sMT64}, s36
    s_and_b32 {sDC}, {sXCD}, 4
    s_add_u32 {sDC}, {sDC}, s35
    s_mul_i32 {sP2W}, {sNI}, {288 * 1024}
    s_lshl_b32 {sP2L}, {sWAVE}, 12
    s_add_u32 {sP2W}, {sP2W}, {sP2L}
    s_add_u32 {sP2W}, {sP2W}, {W1_OFF}
    s_mul_i32 {sP3W}, {sDC}, 56
    s_mul_i32 s35, {sWAVE}, 14
    s_add_u32 {sP3W}, {sP3W}, s35
    s_mul_i32 {sP3W}, {sP3W}, 5120
    s_add_u32 {sP3W}, {sP3W}, {WD_OFF}
    ''')


def fa_addr(c, va, t1):
    c(f'''
    v_and_b32 {t1}, 3, v0
    v_and_b32 {va}, 12, v0
    v_lshl_add_u32 {va}, {va}, 2, {t1}
    v_mul_u32_u24 {va}, {FSP}, {va}
    s_mul_i32 s47, {sWAVE}, {4 * FSP}
    s_add_u32 s47, s47, {FX_OFF}
    ''')


def fw_addr(c, va):
    c(f'''
    v_min_u32 {va}, 11, v0
    v_mul_u32_u24 {va}, {FSP}, {va}
    s_lshr_b32 s57, {sNI}, 1
    s_mul_i32 s57, s57, {16 * FSP}
    s_add_u32 s57, s57, {FW1_OFF}
    ''')


def fd_addr(c, va, t):
    c(f'''
    s_mul_i32 s58, {sWAVE}, 28
    s_add_u32 s58, s58, {OPT.get('wg0', 0)}
    v_min_u32 {va}, 27, v0
    v_add_u32 {va}, s58, {va}
    ''')
    if OPT.get('pz', 0) and t:
        c(f'''
        v_add_u32 {t}, 128, v0
        v_cmp_gt_u32 vcc, 32, v0
        v_cndmask_b32 {va}, {t}, {va}, vcc
        ''')
    c(f'v_mul_u32_u24 {va}, {FSP}, {va}')
    c(f's_mov_b32 s58, {FD_OFF}')


def clear_b(c, st=SC):
    PU = OPT.get('pu', 12)
    n = (16 - PU) * 160 // 128
    c(f'''
    s_sub_u32 s46, s2, 224
    s_lshl_b32 s44, s46, 2
    s_add_u32 s44, s44, {sWAVE}
    s_mul_i32 s45, s44, {n * 1024}
    s_add_u32 s45, s45, {H4_OFF + PU * 163840}
    s_lshl_b32 s44, s44, 11
    s_add_u32 s44, s44, {F3_OFF}
    s_mul_i32 s46, s46, {FSP}
    s_add_u32 s46, s46, {FZ_OFF}
    s_cmp_eq_u32 {sWAVE}, 0
    s_cselect_b32 s46, s46, 0x70000000
    ''')
    for k in range(4):
        c(f'v_mov_b32 v{16 + k}, -1')
    for k in range(2):
        c(f'buffer_store_dwordx4 v[200:203], v1, {WSR}, s44 offen offset:{1024 * k}{st}')
    for k in range(n):
        if k and (k & 3) == 0:
            c('s_add_u32 s45, s45, 4096')
        c(f'buffer_store_dwordx4 v[16:19], v1, {WSR}, s45 offen offset:{1024 * (k & 3)}{st}')
    c('s_waitcnt vmcnt(0)')
    c('s_barrier')
    c(f'buffer_store_dword {vFV}, {vOOB}, {WSR}, s46 offen{st}')


def f2_addr(c, va):
    c(f'''
    s_lshl_b32 s39, {sWAVE}, 6
    v_add_u32 {va}, s39, v0
    v_min_u32 {va}, 159, {va}
    v_mul_u32_u24 {va}, {FSP}, {va}
    ''')


def p2_dma(g, base=sP2W, every=False):
    o = []
    for k in range(4):
        l = [Ins(f's_add_u32 m0, {sP2L}, {(g % RING) * 16384}')] if k == 0 or (every and g >= 12) else []
        if k == 0:
            l.append(Ins(f's_add_u32 {sP2T}, {base}, {g * 16384}'))
        l.append(Ins(f'buffer_load_dwordx4 v1, {WSR}, {sP2T} offen offset:{1024 * k}{SC} lds', f'g{g}'))
        o.append(l)
    return o


def wfrag(j):
    n = 64 - nwb()
    if j < n:
        return ar(4 * (nwb() + j), 4)
    if j < n + 2:
        return vr(244 + 4 * (j - n), 4)
    return ar(4 * (j - n - 2), 4)


def p3_wload(j, R=''):
    o = []
    if j < 60:
        if j and (j & 3) == 0:
            o.append(Ins(f's_add_u32 {sP3W}, {sP3W}, 4096'))
        o.append(Ins(f'buffer_load_dwordx4 {wfrag(j)}, v1, {WSR}, {sP3W} offen offset:{1024 * (j & 3)}{SC}', f'{R}wd{j}'))
    else:
        k = j - 60
        if k and (k & 3) == 0:
            o.append(Ins(f's_add_u32 {sWL}, {sWL}, 4096'))
        if (k & 3) == 0:
            o.append(Ins(f's_add_u32 m0, {sSTG}, {4096 * (k >> 2)}'))
        o.append(Ins(f'buffer_load_dwordx4 v1, {WSR}, {sWL} offen offset:{1024 * (k & 3)}{SC} lds', f'{R}wl'))
    return o


sH, sHHS, sF3, sF3P, sF3Q, sHR, sHB, sRES, sRES4, sOUT, sF2P, sSTG, sWL = 's16', 's17', 's18', 's19', 's20', 21, 's25', 's26', 's27', 's28', 's29', 's30', 's31'


def p23_scalars(c):
    t, u = 's12', 's13'
    c(f'''
    s_lshl_b32 {u}, {sMT}, 2
    s_add_u32 {u}, {u}, {sWAVE}
    s_mul_i32 {sH}, {u}, 40960
    s_add_u32 {sH}, {sH}, {H4_OFF}
    s_mul_i32 {sHHS}, {u}, {2 * 57344}
    s_lshr_b32 {t}, {sNI}, 2
    s_mul_i32 {t}, {t}, {56 * 256}
    s_add_u32 {sHHS}, {sHHS}, {t}
    s_and_b32 {t}, {sNI}, 3
    s_lshl_b32 {t}, {t}, 9
    s_add_u32 {sHHS}, {sHHS}, {t}
    s_add_u32 {sHHS}, {sHHS}, {HH_OFF}
    s_mul_i32 {sF3P}, {u}, {4 * FSP}
    s_add_u32 {sF3P}, {sF3P}, {F3_OFF}
    s_mul_i32 {sF3Q}, {sMT}, {16 * FSP}
    s_mul_i32 {sF3}, {sNI}, {FSP}
    s_add_u32 {sF3}, {sF3}, {sF3Q}
    s_add_u32 {sF3}, {sF3}, {F3_OFF}
    s_add_u32 {sF3Q}, {sF3Q}, {F3_OFF + 3 * 256 * FSP}
    s_cmp_eq_u32 {sWAVE}, 0
    s_cselect_b32 {sF3}, {sF3}, 0x70000000
    s_lshl_b32 {u}, {sMT64}, 2
    s_add_u32 {u}, {u}, {sWAVE}
    s_mul_i32 {sOUT}, {u}, {16 * 1280}
    s_mul_i32 {t}, {sDC}, 160
    s_add_u32 {sOUT}, {sOUT}, {t}
    s_mul_i32 {sHB}, {u}, 57344
    s_add_u32 {sHB}, {sHB}, {HH_OFF + 48 * 256}
    s_lshr_b32 {sRES}, {u}, 1
    s_mul_i32 {sRES}, {sRES}, 40960
    s_and_b32 {t}, {sWAVE}, 1
    s_lshl_b32 {t}, {t}, 3
    s_add_u32 {sRES}, {sRES}, {t}
    s_mul_i32 {t}, {sDC}, {20 * 256}
    s_add_u32 {sRES}, {sRES}, {t}
    s_add_u32 {sRES}, {sRES}, {H4_OFF}
    s_add_u32 {sRES4}, {sRES}, 4096
    s_sub_u32 {sF2P}, {sMT}, 10
    s_cmp_lt_u32 {sMT}, 12
    s_cselect_b32 {sF2P}, 1, {sF2P}
    s_cmp_lt_u32 {sMT}, 8
    s_cselect_b32 {sF2P}, 0, {sF2P}
    s_mul_i32 {sF2P}, {sF2P}, {160 * FSP}
    s_add_u32 {sF2P}, {sF2P}, {F2_OFF}
    s_cmp_lt_u32 {sMT}, {OPT.get('pu', 12)}
    s_cselect_b32 s14, {sF2P}, {F2_OFF}
    s_cselect_b32 s15, 1, 0
    s_mov_b32 s3, {sH}
    s_mul_i32 {sSTG}, {sWAVE}, 10240
    s_add_u32 {sWL}, {sP3W}, {60 * 1024}
    s_mul_i32 {u}, {sMT64}, {4 * 57344}
    s_mul_i32 {t}, {sWAVE}, {56 * 256}
    s_add_u32 {u}, {u}, {t}
    s_add_u32 {u}, {u}, {HH_OFF}
    ''')
    for r in range(4):
        c(f'''
        s_add_u32 {t}, {sWAVE}, {r + 1}
        s_and_b32 {t}, {t}, 3
        s_mul_i32 s{sHR + r}, {t}, 57344
        s_add_u32 s{sHR + r}, s{sHR + r}, {u}
        ''')
    c(f's_movk_i32 s13, {OPT.get("tries", 4)}')
    for o, r in (('nowd', [sP3W, sWL]), ('nog', [sP2W]), ('nohh', [f's{sHR + r}' for r in range(4)] + [sHB]), ('noh', [sH])):
        if OPT.get(o):
            for x in r:
                c(f's_mov_b32 {x}, 0x70000000')


def p23_vectors():
    c = Code()
    t = gT
    c(f'''
    v_add_u32 v4, 0x10000, v1
    v_add_u32 v5, 0x20000, v1
    v_bfe_u32 v2, v0, 4, 1
    v_mul_u32_u24 v2, 57344, v2
    v_lshrrev_b32 v{t}, 5, v0
    v_lshl_add_u32 v2, v{t}, 8, v2
    v_lshrrev_b32 v3, 2, v0
    v_lshlrev_b32 v3, 6, v3
    v_and_b32 v7, 3, v0
    v_lshl_add_u32 v3, v7, 3, v3
    v_and_b32 v7, 15, v0
    v_lshlrev_b32 v7, 4, v7
    v_add_u32 v2, v2, v7
    v_lshrrev_b32 v{t}, 4, v0
    v_lshl_add_u32 v6, v{t}, 9, v7
    v_lshl_add_u32 v7, v{t}, 8, v7
    v_and_b32 {vPA}, 3, v0
    v_mul_u32_u24 {vPA}, {FSP}, {vPA}
    ''')
    return c.ins


def p23_main(c, R, pre_groups, wpre, issued=None):
    ld = st = SC
    O = lambda k, d: OPT.get(R + k, OPT.get(k, d))
    HPRE = O('hpre', 14)
    nacc, NWB = 3, nwb()
    accof = lambda bi: gACC + 16 * (bi % nacc)
    LA = O('la', 6)
    GR = O('gram', 1)
    units = [(-1, 0, 0)] if GR else []
    for kp in range(10):
        units += [(0, kp, 0), (0, kp, 1)] + ([(-1, kp + 1, 0)] if GR and kp < 9 else []) + [(1, kp, 0), (1, kp, 1)]
    N1U = len(units)
    E1 = 4 * N1U
    blk = lambda bi: [(bi, kp, m) for kp in range(10) for m in range(2)] + [(bi, 10, 0)]
    units += blk(2)[:LA] + [(0, 10, 0), (1, 10, 0)] + blk(2)[LA:]
    for bi in range(3, 7):
        units += blk(bi)
    up = {x: 4 * k for k, x in enumerate(units)}
    slots = lambda x: [] if x[0] < 0 else ([w1_slot(x[0], 2 * x[1] + j, x[2]) for j in range(2)] if x[1] < 10 else [w1_slot(x[0], 20)])
    gRES = 220
    home = {80: vr(gRES, 4), 81: vr(gRES + 4, 4)}
    runits = units[:N1U] + [(0, 10, 0), (1, 10, 0)] + [x for x in units[N1U:] if x[0] > 1]
    wbuf, rpos, lastuse, holder = dict(home), {}, {}, {}
    k, prev = 0, -2
    for x in runits:
        for s in slots(x):
            lastuse[s] = up[x] + 3
            want = prev + 2
            if s not in home:
                wbuf[s] = ar(4 * (k % NWB), 4)
                want = max(want if prev >= 0 else -2, lastuse[holder[k % NWB]] + 1 if k >= NWB else -2)
                holder[k % NWB] = s
                k += 1
            rpos[s] = prev = want
            assert want < up[x] - (5 if up[x] > 8 else 0), (x, want)
    rpos = {s: max(p, -1) for s, p in rpos.items()}
    mf, last_of_blk, first_of_blk, started = [], {}, {}, set()
    half = lambda q, j: vr(int(REG_RE.match(q).group(3)) + 2 * j, 2, q[0])
    ga = lambda j, t: gACC + 32 + 8 * (j & 1) + 4 * t

    def gram(j):
        o = []
        for t in range(2):
            for n in range(2):
                h = vr(gHF + 16 * j + 8 * n + 4 * t, 4)
                o.append(f'v_mfma_f32_16x16x32_bf16 {vr(ga(j, t), 4)}, {h}, {h}, {vr(ga(j, t), 4) if n else (vr(ga(j - 1, t), 4) if j else "0")}')
        return o
    for x in units:
        bi, kp, m = x
        if bi < 0:
            mf += [Ins(t) for t in gram(kp)]
            continue
        first_of_blk.setdefault(bi, len(mf))
        for t, j in ((m, 0), (m, 1), (1 - m, 1), (1 - m, 0)):
            if kp < 10:
                a = vr(accof(bi) + 8 * m + 4 * t, 4)
                mf.append(Ins(f'v_mfma_f32_16x16x32_bf16 {a}, {wbuf[slots(x)[j]]}, {vr(gHF + 16 * kp + 8 * j + 4 * t, 4)}, {a if (bi, m, t) in started else "0"}'))
                started.add((bi, m, t))
            else:
                a = vr(accof(bi) + 8 * t + 4 * j, 4)
                mf.append(Ins(f'v_mfma_f32_16x16x16_bf16 {a}, {half(wbuf[slots(x)[0]], t)}, {vr(gMF + 2 * j, 2)}, {a}'))
        last_of_blk[bi] = len(mf) - 1
    N2 = len(mf)
    pre = {}
    P = lambda pos, i: pre.setdefault(pos, []).append(i)

    def hload(k):
        o = []
        if k and (k & 3) == 0:
            o.append(Ins(f's_add_u32 {sH}, {sH}, 4096'))
        o.append(Ins(f'buffer_load_dwordx4 {vr(gHF + 4 * k, 4)}, v6, {WSR}, {sH} offen offset:{hoff(k)}{ld}', f'{R}h{k}'))
        return o
    hoff = lambda k: 2048 * ((k >> 1) & 1) + 256 * (k & 1)

    def dma(g):
        ll = p2_dma(g)
        for l in ll:
            l[-1].tag = f'{R}g{g}'
        return ll
    grp = lambda g: range(16 * g, min(16 * g + 16, 287))
    first_rd = lambda g: min(rpos[s] for s in grp(g))
    bars = sorted({first_rd(min(pre_groups, 3)) - 1} | {first_rd(g) - 1 for g in (5, 7, 9, 12, 14, 16)})
    GPRE = issued or pre_groups
    gjobs = []
    for g in range(pre_groups, 18):
        e = -1 if g < RING else min(b for b in bars if b >= max(lastuse[s] for s in grp(g - RING))) + 2
        cert = max(b for b in bars if b <= first_rd(g))
        if g >= GPRE:
            assert e + 20 < cert, g
            for l in dma(g):
                gjobs.append((e, cert - 4, l))
        if not any(i.mn == '@vm' for i in pre.get(cert, [])):
            P(cert, Ins(f'@vm {R}g{max(g2 for g2 in range(g, 18) if max(b for b in bars if b <= first_rd(g2)) == cert)}'))
    for b in bars:
        P(b, Ins('s_barrier'))
    for x in runits:
        for s in slots(x):
            off = (s % (16 * RING)) * 1024
            if x[1] == 10:
                P(rpos[s] - 2, Ins(f'v_add_u32 v{gT + 6}, {off}, v3'))
                for m in range(2):
                    P(rpos[s], Ins(f'ds_read_b64_tr_b16 {half(wbuf[s], m)}, v{gT + 6} offset:{32 * m}', f'{R}w{s}'))
            else:
                P(rpos[s], Ins(f'ds_read_b128 {wbuf[s]}, {["v1", "v4", "v5"][off >> 16]} offset:{off & 0xffff}', f'{R}w{s}'))
    LG = O('lgn', 2)
    wunits = [x for x in units if x[0] >= 0]
    for k in range(0, len(wunits), LG):
        s = max((s for x in wunits[k:k + LG] for s in slots(x)), key=lambda s_: (rpos[s_], s_))
        P(max(up[wunits[k]] - 2, -1), Ins(f'@lg {R}w{s}'))
    DB = 4
    sq = lambda j, k: gT + 2 * (j & 1) + k
    dpos = lambda j: (-1, 5)[j] if j < 2 else 16 * j - 19
    swaps = lambda j: [f'v_swap_b32 v{x}, v{x + 2}' for x in (gHF + 16 * j + 8 * (k >> 1) + 2 + (k & 1) for k in range(4))]
    if GR:
        gp = lambda j: up[(-1, j, 0)]
        dpos = lambda j: (-1, 4)[j] if j < 2 else gp(j) - O('gd', 15)
        chk = lambda j: f'v_cmp_u_f32 vcc, v{ga(j, 0)}, v{ga(j, 1)}'
    else:
        chk = lambda j: f'v_cmp_u_f32 vcc, v{sq(j, 0)}, v{sq(j, 1)}'

    def dots(j):
        o = [f'v_mov_b32 v{sq(j, k)}, {"0" if j == 0 else "v%d" % sq(j - 1, k)}' for k in range(2)]
        return o + [f'v_dot2_f32_bf16 v{sq(j, (r >> 1) & 1)}, v{gHF + 16 * j + r}, v{gHF + 16 * j + r}, v{sq(j, (r >> 1) & 1)}' for r in range(16)]
    cc = Code()
    for j in range(10):
        p = dpos(j)
        P(p, Ins(f'@vm {R}h{4 * j + 3}'))
        if GR:
            for k, t in enumerate(swaps(j)):
                P(-1 if j == 0 else (p + 1 + (0, 2, 4, 5)[k] if j == 1 else gp(j) - ((14, 11, 7, 3) if O('gd', 15) == 15 else (11, 7, 5, 3))[k]), Ins(t))
            q = gp(j) + (8 if j else 3)
            P(q, Ins(chk(j)))
            for t in (['s_nop 0'] if j == 0 else []) + [f's_cbranch_vccnz L_hv{j}', f'L_hok{j}:']:
                P(q + 3 if j else q, Ins(t))
        else:
            for t in dots(j):
                P(p, Ins(t))
            P(p + 1 if j else p, Ins(chk(j)))
            for t in (['s_nop 0'] if j == 0 else []) + [f's_cbranch_vccnz L_hv{j}', f'L_hok{j}:']:
                P(p + 3 if j else p, Ins(t))
        cc(f'''
        L_hv{j}:
        s_cmp_eq_u32 s15, 1
        s_cbranch_scc1 L_hok{j}
        s_movk_i32 s14, {j}
        {'s_add_u32 s82, s14, 1' if OPT.get('cnt') == 1 else ''}
        s_sub_u32 s13, s13, 1
        s_cbranch_scc1 L_hwait
        L_hl{j}:
        s_add_u32 s12, s3, {4096 * j}
        ''')
        for k in range(4):
            cc(f'buffer_load_dwordx4 {vr(gHF + 16 * j + 4 * k, 4)}, v6, {WSR}, s12 offen offset:{hoff(k)}{ld}')
        cc('s_waitcnt vmcnt(0)')
        for t in swaps(j) + gram(j) if GR else dots(j):
            cc(t)
        cc(f'''
        {chk(j)}
        s_cmp_eq_u32 s15, 2
        s_cbranch_scc1 L_hok{j}
        s_cbranch_vccnz L_hv{j}
        s_branch L_hok{j}
        ''')
    T = 228
    cc(f'''
    L_hwait:
    @reset
    {'s_movk_i32 s82, 11' if OPT.get('cnt') == 1 else ''}
    v_mul_u32_u24 v{T}, {FSP}, v0
    v_add_u32 v{T + 1}, {64 * FSP}, v{T}
    v_add_u32 v{T + 2}, {96 * FSP}, v{T}
    s_branch L_hspin_slow
    L_hspin_ok:
    s_mov_b32 s15, 2
    ''')
    poll_check('hspin', f'v{T + 3}', f'v{T}', WSR, sF2P, 1, 2, more=((f'v{T + 4}', f'v{T + 1}'), (f'v{T + 5}', f'v{T + 2}')))
    for j in range(9):
        cc(f's_cmp_eq_u32 s14, {j}')
        cc(f's_cbranch_scc1 L_hl{j}')
    cc('s_branch L_hl9')
    SLOW.extend(cc.ins)
    for j in range(0 if GR else 10):
        for k in range(4):
            i = Ins(swaps(j)[k])
            if j == 1:
                pre.setdefault(9 + 2 * k, []).insert(0, i)
            else:
                P(16 * j - 13 + 4 * k if j else -1, i)
    quads = list(range(140, 172, 4)) + list(range(204, 236, 4))[:7] + [188, 192, 196, 200, 232]
    acc3 = lambda r, b: quads[5 * r + b]
    pairs = [(r, k) for k in (0, 2, 4) for r in range(4)] + [(r, k) for k in (6, 8) for r in range(3)]
    pairs += [[(0, 10), (3, 6), (1, 10), (3, 8), (2, 10), (3, 10)], [(0, 10), (3, 6), (1, 10), (2, 10), (3, 8), (3, 10)],
              [(0, 10), (1, 10), (2, 10), (3, 6), (3, 8), (3, 10)]][O('ord', 2)]
    pairs += [(4, k) for k in (0, 2, 4, 6)]
    seq3 = lorder = [(r, k + j) for r, k in pairs for j in range(2)]
    usepos = {x: N2 + 5 * (i & ~1) for i, x in enumerate(seq3)}
    if O('tl', 1):
        usepos[(4, 6)] = usepos[(4, 7)] = usepos[(4, 4)] + 2
    free_at = {i: up[(6, i >> 2, 1)] + 3 for i in range(NHB)}
    hbuf = {}
    CP1 = first_of_blk[6] + O('cp1', 5)
    CP2 = N2 + O('cp2', 65)
    CP3 = N2 + O('cp3', 136)
    CP4 = N2 + O('cp4', 202)
    hjobs, rjobs = [], []
    RE = max(up[(1, 10, 0)] + 4, min(b for b in bars if b > (gp(9) + 11 if GR else dpos(9) + 3)) + 1)
    for b in range(5):
        if b < 4:
            i = Ins(f'buffer_load_dwordx2 {vr(gRES + 2 * b, 2)}, v6, {WSR}, {sRES} offen offset:{2048 * (b >> 1) + 256 * (b & 1)}{ld}')
        else:
            i = Ins(f'buffer_load_dwordx2 {vr(gRES + 2 * b, 2)}, v7, {WSR}, {sRES4} offen{ld}')
        rjobs.append((RE, CP1 - 20, [i]))
    for x in lorder:
        r, ks = x
        b = min(free_at, key=lambda k_: (free_at[k_], k_))
        cp = CP4 if r == 4 else (CP3 if ks >= 10 else (CP2 if ks >= 6 else CP1))
        e = max(cp + 1, free_at[b])
        hbuf[x] = b
        free_at[b] = usepos[x] + 9
        l = []
        if r < 4:
            if ks and (ks & 3) == 0:
                l.append(Ins(f's_add_u32 s{sHR + r}, s{sHR + r}, 4096'))
            so, off = f's{sHR + r}', 1024 * (ks & 3)
        else:
            if ks and (ks & 1) == 0:
                l.append(Ins(f's_add_u32 {sHB}, {sHB}, {56 * 256}'))
            so, off = sHB, 1024 * (ks & 1)
        l.append(Ins(f'buffer_load_dwordx4 {vr(gHF + 4 * b, 4)}, v1, {WSR}, {so} offen offset:{off}{ld}', f'{R}hq{r}_{ks}'))
        hjobs.append((e, usepos[x] - 2, l))
        if seq3.index(x) % 2 == 0:
            P(usepos[x] - 1, Ins(f'@vm {R}hq%d_%d' % max(seq3[seq3.index(x):seq3.index(x) + 2], key=lorder.index)))
    done3, wlast = {}, {}
    TL = O('tl', 1)
    fin = {}
    for r, k in pairs:
        if TL and (r, k) == (4, 6):
            continue
        kk = [k, k + 1] + ([6, 7] if TL and (r, k) == (4, 4) else [])
        for b in range(5):
            a = vr(acc3(min(r, 3), b), 4)
            for n, ks in enumerate(kk if b & 1 == 0 else kk[::-1]):
                if r < 4:
                    wlast[5 * ks + b] = len(mf)
                mf.append(Ins(f'v_mfma_f32_16x16x32_bf16 {a}, {wfrag(5 * ks + b)}, {vr(gHF + 4 * hbuf[(r, ks)], 4)}, {"0" if k == 0 and n == 0 and r < 3 else a}'))
            fin[b] = len(mf) - 1
        done3[r] = len(mf) - 1
    P(CP3 + 2, Ins(f'v_and_b32 {vPA}, 15, v0'))
    P(CP3 + 3, Ins(f'v_mul_u32_u24 {vPA}, {FSP}, {vPA}'))
    pjobs = []
    for nm, cp, lead in (('cp1', CP1, O('l1', 48)), ('cp2', CP2, O('l2', 45)), ('cp3', CP3, O('l3', 45)), ('cp4', CP4, O('l4', 45))):
        so = sF3Q if nm == 'cp4' else sF3P
        pjobs.append((cp - lead, cp - lead + 10, [poll_load(vPV, vPA, WSR, so)]))
        for i in poll_check(R + nm, vPV, vPA, WSR, so, 0 if OPT.get('nocp') else 1, 2):
            if OPT.get('nocp') != 2 or i.kind == 'label':
                P(cp, i)
        if nm in ('cp1', 'cp2'):
            P(cp + 1, Ins(f's_add_u32 {sF3P}, {sF3P}, {256 * FSP}'))
    POST = {2: first_rd(12) - 1, 4: N2 - O('po5', 47), 5: N2 + O('po6', 34), 6: N2 + O('po7', 86)}
    for bi, p in POST.items():
        if p in bars:
            pre[p].insert(0, Ins(f'@vm {R}hh{bi}'))
        else:
            if not (O('noack', 0) and bi >= 4):
                P(p, Ins(f'@vm {R}hh{bi}'))
            if bi == 6:
                P(p, Ins(f'@vm {R}wl'))
            P(p, Ins('s_barrier'))
        pjobs.append((p + 1, p + 10, ([Ins(f's_add_u32 {sF3}, {sF3}, {256 * FSP}')] if bi > 2 else []) +
                      [Ins(f'buffer_store_dword {vFV}, {vOOB}, {WSR}, {sF3} offen{st}')]))
    pjobs.sort(key=lambda x: x[0])
    assert POST[2] + 6 < CP1 and POST[4] + 6 < CP2 and POST[5] + 6 < CP3 and POST[6] + 6 < CP4
    BARW = POST[6]
    wjobs = [(0 if j < 66 - NWB else N2, usepos[(0, j // 5)] - 1, p3_wload(j, R)) for j in range(wpre, 60)]
    ljobs = [(min(b for b in bars if b >= max(lastuse[s] for s in grp(11))) + 2, BARW - 40, p3_wload(j, R)) for j in range(60, 70)]
    h2jobs = [(0, dpos(ks >> 2) - 1, hload(ks)) for ks in range(HPRE, 40)]
    tpos, t = [], 0
    for k, m in enumerate(mf):
        tpos.append(t)
        t += 16.6
        if not GR and k in [dpos(j) for j in range(10)]:
            t += 12 + 16 * DB
    for r in range(3):
        p = max(done3[r] + 1, p if r else 0)
        for b in range(5):
            p += O('pws', 3)
            while p in pre:
                p += 1
            P(p, Ins(f'ds_write_b128 v{2 + r}, {vr(acc3(r, b), 4)} offset:{1024 * (5 * r + b)}', f'{R}pw{r}'))
    PRD = p + 3
    vm, pre2, where = pace([h2jobs, gjobs + ljobs, wjobs, hjobs, pjobs, rjobs], tpos,
                           lambda p: O('spa', 46 if GR else 50) if p < E1 - 16 else (O('spb', 80) if p < E1 + O('xe', 180) else (O('spd', 66) if p < N2 else O('spc', 72))),
                           avoid={p for p, l in pre.items() if GR or p >= 144 or (sum(i.cost for i in l) > O('av', 0) and p not in [dpos(j) for j in range(10)])},
                           load={p: sum(i.cost for i in l) for p, l in pre.items()})
    vm[-1] = sum((hload(ks) for ks in range(HPRE)), [])
    for p, l in pre2.items():
        for i in l:
            P(p, i)
    lead = sorted((int(tpos[d] - tpos[where[id(l[-1])]]), l[-1].tag) for _, d, l in h2jobs + wjobs + hjobs)
    print(R, 'smallest leads', lead[:5], 'last vm at', max(where.values()) - N2, file=sys.stderr)
    p = BARW + 1
    for j in range(40):
        p = max(p + 2, wlast[j])
        while p in vm or sum(i.cost for i in pre.get(p, [])) > 4:
            p += 1
        assert p < usepos[(4, j // 5)] - 8
        P(p, Ins(f'ds_read_b128 {wfrag(j)}, v1 offset:{1024 * j}'))
    mk = ((8, 0), (9, E1), (10, N2 - 1), (11, N2 + 140), (12, len(mf) - 1))
    if OPT.get('mk23') == 2:
        mk = [(k + 1, N2 - 1 + 25 * k) for k in range(12)]
    if OPT.get('mk23') == 4:
        mk = []
    if OPT.get('mk23') == 3:
        mk = [(k + 1, 53 * k) for k in range(12)]
    for k, p in ([] if OPT.get('mk1') else mk):
        for i in ([] if k == 11 and OPT.get('cnt') else mark(k, True)):
            P(p, i)
    bg = []
    B = lambda pos, t, tag=None: bg.append((pos, Ins(t, tag and R + tag)))
    p = 160
    NM, VA, RS, C1, T2 = gT + 1, gT, gT + 2, gT + 3, gT + 4
    SA, SB = sq(9, 0), sq(9, 1)
    if GR:
        B(20, f'v_mov_b32 v{SA}, 0')
        B(0, f'v_mov_b32 v{SB}, 0')
        for i in range(4):
            B(0, f's_mov_b32 s{42 + 2 * i if i < 3 else 36}, {0x00100001 << i}')
            B(0, f's_mov_b32 s{43 + 2 * i if i < 3 else 37}, {(0x10000100 << i) & 0xffffffff}')
        for i in range(4):
            B(gp(9) + 12, f'v_cndmask_b32 v{SA}, v{SA}, v{ga(9, 0) + i}, {sr(42 + 2 * i if i < 3 else 36, 2)}')
            B(0, f'v_cndmask_b32 v{SB}, v{SB}, v{ga(9, 1) + i}, {sr(42 + 2 * i if i < 3 else 36, 2)}', 'diag')
    B(130, f'v_permlane16_swap_b32 v{SA}, v{SB}')
    B(130, f'v_add_f32 v{VA}, v{SA}, v{SB}')
    B(130, f'v_add_f32 v{T2}, v{SA}, v{SB}')
    B(up[(0, 9, 0)] + 8, f'v_mov_b32 v{T2 + 1}, v{accof(0)}')
    B(0, f'v_mov_b32 v{NM}, v{accof(0) + 4}')
    B(0, f'v_permlane32_swap_b32 v{VA}, v{T2}')
    B(0, f'v_permlane16_swap_b32 v{T2 + 1}, v{NM}')
    B(0, f'v_add_f32 v{VA}, v{VA}, v{T2}')
    B(0, f'v_mov_b32 v{T2 + 1}, v{NM}')
    B(-1, f'v_permlane32_swap_b32 v{T2 + 1}, v{NM}')
    cc = Code()
    ln_finish(cc, NM, VA, RS)
    for i in cc.ins:
        bg.append((0, i))
    for k in range(4):
        B(0, f'v_cvt_pk_bf16_f32 v{gMF + k}, v{NM}, v{NM}')
    B(0, f'v_permlane16_swap_b32 v{gMF}, v{gMF + 2}')
    B(0, f'v_permlane16_swap_b32 v{gMF + 1}, v{gMF + 3}', 'mf')
    B(0, f'v_mul_f32 v{C1}, 0xbfb8aa3b, v{RS}')
    B(0, f'v_mul_f32 v{T2}, 0xbfb8aa3b, v{RS}')
    B(0, f'v_mul_f32 v{NM}, v{VA}, v{RS}')
    B(0, f'v_mul_f32 v{VA}, v{VA}, v{RS}')
    B(0, f'v_permlane16_swap_b32 v{C1}, v{T2}')
    B(-1, f'v_permlane16_swap_b32 v{VA}, v{NM}')
    c1 = lambda r: C1 + (r >> 2)
    sd = lambda r: VA + (r >> 2)
    epi_last = {}
    for bi in range(7):
        a = accof(bi)
        p = last_of_blk[bi] + 3
        if bi == 6:
            for b in range(5):
                q = acc3(3, b)
                B(0, f'v_lshlrev_b32 v{q}, 16, v{gRES + 2 * b}')
                B(0, f'v_and_b32 v{q + 1}, 0xffff0000, v{gRES + 2 * b}')
                B(0, f'v_lshlrev_b32 v{q + 2}, 16, v{gRES + 2 * b + 1}')
                B(0, f'v_and_b32 v{q + 3}, 0xffff0000, v{gRES + 2 * b + 1}', 'res')
        B(p, f'v_mul_f32 v{a}, v{c1(0)}, v{a}')
        for r in range(8):
            if r < 7:
                B(p, f'v_mul_f32 v{a + r + 1}, v{c1(r + 1)}, v{a + r + 1}')
            else:
                B(p, f'v_fma_f32 v{a}, v{a}, v{sd(0)}, v{sd(0)}')
            B(p, f'v_exp_f32 v{a + r}, v{a + r}')
        for r in range(8):
            if r < 7:
                B(p, f'v_fma_f32 v{a + r + 1}, v{a + r + 1}, v{sd(r + 1)}, v{sd(r + 1)}')
            else:
                B(p, f'v_mul_f32 v{a + 8}, v{a + 8}, v{a}')
            B(p, f'v_rcp_f32 v{a + r}, v{a + r}')
        for r in range(1, 8):
            B(p, f'v_mul_f32 v{a + 8 + r}, v{a + 8 + r}, v{a + r}')
        for r in (0, 2, 1, 3):
            B(p, f'v_cvt_pk_bf16_f32 v{a + r}, v{a + 8 + 2 * r}, v{a + 9 + 2 * r}')
        B(p, f'v_permlane16_swap_b32 v{a}, v{a + 2}')
        B(p, f'v_permlane16_swap_b32 v{a + 1}, v{a + 3}')
        B(p, f'buffer_store_dwordx4 {vr(a, 4)}, v2, {WSR}, {sHHS} offen offset:{2048 * (bi & 1)}{st}', f'hh{bi}')
        epi_last[bi] = bg[-1][1]
        if bi & 1:
            B(p, f's_add_u32 {sHHS}, {sHHS}, 4096')
    for r in range(4):
        B(0, f's_add_u32 s39, {sWAVE}, {r + 1}')
        B(0, f's_and_b32 s39, s39, 3')
        B(0, f's_mul_i32 s39, s39, {15 * 1024}')
        B(0, f's_add_u32 s39, s39, 65536')
        B(0, f'v_add_u32 v{2 + r}, s39, v1')
    OB = O('ob', 1)
    B(0, f'v_lshrrev_b32 v{gT}, 4, v0')
    B(0, f'v_and_b32 v6, 15, v0')
    B(0, f'v_mul_u32_u24 v6, {176 if OB else 1280}, v6')
    if OB:
        B(0, f's_add_u32 s39, {sP2L}, 131072')
        B(0, f'v_add_u32 v6, s39, v6')
        B(0, f'v_mul_u32_u24 v{gT + 1}, 205, v0')
        B(0, f'v_lshrrev_b32 v{gT + 1}, 11, v{gT + 1}')
        B(0, f'v_lshl_add_u32 v{gT + 2}, v{gT + 1}, 4, v1')
        B(0, f'v_add_u32 v{gT + 2}, s39, v{gT + 2}')
        B(0, f'v_mul_u32_u24 v{gT + 1}, 1120, v{gT + 1}')
        B(0, f'v_add_u32 v{gT + 1}, v{gT + 1}, v1')
        B(0, f's_add_u32 s34, {sOUT}, {6 * 1280}')
        B(0, f's_add_u32 s35, {sOUT}, {12 * 1280}')
    B(0, f'v_lshl_add_u32 v7, v{gT}, 3, v6')
    B(0, f'v_lshl_add_u32 v6, v{gT}, 4, v6', 'adr')
    B(PRD, f'@lg {R}pw2')
    B(0, 's_barrier')
    for b in range(5):
        for r in range(3):
            B(0, f'ds_read_b128 {vr(acc3(r, b), 4)}, v5 offset:{1024 * (5 * r + b)}', 'pr')
    OR = gACC
    OS = ['', ' sc1', ' nt', ' sc1 nt', ' sc0 sc1'][O('os', 0)]

    def psum(b):
        if b == O('npk', 4):
            B(len(mf), f'@lg {R}pr')
        for r in (1, 2):
            for k in range(4):
                if b < O('npk', 4):
                    B(PRD + 10, f'v_add_f32 v{acc3(0, b) + k}, v{acc3(0, b) + k}, v{acc3(r, b) + k}', 'sum')
                elif k & 1 == 0:
                    B(len(mf), f'v_pk_add_f32 {vr(acc3(0, b) + k, 2)}, {vr(acc3(0, b) + k, 2)}, {vr(acc3(r, b) + k, 2)}')

    def final(b):
        p = fin[b] + 4
        if b < O('nfk', 2):
            for k in range(4):
                B(p, f'v_add_f32 v{acc3(0, b) + k}, v{acc3(0, b) + k}, v{acc3(3, b) + k}')
        else:
            p = len(mf)
            for k in (0, 2):
                B(p, f'v_pk_add_f32 {vr(acc3(0, b) + k, 2)}, {vr(acc3(0, b) + k, 2)}, {vr(acc3(3, b) + k, 2)}')
        for k in (0, 2):
            B(p, f'v_cvt_pk_bf16_f32 v{OR + 2 * b + k // 2}, v{acc3(0, b) + k}, v{acc3(0, b) + k + 1}')
        if b in (1, 3):
            B(p, f'ds_write_b128 v6, {vr(OR + 2 * b - 2, 4)} offset:{32 * (b - 1)}' if OB else
              f'buffer_store_dwordx4 {vr(OR + 2 * b - 2, 4)}, v6, {OUTS}, {sOUT} offen offset:{32 * (b - 1)}{OS}')
        if b == 4:
            B(p, f'ds_write_b64 v7, {vr(OR + 8, 2)} offset:128' if OB else f'buffer_store_dwordx2 {vr(OR + 8, 2)}, v7, {OUTS}, {sOUT} offen offset:128{OS}')
    for x in ['p0 p1 f0 f1 p2 f2 p3 p4 f3 f4', 'p0 p1 p2 f0 f1 p3 f2 p4 f3 f4', 'p0 p1 p2 p3 f0 f1 f2 p4 f3 f4', 'p0 p1 p2 p3 p4 f0 f1 f2 f3 f4'][O('fo', 1)].split():
        (psum if x[0] == 'p' else final)(int(x[1]))
    if OB:
        p = len(mf)
        B(p, 's_mov_b32 exec_hi, 0x0fffffff')
        for i in range(3):
            B(p, f'ds_read_b128 {vr(acc3(1, i), 4)}, v{gT + 2} offset:{6 * 176 * i}')
        for i, so in enumerate((sOUT, 's34', 's35')):
            if i == 2:
                B(p, 's_mov_b32 exec_hi, 0xff')
            B(p, f'buffer_store_dwordx4 {vr(acc3(1, i), 4)}, v{gT + 1}, {OUTS}, {so} offen{OS}')
        B(p, 's_mov_b64 exec, -1')
    xtra = {k: O('xb', 8) for k in range(N2, N2 + 40)}
    xtra.update({k: 4 for k in range(E1 - 20, N2) if k % O('xa', 32) == 0 or (k < E1 + O('xe', 180) and k % O('xa1', 2) == 0)})
    out = weave(mf, pre, bg, vm, xtra)
    pos = {id(i): k for k, i in enumerate(out)}
    tagged = lambda t: [i for _, i in bg if i.tag == R + t][-1]
    at = lambda t: max(j for j in range(len(mf)) if pos[id(mf[j])] < pos[id(tagged(t))])
    assert not GR or at('diag') < first_of_blk[2] - 1
    assert at('mf') < up[(0, 10, 0)] - 1, ('mean fragment not ready', at('mf'))
    for bi in range(nacc, 7):
        assert at(f'hh{bi - nacc}') < first_of_blk[bi] - 1, ('acc reuse', bi, at(f'hh{bi - nacc}'))
    assert at('hh5') < N2 + 12 and at('res') < N2 + 20, (at('hh5'), at('res'))
    assert at('adr') < done3[0] and BARW < done3[0]
    print(R, ' '.join(f'{t}@{at(t) - N2}' for t in ('hh0', 'hh1', 'hh2', 'hh3', 'hh4', 'hh5', 'res', 'hh6', 'sum')),
          'cp', CP1 - N2, CP2 - N2, CP3 - N2, CP4 - N2, 'prd', PRD - N2, 'after last mfma', len(out) - pos[id(mf[-1])], file=sys.stderr)
    c.extend(out)
```

```python
import sys
from asmlib import *
from phases import *
import phases

NAME = 'sequential_preLN__ssm_conv_h3__glu_gated_glu__prompt'
KN = NAME + '_kernel'
HEADER = open('cdna_kernels/%s.s.ref' % NAME).read().split('; Override launch')[0]


DOC = """;
;  slots 28-31 (side):  clear the first hand-off words, w_gate / w_up into fragment order + column sums.
; Hand-offs: one word per 128-byte line of d_ws, cleared in this launch before use (gated by words in d_debug), set once after
; the stores it covers have completed. The h rows of the last 512 tokens are filled with NaN first and read without waiting;
;
"""


def stamp_begin(c, ts):
    if ts:
        for k in range(1, 13):
            c(f's_mov_b32 s{60 + 2 * k}, 0')
        c('s_memtime s[86:87]')


def stamp_end(c, ts, k):
    if ts:
        c(f'''
        s_waitcnt vmcnt(0) lgkmcnt(0)
        s_memrealtime s[90:91]
        s_memtime s[88:89]
        s_lshl_b32 s34, s2, 2
        s_add_u32 s34, s34, {sWAVE}
        s_lshl_b32 s34, s34, 6
        s_add_u32 s34, s34, {TS_OFF + k * 65536}
        s_waitcnt lgkmcnt(0)
        ''')
        for j in range(16):
            c(f'v_mov_b32 v{j}, s{60 + 2 * j}')
        c('v_mov_b32 v16, 0')
        c('s_mov_b64 exec, 1')
        for j in range(4):
            c(f'buffer_store_dwordx4 v[{4 * j}:{4 * j + 3}], v16, {WSR}, s34 offen offset:{16 * j}')


def desc(name, vgpr, accum):
    return f'''.amdhsa_kernel {name}
  .amdhsa_next_free_vgpr {vgpr}
  .amdhsa_next_free_sgpr 102
  .amdhsa_accum_offset {accum}
  .amdhsa_group_segment_fixed_size 0
  .amdhsa_kernarg_size 104
  .amdhsa_user_sgpr_count 2
  .amdhsa_user_sgpr_kernarg_segment_ptr 1
  .amdhsa_system_sgpr_workgroup_id_x 1
  .amdhsa_float_denorm_mode_32 3
.end_amdhsa_kernel'''


def go_addr(c, va):
    c(f'v_and_b32 {va}, 7, v0')
    c(f'v_lshlrev_b32 {va}, 5, {va}')


def wg_flag(c, soff, wait='s_waitcnt vmcnt(0)'):
    c(wait)
    c('s_barrier')
    c(f's_cmp_eq_u32 {sWAVE}, 0')
    c(f's_cselect_b32 s42, {soff}, 0x7f000000')
    c(f'buffer_store_dword v7, v6, {WSR}, s42 offen{SC}')


def probe(c, a, b, mult, rng=(0, 16), raw=False):
    c('.p2align 8')
    c('.type probe_kernel,@function')
    c('probe_kernel:')
    c('@reset')
    c('s_cmp_ge_u32 s2, 1')
    c('s_cbranch_scc1 L_probe_exit')
    srd(c, 8, WS, WS_USED)
    c('v_lshlrev_b32 v1, 6, v0')
    c('s_waitcnt lgkmcnt(0)')
    for k, (kn, wd, op) in enumerate([(0, 0, 'min'), a, b]):
        c(f's_mov_b32 s20, {TS_OFF + kn * 65536 + wd * 4}')
        for i in range(16):
            c(f'buffer_load_dword v{8 + i}, v1, {WSR}, s20 offen')
            c('s_add_u32 s20, s20, 4096')
        if k == 2 and OPT.get('bit') is not None:
            op = 'add'
            for i in range(16):
                c(f'v_bfe_u32 v{8 + i}, v{8 + i}, {OPT["bit"]}, 1')
        lo, hi = rng if k == 2 else (0, 16)
        if lo:
            c(f'v_mov_b32 v8, v{8 + lo}')
        for i in range(lo + 1, hi):
            c(f'v_{op}_u32 v8, v8, v{8 + i}')
        lanes = [l for l in range(64) if k < 2 or OPT.get('px') is None or (l >> 2) & 7 == OPT['px']]
        c(f'v_readlane_b32 s{30 + k}, v8, {lanes[0]}')
        for l in lanes[1:]:
            c(f'v_readlane_b32 s21, v8, {l}')
            c(f's_{op}_u32 s{30 + k}, s{30 + k}, s21')
    c(f'''
    {'s_mul_i32 s32, s32, 10' if raw else 's_sub_u32 s32, s32, s31'}
    s_min_u32 s32, s32, 20000
    s_mul_i32 s32, s32, {mult}
    s_add_u32 s32, s32, 10000
    L_probe_spin:
    s_memrealtime s[22:23]
    s_waitcnt lgkmcnt(0)
    s_sub_u32 s22, s22, s30
    s_cmp_lt_u32 s22, s32
    s_cbranch_scc1 L_probe_spin
    L_probe_exit:
    s_endpgm
    ''')


def untag(ll):
    for l in ll:
        for i in l:
            i.tag = None
    return ll


def build(ts=False, opts={}):
    c = Code()
    OPT.clear()
    OPT.update(opts)
    OPT['ts'] = ts
    SLOW.clear()
    CHECKS.clear()
    SHORT[0] = OPT.get('short', 1)
    c('.p2align 8')
    c(f'.type {KN},@function')
    c(f'{KN}:')
    if ts:
        c('s_memrealtime s[60:61]')
    c('s_cmp_lt_u32 s2, 160')
    c('s_cbranch_scc1 L_conv')
    c('s_cmp_ge_u32 s2, 256')
    c('s_cbranch_scc1 L_exit')
    if OPT.get('codepf', 1):
        c(f'''
        s_cmp_lt_u32 s2, 240
        s_cbranch_scc1 L_side
        s_getpc_b64 s[34:35]
        L_pc:
        s_and_b32 s36, s2, 8
        s_lshl_b32 s36, s36, 12
        v_lshl_add_u32 v1, v0, 7, s36
        v_min_u32 v2, L_code_end-L_pc-4, v1
        v_mov_b32 v3, s35
        v_add_co_u32 v2, vcc, s34, v2
        v_addc_co_u32 v3, vcc, 0, v3, vcc
        global_load_dword v250, v[2:3], off
        ''')
    c('s_branch L_side')
    c('L_conv:')
    c('@reset')
    for base, slot in ((12, A_K), (16, A_V), (20, A_SH)):
        c(f's_load_dwordx2 s[{base}:{base + 1}], s[0:1], {slot}')
    c(f'''
    s_mov_b32 s14, {NBYTES_SD}
    s_mov_b32 s15, 0x20000
    s_mov_b64 s[18:19], s[14:15]
    s_movk_i32 s22, {D * 8}
    s_mov_b32 s23, s15
    ''')
    ids(c)
    conv_ids(c)
    p0_kv_load(c, 's[12:15]', 's[16:19]', 's[20:23]')
    srd(c, 24, A_SSMK, NBYTES_SD)
    srd(c, 28, A_SSMD, D * 2)
    srd(c, 8, WS, WS_USED)
    srd(c, 48, OUT, NBYTES_SD)
    srd(c, 52, DBG, 256)
    c('s_mov_b32 s59, 0xffff0000')
    stamp_begin(c, ts)
    if OPT.get('mks'):
        c('s_mov_b32 s80, s96')
        c('s_mov_b32 s82, s98')
    c.extend(mark(1))
    p23_ids(c)
    late = p1_k_load(c, 's[24:27]', 's[28:31]')
    srd(c, 44, B_WD, D * F * 2)
    wd_setup(c)
    WDL = OPT.get('wdl', 0)
    if WDL:
        late += wd_loads('s[44:47]')
    else:
        c.extend(sum(wd_loads('s[44:47]'), []))
    for k in range(OPT.get('le', 0)):
        c.extend(late.pop(0))
    p0_kv(c, late)
    go_addr(c, 'v122')
    c.add(poll_load('v123', 'v122', DBGS, '0'))
    c.extend(sum(late, []))
    WDS = OPT.get('wds', 0)
    if WDS < 0:
        c.extend(wd_reads() + wd_stores())
    c.extend(mark(2))
    flag_regs(c, vOOB, vFV)
    c(f'''
    s_lshl_b32 s37, {sSG}, 2
    s_add_u32 s35, s37, {sWAVE}
    s_lshl_b32 s35, s35, 4
    s_add_u32 s35, s35, {sIDX}
    s_mul_i32 s35, s35, {FSP}
    s_add_u32 s35, s35, {F1_OFF}
    s_lshr_b32 s36, {sIDX}, 2
    s_add_u32 s36, s36, s37
    s_mul_i32 s36, s36, {16 * FSP}
    s_add_u32 s36, s36, {F1_OFF}
    ''')
    def setup():
        c(f'''
        v_and_b32 v8, 15, v0
        v_mul_u32_u24 v8, {FSP}, v8
        s_mul_i32 s46, s34, {FSP}
        s_add_u32 s46, s46, {F2_OFF}
        s_add_u32 s41, {sWAVE}, 2
        s_mul_i32 s41, s41, {160 * FSP}
        s_add_u32 s41, s41, s46
        s_sub_u32 s40, s46, {F2_OFF - FD_OFF}
        s_cmp_ge_u32 {sWAVE}, 1
        s_cselect_b32 s46, 0x70000000, s46
        s_cselect_b32 s40, 0x70000000, s40
        s_cselect_b32 s36, 0x70000000, s36
        ''')
        fa_addr(c, 'v138', 'v139')
        fw_addr(c, 'v140')
        f2_addr(c, 'v142')
    work = [lambda: c.extend(wd_reads() if WDS >= 0 else []), lambda: p23_scalars(c), lambda: p1_k(c), lambda: p1_k_frag(c), setup]
    if OPT.get('kl2'):
        work[3:] = work[:2:-1]
    NBF = OPT.get('nbf', 0)
    for f in work[:NBF]:
        f()
    c.extend(poll_check('go_c', 'v123', 'v122', DBGS, '0', 1))
    c('@vm ust')
    c(f'buffer_store_dword {vFV}, {vOOB}, {WSR}, s35 offen{SC}')
    c.extend(mark(3))
    if NBF == 0:
        work[0]()
    if WDS == 0:
        c.extend(wd_stores())
    for f in work[max(NBF, 1):]:
        f()
    if OPT.get('lw', 1):
        c('s_waitcnt lgkmcnt(0)')
    if OPT.get('vw', 0):
        c('s_waitcnt vmcnt(0)')
    c.add(poll_load('v9', 'v8', WSR, 's36'))
    c(f's_cmp_ge_u32 {sWAVE}, 1')
    c('s_cbranch_scc1 L_s1_ok')
    c.extend(poll_check('s1', 'v9', 'v8', WSR, 's36', 1, OPT.get('s1sleep', 0)))
    c('s_waitcnt vmcnt(0)')
    c('s_barrier')
    c.extend(mark(4))
    p1_load_u(c)
    FAP = OPT.get('fap', -1)
    if FAP < 0:
        c.add(poll_load('v139', 'v138', WSR, 's47'))
    fdpost = [Ins(f'buffer_store_dword {vFV}, {vOOB}, {WSR}, s40 offen{SC}')]
    c.extend(wd_stores() if WDS > 0 else fdpost)
    fd_addr(c, 'v128', 'v129')
    FA, FD, FP, WP = OPT.get('fa', 28), OPT.get('fd', 160), OPT.get('fp', 280), OPT.get('wp', 24)
    inj = [(0, mark(5)), (FA, poll_check('fa', 'v139', 'v138', WSR, 's47', 1, 2)), (FD, poll_check('fd_c', 'v129', 'v128', WSR, 's58', 1, 2))]
    if WDS > 0:
        inj.append((WDS, [Ins('@vm wds'), Ins('s_barrier')] + fdpost))
    if OPT.get('mk1') and not OPT.get('mks'):
        inj += [(p, mark(k)) for k, p in ((10, 96), (11, 192), (12, 287))]
    if OPT.get('mk23') == 4:
        inj += [(26 * k + 1, mark(k + 1, True)) for k in range(12)]
    polls = [(FAP, FAP + 8, [poll_load('v139', 'v138', WSR, 's47')])] if FAP >= 0 else []
    polls += [(FD - 40, FD - 30, [poll_load('v129', 'v128', WSR, 's58')])]
    if FP < 288:
        polls.append((FP, 287, [poll_load('v141', 'v140', WSR, 's57')]))
    sj = [(FA + 2, 200, l) for l in p1_load_x()]
    sj += [(FD + 2, 287, l) for l in untag([p3_wload(j) for j in range(WP)])]
    p1_main(c, inj, [polls, sj], [poll_load('v141', 'v140', WSR, 's57')] if FP >= 288 else [])
    fl3 = f'buffer_store_dword {vFV}, {vOOB}, {WSR}, s41 offen{SC}'
    c.extend(poll_check('fw_c', 'v141', 'v140', WSR, 's57', 1, 4, first=fl3))
    G1, G2, GI = OPT.get('g1', 2), OPT.get('g2', 5), OPT.get('gi', 6)
    if OPT.get('mkg'):
        c.extend(mark(1))
    GO2 = OPT.get('go2', 1)
    for g in range(G1):
        c.extend(sum(untag(p2_dma(g)), []))
    c.extend(p23_vectors())
    if OPT.get('mkg'):
        c.extend(mark(2))
    if not GO2:
        c('@vm hst3')
        c(fl3)
    if OPT.get('mkg'):
        c.extend(mark(3))
    c('s_branch L_ring')
    c('L_side:')
    c('@reset')
    srd(c, 12, A_Q, NBYTES_SD)
    srd(c, 16, B_WG, D * F * 2)
    srd(c, 20, B_WU, D * F * 2)
    srd(c, 8, WS, WS_USED)
    srd(c, 48, OUT, NBYTES_SD)
    srd(c, 52, DBG, 256)
    ids(c)
    c('s_mov_b32 s59, 0xffff0000')
    stamp_begin(c, ts)
    flag_regs(c, 'v6', 'v7')
    go_addr(c, 'v122')
    c(f's_cmp_ge_u32 {sSLOT}, 28')
    c('s_cbranch_scc1 L_side2')
    N1 = OPT.get('n1', 3)
    HS = OPT.get('hs', 1)
    N2 = 5 if HS else (40 - 8 * N1) // 4
    c(f'''
    s_sub_u32 s56, s2, 160
    s_sub_u32 s43, {sSLOT}, 20
    s_mov_b32 s7, {sXCD}
    s_mul_i32 s6, s7, {N1}
    ''')
    if HS:
        c('''
        s_and_b32 s58, s7, 1
        s_lshr_b32 s57, s7, 1
        s_sub_u32 s6, s6, s57
        ''')

    def mid1():
        side_w1(c, 's43', 's6', 's7', N1, 0, 1)
        c.extend(poll_check('go_a', 'v123', 'v122', DBGS, '0', 1, 4))
        wg_flag(c, 's56', '')
        c.extend(mark(1))
    W1AT = OPT.get('w1at', 2)
    p0_x(c, 's[12:15]', 's56', lambda k: side_w1_load(c, 's[16:19]', 's[20:23]', 's43', 's6', N1, 0, -1, None) if k == W1AT else None)
    c.add(poll_load('v123', 'v122', DBGS, '0'))
    c(f's_mul_i32 s56, s56, {FSP}')
    c(f's_add_u32 s56, s56, {FX_OFF}')
    if W1AT == 2:
        side_w1_load(c, 's[16:19]', 's[20:23]', 's43', 's6', N1, 0, OPT.get('w1pre', 1), mid1)
    else:
        mid1()
    side_w1(c, 's43', 's6', 's7', N1, 0, 2)
    c('s_branch L_w1_done')
    c('L_side2:')
    c('@reset')
    c('s_waitcnt lgkmcnt(0)')
    c(f'''
    s_sub_u32 s56, s2, 224
    s_lshl_b32 s45, s56, 2
    s_add_u32 s45, s45, {sWAVE}
    s_lshl_b32 s45, s45, 12
    s_add_u32 s45, s45, {FL_OFF}
    s_lshl_b32 s58, s56, 5
    s_cmp_eq_u32 {sWAVE}, 0
    s_cselect_b32 s58, s58, 0x70000000
    s_cmp_lt_u32 s56, 8
    s_cselect_b32 s45, s45, 0x70000000
    v_lshlrev_b32 v14, 4, v0
    v_mov_b32 v200, 0
    v_mov_b32 v201, 0
    v_mov_b32 v202, 0
    v_mov_b32 v203, 0
    ''')
    for k in range(4):
        c(f'buffer_store_dwordx4 v[200:203], v14, {WSR}, s45 offen offset:{1024 * k}{SC}', 'za')
    c(f'''
    s_and_b32 s43, {sXCD}, 1
    s_lshl_b32 s43, s43, 2
    s_add_u32 s43, s43, {sSLOT}
    s_sub_u32 s43, s43, 28
    s_lshr_b32 s7, {sXCD}, 1
    s_mul_i32 s6, s7, {N2}
    s_add_u32 s6, s6, {40 - 4 * N2}
    s_lshl_b32 s57, s7, 1
    s_add_u32 s57, s57, 8
    s_add_u32 s7, s7, 8
    ''')

    def mid2():
        side_w1(c, 's43', 's6', 's57', N2, 1, 1)
        c('@vm za')
        c('s_barrier')
        c(f'buffer_store_dword v7, v6, {DBGS}, s58 offen{SC}')
        c.extend(mark(1))
    side_w1_load(c, 's[16:19]', 's[20:23]', 's43', 's6', N2, 1, OPT.get('w2pre', 2), mid2)
    side_w1(c, 's43', 's6', 's57', N2, 1, 2)
    c('L_w1_done:')
    c('@reset')
    c.add(poll_load('v123', 'v122', DBGS, '0'))
    c(f'''
    s_lshl_b32 s56, s43, 4
    s_add_u32 s56, s56, s7
    s_mul_i32 s56, s56, {FSP}
    s_add_u32 s56, s56, {FW1_OFF}
    ''')
    p23_ids(c)
    p23_scalars(c)
    fw_addr(c, 'v8')
    f2_addr(c, 'v142')
    c(f'''
    v_lshlrev_b32 v1, 4, v0
    v_mul_u32_u24 v13, {FSP}, v0
    s_mov_b32 s47, {FX_OFF}
    ''')
    flag_regs(c, vOOB, vFV)
    c('s_mov_b32 s41, 0x70000000')
    c.extend(poll_check('go_b', 'v123', 'v122', DBGS, '0', 1, 4))
    wg_flag(c, 's56')
    c.extend(mark(2))
    c.extend(p23_vectors())
    fd_addr(c, 'v10', None)
    PZ = OPT.get('pz', 0)
    if PZ:
        c(f's_cmp_lt_u32 {sSLOT}, 28')
        c('s_cbranch_scc1 L_noclr')
        clear_b(c)
        if PZ == 2:
            c('s_waitcnt vmcnt(0)')
        c('L_noclr:')
    CAN = OPT.get('can', 0 if PZ else 1)
    if CAN:
        c(f'''
        s_cmp_lt_u32 {sSLOT}, 28
        s_cbranch_scc1 L_nocan
        s_cmp_lg_u32 {sWAVE}, 0
        s_cbranch_scc1 L_fx2_ok
        s_add_u32 s46, {sXCD}, {OPT.get('rot', 7)}
        s_and_b32 s46, s46, 7
        s_mul_i32 s46, s46, {16 * FSP}
        s_add_u32 s46, s46, {FD_OFF}
        v_and_b32 v15, {CAN - 1}, v0
        v_mul_u32_u24 v15, {FSP}, v15
        ''')
        c.add(poll_load('v11', 'v15', WSR, 's46'))
        c.extend(poll_check('can', 'v11', 'v15', WSR, 's46', 1, 8))
        c.add(poll_load('v14', 'v13', WSR, 's47'))
        c.extend(poll_check('fx2', 'v14', 'v13', WSR, 's47', 1, 8))
        c('s_barrier')
        c('L_nocan:')
    c(f's_cmp_eq_u32 {sWAVE}, 0')
    c('s_cselect_b32 s47, s47, 0x70000000')
    c.add(poll_load('v11', 'v10', WSR, 's58'))
    if not PZ:
        c.add(poll_load('v14', 'v13', WSR, 's47'))
    c.extend(poll_check('fd_s', 'v11', 'v10', WSR, 's58', 1, 8))
    for j in range(WP):
        c.extend(untag([p3_wload(j)])[0])
    c(f's_cmp_lg_u32 {sWAVE}, 0')
    c('s_cbranch_scc1 L_fw_s_ok')
    C2 = OPT.get('can2', 1)
    if not C2:
        c.add(poll_load('v9', 'v8', WSR, 's57'))
    if PZ:
        c(f'v_and_b32 v13, {32 * FSP - 1}, v13')
        c(f's_mov_b32 s47, {FZ_OFF}')
        c.add(poll_load('v14', 'v13', WSR, 's47'))
    c.extend(poll_check('fx_s', 'v14', 'v13', WSR, 's47', 1, 8))
    if C2:
        if C2 == 1:
            c(f's_cmp_lt_u32 {sSLOT}, 28')
            c('s_cbranch_scc1 L_can2_ok')
        c(f'''
        s_add_u32 s46, {sXCD}, {OPT.get('rot', 7)}
        s_and_b32 s46, s46, 7
        s_mul_i32 s46, s46, {16 * FSP}
        s_add_u32 s46, s46, {F2_OFF}
        v_mov_b32 v15, 0
        ''')
        c.add(poll_load('v11', 'v15', WSR, 's46'))
        c.extend(poll_check('can2', 'v11', 'v15', WSR, 's46', 1, 4))
        c.add(poll_load('v9', 'v8', WSR, 's57'))
    c.extend(poll_check('fw_s', 'v9', 'v8', WSR, 's57', 1, 8))
    c('s_barrier')
    c.extend(mark(3))
    for g in range(GI):
        if g == G1:
            c('L_ring:')
            c('@reset')
        if g == 5:
            c('s_barrier')
        if g == G2:
            c.add(poll_load('v11', 'v142', WSR, 's14'))
        for l in p2_dma(g):
            l[-1].tag = f'sg{g}'
            c.extend(l)
    if G2 == GI:
        c.add(poll_load('v11', 'v142', WSR, 's14'))
    if OPT.get('mkg'):
        c.extend(mark(4))
    c.extend(poll_check('s2', 'v11', 'v142', WSR, 's14', 1, OPT.get('s2sleep', 2), first=fl3 if GO2 else ''))
    if GO2:
        c(fl3)
    c('s_barrier')
    c.extend([] if OPT.get('mk1') else mark(7))
    p23_main(c, 's', G2, WP, GI)
    c('L_end:')
    c('@reset')
    stamp_end(c, ts, 0)
    if OPT.get('spin100'):
        c('''
        L_sp100:
        s_memrealtime s[22:23]
        s_waitcnt lgkmcnt(0)
        s_sub_u32 s22, s22, s60
        s_cmp_lt_u32 s22, 10000
        s_cbranch_scc1 L_sp100
        ''')
    c('L_exit:')
    c('s_endpgm')
    c.extend(SLOW)
    c('L_code_end:')
    prb = OPT.get('prb')
    if prb is not None:
        probe(c, (0, 0, 'min'), (0, prb % 16, 'min' if OPT.get('pmin') else 'max'), OPT.get('mult', 10), [(0, 16), (0, 10), (10, 14), (14, 16)][prb // 16], OPT.get('raw'))
    if OPT.get('jit'):
        import random
        rnd = random.Random(OPT['jit'])
        new, k = [], 0
        for n, i in enumerate(c.ins):
            prev_bar = n and c.ins[n - 1].mn == 's_barrier'
            site = i.mn == 's_barrier' or prev_bar or (i.kind == 'vmem' and rnd.random() < (0.5 if 'store' in i.mn else 0.08)) or (i.kind == 'ds' and rnd.random() < 0.03)
            if site and n > 60 and i.kind != 'label':
                k += 1
                new += [Ins(f's_bitcmp0_b32 s70, {rnd.randrange(32)}'), Ins(f's_cbranch_scc1 L_jit{k}'), Ins(f's_sleep {rnd.choice((4, 12, 30, 60))}'), Ins(f'L_jit{k}:')]
            new.append(i)
        c.ins = new
    st = {}
    body = text_of(finalize(c.ins, st))
    print(st, file=sys.stderr)
    out = HEADER + DOC
    if OPT.get('cnt') == 2:
        out += '; checks ' + ' '.join(CHECKS) + '\n'
    if prb is not None:
        out += f'; @launch kernel={KN} grid=(256,1,1) block=(256,1,1) lds={LDS_TOTAL}\n'
        out += '; @launch kernel=probe_kernel grid=(1,1,1) block=(64,1,1) lds=0\n'
    else:
        out += f'; @launch grid=(256,1,1) block=(256,1,1) lds={LDS_TOTAL}\n'
    out += f'.amdgcn_target "amdgcn-amd-amdhsa--gfx950"\n.text\n.globl {KN}\n'
    out += body + '\n.section .rodata,"a"\n'
    out += '.p2align 6\n' + desc(KN, 512, 256) + '\n'
    if prb is not None:
        out += '.p2align 6\n' + desc('probe_kernel', 32, 32) + '\n'
    return out


if __name__ == '__main__':
    import argparse
    ap = argparse.ArgumentParser()
    ap.add_argument('-o', default='cdna_kernels/%s.s' % NAME)
    ap.add_argument('--ts', action='store_true')
    ap.add_argument('--opt', nargs='*', default=[])
    a = ap.parse_args()
    opts = {}
    for kv in a.opt:
        k, _, v = kv.partition('=')
        opts[k] = int(v) if v else 1
    open(a.o, 'w').write(build(a.ts, opts))
```
